```python
import torch

def _softmax(x, axis=-1):
    return torch.softmax(x, dim=axis)
def _gelu(x):
    return torch.nn.functional.gelu(x, approximate="tanh")
def _silu(x):
    return torch.nn.functional.silu(x)
def _sigmoid(x):
    return torch.sigmoid(x)
def _layernorm(x, axis=-1, eps=1e-5):
    m = x.mean(dim=axis, keepdim=True)
    v = x.var(dim=axis, keepdim=True, unbiased=False)
    return (x - m) / torch.sqrt(v + eps)
def _scatter_add(tgt, idx, src, axis=0):
    return tgt.clone().index_add_(axis, idx, src)
def _segment_sum(src, seg, n):
    out = torch.zeros((n,) + src.shape[1:], dtype=src.dtype)
    return out.index_add_(0, seg, src)
def _pad(x, pw):
    flat = tuple(v for pair in reversed(pw) for v in pair)
    return torch.nn.functional.pad(x, flat)

kernel_name = 'sequential_preLN__mha_block__mixer_token_mlp__prompt'

def setup_inputs():

    _w = (lambda a: (lambda t: t.to(torch.bfloat16) if t.is_floating_point() else t)(torch.as_tensor(a)))
    def _A_setup():
        B, S, D, H = 1, 2048, 512, 32
        return {
            "x": _w((lambda *s: torch.randn(*s, dtype=torch.bfloat16) * 0.05)(B, S, D)),
            "wqkv": _w((lambda *s: torch.randn(*s, dtype=torch.bfloat16) * 0.05)(D, 3 * D)),
            "wo": _w((lambda *s: torch.randn(*s, dtype=torch.bfloat16) * 0.05)(D, D)),
        }
    _A_in = _A_setup()

    def _B_setup():
        B, S, D, F = 1, 2048, 512, 1792
        return {
            "x": _w((lambda *s: torch.randn(*s, dtype=torch.bfloat16) * 0.05)(B, S, D)),
            "w1": _w((lambda *s: torch.randn(*s, dtype=torch.bfloat16) * 0.8)(S, F) * (S ** -0.5)),
            "b1": _w((lambda *s: torch.randn(*s, dtype=torch.bfloat16) * 12.8)(F) * 0.02),
            "w2": _w((lambda *s: torch.randn(*s, dtype=torch.bfloat16) * 0.2)(F, S) * (F ** -0.5)),
            "b2": _w((lambda *s: torch.randn(*s, dtype=torch.bfloat16) * 3.2)(S) * 0.02),
        }
    _B_in = _B_setup()

    return {
        "A_x": _A_in["x"],
        "A_wqkv": _A_in["wqkv"],
        "A_wo": _A_in["wo"],
        "B_x": _B_in["x"],
        "B_w1": _B_in["w1"],
        "B_b1": _B_in["b1"],
        "B_w2": _B_in["w2"],
        "B_b2": _B_in["b2"],
    }

def reference(A_x, A_wqkv, A_wo, B_x, B_w1, B_b1, B_w2, B_b2):
    def _A_ref(x, wqkv, wo):
        B, S, D = x.shape
        H = 32
        Dh = D // H
        qkv = (lambda x, *d: x.permute(*d))((x @ wqkv).reshape(B, S, 3, H, Dh), 2, 0, 3, 1, 4)
        q, k, v = qkv[0], qkv[1], qkv[2]
        scores = torch.einsum("bhqd,bhkd->bhqk", q, k) * (Dh ** -0.5)
        p = _softmax(scores, axis=-1)
        o = torch.einsum("bhqk,bhkd->bhqd", p, v)
        return (lambda x, *d: x.permute(*d))(o, 0, 2, 1, 3).reshape(B, S, D) @ wo

    def _B_ref(x, w1, b1, w2, b2):
        B, S, D = x.shape
        h = _layernorm(x, axis=-1)
        u = torch.einsum("bsd,sf->bdf", h, w1) + b1
        u = _gelu(u)
        y = torch.einsum("bdf,fs->bds", u, w2) + b2
        return (lambda x, *d: x.permute(*d))(y, 0, 2, 1)

    x = A_x
    h = x + _A_ref(_layernorm(x, axis=-1), A_wqkv, A_wo)
    h2 = h + _B_ref(_layernorm(h, axis=-1), B_w1, B_b1, B_w2, B_b2)
    return h2
```

```python
import re

class Asm:
    def __init__(self):
        self.lines = []
        self._uid = 0
    def __call__(self, s):
        for ln in s.strip("\n").split("\n"):
            ln = ln.rstrip()
            if ln.strip():
                self.lines.append(ln if ln.strip().endswith(":") and not ln.strip().startswith(";") else "    " + ln.strip())
    def label(self, name):
        self.lines.append(name + ":")
    def uid(self, base):
        self._uid += 1
        return f"{base}_{self._uid}"
    def text(self):
        return "\n".join(self.lines) + "\n"

def vr(b, n=1):
    return f"v{b}" if n == 1 else f"v[{b}:{b+n-1}]"
def sr(b, n=1):
    return f"s{b}" if n == 1 else f"s[{b}:{b+n-1}]"

_REG = re.compile(r"\b([vsa])(\d+)\b|\b([vsa])\[(\d+):(\d+)\]")
def regs(tok):
    out = set()
    for m in _REG.finditer(tok):
        if m.group(1):
            out.add((m.group(1), int(m.group(2))))
        else:
            for i in range(int(m.group(4)), int(m.group(5)) + 1):
                out.add((m.group(3), i))
    if re.search(r"\bvcc\b", tok): out |= {("s", "vcc")}
    if re.search(r"\bm0\b", tok): out |= {("s", "m0")}
    if re.search(r"\bexec\b", tok): out |= {("s", "exec")}
    return out

TRANS = ("v_exp_", "v_log_", "v_rcp_", "v_rsq_", "v_sqrt_", "v_sin_", "v_cos_")
class Ins:
    def __init__(self, text, idx):
        self.text = text; self.idx = idx
        t = text.split(";")[0].strip()
        self.op = t.split()[0]
        rest = t[len(self.op):].strip()
        self.ops = [o.strip() for o in re.split(r",(?![^\[]*\])", rest)] if rest else []
        op = self.op
        self.is_mfma = op.startswith("v_mfma") or op.startswith("v_smfmac")
        self.is_valu = op.startswith("v_") and not self.is_mfma
        self.is_salu = op.startswith("s_") and not op.startswith(("s_load", "s_waitcnt", "s_nop", "s_barrier", "s_buffer_load"))
        self.is_vmem = op.startswith(("buffer_", "global_", "flat_"))
        self.is_ds = op.startswith("ds_")
        self.is_trans = op.startswith(TRANS)
        self.dst = set(); self.src = set()
        ops = self.ops
        if self.is_mfma:
            self.dst = regs(ops[0]); self.srcA = regs(ops[1]); self.srcB = regs(ops[2]); self.srcC = regs(ops[3])
            self.src = self.srcA | self.srcB | self.srcC
            self.passes = 8 if "32x32" in op else 4
        elif self.is_valu:
            if op.startswith("v_cmpx"):
                self.dst = regs(ops[0]) | {("s", "exec")}; self.src = set().union(*[regs(o) for o in ops[1:]])
            elif op.startswith("v_cmp"):
                self.dst = regs(ops[0]); self.src = set().union(*[regs(o) for o in ops[1:]])
            elif op.startswith("v_permlane") and "swap" in op:
                self.dst = regs(ops[0]) | regs(ops[1]); self.src = set(self.dst)
            elif op.startswith(("v_add_co", "v_sub_co", "v_addc_co", "v_subb_co", "v_div_scale")):
                self.dst = regs(ops[0]) | regs(ops[1]); self.src = set().union(*[regs(o) for o in ops[2:]])
            else:
                self.dst = regs(ops[0]); self.src = set().union(*[regs(o) for o in ops[1:]]) if len(ops) > 1 else set()
                if op.startswith(("v_fmac", "v_dot2c", "v_mac", "v_pk_fmac")) or "UNUSED_PRESERVE" in t or "_dpp" in op or " row_" in t or "quad_perm" in t:
                    self.src |= self.dst
                if op.startswith("v_cndmask") and len(ops) == 3: self.src |= {("s", "vcc")}
        elif self.is_vmem:
            if "_load" in op and " lds" not in t and "_lds_" not in op:
                self.dst = regs(ops[0]); self.src = set().union(*[regs(o.split()[0]) for o in ops[1:]])
            elif "atomic" in op:
                self.src = set().union(*[regs(o.split()[0]) for o in ops]);
                if " sc0" in t: self.dst = regs(ops[0])
            else:
                self.src = set().union(*[regs(o.split()[0]) for o in ops]) if ops else set()
                if " lds" in t or "_lds_" in op: self.src |= {("s", "m0")}
        elif self.is_ds:
            if op.startswith(("ds_read", "ds_bpermute", "ds_permute", "ds_swizzle")):
                self.dst = regs(ops[0]); self.src = set().union(*[regs(o.split()[0]) for o in ops[1:]])
            else:
                self.src = set().union(*[regs(o.split()[0]) for o in ops])
        elif op.startswith("s_load") or op.startswith("s_mem"):
            self.dst = regs(ops[0]); self.src = set().union(*[regs(o) for o in ops[1:]]) if len(ops) > 1 else set()
        elif self.is_salu:
            if op.startswith(("s_cmp", "s_cbranch", "s_branch", "s_setprio", "s_sleep", "s_endpgm", "s_bitcmp")):
                self.src = set().union(*[regs(o) for o in ops]) if ops else set()
            else:
                self.dst = regs(ops[0]); self.src = set().union(*[regs(o) for o in ops[1:]]) if len(ops) > 1 else set()
                if "saveexec" in op: self.dst |= {("s", "exec")}; self.src |= {("s", "exec")}
        self.nstates = 1
        if op == "s_nop": self.nstates = int(ops[0], 0) + 1
        self.wide_store = self.is_vmem and "store" in op and ("x3" in op or "x4" in op)
        self.store_data = regs(ops[0]) if (self.wide_store and op.startswith("buffer")) else (regs(ops[1]) if self.wide_store else set())

def vonly(s): return {r for r in s if r[0] in "va"}
def sonly(s): return {r for r in s if r[0] == "s"}

def need(p, c):
    n = 0
    if p.is_valu:
        w = vonly(p.dst); ws = sonly(p.dst)
        if c.is_mfma and (w & c.src): n = max(n, 2)
        if c.is_mfma and ("s", "exec") in ws: n = max(n, 4)
        if p.is_trans and c.is_valu and not c.is_trans and (w & c.src): n = max(n, 1)
        if p.is_trans and c.is_mfma and (w & c.src): n = max(n, 2)
        if c.op.startswith("v_permlane") and (w & c.src): n = max(n, 2)
        if c.op.startswith(("v_readlane", "v_readfirstlane")) and (w & c.src): n = max(n, 1)
        if c.is_valu and ("_dpp" in c.op or " row_" in c.text or "quad_perm" in c.text) and (w & (c.src)): n = max(n, 2)
        if c.is_valu and ("_dpp" in c.op or " row_" in c.text or "quad_perm" in c.text) and ("s", "exec") in ws: n = max(n, 5)
        if ws and c.is_vmem and (ws & c.src): n = max(n, 5)
        if ws and c.is_valu and (ws & c.src): n = max(n, 2)
        if ws and c.op.startswith(("v_readlane", "v_writelane")) and (ws & c.src): n = max(n, 4)
        if ("sdwa" in p.op) and c.is_valu and (w & c.src): n = max(n, 1)
    if p.is_mfma:
        d = p.dst
        big = {4: 8, 8: 12}[p.passes]
        if c.is_mfma:
            if d & (c.srcA | c.srcB): n = max(n, big)
            if d & c.srcC and not (c.srcC == d and c.passes == p.passes): n = max(n, {4: 6, 8: 10}[p.passes])
            if d & c.dst and not (c.dst == d and c.srcC == d): n = max(n, {4: 6, 8: 10}[p.passes]) if c.srcC != d else n
        elif (c.is_valu or c.is_vmem or c.is_ds) and (d & (c.src | c.dst)): n = max(n, big)
        if c.is_valu and (p.srcC & vonly(c.dst)): n = max(n, {4: 3, 8: 7}[p.passes])
    if p.wide_store and (c.is_valu) and (p.store_data & vonly(c.dst)): n = max(n, 2)
    if p.wide_store and not c.is_valu and (p.store_data & vonly(c.dst)): n = max(n, 1)
    if p.is_salu and ("s", "m0") in p.dst and c.is_vmem and ("s", "m0") in c.src: n = max(n, 1)
    return n

def check_hazards(text, window=14):
    ins = []; labels = {}
    for ln in text.split("\n"):
        t = ln.split(";")[0].strip()
        if not t or t.startswith("."): continue
        if t.endswith(":"):
            labels[t[:-1]] = len(ins); continue
        ins.append(Ins(t, len(ins)))
    succ = []
    for i, x in enumerate(ins):
        s = []
        if x.op == "s_endpgm": pass
        elif x.op == "s_branch": s = [labels[x.ops[0]]]
        elif x.op.startswith("s_cbranch"): s = [i + 1, labels[x.ops[0]]]
        else: s = [i + 1]
        succ.append([j for j in s if j < len(ins)])
    problems = []
    for i, p in enumerate(ins):
        if not (p.is_valu or p.is_mfma or p.wide_store or (p.is_salu and ("s", "m0") in p.dst)): continue
        seen = {}
        stack = [(j, 0) for j in succ[i]]
        while stack:
            j, dist = stack.pop()
            if dist >= window or seen.get(j, 99) <= dist: continue
            seen[j] = dist
            c = ins[j]
            nd = need(p, c)
            if nd > dist:
                problems.append(f"HAZARD need {nd} have {dist}: [{p.idx}] {p.text}  ->  [{c.idx}] {c.text}")
            for k in succ[j]:
                stack.append((k, dist + c.nstates))
    return problems
```

```python
from asmlib import *

QF, KF, VF, OF, HF, LF, UF, XCH = 0x000000, 0x200000, 0x400000, 0x600000, 0x800000, 0xA00000, 0xC00000, 0xE00000
WS_SIZE = 0x1000000
P_X, P_WQKV, P_WO, P_W1, P_B1, P_W2, P_B2, P_OUT, P_DBG, P_WS = 4, 6, 8, 12, 14, 16, 18, 20, 22, 24
S_WG, S_WAVE = 2, 3

def srd(a, dst, ptr, nbytes):
    a(f"s_mov_b32 s{dst}, s{ptr}")
    a(f"s_mov_b32 s{dst+1}, s{ptr+1}")
    a(f"s_mov_b32 s{dst+2}, {hex(nbytes)}")
    a(f"s_mov_b32 s{dst+3}, 0x20000")

def prologue(a, nwg, end_label):
    a(f"s_cmp_ge_u32 s2, {nwg}")
    a(f"s_cbranch_scc1 {end_label}")
    a("s_load_dwordx16 s[4:19], s[0:1], 0")
    a("s_load_dwordx4 s[20:23], s[0:1], 64")
    a("s_load_dwordx2 s[24:25], s[0:1], 80")
    a("v_lshrrev_b32 v1, 6, v0")
    a("v_and_b32 v0, 63, v0")
    a("v_readfirstlane_b32 s3, v1")
    a("s_waitcnt lgkmcnt(0)")

def dma(a, voff, srd_, soff, m0, offset=0, flags=""):
    if isinstance(m0, tuple):
        if m0[1] == 0: a(f"s_mov_b32 m0, s{m0[0]}")
        else: a(f"s_add_u32 m0, s{m0[0]}, {m0[1]}")
    elif m0 is not None:
        a(f"s_mov_b32 m0, {m0}")
    if m0 is not None: a("s_nop 0")
    o = f" offset:{offset}" if offset else ""
    so = f"s{soff}" if soff is not None else "0"
    a(f"buffer_load_dwordx4 v{voff}, s[{srd_}:{srd_+3}], {so} offen{o}{flags} lds")

def tr_lane_addr(a, dst, t0, t1, rowsel, colunit_sreg=None, colunit_imm=0):
    a(f"v_lshrrev_b32 v{t0}, 5, v0")
    a(f"v_lshlrev_b32 v{t0}, {3 if rowsel=='nat' else 2}, v{t0}")
    a(f"v_bfe_u32 v{t1}, v0, 2, 2")
    a(f"v_add_u32 v{t0}, v{t0}, v{t1}")
    a(f"v_lshlrev_b32 v{dst}, 7, v{t0}")
    a(f"v_bfe_u32 v{t0}, v0, 4, 1")
    a(f"v_lshlrev_b32 v{t0}, 1, v{t0}")
    a(f"v_bfe_u32 v{t1}, v0, 1, 1")
    a(f"v_add_u32 v{t0}, v{t0}, v{t1}")
    if colunit_sreg is not None: a(f"v_add_u32 v{t0}, s{colunit_sreg}, v{t0}")
    elif colunit_imm: a(f"v_add_u32 v{t0}, {colunit_imm}, v{t0}")
    a(f"v_bfe_u32 v{t1}, v0, 3, 1")
    a(f"v_lshlrev_b32 v{t1}, 2, v{t1}")
    a(f"v_xor_b32 v{t0}, v{t0}, v{t1}")
    a(f"v_lshlrev_b32 v{t0}, 4, v{t0}")
    a(f"v_add_u32 v{dst}, v{dst}, v{t0}")
    a(f"v_and_b32 v{t0}, 1, v0")
    a(f"v_lshlrev_b32 v{t0}, 3, v{t0}")
    a(f"v_add_u32 v{dst}, v{dst}, v{t0}")

def dma_row_voff(a, dst, t0, t1, row_stride):
    a(f"v_lshrrev_b32 v{t0}, 3, v0")
    a(f"s_mov_b32 s49, {row_stride}")
    a(f"v_mul_lo_u32 v{dst}, v{t0}, s49")
    a(f"v_bfe_u32 v{t0}, v0, 4, 1")
    a(f"v_lshlrev_b32 v{t0}, 2, v{t0}")
    a(f"v_and_b32 v{t1}, 7, v0")
    a(f"v_xor_b32 v{t0}, v{t0}, v{t1}")
    a(f"v_lshlrev_b32 v{t0}, 4, v{t0}")
    a(f"v_add_u32 v{dst}, v{dst}, v{t0}")

def mfma(a, d, A, B, c=None):
    cs = vr(d, 16) if c is None else c
    a(f"v_mfma_f32_32x32x16_bf16 {vr(d,16)}, {vr(A,4)}, {vr(B,4)}, {cs}")

def phase1(a):
    s_tb, s_g, s_tt, s_p = 26, 27, 44, 45
    SX, SW, SWS = 28, 32, 36
    a("s_and_b32 s46, s2, 7"); a("s_lshr_b32 s47, s2, 3")
    a("s_lshr_b32 s48, s46, 1"); a("s_lshl_b32 s48, s48, 3"); a("s_and_b32 s49, s47, 7"); a(f"s_add_u32 s{s_tb}, s48, s49")
    a("s_and_b32 s48, s46, 1"); a("s_lshl_b32 s48, s48, 2"); a("s_lshr_b32 s49, s47, 3"); a(f"s_add_u32 s{s_g}, s48, s49")
    a(f"s_and_b32 s{s_tt}, s3, 1"); a(f"s_bfe_u32 s{s_p}, s3, 0x10001")
    srd(a, SX, P_X, 2048 * 512 * 2); srd(a, SW, P_WQKV, 512 * 1536 * 2); srd(a, SWS, P_WS, WS_SIZE)
    XR, VSUM, VSQ, VT, VXW, VWD, VXA, VWA, ACC, XFR, WQ, WK = 8, 40, 41, 44, 46, 47, 48, 56, 64, 96, 104, 112
    a("v_lshrrev_b32 v1, 3, v0"); a("s_lshl_b32 s46, s3, 3"); a("v_add_u32 v2, s46, v1")
    a(f"s_lshl_b32 s47, s{s_tb}, 6"); a("v_add_u32 v3, s47, v2"); a("v_lshlrev_b32 v3, 10, v3")
    a("v_and_b32 v4, 7, v0"); a("v_lshlrev_b32 v5, 4, v4"); a("v_add_u32 v3, v3, v5")
    for c in range(8):
        a(f"buffer_load_dwordx4 {vr(XR+4*c,4)}, v3, s[{SX}:{SX+3}], 0 offen offset:{c*128}")
    dma_row_voff(a, VWD, 5, 6, 3072)
    a("s_mul_i32 s46, s3, 24576"); a(f"s_lshl_b32 s47, s{s_g}, 7"); a("s_add_u32 s46, s46, s47")
    a(f"v_add_u32 v{VWD}, s46, v{VWD}")
    a("s_lshl_b32 s50, s3, 10"); a("s_add_u32 s50, s50, 65536")
    def issue_chunk(ch):
        slot = ch & 3
        for seg in range(3):
            a(f"s_mov_b32 s51, {ch*64*3072 + seg*1024}")
            dma(a, VWD, SW, 51, (50, slot * 24576 + seg * 8192))
    for ch in range(4): issue_chunk(ch)
    a("v_mov_b32 v56, -1"); a("v_mov_b32 v57, -1"); a("v_mov_b32 v58, -1"); a("v_mov_b32 v59, -1")
    a("v_lshlrev_b32 v6, 4, v0"); a("s_lshl_b32 s46, s2, 9"); a(f"s_add_u32 s46, s46, {XCH}")
    lskip = a.uid("L_p1_noclr")
    a("s_cmp_lg_u32 s3, 0"); a(f"s_cbranch_scc1 {lskip}")
    a("v_cmp_gt_u32 vcc, 32, v0"); a("s_and_saveexec_b64 s[52:53], vcc")
    a(f"buffer_store_dwordx4 v[56:59], v6, s[{SWS}:{SWS+3}], s46 offen")
    a("s_mov_b64 exec, s[52:53]")
    a.label(lskip)
    a("v_and_b32 v5, 15, v2"); a("v_xor_b32 v5, v5, v4"); a("v_lshlrev_b32 v5, 4, v5")
    a(f"v_lshlrev_b32 v{VXW}, 10, v2"); a(f"v_add_u32 v{VXW}, v{VXW}, v5"); a(f"v_xor_b32 v43, 128, v{VXW}")
    a("v_and_b32 v1, 31, v0"); a(f"s_lshl_b32 s46, s{s_tt}, 5"); a("v_add_u32 v1, s46, v1")
    a("v_and_b32 v2, 15, v1"); a("v_lshlrev_b32 v1, 10, v1"); a("v_lshrrev_b32 v3, 5, v0")
    for b in range(8):
        a(f"v_add_u32 v4, {2*b}, v3"); a("v_xor_b32 v4, v4, v2"); a("v_lshlrev_b32 v4, 4, v4"); a(f"v_add_u32 v{VXA+b}, v1, v4")
    a(f"s_lshl_b32 s46, s{s_p}, 2")
    tr_lane_addr(a, VWA, 1, 2, 'nat', colunit_sreg=46)
    a(f"v_add_u32 v{VWA}, 0x10000, v{VWA}"); a(f"v_add_u32 v{VWA+1}, 49152, v{VWA}")
    a("s_waitcnt vmcnt(12)")
    a(f"v_mov_b32 v{VSUM}, 0"); a(f"v_mov_b32 v{VSQ}, 0"); a("v_mov_b32 v42, 0x3f803f80")
    for i in range(32):
        a(f"v_dot2c_f32_bf16 v{VSUM}, v{XR+i}, v42")
        a(f"v_dot2c_f32_bf16 v{VSQ}, v{XR+i}, v{XR+i}")
    a("s_nop 2")
    for mod in ("quad_perm:[1,0,3,2]", "quad_perm:[2,3,0,1]", "row_half_mirror"):
        a(f"v_add_f32_dpp v{VSUM}, v{VSUM}, v{VSUM} {mod} row_mask:0xf bank_mask:0xf")
        a(f"v_add_f32_dpp v{VSQ}, v{VSQ}, v{VSQ} {mod} row_mask:0xf bank_mask:0xf")
        a("s_nop 0")
    a(f"v_mul_f32 v{VSUM}, {1/512!r}, v{VSUM}".replace("0.001953125", "0x3b000000"))
    a(f"v_mul_f32 v{VSQ}, 0x3b000000, v{VSQ}")
    a(f"v_fma_f32 v{VSQ}, -v{VSUM}, v{VSUM}, v{VSQ}")
    a(f"v_max_f32 v{VSQ}, 0, v{VSQ}")
    a(f"v_add_f32 v{VSQ}, 0x3727c5ac, v{VSQ}")
    a(f"v_rsq_f32 v60, v{VSQ}")
    a("s_nop 0")
    a(f"v_mul_f32 v62, v{VSUM}, v60"); a("v_sub_f32 v62, 0, v62")
    for i in range(32):
        t = VT if i % 2 == 0 else 6
        a(f"v_lshlrev_b32 v{t}, 16, v{XR+i}")
        a(f"v_and_b32 v{t+1}, 0xffff0000, v{XR+i}")
        a(f"v_pk_fma_f32 {vr(t,2)}, {vr(t,2)}, v[60:61], v[62:63] op_sel_hi:[1,0,0]")
        a(f"v_cvt_pk_bf16_f32 v{XR+i}, v{t}, v{t+1}")
    for c in range(8):
        a(f"ds_write_b128 v{VXW if c % 2 == 0 else 43}, {vr(XR+4*c,4)} offset:{(c>>1)*256}")
    lv, lend = a.uid("L_p1_v"), a.uid("L_p1_end")
    a("s_cmp_ge_u32 s3, 4"); a(f"s_cbranch_scc1 {lv}")
    def gemm(isv):
        n = 16 if isv else 32
        for i in range(n): a(f"v_mov_b32 v{ACC+i}, 0")
        def reads(ksg):
            ch, k = ksg >> 2, ksg & 3
            slot = ch & 3; base = VWA + (slot >> 1); off = (slot & 1) * 24576 + k * 2048
            par = ksg & 1
            a(f"ds_read_b128 {vr(XFR+4*par,4)}, v{VXA + (ksg & 7)} offset:{(ksg >> 3) * 256}")
            segs = (2,) if isv else (0, 1)
            for n_, seg in enumerate(segs):
                r = (WQ if n_ == 0 else WK) + 4 * par
                a(f"ds_read_b64_tr_b16 {vr(r,2)}, v{base} offset:{off + seg*8192}")
                a(f"ds_read_b64_tr_b16 {vr(r+2,2)}, v{base} offset:{off + seg*8192 + 512}")
        nrd = 3 if isv else 5
        a("s_waitcnt vmcnt(9) lgkmcnt(0)"); a("s_barrier")
        reads(0)
        for ksg in range(32):
            ch, k = ksg >> 2, ksg & 3
            if k == 2 and ch < 7:
                vm = {0: 6, 6: 0}.get(ch, 3)
                a(f"s_waitcnt vmcnt({vm})"); a("s_barrier")
                if 1 <= ch <= 4: issue_chunk(ch + 3)
            if ksg < 31:
                reads(ksg + 1); a(f"s_waitcnt lgkmcnt({nrd})")
            else:
                a("s_waitcnt lgkmcnt(0)")
            par = ksg & 1
            if isv:
                mfma(a, ACC, XFR + 4 * par, WQ + 4 * par)
            else:
                mfma(a, ACC, WQ + 4 * par, XFR + 4 * par)
                mfma(a, ACC + 16, WK + 4 * par, XFR + 4 * par)
    gemm(False)
    a(f"s_lshl_b32 s46, s{s_g}, 2"); a(f"s_lshl_b32 s47, s{s_p}, 1"); a("s_add_u32 s46, s46, s47")
    a(f"s_lshl_b32 s47, s{s_tb}, 1"); a(f"s_add_u32 s47, s47, s{s_tt}")
    a("s_lshl_b32 s48, s46, 16"); a("s_lshl_b32 s49, s47, 10"); a("s_add_u32 s48, s48, s49")
    a("v_lshlrev_b32 v1, 4, v0")
    a("s_add_u32 s51, s48, 0x10000")
    a(f"s_add_u32 s52, s48, {KF}"); a(f"s_add_u32 s53, s51, {KF}")
    a("s_mov_b32 s54, 0x3eb8aa3b")
    a("s_nop 7")
    for i in range(16): a(f"v_mul_f32 v{ACC+i}, s54, v{ACC+i}")
    for i in range(8): a(f"v_cvt_pk_bf16_f32 v{XR+i}, v{ACC+2*i}, v{ACC+2*i+1}")
    for i in range(8): a(f"v_cvt_pk_bf16_f32 v{XR+8+i}, v{ACC+16+2*i}, v{ACC+16+2*i+1}")
    for n_, so in enumerate((48, 51, 52, 53)):
        a(f"buffer_store_dwordx4 {vr(XR+4*n_,4)}, v1, s[{SWS}:{SWS+3}], s{so} offen")
    a(f"s_branch {lend}")
    a.label(lv)
    gemm(True)
    a(f"s_lshl_b32 s46, s{s_g}, 2"); a(f"s_lshl_b32 s47, s{s_p}, 1"); a("s_add_u32 s46, s46, s47")
    a(f"s_lshl_b32 s47, s{s_tb}, 1"); a(f"s_add_u32 s47, s47, s{s_tt}")
    a("s_lshl_b32 s48, s46, 16"); a("s_lshl_b32 s49, s47, 10"); a("s_add_u32 s48, s48, s49"); a(f"s_add_u32 s48, s48, {VF}")
    a("v_bfe_u32 v1, v0, 4, 1"); a("v_lshlrev_b32 v1, 16, v1"); a("v_lshrrev_b32 v2, 5, v0"); a("v_lshlrev_b32 v2, 8, v2")
    a("v_add_u32 v1, v1, v2"); a("v_and_b32 v2, 15, v0"); a("v_lshlrev_b32 v2, 4, v2"); a("v_add_u32 v1, v1, v2")
    a("s_nop 7")
    for i in range(8): a(f"v_cvt_pk_bf16_f32 v{XR+i}, v{ACC+2*i}, v{ACC+2*i+1}")
    a(f"buffer_store_dwordx4 {vr(XR,4)}, v1, s[{SWS}:{SWS+3}], s48 offen")
    a(f"buffer_store_dwordx4 {vr(XR+4,4)}, v1, s[{SWS}:{SWS+3}], s48 offen offset:512")
    a.label(lend)
P1_LDS = 163840

ATT_U = 4
P2_LDS = 131072 + 8192
def phase2(a):
    s_head, s_qb = 26, 27
    SWS = 36
    Q, KFR, VFR, SA, SB, P, O, VK, VV, VVI, CN = 4, 8, 16, 32, 48, 64, 72, 88, 89, 90, 96
    a("; ---- P2: attention")
    a("s_and_b32 s46, s2, 7"); a("s_lshr_b32 s47, s2, 3")
    a("s_lshl_b32 s48, s46, 2"); a("s_lshr_b32 s49, s47, 3"); a(f"s_add_u32 s{s_head}, s48, s49"); a(f"s_and_b32 s{s_qb}, s47, 7")
    srd(a, SWS, P_WS, WS_SIZE)
    a("v_lshlrev_b32 v1, 4, v0")
    a(f"s_lshl_b32 s46, s{s_head}, 16")
    a(f"s_lshl_b32 s47, s{s_qb}, 3"); a("s_add_u32 s47, s47, s3"); a("s_lshl_b32 s47, s47, 10"); a("s_add_u32 s47, s47, s46")
    a(f"buffer_load_dwordx4 {vr(Q,4)}, v1, s[{SWS}:{SWS+3}], s47 offen")
    a("s_lshl_b32 s48, s3, 11")
    a("s_add_u32 s49, s46, s48")
    for st in range(4):
        a(f"s_add_u32 s50, s49, {KF + st*16384}")
        dma(a, 1, SWS, 50, (48, st * 16384)); dma(a, 1, SWS, 50, None, offset=1024)
        a(f"s_add_u32 s50, s49, {VF + st*16384}")
        dma(a, 1, SWS, 50, (48, 65536 + st * 16384)); dma(a, 1, SWS, 50, None, offset=1024)
    a("v_mov_b32 v32, 0x3f803f80"); a("v_mov_b32 v33, v32"); a("v_mov_b32 v34, v32"); a("v_mov_b32 v35, v32")
    a("s_lshl_b32 s50, s3, 10"); a("s_add_u32 s50, s50, 131072"); a("v_add_u32 v2, s50, v1")
    a("ds_write_b128 v2, v[32:35]")
    a("v_and_b32 v2, 15, v0"); a("v_lshlrev_b32 v2, 4, v2"); a("v_lshrrev_b32 v3, 5, v0"); a("v_lshlrev_b32 v3, 8, v3"); a("v_add_u32 v91, v2, v3")
    a("v_bfe_u32 v3, v0, 4, 1")
    a("v_lshlrev_b32 v2, 16, v3"); a("v_add_u32 v91, v91, v2"); a("v_add_u32 v91, 0x10000, v91")
    a("v_xor_b32 v3, 1, v3"); a(f"v_mul_u32_u24 v{VVI}, {ATT_U*1024}, v3")
    for i in range(16): a(f"v_mov_b32 v{CN+i}, 0")
    a("s_mov_b32 s55, 0")
    a("s_waitcnt vmcnt(0) lgkmcnt(0)"); a("s_barrier")
    lmain, lloop, ldone, lmax = a.uid("L_p2_main"), a.uid("L_p2_loop"), a.uid("L_p2_done"), a.uid("L_p2_maxl")
    a.label(lmain)
    a(f"v_mov_b32 v{VK}, v1"); a(f"v_mov_b32 v{VV}, v91")
    a(f"ds_read_b128 {vr(KFR,4)}, v{VK}")
    a(f"ds_read_b128 {vr(VFR,4)}, v{VV}"); a(f"ds_read_b128 {vr(VFR+4,4)}, v{VV} offset:512")
    a(f"ds_read_b128 {vr(KFR+4,4)}, v{VK} offset:1024")
    for i in range(16): a(f"v_mov_b32 v{O+i}, 0")
    for i in range(4): a(f"v_mov_b32 v{P+4+i}, 0"); a(f"v_mov_b32 v{VFR+12+i}, 0")
    a("s_waitcnt lgkmcnt(3)")
    mfma(a, SA, KFR, Q, vr(CN, 16))
    a("s_nop 7"); a("s_nop 3")
    a(f"s_mov_b32 s56, {64 // ATT_U}")
    a.label(lloop)
    for u in range(ATT_U):
        S, SN = (SA, SB) if u % 2 == 0 else (SB, SA)
        par = u & 1
        e = lambda i: a(f"v_exp_f32 v{S+i}, v{S+i}")
        c = lambda i: a(f"v_cvt_pk_bf16_f32 v{P+i}, v{S+2*i}, v{S+2*i+1}")
        e(0); e(1)
        mfma(a, O, VFR + 8 * (par ^ 1) + 4, P + 4)
        a(f"ds_read_b128 {vr(VFR+8*(par^1),4)}, v{VV} offset:{(u+1)*1024}")
        a(f"ds_read_b128 {vr(VFR+8*(par^1)+4,4)}, v{VV} offset:{(u+1)*1024+512}")
        a(f"ds_read_b128 {vr(KFR+4*par,4)}, v{VK} offset:{(u+2)*1024}")
        e(2); e(3); e(4); e(5)
        a("s_waitcnt lgkmcnt(3)")
        mfma(a, SN, KFR + 4 * (par ^ 1), Q, vr(CN, 16))
        e(6); e(7); c(0); c(1); c(2); c(3); e(8); e(9)
        mfma(a, O, VFR + 8 * par, P)
        for i in range(10, 16): e(i)
        c(4); c(5); c(6); c(7)
        if u == ATT_U - 1:
            a(f"v_add_u32 v{VK}, {ATT_U*1024}, v{VK}"); a(f"v_add_u32 v{VV}, v{VVI}, v{VV}")
    a("s_sub_u32 s56, s56, 1"); a("s_cmp_lg_u32 s56, 0"); a(f"s_cbranch_scc1 {lloop}")
    a("s_nop 1")
    mfma(a, O, VFR + 8 + 4, P + 4)
    a("s_waitcnt lgkmcnt(0)")
    a("s_nop 7"); a("s_nop 3")
    a("s_cmp_lg_u32 s55, 0"); a(f"s_cbranch_scc1 {ldone}")
    a("v_mov_b32 v2, 0")
    for i in range(8): a(f"v_fmac_f32 v2, 0, v{O+i}")
    a(f"v_cmp_u_f32 s[58:59], v2, v2")
    a("s_mov_b32 s62, 0x5d800000")
    a(f"v_cmp_nge_f32 s[60:61], s62, v{O+8}")
    a("s_mov_b32 s62, 0x21800000")
    a(f"v_cmp_nle_f32 s[64:65], s62, v{O+8}")
    a("s_nop 3")
    a("s_or_b64 s[58:59], s[58:59], s[60:61]"); a("s_or_b64 s[58:59], s[58:59], s[64:65]")
    a("s_cmp_eq_u64 s[58:59], 0"); a(f"s_cbranch_scc1 {ldone}")
    a(f"v_mov_b32 v{VK}, v1"); a("v_mov_b32 v2, 0xff800000"); a("s_mov_b32 s56, 64")
    a.label(lmax)
    a(f"ds_read_b128 {vr(KFR,4)}, v{VK}"); a(f"v_add_u32 v{VK}, 1024, v{VK}")
    a("s_waitcnt lgkmcnt(0)")
    mfma(a, SA, KFR, Q, "0")
    a("s_nop 7"); a("s_nop 3")
    for i in range(8): a(f"v_max3_f32 v2, v2, v{SA+2*i}, v{SA+2*i+1}")
    a("s_sub_u32 s56, s56, 1"); a("s_cmp_lg_u32 s56, 0"); a(f"s_cbranch_scc1 {lmax}")
    a("v_mov_b32 v3, v2"); a("s_nop 1")
    a("v_permlane32_swap_b32 v2, v3"); a("s_nop 1")
    a("v_max_f32 v2, v2, v3"); a("v_sub_f32 v2, 0, v2")
    for i in range(16): a(f"v_mov_b32 v{CN+i}, v2")
    a("s_mov_b32 s55, 1"); a(f"s_branch {lmain}")
    a.label(ldone)
    a(f"v_rcp_f32 v2, v{O+8}"); a("s_nop 0")
    for i in range(8): a(f"v_mul_f32 v{O+i}, v{O+i}, v2")
    for i in range(4): a(f"v_cvt_pk_bf16_f32 v{P+i}, v{O+2*i}, v{O+2*i+1}")
    a(f"s_lshl_b32 s47, s{s_qb}, 3"); a("s_add_u32 s47, s47, s3"); a("s_lshl_b32 s47, s47, 5"); a(f"s_add_u32 s47, s47, s{s_head}")
    a("s_lshl_b32 s47, s47, 10"); a(f"s_add_u32 s47, s47, {OF}")
    a(f"buffer_store_dwordx4 {vr(P,4)}, v1, s[{SWS}:{SWS+3}], s47 offen")

def reduce_scatter(a, ACC, s_sub, s_kq, vtmp, T, base):
    a("s_barrier")
    a(f"s_lshl_b32 s46, s{s_sub}, 15"); a(f"s_lshl_b32 s47, s{s_kq}, 11"); a("s_add_u32 s47, s47, s46"); a(f"s_add_u32 s47, s47, {base}")
    a(f"v_lshlrev_b32 v{vtmp}, 4, v0"); a(f"v_add_u32 v{vtmp+1}, s47, v{vtmp}")
    for pc in range(4):
        for half in range(2):
            r = ACC + 16 * (pc >> 1) + 8 * (pc & 1) + 4 * half
            a(f"ds_write_b128 v{vtmp+1}, {vr(r,4)} offset:{pc*8192 + half*1024}")
    a(f"s_lshl_b32 s47, s{s_kq}, 13"); a("s_add_u32 s47, s47, s46"); a(f"s_add_u32 s47, s47, {base}")
    a(f"v_add_u32 v{vtmp+1}, s47, v{vtmp}")
    a("s_waitcnt lgkmcnt(0)"); a("s_barrier")
    for src in range(4):
        for half in range(2):
            a(f"ds_read_b128 {vr(T + 8*src + 4*half, 4)}, v{vtmp+1} offset:{src*2048 + half*1024}")
    a("s_waitcnt lgkmcnt(4)")
    for i in range(8): a(f"v_add_f32 v{ACC+i}, v{T+i}, v{T+8+i}")
    a("s_waitcnt lgkmcnt(0)")
    for i in range(8): a(f"v_add_f32 v{T+16+i}, v{T+16+i}, v{T+24+i}")
    for i in range(8): a(f"v_add_f32 v{ACC+i}, v{ACC+i}, v{T+16+i}")

P3_LDS = 131072 + 4096
def phase3(a):
    s_tb, s_cb, s_tt, s_kq, s_ct, s_jp = 26, 27, 44, 45, 56, 57
    SWO, SWS, SX = 28, 36, 32
    OFR, XR, ACC, AF, T, VA = 8, 40, 64, 96, 104, 4
    a("s_and_b32 s46, s2, 7"); a("s_lshr_b32 s47, s2, 3")
    a("s_lshl_b32 s48, s46, 2"); a("s_lshr_b32 s49, s47, 3"); a(f"s_add_u32 s{s_tb}, s48, s49"); a(f"s_and_b32 s{s_cb}, s47, 7")
    a(f"s_and_b32 s{s_tt}, s3, 1"); a(f"s_lshr_b32 s{s_kq}, s3, 1")
    a(f"s_lshr_b32 s{s_ct}, s{s_kq}, 1"); a(f"s_and_b32 s{s_jp}, s{s_kq}, 1")
    srd(a, SWO, P_WO, 512 * 512 * 2); srd(a, SWS, P_WS, WS_SIZE); srd(a, SX, P_X, 2048 * 512 * 2)
    dma_row_voff(a, 2, 5, 6, 1024)
    a("s_lshl_b32 s46, s3, 16"); a(f"s_lshl_b32 s47, s{s_cb}, 7"); a("s_add_u32 s46, s46, s47"); a("v_add_u32 v2, s46, v2")
    a("s_lshl_b32 s50, s3, 13")
    for i in range(8):
        a(f"s_mov_b32 s51, {i*8192}")
        dma(a, 2, SWO, 51, (50, i * 1024))
    a("v_lshlrev_b32 v1, 4, v0")
    a(f"s_lshl_b32 s46, s{s_tb}, 1"); a(f"s_add_u32 s58, s46, s{s_tt}")
    a(f"s_lshl_b32 s46, s58, 5"); a(f"s_lshl_b32 s47, s{s_kq}, 3"); a("s_add_u32 s46, s46, s47"); a("s_lshl_b32 s46, s46, 10"); a(f"s_add_u32 s46, s46, {OF}")
    for i in range(8):
        if i == 4: a("s_add_u32 s46, s46, 4096")
        a(f"buffer_load_dwordx4 {vr(OFR+4*i,4)}, v1, s[{SWS}:{SWS+3}], s46 offen offset:{(i&3)*1024}")
    a("v_and_b32 v3, 31, v0"); a("s_lshl_b32 s46, s58, 5"); a("v_add_u32 v3, s46, v3"); a("v_lshlrev_b32 v3, 10, v3")
    a("v_lshrrev_b32 v5, 5, v0"); a("v_lshlrev_b32 v5, 3, v5"); a("v_add_u32 v3, v3, v5")
    a(f"s_lshl_b32 s46, s{s_cb}, 7"); a(f"s_lshl_b32 s47, s{s_kq}, 5"); a("s_add_u32 s46, s46, s47")
    a(f"buffer_load_dwordx2 {vr(XR,2)}, v3, s[{SX}:{SX+3}], s46 offen")
    a(f"buffer_load_dwordx2 {vr(XR+2,2)}, v3, s[{SX}:{SX+3}], s46 offen offset:16")
    tr_lane_addr(a, VA, 5, 6, 'perm')
    a(f"s_lshl_b32 s46, s{s_kq}, 14"); a(f"v_add_u32 v{VA}, s46, v{VA}"); a(f"v_xor_b32 v{VA+1}, 64, v{VA}")
    for i in range(32): a(f"v_mov_b32 v{ACC+i}, 0")
    a("s_waitcnt vmcnt(0)"); a("s_barrier")
    def rd(i):
        for ct in range(2):
            r = AF + 8 * (i & 1) + 4 * ct
            a(f"ds_read_b64_tr_b16 {vr(r,2)}, v{VA+ct} offset:{i*2048}")
            a(f"ds_read_b64_tr_b16 {vr(r+2,2)}, v{VA+ct} offset:{i*2048+1024}")
    rd(0)
    for i in range(8):
        if i < 7: rd(i + 1); a("s_waitcnt lgkmcnt(4)")
        else: a("s_waitcnt lgkmcnt(0)")
        for ct in range(2): mfma(a, ACC + 16 * ct, AF + 8 * (i & 1) + 4 * ct, OFR + 4 * i)
    a("s_nop 7"); a("s_nop 3")
    reduce_scatter(a, ACC, s_tt, s_kq, 5, 112, 65536)
    H = 8
    for j in range(4):
        a(f"v_lshlrev_b32 v{H+2*j}, 16, v{XR+j}"); a(f"v_and_b32 v{H+2*j+1}, 0xffff0000, v{XR+j}")
    for i in range(8): a(f"v_add_f32 v{H+i}, v{H+i}, v{ACC+i}")
    HP = 16
    for j in range(4): a(f"v_cvt_pk_bf16_f32 v{HP+j}, v{H+2*j}, v{H+2*j+1}")
    a(f"s_lshl_b32 s46, s58, 5"); a(f"s_lshl_b32 s47, s{s_cb}, 2"); a("s_add_u32 s46, s46, s47"); a(f"s_add_u32 s46, s46, s{s_kq}")
    a("s_lshl_b32 s46, s46, 10"); a(f"s_add_u32 s46, s46, {HF}")
    a(f"buffer_store_dwordx4 {vr(HP,4)}, v1, s[{SWS}:{SWS+3}], s46 offen")
    for j in range(4):
        a(f"v_lshlrev_b32 v{H+2*j}, 16, v{HP+j}"); a(f"v_and_b32 v{H+2*j+1}, 0xffff0000, v{HP+j}")
    a(f"v_add_f32 v20, v{H}, v{H+1}"); a(f"v_mul_f32 v21, v{H}, v{H}"); a(f"v_fmac_f32 v21, v{H+1}, v{H+1}")
    for i in range(2, 8):
        a(f"v_add_f32 v20, v20, v{H+i}"); a(f"v_fmac_f32 v21, v{H+i}, v{H+i}")
    a("v_mov_b32 v22, v20"); a("v_mov_b32 v23, v21"); a("s_nop 1")
    a("v_permlane32_swap_b32 v20, v22"); a("v_permlane32_swap_b32 v21, v23"); a("s_nop 1")
    a("v_add_f32 v20, v20, v22"); a("v_add_f32 v21, v21, v23")
    ST = 131072
    a("v_and_b32 v5, 31, v0"); a(f"s_lshl_b32 s46, s{s_tt}, 5"); a("v_add_u32 v5, s46, v5"); a("v_lshlrev_b32 v24, 3, v5")
    a(f"s_lshl_b32 s46, s{s_kq}, 9"); a(f"s_add_u32 s46, s46, {ST}"); a("v_add_u32 v6, s46, v24")
    a("v_cmp_gt_u32 vcc, 32, v0"); a("s_and_saveexec_b64 s[52:53], vcc")
    a("ds_write_b64 v6, v[20:21]")
    a("s_mov_b64 exec, s[52:53]")
    a("s_waitcnt lgkmcnt(0)"); a("s_barrier")
    lx = a.uid("L_p3_x")
    a("s_cmp_lg_u32 s3, 0"); a(f"s_cbranch_scc1 {lx}")
    a("v_lshlrev_b32 v5, 3, v0"); a(f"v_add_u32 v6, {ST}, v5")
    for q in range(4): a(f"ds_read_b64 {vr(26+2*q,2)}, v6 offset:{q*512}")
    a("s_waitcnt lgkmcnt(0)")
    a("v_add_f32 v26, v26, v28"); a("v_add_f32 v27, v27, v29"); a("v_add_f32 v30, v30, v32"); a("v_add_f32 v31, v31, v33")
    a("v_add_f32 v26, v26, v30"); a("v_add_f32 v27, v27, v31")
    a("v_cmp_eq_u32 vcc, -1, v26"); a("v_mov_b32 v28, 0x7fc00000"); a("s_nop 0"); a("v_cndmask_b32 v26, v26, v28, vcc")
    a("v_cmp_eq_u32 vcc, -1, v27"); a("s_nop 1"); a("v_cndmask_b32 v27, v27, v28, vcc")
    a(f"s_lshl_b32 s46, s{s_tb}, 12"); a(f"s_add_u32 s46, s46, {XCH}"); a(f"s_lshl_b32 s47, s{s_cb}, 9"); a("s_add_u32 s47, s47, s46")
    a(f"buffer_store_dwordx2 v[26:27], v5, s[{SWS}:{SWS+3}], s47 offen sc1")
    lp, lpd = a.uid("L_p3_poll"), a.uid("L_p3_pd")
    a("s_mov_b32 s48, 0")
    a.label(lp)
    for q in range(8): a(f"buffer_load_dwordx2 {vr(32+2*q,2)}, v5, s[{SWS}:{SWS+3}], s46 offen offset:{q*512} sc1")
    a("s_waitcnt vmcnt(0)")
    a("v_cmp_eq_u32 vcc, -1, v32")
    for q in range(1, 16):
        a(f"v_cmp_eq_u32 s[52:53], -1, v{32+q}"); a("s_or_b64 vcc, vcc, s[52:53]")
    a(f"s_cbranch_vccz {lpd}")
    a("s_add_u32 s48, s48, 1"); a("s_cmp_lt_u32 s48, 0x100000"); a(f"s_cbranch_scc1 {lp}")
    a.label(lpd)
    for q in range(1, 8):
        a(f"v_add_f32 v32, v32, v{32+2*q}"); a(f"v_add_f32 v33, v33, v{33+2*q}")
    a("v_mul_f32 v32, 0x3b000000, v32"); a("v_mul_f32 v33, 0x3b000000, v33")
    a("v_fma_f32 v33, -v32, v32, v33"); a("v_max_f32 v33, 0, v33")
    a("v_add_f32 v34, 0x3727c5ac, v33"); a("v_rsq_f32 v35, v34")
    a("s_nop 0")
    a("v_mul_f32 v36, v35, v35"); a("v_mul_f32 v36, v36, v33")
    a("v_add_f32 v36, 0x3727c5ac, v36"); a("v_rsq_f32 v36, v36")
    a("s_nop 0")
    a("v_mul_f32 v34, v35, v36"); a("v_mul_f32 v35, v32, v34"); a("v_sub_f32 v35, 0, v35")
    a(f"v_add_u32 v6, {ST + 2048}, v5")
    a("ds_write_b64 v6, v[34:35]")
    a("s_waitcnt lgkmcnt(0)")
    a.label(lx)
    a("s_barrier")
    a(f"v_add_u32 v6, {ST + 2048}, v24")
    a("ds_read_b64 v[20:21], v6")
    a("s_waitcnt lgkmcnt(0)")
    for i in range(8): a(f"v_fma_f32 v{H+i}, v{H+i}, v20, v21")
    for j in range(4): a(f"v_cvt_pk_bf16_f32 v{HP+j}, v{H+2*j}, v{H+2*j+1}")
    a("v_lshrrev_b32 v5, 3, v24")
    a("v_bfe_u32 v6, v5, 1, 1"); a("v_lshlrev_b32 v6, 2, v6")
    a(f"s_lshl_b32 s46, s{s_kq}, 1"); a("v_xor_b32 v6, s46, v6")
    a("v_lshlrev_b32 v6, 4, v6"); a("v_lshlrev_b32 v5, 7, v5"); a("v_add_u32 v5, v5, v6")
    a("v_lshrrev_b32 v6, 5, v0"); a("v_lshlrev_b32 v6, 3, v6"); a("v_add_u32 v5, v5, v6")
    a(f"ds_write_b64 v5, {vr(HP,2)}"); a(f"ds_write_b64 v5, {vr(HP+2,2)} offset:16")
    a(f"s_lshl_b32 s46, s{s_tt}, 2")
    tr_lane_addr(a, 7, 5, 6, 'perm', colunit_sreg=46)
    a(f"s_lshl_b32 s46, s{s_kq}, 11"); a("v_add_u32 v7, s46, v7")
    a("s_waitcnt lgkmcnt(0)"); a("s_barrier")
    a("ds_read_b64_tr_b16 v[24:25], v7"); a("ds_read_b64_tr_b16 v[26:27], v7 offset:1024")
    a(f"s_lshl_b32 s46, s{s_cb}, 1"); a(f"s_add_u32 s46, s46, s{s_tt}"); a("s_lshl_b32 s46, s46, 7")
    a(f"s_lshl_b32 s47, s{s_tb}, 2"); a("s_add_u32 s46, s46, s47"); a(f"s_add_u32 s46, s46, s{s_kq}")
    a("s_lshl_b32 s46, s46, 10"); a(f"s_add_u32 s46, s46, {LF}")
    a("s_waitcnt lgkmcnt(0)")
    a(f"buffer_store_dwordx4 v[24:27], v1, s[{SWS}:{SWS+3}], s46 offen")

def big_gemm(a, nst, act_base_sregs, SWS, SW, VWD, w_stage_stride, s_sub, s_kq, act_is_B, ACC):
    VL, VT, AF, WF = 4, 6, 96, 112
    a("v_lshlrev_b32 v1, 4, v0")
    a("s_lshl_b32 s50, s3, 11")
    a("s_lshl_b32 s51, s3, 11"); a("s_add_u32 s51, s51, 16384")
    def issue(s):
        slot = (s & 3) * 32768
        for dt in range(2):
            a(f"s_add_u32 s52, s{act_base_sregs[dt]}, {s*8192}")
            dma(a, 1, SWS, 52, (50, slot + dt * 1024))
        for i in range(2):
            a(f"s_mov_b32 s52, {s*w_stage_stride + i*(w_stage_stride//16)}")
            dma(a, VWD, SW, 52, (51, slot + i * 1024))
    for s in range(4): issue(s)
    a(f"s_lshl_b32 s46, s{s_kq}, 12"); a(f"v_add_u32 v{VL}, s46, v1"); a(f"v_add_u32 v{VL+1}, 0x10000, v{VL}")
    a(f"s_lshl_b32 s46, s{s_sub}, 2")
    tr_lane_addr(a, VT, 2, 3, 'perm', colunit_sreg=46)
    a(f"s_lshl_b32 s46, s{s_kq}, 12"); a("s_add_u32 s46, s46, 16384")
    a(f"v_add_u32 v{VT}, s46, v{VT}"); a(f"v_add_u32 v{VT+1}, 0x10000, v{VT}")
    for i in range(32): a(f"v_mov_b32 v{ACC+i}, 0")
    def reads(n):
        s, k = n >> 1, n & 1
        slot = s & 3; hi = slot >> 1; off = (slot & 1) * 32768
        par = n & 1
        for dt in range(2):
            a(f"ds_read_b128 {vr(AF + 8*par + 4*dt, 4)}, v{VL+hi} offset:{off + k*2048 + dt*1024}")
        a(f"ds_read_b64_tr_b16 {vr(WF + 4*par, 2)}, v{VT+hi} offset:{off + k*2048}")
        a(f"ds_read_b64_tr_b16 {vr(WF + 4*par + 2, 2)}, v{VT+hi} offset:{off + k*2048 + 1024}")
    a("s_waitcnt vmcnt(12)"); a("s_barrier")
    reads(0)
    N = 2 * nst
    for n in range(N):
        s, k = n >> 1, n & 1
        if k == 1 and s < nst - 1:
            outstanding_after = min(nst - 1, max(3, s + 2)) - (s + 1)
            a(f"s_waitcnt vmcnt({4*outstanding_after})"); a("s_barrier")
            if s >= 1 and s + 3 < nst: issue(s + 3)
        if n < N - 1:
            reads(n + 1); a("s_waitcnt lgkmcnt(4)")
        else:
            a("s_waitcnt lgkmcnt(0)")
        par = n & 1
        for dt in range(2):
            if act_is_B: mfma(a, ACC + 16 * dt, WF + 4 * par, AF + 8 * par + 4 * dt)
            else: mfma(a, ACC + 16 * dt, AF + 8 * par + 4 * dt, WF + 4 * par)
    a("s_nop 7"); a("s_nop 3")

P45_LDS = 131072
def phase4(a):
    s_db, s_fb, s_ft, s_kq = 26, 27, 44, 45
    SW, SWS, SB = 28, 36, 32
    ACC = 64
    a("s_and_b32 s46, s2, 7"); a("s_lshr_b32 s47, s2, 3")
    a("s_and_b32 s48, s46, 1"); a("s_lshl_b32 s48, s48, 2"); a("s_and_b32 s49, s47, 3"); a(f"s_add_u32 s{s_db}, s48, s49")
    a("s_lshr_b32 s48, s46, 1"); a("s_mul_i32 s48, s48, 7"); a("s_lshr_b32 s49, s47, 2"); a(f"s_add_u32 s{s_fb}, s48, s49")
    a(f"s_and_b32 s{s_ft}, s3, 1"); a(f"s_lshr_b32 s{s_kq}, s3, 1")
    srd(a, SW, P_W1, 2048 * 1792 * 2); srd(a, SWS, P_WS, WS_SIZE); srd(a, SB, P_B1, 1792 * 2)
    dma_row_voff(a, 10, 2, 3, 3584)
    a("s_mul_i32 s46, s3, %d" % (16 * 3584)); a(f"s_lshl_b32 s47, s{s_fb}, 7"); a("s_add_u32 s46, s46, s47"); a("v_add_u32 v10, s46, v10")
    a(f"s_lshl_b32 s46, s{s_db}, 18"); a("s_lshl_b32 s47, s3, 10"); a("s_add_u32 s46, s46, s47")
    a(f"s_add_u32 s54, s46, {LF}"); a(f"s_add_u32 s55, s46, {LF + 128*1024}")
    a(f"s_lshl_b32 s46, s{s_fb}, 7"); a(f"s_lshl_b32 s47, s{s_ft}, 6"); a("s_add_u32 s46, s46, s47")
    a(f"s_and_b32 s47, s{s_kq}, 1"); a("s_lshl_b32 s47, s47, 5"); a("s_add_u32 s46, s46, s47")
    a("v_lshrrev_b32 v2, 5, v0"); a("v_lshlrev_b32 v2, 3, v2")
    a(f"buffer_load_dwordx2 v[12:13], v2, s[{SB}:{SB+3}], s46 offen"); a(f"buffer_load_dwordx2 v[14:15], v2, s[{SB}:{SB+3}], s46 offen offset:16")
    big_gemm(a, 16, (54, 55), SWS, SW, 10, 128 * 3584, s_ft, s_kq, True, ACC)
    reduce_scatter(a, ACC, s_ft, s_kq, 5, 112, 0)
    for j in range(4):
        a(f"v_lshlrev_b32 v{16+2*j}, 16, v{12+j}"); a(f"v_and_b32 v{17+2*j}, 0xffff0000, v{12+j}")
    for i in range(8): a(f"v_add_f32 v{ACC+i}, v{ACC+i}, v{16+i}")
    a("s_mov_b32 s46, 0xc0135761")
    a("s_mov_b32 s47, 0xbdd2d3e8")
    a("v_mov_b32 v24, s46")
    for i in range(8): a(f"v_mul_f32 v{16+i}, v{ACC+i}, v{ACC+i}")
    for i in range(8): a(f"v_fma_f32 v{16+i}, v{16+i}, s47, v24")
    for i in range(8): a(f"v_mul_f32 v{16+i}, v{16+i}, v{ACC+i}")
    for i in range(8): a(f"v_exp_f32 v{16+i}, v{16+i}")
    for i in range(8): a(f"v_add_f32 v{16+i}, 1.0, v{16+i}")
    for i in range(8): a(f"v_rcp_f32 v{16+i}, v{16+i}")
    for i in range(8): a(f"v_mul_f32 v{16+i}, v{16+i}, v{ACC+i}")
    for j in range(4): a(f"v_cvt_pk_bf16_f32 v{28+j}, v{16+2*j}, v{17+2*j}")
    a(f"s_lshl_b32 s46, s{s_db}, 1"); a(f"s_lshr_b32 s47, s{s_kq}, 1"); a("s_add_u32 s46, s46, s47"); a("s_mul_i32 s46, s46, 112")
    a(f"s_lshl_b32 s47, s{s_fb}, 2"); a("s_add_u32 s46, s46, s47"); a(f"s_lshl_b32 s47, s{s_ft}, 1"); a("s_add_u32 s46, s46, s47")
    a(f"s_and_b32 s47, s{s_kq}, 1"); a("s_add_u32 s46, s46, s47"); a("s_lshl_b32 s46, s46, 10"); a(f"s_add_u32 s46, s46, {UF}")
    a(f"buffer_store_dwordx4 v[28:31], v1, s[{SWS}:{SWS+3}], s46 offen")

def phase5(a):
    s_db, s_sb, s_st, s_kq = 26, 27, 44, 45
    SW, SWS, SB, SO = 28, 36, 32, 40
    ACC = 64
    a("; ---- P5: out = h + (u w2 + b2)^T")
    a("s_and_b32 s46, s2, 7"); a("s_lshr_b32 s47, s2, 3")
    a("s_and_b32 s48, s46, 1"); a("s_lshl_b32 s48, s48, 2"); a("s_and_b32 s49, s47, 3"); a(f"s_add_u32 s{s_db}, s48, s49")
    a("s_lshr_b32 s48, s46, 1"); a("s_lshl_b32 s48, s48, 3"); a("s_lshr_b32 s49, s47, 2"); a(f"s_add_u32 s{s_sb}, s48, s49")
    a(f"s_and_b32 s{s_st}, s3, 1"); a(f"s_lshr_b32 s{s_kq}, s3, 1")
    srd(a, SW, P_W2, 1792 * 2048 * 2); srd(a, SWS, P_WS, WS_SIZE); srd(a, SB, P_B2, 2048 * 2); srd(a, SO, P_OUT, 2048 * 512 * 2)
    dma_row_voff(a, 10, 2, 3, 4096)
    a("s_lshl_b32 s46, s3, 16"); a(f"s_lshl_b32 s47, s{s_sb}, 7"); a("s_add_u32 s46, s46, s47"); a("v_add_u32 v10, s46, v10")
    a(f"s_mul_i32 s46, s{s_db}, {2*112*1024}"); a("s_lshl_b32 s47, s3, 10"); a("s_add_u32 s46, s46, s47")
    a(f"s_add_u32 s54, s46, {UF}"); a(f"s_add_u32 s55, s46, {UF + 112*1024}")
    a(f"s_lshl_b32 s46, s{s_sb}, 1"); a(f"s_add_u32 s58, s46, s{s_st}")
    a("v_and_b32 v2, 31, v0"); a("s_lshl_b32 s46, s58, 5"); a("v_add_u32 v11, s46, v2")
    a("v_lshlrev_b32 v2, 1, v11")
    a(f"buffer_load_ushort v12, v2, s[{SB}:{SB+3}], 0 offen")
    a("s_lshl_b32 s46, s58, 5"); a(f"s_lshl_b32 s47, s{s_db}, 2"); a("s_add_u32 s46, s46, s47"); a(f"s_add_u32 s46, s46, s{s_kq}")
    a("s_lshl_b32 s46, s46, 10"); a(f"s_add_u32 s46, s46, {HF}")
    a("v_lshlrev_b32 v2, 4, v0")
    a(f"buffer_load_dwordx4 v[16:19], v2, s[{SWS}:{SWS+3}], s46 offen")
    big_gemm(a, 14, (54, 55), SWS, SW, 10, 128 * 4096, s_st, s_kq, False, ACC)
    reduce_scatter(a, ACC, s_st, s_kq, 5, 112, 0)
    a("v_lshlrev_b32 v12, 16, v12")
    for j in range(4):
        a(f"v_lshlrev_b32 v{20+2*j}, 16, v{16+j}"); a(f"v_and_b32 v{21+2*j}, 0xffff0000, v{16+j}")
    for i in range(8): a(f"v_add_f32 v{ACC+i}, v{ACC+i}, v12")
    for i in range(8): a(f"v_add_f32 v{ACC+i}, v{ACC+i}, v{20+i}")
    for j in range(4): a(f"v_cvt_pk_bf16_f32 v{28+j}, v{ACC+2*j}, v{ACC+2*j+1}")
    a("s_nop 1")
    a("v_permlane32_swap_b32 v28, v30"); a("v_permlane32_swap_b32 v29, v31")
    a("v_lshlrev_b32 v11, 10, v11"); a("v_lshrrev_b32 v2, 5, v0"); a("v_lshlrev_b32 v2, 4, v2"); a("v_add_u32 v11, v11, v2")
    a(f"s_lshl_b32 s46, s{s_db}, 7"); a(f"s_lshl_b32 s47, s{s_kq}, 5"); a("s_add_u32 s46, s46, s47")
    a(f"buffer_store_dwordx4 v[28:31], v11, s[{SO}:{SO+3}], s46 offen")
```

```python
import sys
from asmlib import *
from phases import *
NAME = "sequential_preLN__mha_block__mixer_token_mlp__prompt"
HEADER = open("cdna_kernels/%s.s.ref" % NAME).read().split("; Override launch")[0]

def kernel(name, fn, nwg, vgpr=256):
    a = Asm()
    a(f".globl {name}"); a(".p2align 8"); a(f".type {name},@function")
    a.label(name)
    end = f"L_end_{name}"
    prologue(a, nwg, end)
    fn(a)
    a.label(end)
    a("s_endpgm")
    body = a.text().replace("    .globl", ".globl").replace("    .p2align", ".p2align").replace("    .type", ".type")
    desc = f""".amdhsa_kernel {name}
  .amdhsa_next_free_vgpr {vgpr}
  .amdhsa_next_free_sgpr 96
  .amdhsa_accum_offset {min(256, (vgpr + 3) // 4 * 4)}
  .amdhsa_group_segment_fixed_size 0
  .amdhsa_kernarg_size 88
  .amdhsa_user_sgpr_count 2
  .amdhsa_user_sgpr_kernarg_segment_ptr 1
  .amdhsa_system_sgpr_workgroup_id_x 1
  .amdhsa_float_denorm_mode_32 3
.end_amdhsa_kernel
"""
    return body, desc

def build(which=(1, 2, 3, 4, 5)):
    table = {1: ("p1_kernel", phase1, 256, P1_LDS), 2: ("p2_kernel", phase2, 256, P2_LDS), 3: ("p3_kernel", phase3, 256, P3_LDS),
             4: ("p4_kernel", phase4, 224, P45_LDS), 5: ("p5_kernel", phase5, 256, P45_LDS)}
    launch = ""; bodies = ""; descs = ""
    import phases
    uid = 0
    for w in which:
        name, fn, nwg, lds = table[w]
        launch += f"; @launch kernel={name} grid=({nwg},1,1) block=(512,1,1) lds={lds}\n"
    seen = set()
    for w in which:
        if w in seen: continue
        seen.add(w)
        name, fn, nwg, lds = table[w]
        b, d = kernel(name, fn, nwg, 160)
        b = b.replace("L_p", f"L{w}_p")
        probs = check_hazards(b)
        for p in probs: print(name, p, file=sys.stderr)
        bodies += b; descs += ".p2align 6\n" + d
    return HEADER + launch + '.amdgcn_target "amdgcn-amd-amdhsa--gfx950"\n.text\n' + bodies + '.section .rodata,"a"\n' + descs

if __name__ == "__main__":
    out = sys.argv[1] if len(sys.argv) > 1 else f"cdna_kernels/{NAME}.s"
    open(out, "w").write(build())
    print("wrote", out)
```

```python
import sys
from gen_multi import *
import gen_multi
def with_empty(n):
    s = build()
    launch = "".join("; @launch kernel=e_kernel grid=(1,1,1) block=(64,1,1) lds=0\n" for _ in range(n))
    s = s.replace('.amdgcn_target', launch + '.amdgcn_target', 1)
    body = ".globl e_kernel\n.p2align 8\n.type e_kernel,@function\ne_kernel:\n    s_endpgm\n"
    desc = """.p2align 6
.amdhsa_kernel e_kernel
  .amdhsa_next_free_vgpr 8
  .amdhsa_next_free_sgpr 16
  .amdhsa_accum_offset 8
  .amdhsa_group_segment_fixed_size 0
  .amdhsa_kernarg_size 88
  .amdhsa_user_sgpr_count 2
  .amdhsa_user_sgpr_kernarg_segment_ptr 1
  .amdhsa_system_sgpr_workgroup_id_x 1
.end_amdhsa_kernel
"""
    s = s.replace('.section .rodata,"a"\n', body + '.section .rodata,"a"\n' + desc, 1)
    return s
D = "cdna_kernels/"
open(D + "v_empty5.s", "w").write(with_empty(5))
open(D + "v_p1x2.s", "w").write(build((1, 1, 2, 3, 4, 5)))
open(D + "v_p2x2.s", "w").write(build((1, 2, 2, 3, 4, 5)))
open(D + "v_p4x2.s", "w").write(build((1, 2, 3, 4, 4, 5)))
open(D + "v_p5x2.s", "w").write(build((1, 2, 3, 4, 5, 5)))
```

```python
from asmlib import *

QF, KF, VF, OF, HF, LF, UF, XCH = 0x000000, 0x200000, 0x400000, 0x600000, 0x800000, 0xA00000, 0xC00000, 0xE00000
WS_SIZE = 0x1000000
P_X, P_WQKV, P_WO, P_W1, P_B1, P_W2, P_B2, P_OUT, P_DBG, P_WS = 4, 6, 8, 12, 14, 16, 18, 20, 22, 24
S_WG, S_WAVE = 2, 3
class Cfg:
    persist = False
    stamps = False
cfg = Cfg()
def SC(): return " sc1" if cfg.persist else ""
CNT = 0xE40000
V_HP = 200

def srd(a, dst, ptr, nbytes):
    a(f"s_mov_b32 s{dst}, s{ptr}")
    a(f"s_mov_b32 s{dst+1}, s{ptr+1}")
    a(f"s_mov_b32 s{dst+2}, {hex(nbytes)}")
    a(f"s_mov_b32 s{dst+3}, 0x20000")

def prologue(a, nwg, end_label):
    a(f"s_cmp_ge_u32 s2, {nwg}")
    a(f"s_cbranch_scc1 {end_label}")
    a("s_load_dwordx16 s[4:19], s[0:1], 0")
    a("s_load_dwordx4 s[20:23], s[0:1], 64")
    a("s_load_dwordx2 s[24:25], s[0:1], 80")
    a("v_lshrrev_b32 v1, 6, v0")
    a("v_and_b32 v0, 63, v0")
    a("v_readfirstlane_b32 s3, v1")
    a("s_waitcnt lgkmcnt(0)")

def dma(a, voff, srd_, soff, m0, offset=0, flags=""):
    if isinstance(m0, tuple):
        if m0[1] == 0: a(f"s_mov_b32 m0, s{m0[0]}")
        else: a(f"s_add_u32 m0, s{m0[0]}, {m0[1]}")
    elif m0 is not None:
        a(f"s_mov_b32 m0, {m0}")
    if m0 is not None: a("s_nop 0")
    o = f" offset:{offset}" if offset else ""
    so = f"s{soff}" if soff is not None else "0"
    a(f"buffer_load_dwordx4 v{voff}, s[{srd_}:{srd_+3}], {so} offen{o}{flags} lds")

def tr_lane_addr(a, dst, t0, t1, rowsel, colunit_sreg=None, colunit_imm=0):
    a(f"v_lshrrev_b32 v{t0}, 5, v0")
    a(f"v_lshlrev_b32 v{t0}, {3 if rowsel=='nat' else 2}, v{t0}")
    a(f"v_bfe_u32 v{t1}, v0, 2, 2")
    a(f"v_add_u32 v{t0}, v{t0}, v{t1}")
    a(f"v_lshlrev_b32 v{dst}, 7, v{t0}")
    a(f"v_bfe_u32 v{t0}, v0, 4, 1")
    a(f"v_lshlrev_b32 v{t0}, 1, v{t0}")
    a(f"v_bfe_u32 v{t1}, v0, 1, 1")
    a(f"v_add_u32 v{t0}, v{t0}, v{t1}")
    if colunit_sreg is not None: a(f"v_add_u32 v{t0}, s{colunit_sreg}, v{t0}")
    elif colunit_imm: a(f"v_add_u32 v{t0}, {colunit_imm}, v{t0}")
    a(f"v_bfe_u32 v{t1}, v0, 3, 1")
    a(f"v_lshlrev_b32 v{t1}, 2, v{t1}")
    a(f"v_xor_b32 v{t0}, v{t0}, v{t1}")
    a(f"v_lshlrev_b32 v{t0}, 4, v{t0}")
    a(f"v_add_u32 v{dst}, v{dst}, v{t0}")
    a(f"v_and_b32 v{t0}, 1, v0")
    a(f"v_lshlrev_b32 v{t0}, 3, v{t0}")
    a(f"v_add_u32 v{dst}, v{dst}, v{t0}")

def dma_row_voff(a, dst, t0, t1, row_stride):
    a(f"v_lshrrev_b32 v{t0}, 3, v0")
    a(f"s_mov_b32 s49, {row_stride}")
    a(f"v_mul_lo_u32 v{dst}, v{t0}, s49")
    a(f"v_bfe_u32 v{t0}, v0, 4, 1")
    a(f"v_lshlrev_b32 v{t0}, 2, v{t0}")
    a(f"v_and_b32 v{t1}, 7, v0")
    a(f"v_xor_b32 v{t0}, v{t0}, v{t1}")
    a(f"v_lshlrev_b32 v{t0}, 4, v{t0}")
    a(f"v_add_u32 v{dst}, v{dst}, v{t0}")

def mfma(a, d, A, B, c=None):
    cs = vr(d, 16) if c is None else c
    a(f"v_mfma_f32_32x32x16_bf16 {vr(d,16)}, {vr(A,4)}, {vr(B,4)}, {cs}")

def phase1(a, hooks=None):
    hooks = hooks or {}
    s_tb, s_g, s_tt, s_p = 26, 27, 44, 45
    SX, SW, SWS = 28, 32, 36
    a("s_and_b32 s46, s2, 7"); a("s_lshr_b32 s47, s2, 3")
    a("s_lshr_b32 s48, s46, 1"); a("s_lshl_b32 s48, s48, 3"); a("s_and_b32 s49, s47, 7"); a(f"s_add_u32 s{s_tb}, s48, s49")
    a("s_and_b32 s48, s46, 1"); a("s_lshl_b32 s48, s48, 2"); a("s_lshr_b32 s49, s47, 3"); a(f"s_add_u32 s{s_g}, s48, s49")
    a(f"s_and_b32 s{s_tt}, s3, 1"); a(f"s_bfe_u32 s{s_p}, s3, 0x10001")
    srd(a, SX, P_X, 2048 * 512 * 2); srd(a, SW, P_WQKV, 512 * 1536 * 2); srd(a, SWS, P_WS, WS_SIZE)
    XR, VSUM, VSQ, VT, VXW, VWD, VXA, VWA, ACC, XFR, WQ, WK = 8, 40, 41, 44, 46, 47, 48, 56, 64, 96, 104, 112
    a("v_lshrrev_b32 v1, 3, v0"); a("s_lshl_b32 s46, s3, 3"); a("v_add_u32 v2, s46, v1")
    a(f"s_lshl_b32 s47, s{s_tb}, 6"); a("v_add_u32 v3, s47, v2"); a("v_lshlrev_b32 v3, 10, v3")
    a("v_and_b32 v4, 7, v0"); a("v_lshlrev_b32 v5, 4, v4"); a("v_add_u32 v3, v3, v5")
    for c in range(8):
        a(f"buffer_load_dwordx4 {vr(XR+4*c,4)}, v3, s[{SX}:{SX+3}], 0 offen offset:{c*128}")
    dma_row_voff(a, VWD, 5, 6, 3072)
    a("s_mul_i32 s46, s3, 24576"); a(f"s_lshl_b32 s47, s{s_g}, 7"); a("s_add_u32 s46, s46, s47")
    a(f"v_add_u32 v{VWD}, s46, v{VWD}")
    a("s_lshl_b32 s50, s3, 10"); a("s_add_u32 s50, s50, 65536")
    def issue_chunk(ch):
        slot = ch & 3
        for seg in range(3):
            a(f"s_mov_b32 s51, {ch*64*3072 + seg*1024}")
            dma(a, VWD, SW, 51, (50, slot * 24576 + seg * 8192))
    for ch in range(4): issue_chunk(ch)
    a("v_mov_b32 v56, -1"); a("v_mov_b32 v57, -1"); a("v_mov_b32 v58, -1"); a("v_mov_b32 v59, -1")
    a("v_lshlrev_b32 v6, 4, v0"); a("s_lshl_b32 s46, s2, 9"); a(f"s_add_u32 s46, s46, {XCH}")
    lskip = a.uid("L_p1_noclr")
    a("s_cmp_lg_u32 s3, 0"); a(f"s_cbranch_scc1 {lskip}")
    a("v_cmp_gt_u32 vcc, 32, v0"); a("s_and_saveexec_b64 s[52:53], vcc")
    a(f"buffer_store_dwordx4 v[56:59], v6, s[{SWS}:{SWS+3}], s46 offen{SC()}")
    a("s_mov_b64 exec, s[52:53]")
    a.label(lskip)
    a("v_and_b32 v5, 15, v2"); a("v_xor_b32 v5, v5, v4"); a("v_lshlrev_b32 v5, 4, v5")
    a(f"v_lshlrev_b32 v{VXW}, 10, v2"); a(f"v_add_u32 v{VXW}, v{VXW}, v5"); a(f"v_xor_b32 v43, 128, v{VXW}")
    a("v_and_b32 v1, 31, v0"); a(f"s_lshl_b32 s46, s{s_tt}, 5"); a("v_add_u32 v1, s46, v1")
    a("v_and_b32 v2, 15, v1"); a("v_lshlrev_b32 v1, 10, v1"); a("v_lshrrev_b32 v3, 5, v0")
    for b in range(8):
        a(f"v_add_u32 v4, {2*b}, v3"); a("v_xor_b32 v4, v4, v2"); a("v_lshlrev_b32 v4, 4, v4"); a(f"v_add_u32 v{VXA+b}, v1, v4")
    a(f"s_lshl_b32 s46, s{s_p}, 2")
    tr_lane_addr(a, VWA, 1, 2, 'nat', colunit_sreg=46)
    a(f"v_add_u32 v{VWA}, 0x10000, v{VWA}"); a(f"v_add_u32 v{VWA+1}, 49152, v{VWA}")
    a("s_waitcnt vmcnt(12)")
    a(f"v_mov_b32 v{VSUM}, 0"); a(f"v_mov_b32 v{VSQ}, 0"); a("v_mov_b32 v42, 0x3f803f80")
    for i in range(32):
        a(f"v_dot2c_f32_bf16 v{VSUM}, v{XR+i}, v42")
        a(f"v_dot2c_f32_bf16 v{VSQ}, v{XR+i}, v{XR+i}")
    a("s_nop 2")
    for mod in ("quad_perm:[1,0,3,2]", "quad_perm:[2,3,0,1]", "row_half_mirror"):
        a(f"v_add_f32_dpp v{VSUM}, v{VSUM}, v{VSUM} {mod} row_mask:0xf bank_mask:0xf")
        a(f"v_add_f32_dpp v{VSQ}, v{VSQ}, v{VSQ} {mod} row_mask:0xf bank_mask:0xf")
        a("s_nop 0")
    a(f"v_mul_f32 v{VSUM}, {1/512!r}, v{VSUM}".replace("0.001953125", "0x3b000000"))
    a(f"v_mul_f32 v{VSQ}, 0x3b000000, v{VSQ}")
    a(f"v_fma_f32 v{VSQ}, -v{VSUM}, v{VSUM}, v{VSQ}")
    a(f"v_max_f32 v{VSQ}, 0, v{VSQ}")
    a(f"v_add_f32 v{VSQ}, 0x3727c5ac, v{VSQ}")
    a(f"v_rsq_f32 v60, v{VSQ}")
    a("s_nop 0")
    a(f"v_mul_f32 v62, v{VSUM}, v60"); a("v_sub_f32 v62, 0, v62")
    for i in range(32):
        t = VT if i % 2 == 0 else 6
        a(f"v_lshlrev_b32 v{t}, 16, v{XR+i}")
        a(f"v_and_b32 v{t+1}, 0xffff0000, v{XR+i}")
        a(f"v_pk_fma_f32 {vr(t,2)}, {vr(t,2)}, v[60:61], v[62:63] op_sel_hi:[1,0,0]")
        a(f"v_cvt_pk_bf16_f32 v{XR+i}, v{t}, v{t+1}")
    for c in range(8):
        a(f"ds_write_b128 v{VXW if c % 2 == 0 else 43}, {vr(XR+4*c,4)} offset:{(c>>1)*256}")
    lv, lend = a.uid("L_p1_v"), a.uid("L_p1_end")
    a("s_cmp_ge_u32 s3, 4"); a(f"s_cbranch_scc1 {lv}")
    def gemm(isv):
        n = 16 if isv else 32
        for i in range(n): a(f"v_mov_b32 v{ACC+i}, 0")
        def reads(ksg):
            ch, k = ksg >> 2, ksg & 3
            slot = ch & 3; base = VWA + (slot >> 1); off = (slot & 1) * 24576 + k * 2048
            par = ksg & 1
            a(f"ds_read_b128 {vr(XFR+4*par,4)}, v{VXA + (ksg & 7)} offset:{(ksg >> 3) * 256}")
            segs = (2,) if isv else (0, 1)
            for n_, seg in enumerate(segs):
                r = (WQ if n_ == 0 else WK) + 4 * par
                a(f"ds_read_b64_tr_b16 {vr(r,2)}, v{base} offset:{off + seg*8192}")
                a(f"ds_read_b64_tr_b16 {vr(r+2,2)}, v{base} offset:{off + seg*8192 + 512}")
        nrd = 3 if isv else 5
        a("s_waitcnt vmcnt(9) lgkmcnt(0)"); a("s_barrier")
        reads(0)
        for ksg in range(32):
            ch, k = ksg >> 2, ksg & 3
            if k == 2 and ch < 7:
                vm = {0: 6, 6: 0}.get(ch, 3)
                a(f"s_waitcnt vmcnt({vm})"); a("s_barrier")
                if 1 <= ch <= 4: issue_chunk(ch + 3)
            if ksg < 31:
                reads(ksg + 1); a(f"s_waitcnt lgkmcnt({nrd})")
            else:
                a("s_waitcnt lgkmcnt(0)")
            par = ksg & 1
            if isv:
                mfma(a, ACC, XFR + 4 * par, WQ + 4 * par)
            else:
                mfma(a, ACC, WQ + 4 * par, XFR + 4 * par)
                mfma(a, ACC + 16, WK + 4 * par, XFR + 4 * par)
    gemm(False)
    a(f"s_lshl_b32 s46, s{s_g}, 2"); a(f"s_lshl_b32 s47, s{s_p}, 1"); a("s_add_u32 s46, s46, s47")
    a(f"s_lshl_b32 s47, s{s_tb}, 1"); a(f"s_add_u32 s47, s47, s{s_tt}")
    a("s_lshl_b32 s48, s46, 16"); a("s_lshl_b32 s49, s47, 10"); a("s_add_u32 s48, s48, s49")
    a("v_lshlrev_b32 v1, 4, v0")
    a("s_add_u32 s51, s48, 0x10000")
    a(f"s_add_u32 s52, s48, {KF}"); a(f"s_add_u32 s53, s51, {KF}")
    a("s_mov_b32 s54, 0x3eb8aa3b")
    a("s_nop 7")
    for i in range(16): a(f"v_mul_f32 v{ACC+i}, s54, v{ACC+i}")
    for i in range(8): a(f"v_cvt_pk_bf16_f32 v{XR+i}, v{ACC+2*i}, v{ACC+2*i+1}")
    for i in range(8): a(f"v_cvt_pk_bf16_f32 v{XR+8+i}, v{ACC+16+2*i}, v{ACC+16+2*i+1}")
    if "pre_store" in hooks: hooks["pre_store"](a)
    for n_, so in enumerate((48, 51, 52, 53)):
        a(f"buffer_store_dwordx4 {vr(XR+4*n_,4)}, v1, s[{SWS}:{SWS+3}], s{so} offen{SC()}")
    a(f"s_branch {lend}")
    a.label(lv)
    gemm(True)
    a(f"s_lshl_b32 s46, s{s_g}, 2"); a(f"s_lshl_b32 s47, s{s_p}, 1"); a("s_add_u32 s46, s46, s47")
    a(f"s_lshl_b32 s47, s{s_tb}, 1"); a(f"s_add_u32 s47, s47, s{s_tt}")
    a("s_lshl_b32 s48, s46, 16"); a("s_lshl_b32 s49, s47, 10"); a("s_add_u32 s48, s48, s49"); a(f"s_add_u32 s48, s48, {VF}")
    a("v_bfe_u32 v1, v0, 4, 1"); a("v_lshlrev_b32 v1, 16, v1"); a("v_lshrrev_b32 v2, 5, v0"); a("v_lshlrev_b32 v2, 8, v2")
    a("v_add_u32 v1, v1, v2"); a("v_and_b32 v2, 15, v0"); a("v_lshlrev_b32 v2, 4, v2"); a("v_add_u32 v1, v1, v2")
    a("s_nop 7")
    for i in range(8): a(f"v_cvt_pk_bf16_f32 v{XR+i}, v{ACC+2*i}, v{ACC+2*i+1}")
    a(f"buffer_store_dwordx4 {vr(XR,4)}, v1, s[{SWS}:{SWS+3}], s48 offen{SC()}")
    a(f"buffer_store_dwordx4 {vr(XR+4,4)}, v1, s[{SWS}:{SWS+3}], s48 offen offset:512{SC()}")
    a.label(lend)
P1_LDS = 163840

ATT_U = 4
P2_LDS = 131072 + 8192
def phase2(a, hooks=None):
    hooks = hooks or {}
    s_head, s_qb = 26, 27
    SWS = 36
    Q, KFR, VFR, SA, SB, P, O, VK, VV, VVI, CN = 4, 8, 16, 32, 48, 64, 72, 88, 89, 90, 96
    a("; ---- P2: attention")
    a("s_and_b32 s46, s2, 7"); a("s_lshr_b32 s47, s2, 3")
    a("s_lshl_b32 s48, s46, 2"); a("s_lshr_b32 s49, s47, 3"); a(f"s_add_u32 s{s_head}, s48, s49"); a(f"s_and_b32 s{s_qb}, s47, 7")
    srd(a, SWS, P_WS, WS_SIZE)
    a("v_lshlrev_b32 v1, 4, v0")
    a(f"s_lshl_b32 s46, s{s_head}, 16")
    a(f"s_lshl_b32 s47, s{s_qb}, 3"); a("s_add_u32 s47, s47, s3"); a("s_lshl_b32 s47, s47, 10"); a("s_add_u32 s47, s47, s46")
    if "dep" in hooks: hooks["dep"](a)
    a(f"buffer_load_dwordx4 {vr(Q,4)}, v1, s[{SWS}:{SWS+3}], s47 offen{SC()}")
    a("s_lshl_b32 s48, s3, 11")
    a("s_add_u32 s49, s46, s48")
    for st in range(4):
        a(f"s_add_u32 s50, s49, {KF + st*16384}")
        dma(a, 1, SWS, 50, (48, st * 16384), flags=SC()); dma(a, 1, SWS, 50, None, offset=1024, flags=SC())
        a(f"s_add_u32 s50, s49, {VF + st*16384}")
        dma(a, 1, SWS, 50, (48, 65536 + st * 16384), flags=SC()); dma(a, 1, SWS, 50, None, offset=1024, flags=SC())
    ntouch = hooks["touch"](a) if "touch" in hooks else 0
    a("v_mov_b32 v32, 0x3f803f80"); a("v_mov_b32 v33, v32"); a("v_mov_b32 v34, v32"); a("v_mov_b32 v35, v32")
    a("s_lshl_b32 s50, s3, 10"); a("s_add_u32 s50, s50, 131072"); a("v_add_u32 v2, s50, v1")
    a("ds_write_b128 v2, v[32:35]")
    a("v_and_b32 v2, 15, v0"); a("v_lshlrev_b32 v2, 4, v2"); a("v_lshrrev_b32 v3, 5, v0"); a("v_lshlrev_b32 v3, 8, v3"); a("v_add_u32 v91, v2, v3")
    a("v_bfe_u32 v3, v0, 4, 1")
    a("v_lshlrev_b32 v2, 16, v3"); a("v_add_u32 v91, v91, v2"); a("v_add_u32 v91, 0x10000, v91")
    a("v_xor_b32 v3, 1, v3"); a(f"v_mul_u32_u24 v{VVI}, {ATT_U*1024}, v3")
    for i in range(16): a(f"v_mov_b32 v{CN+i}, 0")
    a("s_mov_b32 s55, 0")
    a(f"s_waitcnt vmcnt({ntouch}) lgkmcnt(0)"); a("s_barrier")
    lmain, lloop, ldone, lmax = a.uid("L_p2_main"), a.uid("L_p2_loop"), a.uid("L_p2_done"), a.uid("L_p2_maxl")
    a.label(lmain)
    a(f"v_mov_b32 v{VK}, v1"); a(f"v_mov_b32 v{VV}, v91")
    a(f"ds_read_b128 {vr(KFR,4)}, v{VK}")
    a(f"ds_read_b128 {vr(VFR,4)}, v{VV}"); a(f"ds_read_b128 {vr(VFR+4,4)}, v{VV} offset:512")
    a(f"ds_read_b128 {vr(KFR+4,4)}, v{VK} offset:1024")
    for i in range(16): a(f"v_mov_b32 v{O+i}, 0")
    for i in range(4): a(f"v_mov_b32 v{P+4+i}, 0"); a(f"v_mov_b32 v{VFR+12+i}, 0")
    a("s_waitcnt lgkmcnt(3)")
    mfma(a, SA, KFR, Q, vr(CN, 16))
    a("s_nop 7"); a("s_nop 3")
    a(f"s_mov_b32 s56, {64 // ATT_U}")
    a.label(lloop)
    for u in range(ATT_U):
        S, SN = (SA, SB) if u % 2 == 0 else (SB, SA)
        par = u & 1
        e = lambda i: a(f"v_exp_f32 v{S+i}, v{S+i}")
        c = lambda i: a(f"v_cvt_pk_bf16_f32 v{P+i}, v{S+2*i}, v{S+2*i+1}")
        e(0); e(1)
        mfma(a, O, VFR + 8 * (par ^ 1) + 4, P + 4)
        a(f"ds_read_b128 {vr(VFR+8*(par^1),4)}, v{VV} offset:{(u+1)*1024}")
        a(f"ds_read_b128 {vr(VFR+8*(par^1)+4,4)}, v{VV} offset:{(u+1)*1024+512}")
        a(f"ds_read_b128 {vr(KFR+4*par,4)}, v{VK} offset:{(u+2)*1024}")
        e(2); e(3); e(4); e(5)
        a("s_waitcnt lgkmcnt(3)")
        mfma(a, SN, KFR + 4 * (par ^ 1), Q, vr(CN, 16))
        e(6); e(7); c(0); c(1); c(2); c(3); e(8); e(9)
        mfma(a, O, VFR + 8 * par, P)
        for i in range(10, 16): e(i)
        c(4); c(5); c(6); c(7)
        if u == ATT_U - 1:
            a(f"v_add_u32 v{VK}, {ATT_U*1024}, v{VK}"); a(f"v_add_u32 v{VV}, v{VVI}, v{VV}")
    a("s_sub_u32 s56, s56, 1"); a("s_cmp_lg_u32 s56, 0"); a(f"s_cbranch_scc1 {lloop}")
    a("s_nop 1")
    mfma(a, O, VFR + 8 + 4, P + 4)
    a("s_waitcnt lgkmcnt(0)")
    a("s_nop 7"); a("s_nop 3")
    a("s_cmp_lg_u32 s55, 0"); a(f"s_cbranch_scc1 {ldone}")
    a("v_mov_b32 v2, 0")
    for i in range(8): a(f"v_fmac_f32 v2, 0, v{O+i}")
    a(f"v_cmp_u_f32 s[58:59], v2, v2")
    a("s_mov_b32 s62, 0x5d800000")
    a(f"v_cmp_nge_f32 s[60:61], s62, v{O+8}")
    a("s_mov_b32 s62, 0x21800000")
    a(f"v_cmp_nle_f32 s[64:65], s62, v{O+8}")
    a("s_nop 3")
    a("s_or_b64 s[58:59], s[58:59], s[60:61]"); a("s_or_b64 s[58:59], s[58:59], s[64:65]")
    a("s_cmp_eq_u64 s[58:59], 0"); a(f"s_cbranch_scc1 {ldone}")
    a(f"v_mov_b32 v{VK}, v1"); a("v_mov_b32 v2, 0xff800000"); a("s_mov_b32 s56, 64")
    a.label(lmax)
    a(f"ds_read_b128 {vr(KFR,4)}, v{VK}"); a(f"v_add_u32 v{VK}, 1024, v{VK}")
    a("s_waitcnt lgkmcnt(0)")
    mfma(a, SA, KFR, Q, "0")
    a("s_nop 7"); a("s_nop 3")
    for i in range(8): a(f"v_max3_f32 v2, v2, v{SA+2*i}, v{SA+2*i+1}")
    a("s_sub_u32 s56, s56, 1"); a("s_cmp_lg_u32 s56, 0"); a(f"s_cbranch_scc1 {lmax}")
    a("v_mov_b32 v3, v2"); a("s_nop 1")
    a("v_permlane32_swap_b32 v2, v3"); a("s_nop 1")
    a("v_max_f32 v2, v2, v3"); a("v_sub_f32 v2, 0, v2")
    for i in range(16): a(f"v_mov_b32 v{CN+i}, v2")
    a("s_mov_b32 s55, 1"); a(f"s_branch {lmain}")
    a.label(ldone)
    a(f"v_rcp_f32 v2, v{O+8}"); a("s_nop 0")
    for i in range(8): a(f"v_mul_f32 v{O+i}, v{O+i}, v2")
    for i in range(4): a(f"v_cvt_pk_bf16_f32 v{P+i}, v{O+2*i}, v{O+2*i+1}")
    a(f"s_lshl_b32 s47, s{s_qb}, 3"); a("s_add_u32 s47, s47, s3"); a("s_lshl_b32 s47, s47, 5"); a(f"s_add_u32 s47, s47, s{s_head}")
    a("s_lshl_b32 s47, s47, 10"); a(f"s_add_u32 s47, s47, {OF}")
    a(f"buffer_store_dwordx4 {vr(P,4)}, v1, s[{SWS}:{SWS+3}], s47 offen{SC()}")

def reduce_scatter(a, ACC, s_sub, s_kq, vtmp, T, base):
    a("s_barrier")
    a(f"s_lshl_b32 s46, s{s_sub}, 15"); a(f"s_lshl_b32 s47, s{s_kq}, 11"); a("s_add_u32 s47, s47, s46"); a(f"s_add_u32 s47, s47, {base}")
    a(f"v_lshlrev_b32 v{vtmp}, 4, v0"); a(f"v_add_u32 v{vtmp+1}, s47, v{vtmp}")
    for pc in range(4):
        for half in range(2):
            r = ACC + 16 * (pc >> 1) + 8 * (pc & 1) + 4 * half
            a(f"ds_write_b128 v{vtmp+1}, {vr(r,4)} offset:{pc*8192 + half*1024}")
    a(f"s_lshl_b32 s47, s{s_kq}, 13"); a("s_add_u32 s47, s47, s46"); a(f"s_add_u32 s47, s47, {base}")
    a(f"v_add_u32 v{vtmp+1}, s47, v{vtmp}")
    a("s_waitcnt lgkmcnt(0)"); a("s_barrier")
    for src in range(4):
        for half in range(2):
            a(f"ds_read_b128 {vr(T + 8*src + 4*half, 4)}, v{vtmp+1} offset:{src*2048 + half*1024}")
    a("s_waitcnt lgkmcnt(4)")
    for i in range(8): a(f"v_add_f32 v{ACC+i}, v{T+i}, v{T+8+i}")
    a("s_waitcnt lgkmcnt(0)")
    for i in range(8): a(f"v_add_f32 v{T+16+i}, v{T+16+i}, v{T+24+i}")
    for i in range(8): a(f"v_add_f32 v{ACC+i}, v{ACC+i}, v{T+16+i}")

P3_LDS = 131072 + 4096
def phase3(a, hooks=None):
    hooks = hooks or {}
    s_tb, s_cb, s_tt, s_kq, s_ct, s_jp = 26, 27, 44, 45, 56, 57
    SWO, SWS, SX = 28, 36, 32
    OFR, XR, ACC, AF, T, VA = 8, 40, 64, 96, 104, 4
    a("s_and_b32 s46, s2, 7"); a("s_lshr_b32 s47, s2, 3")
    a("s_lshl_b32 s48, s46, 2"); a("s_lshr_b32 s49, s47, 3"); a(f"s_add_u32 s{s_tb}, s48, s49"); a(f"s_and_b32 s{s_cb}, s47, 7")
    a(f"s_and_b32 s{s_tt}, s3, 1"); a(f"s_lshr_b32 s{s_kq}, s3, 1")
    a(f"s_lshr_b32 s{s_ct}, s{s_kq}, 1"); a(f"s_and_b32 s{s_jp}, s{s_kq}, 1")
    srd(a, SWO, P_WO, 512 * 512 * 2); srd(a, SWS, P_WS, WS_SIZE); srd(a, SX, P_X, 2048 * 512 * 2)
    dma_row_voff(a, 2, 5, 6, 1024)
    a("s_lshl_b32 s46, s3, 16"); a(f"s_lshl_b32 s47, s{s_cb}, 7"); a("s_add_u32 s46, s46, s47"); a("v_add_u32 v2, s46, v2")
    a("s_lshl_b32 s50, s3, 13")
    for i in range(8):
        a(f"s_mov_b32 s51, {i*8192}")
        dma(a, 2, SWO, 51, (50, i * 1024))
    a("v_lshlrev_b32 v1, 4, v0")
    a(f"s_lshl_b32 s46, s{s_tb}, 1"); a(f"s_add_u32 s58, s46, s{s_tt}")
    a("v_and_b32 v3, 31, v0"); a("s_lshl_b32 s46, s58, 5"); a("v_add_u32 v3, s46, v3"); a("v_lshlrev_b32 v3, 10, v3")
    a("v_lshrrev_b32 v5, 5, v0"); a("v_lshlrev_b32 v5, 3, v5"); a("v_add_u32 v3, v3, v5")
    a(f"s_lshl_b32 s46, s{s_cb}, 7"); a(f"s_lshl_b32 s47, s{s_kq}, 5"); a("s_add_u32 s46, s46, s47")
    a(f"buffer_load_dwordx2 {vr(XR,2)}, v3, s[{SX}:{SX+3}], s46 offen")
    a(f"buffer_load_dwordx2 {vr(XR+2,2)}, v3, s[{SX}:{SX+3}], s46 offen offset:16")
    if "dep" in hooks: hooks["dep"](a)
    a(f"s_lshl_b32 s46, s58, 5"); a(f"s_lshl_b32 s47, s{s_kq}, 3"); a("s_add_u32 s46, s46, s47"); a("s_lshl_b32 s46, s46, 10"); a(f"s_add_u32 s46, s46, {OF}")
    for i in range(8):
        if i == 4: a("s_add_u32 s46, s46, 4096")
        a(f"buffer_load_dwordx4 {vr(OFR+4*i,4)}, v1, s[{SWS}:{SWS+3}], s46 offen offset:{(i&3)*1024}{SC()}")
    tr_lane_addr(a, VA, 5, 6, 'perm')
    a(f"s_lshl_b32 s46, s{s_kq}, 14"); a(f"v_add_u32 v{VA}, s46, v{VA}"); a(f"v_xor_b32 v{VA+1}, 64, v{VA}")
    for i in range(32): a(f"v_mov_b32 v{ACC+i}, 0")
    a("s_waitcnt vmcnt(0)"); a("s_barrier")
    def rd(i):
        for ct in range(2):
            r = AF + 8 * (i & 1) + 4 * ct
            a(f"ds_read_b64_tr_b16 {vr(r,2)}, v{VA+ct} offset:{i*2048}")
            a(f"ds_read_b64_tr_b16 {vr(r+2,2)}, v{VA+ct} offset:{i*2048+1024}")
    rd(0)
    for i in range(8):
        if i < 7: rd(i + 1); a("s_waitcnt lgkmcnt(4)")
        else: a("s_waitcnt lgkmcnt(0)")
        for ct in range(2): mfma(a, ACC + 16 * ct, AF + 8 * (i & 1) + 4 * ct, OFR + 4 * i)
    a("s_nop 7"); a("s_nop 3")
    reduce_scatter(a, ACC, s_tt, s_kq, 5, 112, 65536)
    H = 8
    for j in range(4):
        a(f"v_lshlrev_b32 v{H+2*j}, 16, v{XR+j}"); a(f"v_and_b32 v{H+2*j+1}, 0xffff0000, v{XR+j}")
    for i in range(8): a(f"v_add_f32 v{H+i}, v{H+i}, v{ACC+i}")
    HP = 16
    for j in range(4): a(f"v_cvt_pk_bf16_f32 v{HP+j}, v{H+2*j}, v{H+2*j+1}")
    a(f"s_lshl_b32 s46, s58, 5"); a(f"s_lshl_b32 s47, s{s_cb}, 2"); a("s_add_u32 s46, s46, s47"); a(f"s_add_u32 s46, s46, s{s_kq}")
    a("s_lshl_b32 s46, s46, 10"); a(f"s_add_u32 s46, s46, {HF}")
    if cfg.persist:
        for j in range(4): a(f"v_mov_b32 v{V_HP+j}, v{HP+j}")
    else:
        a(f"buffer_store_dwordx4 {vr(HP,4)}, v1, s[{SWS}:{SWS+3}], s46 offen")
    for j in range(4):
        a(f"v_lshlrev_b32 v{H+2*j}, 16, v{HP+j}"); a(f"v_and_b32 v{H+2*j+1}, 0xffff0000, v{HP+j}")
    a(f"v_add_f32 v20, v{H}, v{H+1}"); a(f"v_mul_f32 v21, v{H}, v{H}"); a(f"v_fmac_f32 v21, v{H+1}, v{H+1}")
    for i in range(2, 8):
        a(f"v_add_f32 v20, v20, v{H+i}"); a(f"v_fmac_f32 v21, v{H+i}, v{H+i}")
    a("v_mov_b32 v22, v20"); a("v_mov_b32 v23, v21"); a("s_nop 1")
    a("v_permlane32_swap_b32 v20, v22"); a("v_permlane32_swap_b32 v21, v23"); a("s_nop 1")
    a("v_add_f32 v20, v20, v22"); a("v_add_f32 v21, v21, v23")
    ST = 131072
    a("v_and_b32 v5, 31, v0"); a(f"s_lshl_b32 s46, s{s_tt}, 5"); a("v_add_u32 v5, s46, v5"); a("v_lshlrev_b32 v24, 3, v5")
    a(f"s_lshl_b32 s46, s{s_kq}, 9"); a(f"s_add_u32 s46, s46, {ST}"); a("v_add_u32 v6, s46, v24")
    a("v_cmp_gt_u32 vcc, 32, v0"); a("s_and_saveexec_b64 s[52:53], vcc")
    a("ds_write_b64 v6, v[20:21]")
    a("s_mov_b64 exec, s[52:53]")
    a("s_waitcnt lgkmcnt(0)"); a("s_barrier")
    lx = a.uid("L_p3_x")
    a("s_cmp_lg_u32 s3, 0"); a(f"s_cbranch_scc1 {lx}")
    a("v_lshlrev_b32 v5, 3, v0"); a(f"v_add_u32 v6, {ST}, v5")
    for q in range(4): a(f"ds_read_b64 {vr(26+2*q,2)}, v6 offset:{q*512}")
    a("s_waitcnt lgkmcnt(0)")
    a("v_add_f32 v26, v26, v28"); a("v_add_f32 v27, v27, v29"); a("v_add_f32 v30, v30, v32"); a("v_add_f32 v31, v31, v33")
    a("v_add_f32 v26, v26, v30"); a("v_add_f32 v27, v27, v31")
    a("v_cmp_eq_u32 vcc, -1, v26"); a("v_mov_b32 v28, 0x7fc00000"); a("s_nop 0"); a("v_cndmask_b32 v26, v26, v28, vcc")
    a("v_cmp_eq_u32 vcc, -1, v27"); a("s_nop 1"); a("v_cndmask_b32 v27, v27, v28, vcc")
    a(f"s_lshl_b32 s46, s{s_tb}, 12"); a(f"s_add_u32 s46, s46, {XCH}"); a(f"s_lshl_b32 s47, s{s_cb}, 9"); a("s_add_u32 s47, s47, s46")
    a(f"buffer_store_dwordx2 v[26:27], v5, s[{SWS}:{SWS+3}], s47 offen sc1")
    lp, lpd = a.uid("L_p3_poll"), a.uid("L_p3_pd")
    a("s_mov_b32 s48, 0")
    a.label(lp)
    for q in range(8): a(f"buffer_load_dwordx2 {vr(32+2*q,2)}, v5, s[{SWS}:{SWS+3}], s46 offen offset:{q*512} sc1")
    a("s_waitcnt vmcnt(0)")
    a("v_cmp_eq_u32 vcc, -1, v32")
    for q in range(1, 16):
        a(f"v_cmp_eq_u32 s[52:53], -1, v{32+q}"); a("s_or_b64 vcc, vcc, s[52:53]")
    a(f"s_cbranch_vccz {lpd}")
    a("s_add_u32 s48, s48, 1"); a("s_cmp_lt_u32 s48, 0x100000"); a(f"s_cbranch_scc1 {lp}")
    a.label(lpd)
    for q in range(1, 8):
        a(f"v_add_f32 v32, v32, v{32+2*q}"); a(f"v_add_f32 v33, v33, v{33+2*q}")
    a("v_mul_f32 v32, 0x3b000000, v32"); a("v_mul_f32 v33, 0x3b000000, v33")
    a("v_fma_f32 v33, -v32, v32, v33"); a("v_max_f32 v33, 0, v33")
    a("v_add_f32 v34, 0x3727c5ac, v33"); a("v_rsq_f32 v35, v34")
    a("s_nop 0")
    a("v_mul_f32 v36, v35, v35"); a("v_mul_f32 v36, v36, v33")
    a("v_add_f32 v36, 0x3727c5ac, v36"); a("v_rsq_f32 v36, v36")
    a("s_nop 0")
    a("v_mul_f32 v34, v35, v36"); a("v_mul_f32 v35, v32, v34"); a("v_sub_f32 v35, 0, v35")
    a(f"v_add_u32 v6, {ST + 2048}, v5")
    a("ds_write_b64 v6, v[34:35]")
    a("s_waitcnt lgkmcnt(0)")
    a.label(lx)
    a("s_barrier")
    a(f"v_add_u32 v6, {ST + 2048}, v24")
    a("ds_read_b64 v[20:21], v6")
    a("s_waitcnt lgkmcnt(0)")
    for i in range(8): a(f"v_fma_f32 v{H+i}, v{H+i}, v20, v21")
    for j in range(4): a(f"v_cvt_pk_bf16_f32 v{HP+j}, v{H+2*j}, v{H+2*j+1}")
    a("v_lshrrev_b32 v5, 3, v24")
    a("v_bfe_u32 v6, v5, 1, 1"); a("v_lshlrev_b32 v6, 2, v6")
    a(f"s_lshl_b32 s46, s{s_kq}, 1"); a("v_xor_b32 v6, s46, v6")
    a("v_lshlrev_b32 v6, 4, v6"); a("v_lshlrev_b32 v5, 7, v5"); a("v_add_u32 v5, v5, v6")
    a("v_lshrrev_b32 v6, 5, v0"); a("v_lshlrev_b32 v6, 3, v6"); a("v_add_u32 v5, v5, v6")
    a(f"ds_write_b64 v5, {vr(HP,2)}"); a(f"ds_write_b64 v5, {vr(HP+2,2)} offset:16")
    a(f"s_lshl_b32 s46, s{s_tt}, 2")
    tr_lane_addr(a, 7, 5, 6, 'perm', colunit_sreg=46)
    a(f"s_lshl_b32 s46, s{s_kq}, 11"); a("v_add_u32 v7, s46, v7")
    a("s_waitcnt lgkmcnt(0)"); a("s_barrier")
    a("ds_read_b64_tr_b16 v[24:25], v7"); a("ds_read_b64_tr_b16 v[26:27], v7 offset:1024")
    a(f"s_lshl_b32 s46, s{s_cb}, 1"); a(f"s_add_u32 s46, s46, s{s_tt}"); a("s_lshl_b32 s46, s46, 7")
    a(f"s_lshl_b32 s47, s{s_tb}, 2"); a("s_add_u32 s46, s46, s47"); a(f"s_add_u32 s46, s46, s{s_kq}")
    a("s_lshl_b32 s46, s46, 10"); a(f"s_add_u32 s46, s46, {LF}")
    a("s_waitcnt lgkmcnt(0)")
    a(f"buffer_store_dwordx4 v[24:27], v1, s[{SWS}:{SWS+3}], s46 offen{SC()}")

def big_gemm(a, nst, act_base_sregs, SWS, SW, VWD, w_stage_stride, s_sub, s_kq, act_is_B, ACC, dep=None):
    VL, VT, AF, WF = 4, 6, 96, 112
    a("v_lshlrev_b32 v1, 4, v0")
    a("s_lshl_b32 s50, s3, 11")
    a("s_lshl_b32 s51, s3, 11"); a("s_add_u32 s51, s51, 16384")
    def issue_act(s):
        slot = (s & 3) * 32768
        for dt in range(2):
            a(f"s_add_u32 s52, s{act_base_sregs[dt]}, {s*8192}")
            dma(a, 1, SWS, 52, (50, slot + dt * 1024), flags=SC())
    def issue_w(s):
        slot = (s & 3) * 32768
        for i in range(2):
            a(f"s_mov_b32 s52, {s*w_stage_stride + i*(w_stage_stride//16)}")
            dma(a, VWD, SW, 52, (51, slot + i * 1024))
    def issue(s): issue_act(s); issue_w(s)
    for s in range(4): issue_w(s)
    if dep: dep(a)
    for s in range(4): issue_act(s)
    a(f"s_lshl_b32 s46, s{s_kq}, 12"); a(f"v_add_u32 v{VL}, s46, v1"); a(f"v_add_u32 v{VL+1}, 0x10000, v{VL}")
    a(f"s_lshl_b32 s46, s{s_sub}, 2")
    tr_lane_addr(a, VT, 2, 3, 'perm', colunit_sreg=46)
    a(f"s_lshl_b32 s46, s{s_kq}, 12"); a("s_add_u32 s46, s46, 16384")
    a(f"v_add_u32 v{VT}, s46, v{VT}"); a(f"v_add_u32 v{VT+1}, 0x10000, v{VT}")
    for i in range(32): a(f"v_mov_b32 v{ACC+i}, 0")
    def reads(n):
        s, k = n >> 1, n & 1
        slot = s & 3; hi = slot >> 1; off = (slot & 1) * 32768
        par = n & 1
        for dt in range(2):
            a(f"ds_read_b128 {vr(AF + 8*par + 4*dt, 4)}, v{VL+hi} offset:{off + k*2048 + dt*1024}")
        a(f"ds_read_b64_tr_b16 {vr(WF + 4*par, 2)}, v{VT+hi} offset:{off + k*2048}")
        a(f"ds_read_b64_tr_b16 {vr(WF + 4*par + 2, 2)}, v{VT+hi} offset:{off + k*2048 + 1024}")
    a("s_waitcnt vmcnt(6)"); a("s_barrier")
    reads(0)
    N = 2 * nst
    for n in range(N):
        s, k = n >> 1, n & 1
        if k == 1 and s < nst - 1:
            if s <= 2: vm = {0: 4, 1: 2, 2: 4}[s]
            else: vm = 4 * (min(nst - 1, s + 2) - (s + 1))
            a(f"s_waitcnt vmcnt({vm})"); a("s_barrier")
            if s >= 1 and s + 3 < nst: issue(s + 3)
        if n < N - 1:
            reads(n + 1); a("s_waitcnt lgkmcnt(4)")
        else:
            a("s_waitcnt lgkmcnt(0)")
        par = n & 1
        for dt in range(2):
            if act_is_B: mfma(a, ACC + 16 * dt, WF + 4 * par, AF + 8 * par + 4 * dt)
            else: mfma(a, ACC + 16 * dt, AF + 8 * par + 4 * dt, WF + 4 * par)
    a("s_nop 7"); a("s_nop 3")

P45_LDS = 131072
def phase4(a, hooks=None):
    hooks = hooks or {}
    s_db, s_fb, s_ft, s_kq = 26, 27, 44, 45
    SW, SWS, SB = 28, 36, 32
    ACC = 64
    a("s_and_b32 s46, s2, 7"); a("s_lshr_b32 s47, s2, 3")
    a("s_and_b32 s48, s46, 1"); a("s_lshl_b32 s48, s48, 2"); a("s_and_b32 s49, s47, 3"); a(f"s_add_u32 s{s_db}, s48, s49")
    a("s_lshr_b32 s48, s46, 1"); a("s_mul_i32 s48, s48, 7"); a("s_lshr_b32 s49, s47, 2"); a(f"s_add_u32 s{s_fb}, s48, s49")
    a(f"s_and_b32 s{s_ft}, s3, 1"); a(f"s_lshr_b32 s{s_kq}, s3, 1")
    srd(a, SW, P_W1, 2048 * 1792 * 2); srd(a, SWS, P_WS, WS_SIZE); srd(a, SB, P_B1, 1792 * 2)
    dma_row_voff(a, 10, 2, 3, 3584)
    a("s_mul_i32 s46, s3, %d" % (16 * 3584)); a(f"s_lshl_b32 s47, s{s_fb}, 7"); a("s_add_u32 s46, s46, s47"); a("v_add_u32 v10, s46, v10")
    a(f"s_lshl_b32 s46, s{s_db}, 18"); a("s_lshl_b32 s47, s3, 10"); a("s_add_u32 s46, s46, s47")
    a(f"s_add_u32 s54, s46, {LF}"); a(f"s_add_u32 s55, s46, {LF + 128*1024}")
    a(f"s_lshl_b32 s46, s{s_fb}, 7"); a(f"s_lshl_b32 s47, s{s_ft}, 6"); a("s_add_u32 s46, s46, s47")
    a(f"s_and_b32 s47, s{s_kq}, 1"); a("s_lshl_b32 s47, s47, 5"); a("s_add_u32 s46, s46, s47")
    a("v_lshrrev_b32 v2, 5, v0"); a("v_lshlrev_b32 v2, 3, v2")
    a(f"buffer_load_dwordx2 v[12:13], v2, s[{SB}:{SB+3}], s46 offen"); a(f"buffer_load_dwordx2 v[14:15], v2, s[{SB}:{SB+3}], s46 offen offset:16")
    big_gemm(a, 16, (54, 55), SWS, SW, 10, 128 * 3584, s_ft, s_kq, True, ACC, hooks.get("dep"))
    reduce_scatter(a, ACC, s_ft, s_kq, 5, 112, 0)
    for j in range(4):
        a(f"v_lshlrev_b32 v{16+2*j}, 16, v{12+j}"); a(f"v_and_b32 v{17+2*j}, 0xffff0000, v{12+j}")
    for i in range(8): a(f"v_add_f32 v{ACC+i}, v{ACC+i}, v{16+i}")
    a("s_mov_b32 s46, 0xc0135761")
    a("s_mov_b32 s47, 0xbdd2d3e8")
    a("v_mov_b32 v24, s46")
    for i in range(8): a(f"v_mul_f32 v{16+i}, v{ACC+i}, v{ACC+i}")
    for i in range(8): a(f"v_fma_f32 v{16+i}, v{16+i}, s47, v24")
    for i in range(8): a(f"v_mul_f32 v{16+i}, v{16+i}, v{ACC+i}")
    for i in range(8): a(f"v_exp_f32 v{16+i}, v{16+i}")
    for i in range(8): a(f"v_add_f32 v{16+i}, 1.0, v{16+i}")
    for i in range(8): a(f"v_rcp_f32 v{16+i}, v{16+i}")
    for i in range(8): a(f"v_mul_f32 v{16+i}, v{16+i}, v{ACC+i}")
    for j in range(4): a(f"v_cvt_pk_bf16_f32 v{28+j}, v{16+2*j}, v{17+2*j}")
    a(f"s_lshl_b32 s46, s{s_db}, 1"); a(f"s_lshr_b32 s47, s{s_kq}, 1"); a("s_add_u32 s46, s46, s47"); a("s_mul_i32 s46, s46, 112")
    a(f"s_lshl_b32 s47, s{s_fb}, 2"); a("s_add_u32 s46, s46, s47"); a(f"s_lshl_b32 s47, s{s_ft}, 1"); a("s_add_u32 s46, s46, s47")
    a(f"s_and_b32 s47, s{s_kq}, 1"); a("s_add_u32 s46, s46, s47"); a("s_lshl_b32 s46, s46, 10"); a(f"s_add_u32 s46, s46, {UF}")
    a(f"buffer_store_dwordx4 v[28:31], v1, s[{SWS}:{SWS+3}], s46 offen{SC()}")

def phase5(a, hooks=None):
    hooks = hooks or {}
    s_db, s_sb, s_st, s_kq = 26, 27, 44, 45
    SW, SWS, SB, SO = 28, 36, 32, 40
    ACC = 64
    a("; ---- P5: out = h + (u w2 + b2)^T")
    a("s_and_b32 s46, s2, 7"); a("s_lshr_b32 s47, s2, 3")
    a("s_lshl_b32 s48, s46, 2"); a("s_lshr_b32 s49, s47, 3"); a(f"s_add_u32 s{s_sb}, s48, s49"); a(f"s_and_b32 s{s_db}, s47, 7")
    a(f"s_and_b32 s{s_st}, s3, 1"); a(f"s_lshr_b32 s{s_kq}, s3, 1")
    srd(a, SW, P_W2, 1792 * 2048 * 2); srd(a, SWS, P_WS, WS_SIZE); srd(a, SB, P_B2, 2048 * 2); srd(a, SO, P_OUT, 2048 * 512 * 2)
    dma_row_voff(a, 10, 2, 3, 4096)
    a("s_lshl_b32 s46, s3, 16"); a(f"s_lshl_b32 s47, s{s_sb}, 7"); a("s_add_u32 s46, s46, s47"); a("v_add_u32 v10, s46, v10")
    a(f"s_mul_i32 s46, s{s_db}, {2*112*1024}"); a("s_lshl_b32 s47, s3, 10"); a("s_add_u32 s46, s46, s47")
    a(f"s_add_u32 s54, s46, {UF}"); a(f"s_add_u32 s55, s46, {UF + 112*1024}")
    a(f"s_lshl_b32 s46, s{s_sb}, 1"); a(f"s_add_u32 s58, s46, s{s_st}")
    a("v_and_b32 v2, 31, v0"); a("s_lshl_b32 s46, s58, 5"); a("v_add_u32 v11, s46, v2")
    a("v_lshlrev_b32 v2, 1, v11")
    a(f"buffer_load_ushort v12, v2, s[{SB}:{SB+3}], 0 offen")
    a("s_lshl_b32 s46, s58, 5"); a(f"s_lshl_b32 s47, s{s_db}, 2"); a("s_add_u32 s46, s46, s47"); a(f"s_add_u32 s46, s46, s{s_kq}")
    a("s_lshl_b32 s46, s46, 10"); a(f"s_add_u32 s46, s46, {HF}")
    a("v_lshlrev_b32 v2, 4, v0")
    if cfg.persist:
        for j in range(4): a(f"v_mov_b32 v{16+j}, v{V_HP+j}")
    else:
        a(f"buffer_load_dwordx4 v[16:19], v2, s[{SWS}:{SWS+3}], s46 offen")
    big_gemm(a, 14, (54, 55), SWS, SW, 10, 128 * 4096, s_st, s_kq, False, ACC, hooks.get("dep"))
    reduce_scatter(a, ACC, s_st, s_kq, 5, 112, 0)
    a("v_lshlrev_b32 v12, 16, v12")
    for j in range(4):
        a(f"v_lshlrev_b32 v{20+2*j}, 16, v{16+j}"); a(f"v_and_b32 v{21+2*j}, 0xffff0000, v{16+j}")
    for i in range(8): a(f"v_add_f32 v{ACC+i}, v{ACC+i}, v12")
    for i in range(8): a(f"v_add_f32 v{ACC+i}, v{ACC+i}, v{20+i}")
    for j in range(4): a(f"v_cvt_pk_bf16_f32 v{28+j}, v{ACC+2*j}, v{ACC+2*j+1}")
    a("s_nop 1")
    a("v_permlane32_swap_b32 v28, v30"); a("v_permlane32_swap_b32 v29, v31")
    a("v_lshlrev_b32 v11, 10, v11"); a("v_lshrrev_b32 v2, 5, v0"); a("v_lshlrev_b32 v2, 4, v2"); a("v_add_u32 v11, v11, v2")
    a(f"s_lshl_b32 s46, s{s_db}, 7"); a(f"s_lshl_b32 s47, s{s_kq}, 5"); a("s_add_u32 s46, s46, s47")
    a(f"buffer_store_dwordx4 v[28:31], v11, s[{SO}:{SO+3}], s46 offen")
```

```python
import sys
from asmlib import *
import phases
from phases import *
NAME = "sequential_preLN__mha_block__mixer_token_mlp__prompt"
HEADER = open("cdna_kernels/%s.s.ref" % NAME).read().split("; Override launch")[0]
KNAME = NAME + "_kernel"
SB_WS = 68
STAMP0 = 80

class Opt:
    stamps = False
    touch = True
    codepf = True
    stamp_wg = 0
opt = Opt()

def stamp(a, i):
    if opt.stamps:
        a("s_memrealtime s[72:73]"); a("s_waitcnt lgkmcnt(0)"); a(f"s_mov_b32 s{STAMP0+i}, s72")
        if i in (2, 9):
            a("s_memtime s[66:67]"); a("s_waitcnt lgkmcnt(0)"); a(f"s_mov_b32 s{STAMP0 + (10 if i == 2 else 11)}, s66")
        if i == 4:
            a("s_memtime s[66:67]"); a("s_waitcnt lgkmcnt(0)"); a(f"s_mov_b32 s{STAMP0 + 12}, s66")

def arrive(a, k, s_group):
    l = a.uid("L_arr")
    a("s_waitcnt vmcnt(0)"); a("s_barrier")
    a("s_cmp_lg_u32 s3, 0"); a(f"s_cbranch_scc1 {l}")
    a(f"s_lshl_b32 s60, s{s_group}, 8"); a(f"s_add_u32 s60, s60, {CNT + k*2048}")
    a("v_mov_b32 v250, 1"); a("v_mov_b32 v251, 0")
    a("v_cmp_eq_u32 vcc, 0, v0"); a("s_and_saveexec_b64 s[62:63], vcc")
    a(f"buffer_atomic_add v250, v251, s[{SB_WS}:{SB_WS+3}], s60 offen")
    a("s_mov_b64 exec, s[62:63]")
    a.label(l)

def make_wait(k, s_group, target, st=None):
    def dep(a):
        l, lp = a.uid("L_wait"), a.uid("L_poll")
        a("s_cmp_lg_u32 s3, 0"); a(f"s_cbranch_scc1 {l}")
        a(f"s_lshl_b32 s60, s{s_group}, 8"); a(f"s_add_u32 s60, s60, {CNT + k*2048}")
        a("v_mov_b32 v251, 0"); a("s_mov_b32 s61, 0")
        a.label(lp)
        a(f"buffer_load_dword v250, v251, s[{SB_WS}:{SB_WS+3}], s60 offen sc1")
        a("s_waitcnt vmcnt(0)")
        a("v_readfirstlane_b32 s64, v250")
        a("s_add_u32 s61, s61, 1")
        a(f"s_cmp_ge_u32 s64, {target}"); a(f"s_cbranch_scc1 {l}")
        a("s_cmp_lt_u32 s61, 0x200000"); a(f"s_cbranch_scc1 {lp}")
        a.label(l)
        a("s_barrier")
        if st is not None: stamp(a, st)
    return dep

def build():
    phases.cfg.persist = True
    a = Asm()
    a.label(KNAME)
    end = "L_end"
    if opt.stamps: a("s_memrealtime s[74:75]")
    prologue(a, 256, end)
    if opt.stamps: a(f"s_mov_b32 s{STAMP0}, s74")
    srd(a, SB_WS, P_WS, WS_SIZE)
    srd(a, 76, P_DBG, 256)
    a("v_mov_b32 v248, 252"); a("v_mov_b32 v247, 0")
    if opt.codepf:
        lc = a.uid("L_cpf")
        a("s_cmp_ge_u32 s3, 4"); a(f"s_cbranch_scc1 {lc}")
        a("s_getpc_b64 s[62:63]")
        a.label("L_pcbase")
        a("s_lshl_b32 s60, s3, 13"); a("v_lshlrev_b32 v2, 7, v0"); a("v_add_u32 v2, s60, v2")
        a("s_mov_b32 s61, L_codeend-L_pcbase"); a("v_min_u32 v2, s61, v2")
        a("global_load_dword v249, v2, s[62:63]")
        a.label(lc)
    lz = a.uid("L_zero")
    a("s_cmp_lg_u32 s2, 0"); a(f"s_cbranch_scc1 {lz}")
    a("s_cmp_lg_u32 s3, 7"); a(f"s_cbranch_scc1 {lz}")
    a("v_lshlrev_b32 v2, 8, v0"); a("v_mov_b32 v3, 0")
    a("v_cmp_gt_u32 vcc, 32, v0"); a("s_and_saveexec_b64 s[62:63], vcc")
    a(f"s_mov_b32 s60, {CNT}")
    a(f"buffer_store_dword v3, v2, s[{SB_WS}:{SB_WS+3}], s60 offen sc1")
    a("s_waitcnt vmcnt(0)")
    a("s_mov_b64 exec, s[62:63]")
    a("v_mov_b32 v3, 1"); a("v_mov_b32 v2, 252")
    a("v_cmp_eq_u32 vcc, 0, v0"); a("s_and_saveexec_b64 s[62:63], vcc")
    a("buffer_store_dword v3, v2, s[76:79], 0 offen sc1")
    a("s_mov_b64 exec, s[62:63]")
    a.label(lz)

    def pre_store(a):
        l = a.uid("L_zf")
        a("s_cmp_lg_u32 s3, 0"); a(f"s_cbranch_scc1 {l}")
        a("buffer_load_dword v247, v248, s[76:79], 0 offen sc1")
        a.label(l)
    phase1(a, {"pre_store": pre_store})
    stamp(a, 1)
    l, lp = a.uid("L_zc"), a.uid("L_zp")
    a("s_cmp_lg_u32 s3, 0"); a(f"s_cbranch_scc1 {l}")
    a("s_mov_b32 s61, 0")
    a.label(lp)
    a("s_waitcnt vmcnt(0)")
    a("v_readfirstlane_b32 s64, v247"); a("s_add_u32 s61, s61, 1")
    a("s_cmp_lg_u32 s64, 0"); a(f"s_cbranch_scc1 {l}")
    a("buffer_load_dword v247, v248, s[76:79], 0 offen sc1")
    a("s_cmp_lt_u32 s61, 0x200000"); a(f"s_cbranch_scc1 {lp}")
    a.label(l)
    arrive(a, 0, 27)
    def touch(a):
        if not opt.touch: return 0
        n = 0
        a("s_and_b32 s60, s2, 7"); a("s_lshr_b32 s61, s2, 3")
        srd(a, 28, P_W1, 2048 * 1792 * 2); srd(a, 32, P_W2, 1792 * 2048 * 2); srd(a, 40, P_WO, 512 * 512 * 2)
        a("s_lshr_b32 s62, s60, 1"); a("s_mul_i32 s62, s62, 7"); a("s_lshr_b32 s63, s61, 2"); a("s_add_u32 s62, s62, s63"); a("s_lshl_b32 s62, s62, 7")
        a("s_lshl_b32 s63, s3, 8"); a("v_add_u32 v240, s63, v0")
        a("s_mov_b32 s64, 3584"); a("v_mul_lo_u32 v241, v240, s64"); a("v_add_u32 v241, s62, v241")
        for i in range(4):
            a(f"s_mov_b32 s64, {i*64*3584}"); a("buffer_load_dword v249, v241, s[28:31], s64 offen"); n += 1
        a("s_lshl_b32 s62, s60, 2"); a("s_lshr_b32 s63, s61, 3"); a("s_add_u32 s62, s62, s63"); a("s_lshl_b32 s62, s62, 7")
        a("s_mul_i32 s63, s3, 224"); a("v_add_u32 v240, s63, v0"); a("v_lshlrev_b32 v241, 12, v240"); a("v_add_u32 v241, s62, v241")
        for i in range(4):
            a(f"s_mov_b32 s64, {i*64*4096}"); a("buffer_load_dword v249, v241, s[32:35], s64 offen"); n += 1
        a("s_and_b32 s62, s61, 7"); a("s_lshl_b32 s62, s62, 7")
        a("s_lshl_b32 s63, s3, 6"); a("v_add_u32 v240, s63, v0"); a("v_lshlrev_b32 v241, 10, v240"); a("v_add_u32 v241, s62, v241")
        a("buffer_load_dword v249, v241, s[40:43], 0 offen"); n += 1
        return n
    def dep2(a):
        a("s_and_b32 s65, s2, 7")
        make_wait(0, 65, 32, 2)(a)
    phase2(a, {"dep": dep2, "touch": touch})
    stamp(a, 3)
    if opt.stamps:
        a("s_lshl_b32 s61, s2, 3"); a("s_add_u32 s61, s61, s3"); a("s_lshl_b32 s61, s61, 3"); a("s_add_u32 s61, s61, 0xF10000")
        a("v_mov_b32 v2, s72"); a("v_mov_b32 v3, s55"); a("v_mov_b32 v250, 0")
        a(f"buffer_store_dwordx2 v[2:3], v250, s[{SB_WS}:{SB_WS+3}], s61 offen")
    arrive(a, 1, 27)
    def dep3(a):
        a("s_and_b32 s65, s2, 7")
        make_wait(1, 65, 32, 4)(a)
    phase3(a, {"dep": dep3})
    stamp(a, 5)
    arrive(a, 2, 27)
    l5 = a.uid("L_skip4")
    a("s_cmp_ge_u32 s2, 224"); a(f"s_cbranch_scc1 {l5}")
    phase4(a, {"dep": make_wait(2, 26, 32, 6)})
    stamp(a, 7)
    arrive(a, 3, 26)
    a.label(l5)
    phase5(a, {"dep": make_wait(3, 26, 28, 8)})
    if opt.stamps:
        a("s_waitcnt vmcnt(0)")
        stamp(a, 9)
        ls = a.uid("L_st")
        a("s_cmp_lg_u32 s3, 0"); a(f"s_cbranch_scc1 {ls}")
        a("s_lshl_b32 s61, s2, 6"); a("s_add_u32 s61, s61, 0xF00000"); a("v_mov_b32 v3, 0")
        for i in range(13):
            a(f"v_mov_b32 v2, s{STAMP0+i}")
            a(f"buffer_store_dword v2, v3, s[{SB_WS}:{SB_WS+3}], s61 offen offset:{4*i}")
        a(f"s_cmp_lg_u32 s2, {opt.stamp_wg}"); a(f"s_cbranch_scc1 {ls}")
        for i in range(12):
            a(f"s_sub_u32 s60, s{STAMP0+i}, s74"); a(f"v_mov_b32 v2, s60"); a(f"v_mov_b32 v3, {4*i}")
            a("buffer_store_dword v2, v3, s[76:79], 0 offen")
        a.label(ls)
    a.label(end)
    a.label("L_codeend")
    a("s_endpgm")
    body = a.text()
    probs = check_hazards(body)
    for p in probs: print(p, file=sys.stderr)
    desc = f""".amdhsa_kernel {KNAME}
  .amdhsa_next_free_vgpr 256
  .amdhsa_next_free_sgpr 96
  .amdhsa_accum_offset 256
  .amdhsa_group_segment_fixed_size 0
  .amdhsa_kernarg_size 88
  .amdhsa_user_sgpr_count 2
  .amdhsa_user_sgpr_kernarg_segment_ptr 1
  .amdhsa_system_sgpr_workgroup_id_x 1
  .amdhsa_float_denorm_mode_32 3
.end_amdhsa_kernel
"""
    return (HEADER + "; @launch grid=(256,1,1) block=(512,1,1) lds=163840\n"
            + '.amdgcn_target "amdgcn-amd-amdhsa--gfx950"\n.text\n'
            + f".globl {KNAME}\n.p2align 8\n.type {KNAME},@function\n" + body
            + '.section .rodata,"a"\n.p2align 6\n' + desc)

if __name__ == "__main__":
    import argparse
    ap = argparse.ArgumentParser()
    ap.add_argument("-o", default=f"cdna_kernels/{NAME}.s")
    ap.add_argument("--stamps", action="store_true")
    ap.add_argument("--stamp-wg", type=int, default=0)
    ap.add_argument("--no-touch", action="store_true")
    ap.add_argument("--no-codepf", action="store_true")
    args = ap.parse_args()
    opt.stamps = args.stamps; opt.touch = not args.no_touch; opt.codepf = not args.no_codepf; opt.stamp_wg = args.stamp_wg
    open(args.o, "w").write(build())
    print("wrote", args.o)
```

```python
import re

class Asm:
    def __init__(self):
        self.lines = []
        self._uid = 0
    def __call__(self, s):
        for ln in s.strip("\n").split("\n"):
            ln = ln.rstrip()
            if ln.strip():
                self.lines.append(ln if ln.strip().endswith(":") and not ln.strip().startswith(";") else "    " + ln.strip())
    def label(self, name):
        self.lines.append(name + ":")
    def uid(self, base):
        self._uid += 1
        return f"{base}_{self._uid}"
    def text(self):
        return "\n".join(self.lines) + "\n"

class VMQ:
    def __init__(self): self.q = []
    def issue(self, tag, n=1): self.q += [tag] * n
    def wait(self, a, tag, extra=""):
        if tag not in self.q:
            if extra: a("s_waitcnt" + extra)
            return
        last = len(self.q) - 1 - self.q[::-1].index(tag)
        n = len(self.q) - 1 - last
        assert n <= 63
        a(f"s_waitcnt vmcnt({n}){extra}")
        self.q = self.q[last + 1:]
    def drain(self, a):
        a("s_waitcnt vmcnt(0)"); self.q = []

def vr(b, n=1):
    return f"v{b}" if n == 1 else f"v[{b}:{b+n-1}]"
def sr(b, n=1):
    return f"s{b}" if n == 1 else f"s[{b}:{b+n-1}]"

_REG = re.compile(r"\b([vsa])(\d+)\b|\b([vsa])\[(\d+):(\d+)\]")
def regs(tok):
    out = set()
    for m in _REG.finditer(tok):
        if m.group(1):
            out.add((m.group(1), int(m.group(2))))
        else:
            for i in range(int(m.group(4)), int(m.group(5)) + 1):
                out.add((m.group(3), i))
    if re.search(r"\bvcc\b", tok): out |= {("s", "vcc")}
    if re.search(r"\bm0\b", tok): out |= {("s", "m0")}
    if re.search(r"\bexec\b", tok): out |= {("s", "exec")}
    return out

TRANS = ("v_exp_", "v_log_", "v_rcp_", "v_rsq_", "v_sqrt_", "v_sin_", "v_cos_")
class Ins:
    def __init__(self, text, idx):
        self.text = text; self.idx = idx
        t = text.split(";")[0].strip()
        self.op = t.split()[0]
        rest = t[len(self.op):].strip()
        self.ops = [o.strip() for o in re.split(r",(?![^\[]*\])", rest)] if rest else []
        op = self.op
        self.is_mfma = op.startswith("v_mfma") or op.startswith("v_smfmac")
        self.is_valu = op.startswith("v_") and not self.is_mfma
        self.is_salu = op.startswith("s_") and not op.startswith(("s_load", "s_waitcnt", "s_nop", "s_barrier", "s_buffer_load"))
        self.is_vmem = op.startswith(("buffer_", "global_", "flat_"))
        self.is_ds = op.startswith("ds_")
        self.is_trans = op.startswith(TRANS)
        self.dst = set(); self.src = set()
        ops = self.ops
        if self.is_mfma:
            self.dst = regs(ops[0]); self.srcA = regs(ops[1]); self.srcB = regs(ops[2]); self.srcC = regs(ops[3])
            self.src = self.srcA | self.srcB | self.srcC
            self.passes = 8 if "32x32" in op else 4
        elif self.is_valu:
            if op.startswith("v_cmpx"):
                self.dst = regs(ops[0]) | {("s", "exec")}; self.src = set().union(*[regs(o) for o in ops[1:]])
            elif op.startswith("v_cmp"):
                self.dst = regs(ops[0]); self.src = set().union(*[regs(o) for o in ops[1:]])
            elif op.startswith("v_permlane") and "swap" in op:
                self.dst = regs(ops[0]) | regs(ops[1]); self.src = set(self.dst)
            elif op.startswith(("v_add_co", "v_sub_co", "v_addc_co", "v_subb_co", "v_div_scale")):
                self.dst = regs(ops[0]) | regs(ops[1]); self.src = set().union(*[regs(o) for o in ops[2:]])
            else:
                self.dst = regs(ops[0]); self.src = set().union(*[regs(o) for o in ops[1:]]) if len(ops) > 1 else set()
                if op.startswith(("v_fmac", "v_dot2c", "v_mac", "v_pk_fmac")) or "UNUSED_PRESERVE" in t or "_dpp" in op or " row_" in t or "quad_perm" in t:
                    self.src |= self.dst
                if op.startswith("v_cndmask") and len(ops) == 3: self.src |= {("s", "vcc")}
        elif self.is_vmem:
            if "_load" in op and " lds" not in t and "_lds_" not in op:
                self.dst = regs(ops[0]); self.src = set().union(*[regs(o.split()[0]) for o in ops[1:]])
            elif "atomic" in op:
                self.src = set().union(*[regs(o.split()[0]) for o in ops]);
                if " sc0" in t: self.dst = regs(ops[0])
            else:
                self.src = set().union(*[regs(o.split()[0]) for o in ops]) if ops else set()
                if " lds" in t or "_lds_" in op: self.src |= {("s", "m0")}
        elif self.is_ds:
            if op.startswith(("ds_read", "ds_bpermute", "ds_permute", "ds_swizzle")):
                self.dst = regs(ops[0]); self.src = set().union(*[regs(o.split()[0]) for o in ops[1:]])
            else:
                self.src = set().union(*[regs(o.split()[0]) for o in ops])
        elif op.startswith("s_load") or op.startswith("s_mem"):
            self.dst = regs(ops[0]); self.src = set().union(*[regs(o) for o in ops[1:]]) if len(ops) > 1 else set()
        elif self.is_salu:
            if op.startswith(("s_cmp", "s_cbranch", "s_branch", "s_setprio", "s_sleep", "s_endpgm", "s_bitcmp")):
                self.src = set().union(*[regs(o) for o in ops]) if ops else set()
            else:
                self.dst = regs(ops[0]); self.src = set().union(*[regs(o) for o in ops[1:]]) if len(ops) > 1 else set()
                if "saveexec" in op: self.dst |= {("s", "exec")}; self.src |= {("s", "exec")}
        self.nstates = 1
        if op == "s_nop": self.nstates = int(ops[0], 0) + 1
        self.wide_store = self.is_vmem and "store" in op and ("x3" in op or "x4" in op)
        self.store_data = regs(ops[0]) if (self.wide_store and op.startswith("buffer")) else (regs(ops[1]) if self.wide_store else set())

def vonly(s): return {r for r in s if r[0] in "va"}
def sonly(s): return {r for r in s if r[0] == "s"}

def need(p, c):
    n = 0
    if p.is_valu:
        w = vonly(p.dst); ws = sonly(p.dst)
        if c.is_mfma and (w & c.src): n = max(n, 2)
        if c.is_mfma and ("s", "exec") in ws: n = max(n, 4)
        if p.is_trans and c.is_valu and not c.is_trans and (w & c.src): n = max(n, 1)
        if p.is_trans and c.is_mfma and (w & c.src): n = max(n, 2)
        if c.op.startswith("v_permlane") and (w & c.src): n = max(n, 2)
        if c.op.startswith(("v_readlane", "v_readfirstlane")) and (w & c.src): n = max(n, 1)
        if c.is_valu and ("_dpp" in c.op or " row_" in c.text or "quad_perm" in c.text) and (w & (c.src)): n = max(n, 2)
        if c.is_valu and ("_dpp" in c.op or " row_" in c.text or "quad_perm" in c.text) and ("s", "exec") in ws: n = max(n, 5)
        if ws and c.is_vmem and (ws & c.src): n = max(n, 5)
        if ws and c.is_valu and (ws & c.src): n = max(n, 2)
        if ws and c.op.startswith(("v_readlane", "v_writelane")) and (ws & c.src): n = max(n, 4)
        if ("sdwa" in p.op) and c.is_valu and (w & c.src): n = max(n, 1)
    if p.is_mfma:
        d = p.dst
        big = {4: 8, 8: 12}[p.passes]
        if c.is_mfma:
            if d & (c.srcA | c.srcB): n = max(n, big)
            if d & c.srcC and not (c.srcC == d and c.passes == p.passes): n = max(n, {4: 6, 8: 10}[p.passes])
            if d & c.dst and not (c.dst == d and c.srcC == d): n = max(n, {4: 6, 8: 10}[p.passes]) if c.srcC != d else n
        elif (c.is_valu or c.is_vmem or c.is_ds) and (d & (c.src | c.dst)): n = max(n, big)
        if c.is_valu and (p.srcC & vonly(c.dst)): n = max(n, {4: 3, 8: 7}[p.passes])
    if p.wide_store and (c.is_valu) and (p.store_data & vonly(c.dst)): n = max(n, 2)
    if p.wide_store and not c.is_valu and (p.store_data & vonly(c.dst)): n = max(n, 1)
    if p.is_salu and ("s", "m0") in p.dst and c.is_vmem and ("s", "m0") in c.src: n = max(n, 1)
    return n

def check_hazards(text, window=14):
    ins = []; labels = {}
    for ln in text.split("\n"):
        t = ln.split(";")[0].strip()
        if not t or t.startswith("."): continue
        if t.endswith(":"):
            labels[t[:-1]] = len(ins); continue
        ins.append(Ins(t, len(ins)))
    succ = []
    for i, x in enumerate(ins):
        s = []
        if x.op == "s_endpgm": pass
        elif x.op == "s_branch": s = [labels[x.ops[0]]]
        elif x.op.startswith("s_cbranch"): s = [i + 1, labels[x.ops[0]]]
        else: s = [i + 1]
        succ.append([j for j in s if j < len(ins)])
    problems = []
    for i, p in enumerate(ins):
        if not (p.is_valu or p.is_mfma or p.wide_store or (p.is_salu and ("s", "m0") in p.dst)): continue
        seen = {}
        stack = [(j, 0) for j in succ[i]]
        while stack:
            j, dist = stack.pop()
            if dist >= window or seen.get(j, 99) <= dist: continue
            seen[j] = dist
            c = ins[j]
            nd = need(p, c)
            if nd > dist:
                problems.append(f"HAZARD need {nd} have {dist}: [{p.idx}] {p.text}  ->  [{c.idx}] {c.text}")
            for k in succ[j]:
                stack.append((k, dist + c.nstates))
    return problems
```

```python
import sys
from asmlib import *
import phases
from phases import *
NAME = "sequential_preLN__mha_block__mixer_token_mlp__prompt"
HEADER = open("cdna_kernels/%s.s.ref" % NAME).read().split("; Override launch")[0]
KNAME = NAME + "_kernel"
SB_WS = 68
STAMP0 = 80

class Opt:
    stamps = False
    touch = True
    codepf = True
    stamp_wg = 0
    diag = None
opt = Opt()

def stamp(a, i, cyc=False, force=False):
    if getattr(opt, "endonly", False) and i not in (0, 12): return
    if getattr(opt, "p1stamps", False) and i in (4, 5, 6, 7) and not force: return
    if getattr(opt, "exp", None) == "p45" and i in (1, 4, 5, 13) and not force: return
    if getattr(opt, "exp", None) == "p4steps" and i in (1, 2, 3, 4, 5, 9, 10, 11, 12, 13) and not force: return
    if getattr(opt, "exp", None) == "p5steps" and i in (1, 2, 3, 4, 5, 6, 7, 10, 11, 13) and not force: return
    if getattr(opt, "exp", None) == "probes" and i in (1, 13) and not force: return
    if getattr(opt, "exp", None) == "chunks" and i in (8, 9, 10, 11, 12) and not force: return
    if opt.stamps:
        a(f"{'s_memtime' if cyc else 's_memrealtime'} s[72:73]"); a("s_waitcnt lgkmcnt(0)"); a(f"s_mov_b32 s{STAMP0+i}, s72")

def arrive(a, k, s_group, st=None):
    l = a.uid("L_arr")
    a("s_waitcnt vmcnt(0)")
    if st is not None: stamp(a, st)
    a("s_barrier")
    a("s_cmp_lg_u32 s3, 0"); a(f"s_cbranch_scc1 {l}")
    a(f"s_lshl_b32 s60, s{s_group}, 8"); a(f"s_add_u32 s60, s60, {CNT + k*2048}")
    a("v_mov_b32 v250, 1"); a("v_mov_b32 v251, 0")
    a("v_cmp_eq_u32 vcc, 0, v0"); a("s_and_saveexec_b64 s[62:63], vcc")
    a(f"buffer_atomic_add v250, v251, s[{SB_WS}:{SB_WS+3}], s60 offen")
    a("s_mov_b64 exec, s[62:63]")
    a.label(l)

def make_wait(k, s_group, target, st=None):
    def dep(a):
        l, lp = a.uid("L_wait"), a.uid("L_poll")
        a("s_cmp_lg_u32 s3, 0"); a(f"s_cbranch_scc1 {l}")
        a(f"s_lshl_b32 s60, s{s_group}, 8"); a(f"s_add_u32 s60, s60, {CNT + k*2048}")
        a("v_mov_b32 v251, 0"); a("s_mov_b32 s61, 0")
        a.label(lp)
        a(f"buffer_load_dword v250, v251, s[{SB_WS}:{SB_WS+3}], s60 offen sc1")
        a("s_waitcnt vmcnt(0)")
        a("v_readfirstlane_b32 s64, v250")
        a("s_add_u32 s61, s61, 1")
        a(f"s_cmp_ge_u32 s64, {target}"); a(f"s_cbranch_scc1 {l}")
        a("s_cmp_lt_u32 s61, 0x200000"); a(f"s_cbranch_scc1 {lp}")
        a.label(l)
        a("s_barrier")
        if st is not None: stamp(a, st)
    return dep

def build():
    phases.cfg.persist = True
    a = Asm()
    a.label(KNAME)
    end = "L_end"
    if opt.stamps: a("s_memrealtime s[74:75]")
    prologue(a, 256, end)
    if opt.stamps:
        for i in range(1, 16): a(f"s_mov_b32 s{STAMP0+i}, 0")
        a(f"s_mov_b32 s{STAMP0}, s74")
    if opt.diag == "pad100":
        a("s_memrealtime s[90:91]"); a("s_waitcnt lgkmcnt(0)")
    if opt.diag == "cyc_start":
        a("s_mov_b32 s90, 2000"); a.label("L_dg"); a("s_nop 7"); a("s_nop 7"); a("s_nop 7"); a("s_nop 7"); a("s_sub_u32 s90, s90, 1"); a("s_cmp_lg_u32 s90, 0"); a("s_cbranch_scc1 L_dg")
    srd(a, SB_WS, P_WS, WS_SIZE)
    srd(a, 76, P_DBG, 256)
    a("v_mov_b32 v248, 252"); a("v_mov_b32 v247, 0")
    if opt.codepf:
        lc = a.uid("L_cpf")
        a("s_getpc_b64 s[62:63]")
        a.label("L_pcbase")
        a("s_lshl_b32 s60, s3, 13"); a("v_lshlrev_b32 v2, 7, v0"); a("v_add_u32 v2, s60, v2")
        a("s_mov_b32 s61, L_codeend-L_pcbase"); a("v_min_u32 v2, s61, v2")
        a("global_load_dword v249, v2, s[62:63]")
        a.label(lc)
    lz = a.uid("L_zero")
    a("s_cmp_lg_u32 s2, 0"); a(f"s_cbranch_scc1 {lz}")
    a("s_cmp_lg_u32 s3, 7"); a(f"s_cbranch_scc1 {lz}")
    a("v_lshlrev_b32 v2, 8, v0"); a("v_mov_b32 v3, 0")
    a("v_cmp_gt_u32 vcc, 32, v0"); a("s_and_saveexec_b64 s[62:63], vcc")
    a(f"s_mov_b32 s60, {CNT}")
    a(f"buffer_store_dword v3, v2, s[{SB_WS}:{SB_WS+3}], s60 offen sc1")
    a("s_waitcnt vmcnt(0)")
    a("s_mov_b64 exec, s[62:63]")
    a("v_mov_b32 v3, 1"); a("v_mov_b32 v2, 252")
    a("v_cmp_eq_u32 vcc, 0, v0"); a("s_and_saveexec_b64 s[62:63], vcc")
    a("buffer_store_dword v3, v2, s[76:79], 0 offen sc1")
    a("s_mov_b64 exec, s[62:63]")
    a.label(lz)

    def pre_store(a):
        l = a.uid("L_zf")
        a("s_cmp_lg_u32 s3, 0"); a(f"s_cbranch_scc1 {l}")
        a("buffer_load_dword v247, v248, s[76:79], 0 offen sc1")
        a.label(l)
    phase1(a, {"pre_store": pre_store})
    stamp(a, 1)
    l, lp = a.uid("L_zc"), a.uid("L_zp")
    a("s_cmp_lg_u32 s3, 0"); a(f"s_cbranch_scc1 {l}")
    a("s_mov_b32 s61, 0")
    a.label(lp)
    a("s_waitcnt vmcnt(0)")
    a("v_readfirstlane_b32 s64, v247"); a("s_add_u32 s61, s61, 1")
    a("s_cmp_lg_u32 s64, 0"); a(f"s_cbranch_scc1 {l}")
    a("buffer_load_dword v247, v248, s[76:79], 0 offen sc1")
    a("s_cmp_lt_u32 s61, 0x200000"); a(f"s_cbranch_scc1 {lp}")
    a.label(l)
    arrive(a, 0, 27)
    def touch(a):
        if not opt.touch: return 0
        l = a.uid("L_notouch")
        a("s_cmp_ge_u32 s3, 4"); a(f"s_cbranch_scc1 {l}")
        a("s_and_b32 s60, s2, 7"); a("s_lshr_b32 s61, s2, 3")
        srd(a, 28, P_W1, 2048 * 1792 * 2); srd(a, 32, P_W2, 1792 * 2048 * 2); srd(a, 40, P_WO, 512 * 512 * 2)
        a("s_and_b32 s62, s61, 7"); a("s_lshl_b32 s62, s62, 7")
        a("s_lshl_b32 s63, s3, 7"); a("v_add_u32 v240, s63, v0"); a("v_lshlrev_b32 v241, 10, v240"); a("v_add_u32 v241, s62, v241")
        for i in range(2):
            a(f"s_mov_b32 s64, {i*64*1024}"); a("buffer_load_dword v249, v241, s[40:43], s64 offen")
        a("s_lshr_b32 s62, s60, 1"); a("s_mul_i32 s62, s62, 7"); a("s_lshr_b32 s63, s61, 2"); a("s_add_u32 s62, s62, s63"); a("s_lshl_b32 s62, s62, 7")
        a("s_lshl_b32 s63, s3, 9"); a("v_add_u32 v240, s63, v0")
        a("s_mov_b32 s64, 3584"); a("v_mul_lo_u32 v241, v240, s64"); a("v_add_u32 v241, s62, v241")
        for i in range(8):
            a(f"s_mov_b32 s64, {i*64*3584}"); a("buffer_load_dword v249, v241, s[28:31], s64 offen")
        a("s_lshl_b32 s62, s60, 2"); a("s_lshr_b32 s63, s61, 3"); a("s_add_u32 s62, s62, s63"); a("s_lshl_b32 s62, s62, 7")
        a("s_mul_i32 s63, s3, 448"); a("v_add_u32 v240, s63, v0"); a("v_lshlrev_b32 v241, 12, v240"); a("v_add_u32 v241, s62, v241")
        for i in range(7):
            a(f"s_mov_b32 s64, {i*64*4096}"); a("buffer_load_dword v249, v241, s[32:35], s64 offen")
        a.label(l)
        return 0
    def dep2(a):
        a("s_and_b32 s65, s2, 7")
        make_wait(0, 65, 32, 2)(a)
    phase2(a, {"dep": dep2, "after": (lambda a: touch(a)), "loop_start": lambda a: (stamp(a, 10), stamp(a, 14, True)), "loop_end": lambda a: (stamp(a, 15, True), stamp(a, 11))})
    stamp(a, 3)
    arrive(a, 1, 27)
    def dep3(a):
        a("s_and_b32 s65, s2, 7")
        make_wait(1, 65, 32, 4)(a)
    phase3(a, {"dep": dep3})
    stamp(a, 5)
    arrive(a, 2, 27)
    l5 = a.uid("L_skip4")
    a("s_cmp_ge_u32 s2, 224"); a(f"s_cbranch_scc1 {l5}")
    phase4(a, {"dep": make_wait(2, 26, 32, 6)})
    stamp(a, 7)
    arrive(a, 3, 26)
    a.label(l5)
    phase5(a, {"dep": make_wait(3, 26, 28, 8)})
    if opt.stamps:
        a("s_waitcnt vmcnt(0)")
        stamp(a, 9)
        ls = a.uid("L_st")
        a("s_lshl_b32 s61, s2, 3"); a("s_add_u32 s61, s61, s3"); a("s_lshl_b32 s61, s61, 6"); a("s_add_u32 s61, s61, 0xF00000"); a("v_mov_b32 v3, 0")
        for i in range(16):
            a(f"v_mov_b32 v2, s{STAMP0+i}")
            a(f"buffer_store_dword v2, v3, s[{SB_WS}:{SB_WS+3}], s61 offen offset:{4*i}")
        a(f"s_cmp_lg_u32 s2, {opt.stamp_wg}"); a(f"s_cbranch_scc1 {ls}"); a("s_cmp_lg_u32 s3, 0"); a(f"s_cbranch_scc1 {ls}")
        for i in range(14):
            a(f"s_sub_u32 s60, s{STAMP0+i}, s74"); a(f"v_mov_b32 v2, s60"); a(f"v_mov_b32 v3, {4*i}")
            a("buffer_store_dword v2, v3, s[76:79], 0 offen")
        a.label(ls)
    if opt.diag == "pad100":
        a.label("L_dg"); a("s_memrealtime s[92:93]"); a("s_waitcnt lgkmcnt(0)"); a("s_sub_u32 s92, s92, s90"); a("s_cmp_lt_u32 s92, 10000"); a("s_cbranch_scc1 L_dg")
    if opt.diag == "cyc_end":
        a("s_mov_b32 s90, 2000"); a.label("L_dg"); a("s_nop 7"); a("s_nop 7"); a("s_nop 7"); a("s_nop 7"); a("s_sub_u32 s90, s90, 1"); a("s_cmp_lg_u32 s90, 0"); a("s_cbranch_scc1 L_dg")
    a.label(end)
    a.label("L_codeend")
    a("s_endpgm")
    body = a.text()
    probs = check_hazards(body)
    for p in probs: print(p, file=sys.stderr)
    desc = f""".amdhsa_kernel {KNAME}
  .amdhsa_next_free_vgpr 256
  .amdhsa_next_free_sgpr 96
  .amdhsa_accum_offset 256
  .amdhsa_group_segment_fixed_size 0
  .amdhsa_kernarg_size 88
  .amdhsa_user_sgpr_count 2
  .amdhsa_user_sgpr_kernarg_segment_ptr 1
  .amdhsa_system_sgpr_workgroup_id_x 1
  .amdhsa_float_denorm_mode_32 3
.end_amdhsa_kernel
"""
    return (HEADER + "; @launch grid=(256,1,1) block=(512,1,1) lds=163840\n"
            + '.amdgcn_target "amdgcn-amd-amdhsa--gfx950"\n.text\n'
            + f".globl {KNAME}\n.p2align 8\n.type {KNAME},@function\n" + body
            + '.section .rodata,"a"\n.p2align 6\n' + desc)

if __name__ == "__main__":
    import argparse
    ap = argparse.ArgumentParser()
    ap.add_argument("-o", default=f"cdna_kernels/{NAME}.s")
    ap.add_argument("--stamps", action="store_true")
    ap.add_argument("--stamp-wg", type=int, default=0)
    ap.add_argument("--no-touch", action="store_true")
    ap.add_argument("--no-codepf", action="store_true")
    ap.add_argument("--diag", default=None)
    args = ap.parse_args()
    opt.diag = args.diag
    opt.stamps = args.stamps; opt.touch = not args.no_touch; opt.codepf = not args.no_codepf; opt.stamp_wg = args.stamp_wg
    open(args.o, "w").write(build())
    print("wrote", args.o)
```

```python
from asmlib import *

QF, KF, VF, OF, HF, LF, UF, XCH = 0x000000, 0x200000, 0x400000, 0x600000, 0x800000, 0xA00000, 0xC00000, 0xE00000
WS_SIZE = 0x1000000
P_X, P_WQKV, P_WO, P_W1, P_B1, P_W2, P_B2, P_OUT, P_DBG, P_WS = 4, 6, 8, 12, 14, 16, 18, 20, 22, 24
S_WG, S_WAVE = 2, 3
class Cfg:
    persist = False
    stamps = False
    tags = False
cfg = Cfg()
def SC(): return " sc1" if cfg.persist else ""
CNT = 0xE40000
V_HP = 200

def srd(a, dst, ptr, nbytes):
    a(f"s_mov_b32 s{dst}, s{ptr}")
    a(f"s_mov_b32 s{dst+1}, s{ptr+1}")
    a(f"s_mov_b32 s{dst+2}, {hex(nbytes)}")
    a(f"s_mov_b32 s{dst+3}, 0x20000")

def prologue(a, nwg, end_label):
    a(f"s_cmp_ge_u32 s2, {nwg}")
    a(f"s_cbranch_scc1 {end_label}")
    a("s_load_dwordx16 s[4:19], s[0:1], 0")
    a("s_load_dwordx4 s[20:23], s[0:1], 64")
    a("s_load_dwordx2 s[24:25], s[0:1], 80")
    a("v_lshrrev_b32 v1, 6, v0")
    a("v_and_b32 v0, 63, v0")
    a("v_readfirstlane_b32 s3, v1")
    a("s_waitcnt lgkmcnt(0)")

def dma(a, voff, srd_, soff, m0, offset=0, flags="", pre=None):
    if isinstance(m0, tuple):
        if m0[1] == 0: a(f"s_mov_b32 m0, s{m0[0]}")
        else: a(f"s_add_u32 m0, s{m0[0]}, {m0[1]}")
    elif m0 is not None:
        a(f"s_mov_b32 m0, {m0}")
    if pre: a(pre)
    elif m0 is not None: a("s_nop 0")
    o = f" offset:{offset}" if offset else ""
    so = f"s{soff}" if soff is not None else "0"
    a(f"buffer_load_dwordx4 v{voff}, s[{srd_}:{srd_+3}], {so} offen{o}{flags} lds")

def tr_lane_addr(a, dst, t0, t1, rowsel, colunit_sreg=None, colunit_imm=0):
    a(f"v_lshrrev_b32 v{t0}, 5, v0")
    a(f"v_lshlrev_b32 v{t0}, {3 if rowsel=='nat' else 2}, v{t0}")
    a(f"v_bfe_u32 v{t1}, v0, 2, 2")
    a(f"v_add_u32 v{t0}, v{t0}, v{t1}")
    a(f"v_lshlrev_b32 v{dst}, 7, v{t0}")
    a(f"v_bfe_u32 v{t0}, v0, 4, 1")
    a(f"v_lshlrev_b32 v{t0}, 1, v{t0}")
    a(f"v_bfe_u32 v{t1}, v0, 1, 1")
    a(f"v_add_u32 v{t0}, v{t0}, v{t1}")
    if colunit_sreg is not None: a(f"v_add_u32 v{t0}, s{colunit_sreg}, v{t0}")
    elif colunit_imm: a(f"v_add_u32 v{t0}, {colunit_imm}, v{t0}")
    a(f"v_bfe_u32 v{t1}, v0, 3, 1")
    a(f"v_lshlrev_b32 v{t1}, 2, v{t1}")
    a(f"v_xor_b32 v{t0}, v{t0}, v{t1}")
    a(f"v_lshlrev_b32 v{t0}, 4, v{t0}")
    a(f"v_add_u32 v{dst}, v{dst}, v{t0}")
    a(f"v_and_b32 v{t0}, 1, v0")
    a(f"v_lshlrev_b32 v{t0}, 3, v{t0}")
    a(f"v_add_u32 v{dst}, v{dst}, v{t0}")

def dma_row_voff(a, dst, t0, t1, row_stride):
    a(f"v_lshrrev_b32 v{t0}, 3, v0")
    a(f"s_mov_b32 s65, {row_stride}")
    a(f"v_mul_lo_u32 v{dst}, v{t0}, s65")
    a(f"v_bfe_u32 v{t0}, v0, 4, 1")
    a(f"v_lshlrev_b32 v{t0}, 2, v{t0}")
    a(f"v_and_b32 v{t1}, 7, v0")
    a(f"v_xor_b32 v{t0}, v{t0}, v{t1}")
    a(f"v_lshlrev_b32 v{t0}, 4, v{t0}")
    a(f"v_add_u32 v{dst}, v{dst}, v{t0}")

def mfma(a, d, A, B, c=None):
    cs = vr(d, 16) if c is None else c
    a(f"v_mfma_f32_32x32x16_bf16 {vr(d,16)}, {vr(A,4)}, {vr(B,4)}, {cs}")

def phase1(a, hooks=None):
    hooks = hooks or {}
    s_tb, s_g, s_tt, s_p = 26, 27, 44, 45
    SX, SW, SWS = 28, 32, 36
    a("s_and_b32 s46, s2, 7"); a("s_lshr_b32 s47, s2, 3")
    a("s_lshr_b32 s48, s46, 1"); a("s_lshl_b32 s48, s48, 3"); a("s_and_b32 s49, s47, 7"); a(f"s_add_u32 s{s_tb}, s48, s49")
    a("s_and_b32 s48, s46, 1"); a("s_lshl_b32 s48, s48, 2"); a("s_lshr_b32 s49, s47, 3"); a(f"s_add_u32 s{s_g}, s48, s49")
    if getattr(cfg, "exp", None) == "gswap": a(f"s_xor_b32 s{s_g}, s{s_g}, 4")
    a(f"s_and_b32 s{s_tt}, s3, 1"); a(f"s_bfe_u32 s{s_p}, s3, 0x10001")
    srd(a, SX, P_X, 2048 * 512 * 2); srd(a, SW, P_WQKV, 512 * 1536 * 2); srd(a, SWS, P_WS, WS_SIZE)
    XR, VSUM, VSQ, VT, VXW, VWD, VXA, VWA, ACC, XFR, WQ, WK = 8, 40, 41, 44, 46, 47, 48, 56, 64, 96, 104, 112
    a("v_lshrrev_b32 v1, 3, v0"); a("s_lshl_b32 s46, s3, 3"); a("v_add_u32 v2, s46, v1")
    a(f"s_lshl_b32 s47, s{s_tb}, 6"); a("v_add_u32 v3, s47, v2"); a("v_lshlrev_b32 v3, 10, v3")
    a("v_and_b32 v4, 7, v0"); a("v_lshlrev_b32 v5, 4, v4"); a("v_add_u32 v3, v3, v5")
    for c in range(8):
        a(f"buffer_load_dwordx4 {vr(XR+4*c,4)}, v3, s[{SX}:{SX+3}], 0 offen offset:{c*128}")
    if hooks.get("xfirst"): a("s_barrier")
    dma_row_voff(a, VWD, 5, 6, 3072)
    a("s_mul_i32 s46, s3, 24576"); a(f"s_lshl_b32 s47, s{s_g}, 7"); a("s_add_u32 s46, s46, s47")
    a(f"v_add_u32 v{VWD}, s46, v{VWD}")
    a("s_lshl_b32 s50, s3, 10"); a("s_add_u32 s50, s50, 65536")
    vq0 = VMQ(); vq0.issue('x', 8)
    def issue_chunk(ch, vq):
        slot = ch & 3
        for seg in range(3):
            dma(a, VWD, SW, 51, (50, slot * 24576 + seg * 8192), pre=f"s_mov_b32 s51, {ch*64*3072 + seg*1024}")
        vq.issue(f"c{ch}", 3)
    late = hooks.get("late_issue")
    for ch in range(2 if late else 4): issue_chunk(ch, vq0)
    def wtouch():
        a("s_lshr_b32 s46, s2, 3"); a("s_and_b32 s46, s46, 7"); a("s_lshl_b32 s46, s46, 5"); a("s_and_b32 s47, s3, 1"); a("s_lshl_b32 s47, s47, 4")
        a("s_add_u32 s46, s46, s47"); a("s_add_u32 s46, s46, 256")
        a("v_and_b32 v6, 15, v0"); a("v_add_u32 v6, s46, v6"); a("s_movk_i32 s47, 3072"); a("v_mul_lo_u32 v6, v6, s47")
        a("s_lshr_b32 s46, s3, 1"); a("s_min_u32 s46, s46, 2"); a("s_lshl_b32 s46, s46, 10"); a(f"s_lshl_b32 s47, s{s_g}, 7"); a("s_add_u32 s46, s46, s47")
        a("v_cmp_gt_u32 vcc, 16, v0"); a("s_and_saveexec_b64 s[52:53], vcc")
        a(f"buffer_load_dword v125, v6, s[{SW}:{SW+3}], s46 offen")
        a("s_mov_b64 exec, s[52:53]")
        vq0.issue("touch", 1)
    if hooks.get("wtouch") and not late: wtouch()
    if "after_dma" in hooks and not late: vq0.issue("extra", hooks["after_dma"](a))
    if not hooks.get('no_clear'):
        a("v_mov_b32 v56, -1"); a("v_mov_b32 v57, -1"); a("v_mov_b32 v58, -1"); a("v_mov_b32 v59, -1")
        a("v_lshlrev_b32 v6, 4, v0"); a("s_lshl_b32 s46, s2, 9"); a(f"s_add_u32 s46, s46, {XCH}")
        lskip = a.uid("L_p1_noclr")
        a("s_cmp_lg_u32 s3, 0"); a(f"s_cbranch_scc1 {lskip}")
        a("v_cmp_gt_u32 vcc, 32, v0"); a("s_and_saveexec_b64 s[52:53], vcc")
        a(f"buffer_store_dwordx4 v[56:59], v6, s[{SWS}:{SWS+3}], s46 offen{SC()}")
        a("s_mov_b64 exec, s[52:53]")
        a.label(lskip)
    a("v_and_b32 v5, 15, v2"); a("v_xor_b32 v5, v5, v4"); a("v_lshlrev_b32 v5, 4, v5")
    a(f"v_lshlrev_b32 v{VXW}, 10, v2"); a(f"v_add_u32 v{VXW}, v{VXW}, v5"); a(f"v_xor_b32 v43, 128, v{VXW}")
    a("v_and_b32 v1, 31, v0"); a(f"s_lshl_b32 s46, s{s_tt}, 5"); a("v_add_u32 v1, s46, v1")
    a("v_and_b32 v2, 15, v1"); a("v_lshlrev_b32 v1, 10, v1"); a("v_lshrrev_b32 v3, 5, v0")
    for b in range(8):
        a(f"v_add_u32 v4, {2*b}, v3"); a("v_xor_b32 v4, v4, v2"); a("v_lshlrev_b32 v4, 4, v4"); a(f"v_add_u32 v{VXA+b}, v1, v4")
    a(f"s_lshl_b32 s46, s{s_p}, 2")
    tr_lane_addr(a, VWA, 1, 2, 'nat', colunit_sreg=46)
    a(f"v_add_u32 v{VWA}, 0x10000, v{VWA}"); a(f"v_add_u32 v{VWA+1}, 49152, v{VWA}")
    vq0.wait(a, "x")
    if "post_x" in hooks: hooks["post_x"](a)
    if "st" in hooks: hooks["st"](a, 4)
    a(f"v_mov_b32 v{VSUM}, 0"); a(f"v_mov_b32 v{VSQ}, 0"); a("v_mov_b32 v42, 0x3f803f80")
    for i in range(32):
        a(f"v_dot2c_f32_bf16 v{VSUM}, v{XR+i}, v42")
        a(f"v_dot2c_f32_bf16 v{VSQ}, v{XR+i}, v{XR+i}")
    a("s_nop 2")
    for mod in ("quad_perm:[1,0,3,2]", "quad_perm:[2,3,0,1]", "row_half_mirror"):
        a(f"v_add_f32_dpp v{VSUM}, v{VSUM}, v{VSUM} {mod} row_mask:0xf bank_mask:0xf")
        a(f"v_add_f32_dpp v{VSQ}, v{VSQ}, v{VSQ} {mod} row_mask:0xf bank_mask:0xf")
        a("s_nop 0")
    a(f"v_mul_f32 v{VSUM}, {1/512!r}, v{VSUM}".replace("0.001953125", "0x3b000000"))
    a(f"v_mul_f32 v{VSQ}, 0x3b000000, v{VSQ}")
    a(f"v_fma_f32 v{VSQ}, -v{VSUM}, v{VSUM}, v{VSQ}")
    a(f"v_max_f32 v{VSQ}, 0, v{VSQ}")
    a(f"v_add_f32 v{VSQ}, 0x3727c5ac, v{VSQ}")
    a(f"v_rsq_f32 v60, v{VSQ}")
    a("s_nop 0")
    a(f"v_mul_f32 v62, v{VSUM}, v60"); a("v_sub_f32 v62, 0, v62")
    for i in range(32):
        if late and i == 4: issue_chunk(2, vq0)
        if late and i == 14: issue_chunk(3, vq0)
        if late and i == 24 and hooks.get("wtouch"): wtouch()
        t = VT if i % 2 == 0 else 120
        a(f"v_lshlrev_b32 v{t}, 16, v{XR+i}")
        a(f"v_and_b32 v{t+1}, 0xffff0000, v{XR+i}")
        a(f"v_pk_fma_f32 {vr(t,2)}, {vr(t,2)}, v[60:61], v[62:63] op_sel_hi:[1,0,0]")
        a(f"v_cvt_pk_bf16_f32 v{XR+i}, v{t}, v{t+1}")
    for c in range(8):
        a(f"ds_write_b128 v{VXW if c % 2 == 0 else 43}, {vr(XR+4*c,4)} offset:{(c>>1)*256}")
    lv, lend = a.uid("L_p1_v"), a.uid("L_p1_end")
    a("s_cmp_ge_u32 s3, 4"); a(f"s_cbranch_scc1 {lv}")
    def gemm(isv):
        n = 16 if isv else 32
        for i in range(n): a(f"v_mov_b32 v{ACC+i}, 0")
        def reads(ksg):
            ch, k = ksg >> 2, ksg & 3
            slot = ch & 3; base = VWA + (slot >> 1); off = (slot & 1) * 24576 + k * 2048
            par = ksg & 1
            a(f"ds_read_b128 {vr(XFR+4*par,4)}, v{VXA + (ksg & 7)} offset:{(ksg >> 3) * 256}")
            segs = (2,) if isv else (0, 1)
            for n_, seg in enumerate(segs):
                r = (WQ if n_ == 0 else WK) + 4 * par
                a(f"ds_read_b64_tr_b16 {vr(r,2)}, v{base} offset:{off + seg*8192}")
                a(f"ds_read_b64_tr_b16 {vr(r+2,2)}, v{base} offset:{off + seg*8192 + 512}")
        nrd = 3 if isv else 5
        vq = VMQ(); vq.q = list(vq0.q)
        vq.wait(a, "c0", " lgkmcnt(0)"); a("s_barrier")
        if "st" in hooks: hooks["st"](a, 5)
        reads(0)
        for ksg in range(32):
            ch, k = ksg >> 2, ksg & 3
            if k == 2 and ch < 7:
                vq.wait(a, f"c{ch+1}"); a("s_barrier")
                if "st" in hooks and getattr(cfg, "exp", None) == "chunks": hooks["st"](a, [6, 7, 8, 9, 10, 11, 12][ch])
                elif "st" in hooks and ch == 3: hooks["st"](a, 6)
                elif "st" in hooks and ch == 6: hooks["st"](a, 7)
                if 1 <= ch <= 4: issue_chunk(ch + 3, vq)
                if late and ch == 5 and "after_dma" in hooks: vq.issue("extra", hooks["after_dma"](a))
            if ksg < 31:
                reads(ksg + 1); a(f"s_waitcnt lgkmcnt({nrd})")
            else:
                a("s_waitcnt lgkmcnt(0)")
            par = ksg & 1
            if isv:
                mfma(a, ACC, XFR + 4 * par, WQ + 4 * par)
            else:
                mfma(a, ACC, WQ + 4 * par, XFR + 4 * par)
                mfma(a, ACC + 16, WK + 4 * par, XFR + 4 * par)
    gemm(False)
    a(f"s_lshl_b32 s46, s{s_g}, 2"); a(f"s_lshl_b32 s47, s{s_p}, 1"); a("s_add_u32 s46, s46, s47")
    a(f"s_lshl_b32 s47, s{s_tb}, 1"); a(f"s_add_u32 s47, s47, s{s_tt}")
    a("s_lshl_b32 s48, s46, 16"); a("s_lshl_b32 s49, s47, 10"); a("s_add_u32 s48, s48, s49")
    a("v_lshlrev_b32 v1, 4, v0")
    a("s_add_u32 s51, s48, 0x10000")
    a(f"s_add_u32 s52, s48, {KF}"); a(f"s_add_u32 s53, s51, {KF}")
    a("s_mov_b32 s54, 0x3eb8aa3b")
    a("s_nop 7")
    for i in range(16): a(f"v_mul_f32 v{ACC+i}, s54, v{ACC+i}")
    for i in range(8): a(f"v_cvt_pk_bf16_f32 v{XR+i}, v{ACC+2*i}, v{ACC+2*i+1}")
    for i in range(8): a(f"v_cvt_pk_bf16_f32 v{XR+8+i}, v{ACC+16+2*i}, v{ACC+16+2*i+1}")
    if "pre_store" in hooks: hooks["pre_store"](a)
    for n_, so in enumerate((48, 51, 52, 53)):
        a(f"buffer_store_dwordx4 {vr(XR+4*n_,4)}, v1, s[{SWS}:{SWS+3}], s{so} offen{SC()}")
    a(f"s_branch {lend}")
    a.label(lv)
    gemm(True)
    a(f"s_lshl_b32 s46, s{s_g}, 2"); a(f"s_lshl_b32 s47, s{s_p}, 1"); a("s_add_u32 s46, s46, s47")
    a(f"s_lshl_b32 s47, s{s_tb}, 1"); a(f"s_add_u32 s47, s47, s{s_tt}")
    a("s_lshl_b32 s48, s46, 16"); a("s_lshl_b32 s49, s47, 10"); a("s_add_u32 s48, s48, s49"); a(f"s_add_u32 s48, s48, {VF}")
    a("v_bfe_u32 v1, v0, 4, 1"); a("v_lshlrev_b32 v1, 16, v1"); a("v_lshrrev_b32 v2, 5, v0"); a("v_lshlrev_b32 v2, 8, v2")
    a("v_add_u32 v1, v1, v2"); a("v_and_b32 v2, 15, v0"); a("v_lshlrev_b32 v2, 4, v2"); a("v_add_u32 v1, v1, v2")
    a("s_nop 7")
    for i in range(8): a(f"v_cvt_pk_bf16_f32 v{XR+i}, v{ACC+2*i}, v{ACC+2*i+1}")
    if "pre_store" in hooks: hooks["pre_store"](a)
    a(f"buffer_store_dwordx4 {vr(XR,4)}, v1, s[{SWS}:{SWS+3}], s48 offen{SC()}")
    a(f"buffer_store_dwordx4 {vr(XR+4,4)}, v1, s[{SWS}:{SWS+3}], s48 offen offset:512{SC()}")
    a.label(lend)
P1_LDS = 163840

P2_LDS = 131072
class Att:
    Q, KFR, VFR, SA, SB, P, O, VK, VV = 4, 8, 16, 32, 48, 64, 72, 88, 89
def phase2(a, hooks=None):
    hooks = hooks or {}
    s_head, s_qb = 26, 27
    SWS = 36
    Q, KFR, VFR, SA, SB, P, O, VK, VV = Att.Q, Att.KFR, Att.VFR, Att.SA, Att.SB, Att.P, Att.O, Att.VK, Att.VV
    MASK = "s[56:57]"
    a("; ---- P2: attention")
    a("s_and_b32 s46, s2, 7"); a("s_lshr_b32 s47, s2, 3")
    a("s_lshl_b32 s48, s46, 2"); a("s_lshr_b32 s49, s47, 3"); a(f"s_add_u32 s{s_head}, s48, s49"); a(f"s_and_b32 s{s_qb}, s47, 7")
    srd(a, SWS, P_WS, WS_SIZE)
    a("v_lshlrev_b32 v1, 4, v0")
    a(f"s_lshl_b32 s46, s{s_head}, 16")
    a(f"s_lshl_b32 s47, s{s_qb}, 3"); a("s_add_u32 s47, s47, s3"); a("s_lshl_b32 s47, s47, 10"); a("s_add_u32 s47, s47, s46")
    a("s_lshl_b32 s48, s3, 11")
    a("s_add_u32 s49, s46, s48")
    a("s_mov_b32 s56, 0x0000ffff"); a("s_mov_b32 s57, 0x0000ffff")
    a("v_and_b32 v2, 27, v0"); a("v_cmp_eq_u32 vcc, 16, v2"); a("v_mov_b32 v3, 0x3f803f80"); a("v_mov_b32 v2, 0")
    a("v_cndmask_b32 v2, v2, v3, vcc")
    for i in range(16): a(f"v_mov_b32 v{VFR+i}, v2")
    a("v_and_b32 v2, 15, v0"); a("v_lshlrev_b32 v2, 4, v2"); a("v_lshrrev_b32 v3, 5, v0"); a("v_lshlrev_b32 v3, 8, v3"); a("v_add_u32 v91, v2, v3")
    a("v_add_u32 v91, 0x10000, v91")
    if "dep" in hooks: hooks["dep"](a)
    vq = hooks.get("vq") or VMQ()
    a(f"buffer_load_dwordx4 {vr(Q,4)}, v1, s[{SWS}:{SWS+3}], s47 offen{SC()}"); vq.issue("q")
    for st in range(4):
        vq.issue(f"kv{st}", 4)
        a(f"s_add_u32 s50, s49, {KF + st*16384}")
        dma(a, 1, SWS, 50, (48, st * 16384), flags=SC()); dma(a, 1, SWS, 50, None, offset=1024, flags=SC())
        a(f"s_add_u32 s50, s49, {VF + st*16384}")
        dma(a, 1, SWS, 50, (48, 65536 + st * 16384), flags=SC()); dma(a, 1, SWS, 50, None, offset=1024, flags=SC())
    vq.wait(a, "kv0"); a("s_barrier")
    if "loop_start" in hooks: hooks["loop_start"](a)
    def vread(dst, off):
        a(f"s_mov_b64 exec, {MASK}")
        a(f"ds_read_b128 {vr(dst,4)}, v{VV} offset:{off}"); a(f"ds_read_b128 {vr(dst+4,4)}, v{VV} offset:{off+512}")
        a("s_mov_b64 exec, -1")
    def tile(t, S, SN, par, koff, voff, C):
        e = lambda i: a(f"v_exp_f32 v{S+i}, v{S+i}")
        c = lambda i: a(f"v_cvt_pk_bf16_f32 v{P+i}, v{S+2*i}, v{S+2*i+1}")
        e(0); e(1)
        mfma(a, O, VFR + 8 * (par ^ 1) + 4, P + 4)
        vread(VFR + 8 * (par ^ 1), voff)
        a(f"ds_read_b128 {vr(KFR+4*par,4)}, v{VK} offset:{koff}")
        e(2); e(3); e(4); e(5)
        a("s_waitcnt lgkmcnt(3)")
        mfma(a, SN, KFR + 4 * (par ^ 1), Q, C)
        e(6); e(7); c(0); c(1); c(2); c(3); e(8); e(9)
        mfma(a, O, VFR + 8 * par, P)
        for i in range(10, 16): e(i)
        c(4); c(5); c(6); c(7)
    def start(C):
        a(f"v_mov_b32 v{VK}, v1"); a(f"v_mov_b32 v{VV}, v91")
        a(f"ds_read_b128 {vr(KFR,4)}, v{VK}")
        vread(VFR, 0)
        a(f"ds_read_b128 {vr(KFR+4,4)}, v{VK} offset:1024")
        for i in range(16): a(f"v_mov_b32 v{O+i}, 0")
        for i in range(4): a(f"v_mov_b32 v{P+4+i}, 0")
        a(f"s_mov_b64 exec, {MASK}")
        for i in range(4): a(f"v_mov_b32 v{VFR+12+i}, 0")
        a("s_mov_b64 exec, -1")
        a("s_waitcnt lgkmcnt(3)")
        mfma(a, SA, KFR, Q, C)
        a("s_nop 7"); a("s_nop 3")
    def finish():
        a("s_nop 1")
        mfma(a, O, VFR + 8 + 4, P + 4)
        a("s_waitcnt lgkmcnt(0)")
        a("s_nop 7"); a("s_nop 3")
    start("0")
    for t in range(64):
        if t in (12, 28, 44):
            vq.wait(a, {12: "kv1", 28: "kv2", 44: "kv3"}[t]); a("s_barrier")
        if "tile" in hooks: hooks["tile"](a, t)
        if t == 48:
            pass
        S, SN = (SA, SB) if t % 2 == 0 else (SB, SA)
        tile(t, S, SN, t & 1, min((t + 2), 63) * 1024, min(t + 1, 63) * 1024, "0")
    finish()
    if "loop_end" in hooks: hooks["loop_end"](a)
    ldone, lmax, lloop = a.uid("L_p2_done"), a.uid("L_p2_maxl"), a.uid("L_p2_loop")
    a("v_mov_b32 v2, 0")
    for i in range(8): a(f"v_fmac_f32 v2, 0, v{O+i}")
    a(f"v_cmp_u_f32 s[58:59], v2, v2")
    a("s_mov_b32 s62, 0x5d800000")
    a(f"v_cmp_nge_f32 s[60:61], s62, v{O+8}")
    a("s_mov_b32 s62, 0x21800000")
    a(f"v_cmp_nle_f32 s[64:65], s62, v{O+8}")
    a("s_nop 3")
    a("s_or_b64 s[58:59], s[58:59], s[60:61]"); a("s_or_b64 s[58:59], s[58:59], s[64:65]")
    a("s_mov_b32 s55, 0")
    a("s_cmp_eq_u64 s[58:59], 0"); a(f"s_cbranch_scc1 {ldone}")
    a("s_mov_b32 s55, 1")
    CN = 96
    a(f"v_mov_b32 v{VK}, v1"); a("v_mov_b32 v2, 0xff800000"); a("s_mov_b32 s54, 64")
    a.label(lmax)
    a(f"ds_read_b128 {vr(KFR,4)}, v{VK}"); a(f"v_add_u32 v{VK}, 1024, v{VK}")
    a("s_waitcnt lgkmcnt(0)")
    mfma(a, SA, KFR, Q, "0")
    a("s_nop 7"); a("s_nop 3")
    for i in range(8): a(f"v_max3_f32 v2, v2, v{SA+2*i}, v{SA+2*i+1}")
    a("s_sub_u32 s54, s54, 1"); a("s_cmp_lg_u32 s54, 0"); a(f"s_cbranch_scc1 {lmax}")
    a("v_mov_b32 v3, v2"); a("s_nop 1")
    a("v_permlane32_swap_b32 v2, v3"); a("s_nop 1")
    a("v_max_f32 v2, v2, v3"); a("v_sub_f32 v2, 0, v2")
    for i in range(16): a(f"v_mov_b32 v{CN+i}, v2")
    start(vr(CN, 16))
    a("s_mov_b32 s54, 32")
    a.label(lloop)
    for u in range(2):
        S, SN = (SA, SB) if u == 0 else (SB, SA)
        tile(u, S, SN, u, (u + 2) * 1024, (u + 1) * 1024, vr(CN, 16))
    a(f"v_add_u32 v{VK}, 2048, v{VK}"); a(f"v_add_u32 v{VV}, 2048, v{VV}")
    a("s_sub_u32 s54, s54, 1"); a("s_cmp_lg_u32 s54, 0"); a(f"s_cbranch_scc1 {lloop}")
    finish()
    a.label(ldone)
    a(f"v_rcp_f32 v2, v{O+8}"); a("s_nop 0")
    for i in range(8): a(f"v_mul_f32 v{O+i}, v{O+i}, v2")
    for i in range(4): a(f"v_cvt_pk_bf16_f32 v{P+i}, v{O+2*i}, v{O+2*i+1}")
    if cfg.tags: a(f"v_min_u32 v{P}, 0xfffffffe, v{P}")
    a(f"s_lshl_b32 s47, s{s_qb}, 3"); a("s_add_u32 s47, s47, s3"); a("s_lshl_b32 s47, s47, 5"); a(f"s_add_u32 s47, s47, s{s_head}")
    a("s_lshl_b32 s47, s47, 10"); a(f"s_add_u32 s47, s47, {OF}")
    a(f"buffer_store_dwordx4 {vr(P,4)}, v1, s[{SWS}:{SWS+3}], s47 offen{SC()}")
    if "after" in hooks: hooks["after"](a)

def reduce_scatter(a, ACC, s_sub, s_kq, vtmp, T, base, sub_shift=15):
    a("s_barrier")
    a(f"s_lshl_b32 s46, s{s_sub}, {sub_shift}"); a(f"s_lshl_b32 s47, s{s_kq}, 11"); a("s_add_u32 s47, s47, s46"); a(f"s_add_u32 s47, s47, {base}")
    a(f"v_lshlrev_b32 v{vtmp}, 4, v0"); a(f"v_add_u32 v{vtmp+1}, s47, v{vtmp}")
    for pc in range(4):
        for half in range(2):
            r = ACC + 16 * (pc >> 1) + 8 * (pc & 1) + 4 * half
            a(f"ds_write_b128 v{vtmp+1}, {vr(r,4)} offset:{pc*8192 + half*1024}")
    a(f"s_lshl_b32 s47, s{s_kq}, 13"); a("s_add_u32 s47, s47, s46"); a(f"s_add_u32 s47, s47, {base}")
    a(f"v_add_u32 v{vtmp+1}, s47, v{vtmp}")
    a("s_waitcnt lgkmcnt(0)"); a("s_barrier")
    for src in range(4):
        for half in range(2):
            a(f"ds_read_b128 {vr(T + 8*src + 4*half, 4)}, v{vtmp+1} offset:{src*2048 + half*1024}")
    a("s_waitcnt lgkmcnt(4)")
    for i in range(8): a(f"v_add_f32 v{ACC+i}, v{T+i}, v{T+8+i}")
    a("s_waitcnt lgkmcnt(0)")
    for i in range(8): a(f"v_add_f32 v{T+16+i}, v{T+16+i}, v{T+24+i}")
    for i in range(8): a(f"v_add_f32 v{ACC+i}, v{ACC+i}, v{T+16+i}")

P3_LDS = 131072 + 4096
def phase3(a, hooks=None):
    hooks = hooks or {}
    s_tb, s_cb, s_tt, s_kq, s_ct, s_jp = 26, 27, 44, 45, 56, 57
    SWO, SWS, SX = 28, 36, 32
    OFR, XR, ACC, AF, T, VA = 8, 40, 64, 96, 104, 4
    a("s_and_b32 s46, s2, 7"); a("s_lshr_b32 s47, s2, 3")
    a("s_lshl_b32 s48, s46, 2"); a("s_lshr_b32 s49, s47, 3"); a(f"s_add_u32 s{s_tb}, s48, s49"); a(f"s_and_b32 s{s_cb}, s47, 7")
    a(f"s_and_b32 s{s_tt}, s3, 1"); a(f"s_lshr_b32 s{s_kq}, s3, 1")
    a(f"s_lshr_b32 s{s_ct}, s{s_kq}, 1"); a(f"s_and_b32 s{s_jp}, s{s_kq}, 1")
    srd(a, SWO, P_WO, 512 * 512 * 2); srd(a, SWS, P_WS, WS_SIZE); srd(a, SX, P_X, 2048 * 512 * 2)
    dma_row_voff(a, 2, 5, 6, 1024)
    a("s_lshl_b32 s46, s3, 16"); a(f"s_lshl_b32 s47, s{s_cb}, 7"); a("s_add_u32 s46, s46, s47"); a("v_add_u32 v2, s46, v2")
    a("s_lshl_b32 s50, s3, 13")
    for i in range(8):
        a(f"s_mov_b32 s51, {i*8192}")
        dma(a, 2, SWO, 51, (50, i * 1024))
    a("v_lshlrev_b32 v1, 4, v0")
    a(f"s_lshl_b32 s46, s{s_tb}, 1"); a(f"s_add_u32 s58, s46, s{s_tt}")
    a("v_and_b32 v3, 31, v0"); a("s_lshl_b32 s46, s58, 5"); a("v_add_u32 v3, s46, v3"); a("v_lshlrev_b32 v3, 10, v3")
    a("v_lshrrev_b32 v5, 5, v0"); a("v_lshlrev_b32 v5, 3, v5"); a("v_add_u32 v3, v3, v5")
    a(f"s_lshl_b32 s46, s{s_cb}, 7"); a(f"s_lshl_b32 s47, s{s_kq}, 5"); a("s_add_u32 s46, s46, s47")
    a(f"buffer_load_dwordx2 {vr(XR,2)}, v3, s[{SX}:{SX+3}], s46 offen")
    a(f"buffer_load_dwordx2 {vr(XR+2,2)}, v3, s[{SX}:{SX+3}], s46 offen offset:16")
    if "dep" in hooks: hooks["dep"](a)
    a(f"s_lshl_b32 s46, s58, 5"); a(f"s_lshl_b32 s47, s{s_kq}, 3"); a("s_add_u32 s46, s46, s47"); a("s_lshl_b32 s46, s46, 10"); a(f"s_add_u32 s46, s46, {OF}")
    for i in range(8):
        if i == 4: a("s_add_u32 s46, s46, 4096")
        a(f"buffer_load_dwordx4 {vr(OFR+4*i,4)}, v1, s[{SWS}:{SWS+3}], s46 offen offset:{(i&3)*1024}{SC()}")
    tr_lane_addr(a, VA, 5, 6, 'perm')
    a(f"s_lshl_b32 s46, s{s_kq}, 14"); a(f"v_add_u32 v{VA}, s46, v{VA}"); a(f"v_xor_b32 v{VA+1}, 64, v{VA}")
    for i in range(32): a(f"v_mov_b32 v{ACC+i}, 0")
    a("s_waitcnt vmcnt(0)"); a("s_barrier")
    def rd(i):
        for ct in range(2):
            r = AF + 8 * (i & 1) + 4 * ct
            a(f"ds_read_b64_tr_b16 {vr(r,2)}, v{VA+ct} offset:{i*2048}")
            a(f"ds_read_b64_tr_b16 {vr(r+2,2)}, v{VA+ct} offset:{i*2048+1024}")
    rd(0)
    for i in range(8):
        if i < 7: rd(i + 1); a("s_waitcnt lgkmcnt(4)")
        else: a("s_waitcnt lgkmcnt(0)")
        for ct in range(2): mfma(a, ACC + 16 * ct, AF + 8 * (i & 1) + 4 * ct, OFR + 4 * i)
    a("s_nop 7"); a("s_nop 3")
    reduce_scatter(a, ACC, s_tt, s_kq, 5, 112, 65536)
    H = 8
    for j in range(4):
        a(f"v_lshlrev_b32 v{H+2*j}, 16, v{XR+j}"); a(f"v_and_b32 v{H+2*j+1}, 0xffff0000, v{XR+j}")
    for i in range(8): a(f"v_add_f32 v{H+i}, v{H+i}, v{ACC+i}")
    HP = 16
    for j in range(4): a(f"v_cvt_pk_bf16_f32 v{HP+j}, v{H+2*j}, v{H+2*j+1}")
    a(f"s_lshl_b32 s46, s58, 5"); a(f"s_lshl_b32 s47, s{s_cb}, 2"); a("s_add_u32 s46, s46, s47"); a(f"s_add_u32 s46, s46, s{s_kq}")
    a("s_lshl_b32 s46, s46, 10"); a(f"s_add_u32 s46, s46, {HF}")
    if cfg.persist:
        for j in range(4): a(f"v_mov_b32 v{V_HP+j}, v{HP+j}")
    else:
        a(f"buffer_store_dwordx4 {vr(HP,4)}, v1, s[{SWS}:{SWS+3}], s46 offen")
    for j in range(4):
        a(f"v_lshlrev_b32 v{H+2*j}, 16, v{HP+j}"); a(f"v_and_b32 v{H+2*j+1}, 0xffff0000, v{HP+j}")
    a(f"v_add_f32 v20, v{H}, v{H+1}"); a(f"v_mul_f32 v21, v{H}, v{H}"); a(f"v_fmac_f32 v21, v{H+1}, v{H+1}")
    for i in range(2, 8):
        a(f"v_add_f32 v20, v20, v{H+i}"); a(f"v_fmac_f32 v21, v{H+i}, v{H+i}")
    a("v_mov_b32 v22, v20"); a("v_mov_b32 v23, v21"); a("s_nop 1")
    a("v_permlane32_swap_b32 v20, v22"); a("v_permlane32_swap_b32 v21, v23"); a("s_nop 1")
    a("v_add_f32 v20, v20, v22"); a("v_add_f32 v21, v21, v23")
    ST = 131072
    a("v_and_b32 v5, 31, v0"); a(f"s_lshl_b32 s46, s{s_tt}, 5"); a("v_add_u32 v5, s46, v5"); a("v_lshlrev_b32 v24, 3, v5")
    a(f"s_lshl_b32 s46, s{s_kq}, 9"); a(f"s_add_u32 s46, s46, {ST}"); a("v_add_u32 v6, s46, v24")
    a("v_cmp_gt_u32 vcc, 32, v0"); a("s_and_saveexec_b64 s[52:53], vcc")
    a("ds_write_b64 v6, v[20:21]")
    a("s_mov_b64 exec, s[52:53]")
    a("s_waitcnt lgkmcnt(0)"); a("s_barrier")
    lx = a.uid("L_p3_x")
    a("s_cmp_lg_u32 s3, 0"); a(f"s_cbranch_scc1 {lx}")
    a("v_lshlrev_b32 v5, 3, v0"); a(f"v_add_u32 v6, {ST}, v5")
    for q in range(4): a(f"ds_read_b64 {vr(26+2*q,2)}, v6 offset:{q*512}")
    a("s_waitcnt lgkmcnt(0)")
    a("v_add_f32 v26, v26, v28"); a("v_add_f32 v27, v27, v29"); a("v_add_f32 v30, v30, v32"); a("v_add_f32 v31, v31, v33")
    a("v_add_f32 v26, v26, v30"); a("v_add_f32 v27, v27, v31")
    a("v_cmp_eq_u32 vcc, -1, v26"); a("v_mov_b32 v28, 0x7fc00000"); a("s_nop 0"); a("v_cndmask_b32 v26, v26, v28, vcc")
    a("v_cmp_eq_u32 vcc, -1, v27"); a("s_nop 1"); a("v_cndmask_b32 v27, v27, v28, vcc")
    a(f"s_lshl_b32 s46, s{s_tb}, 12"); a(f"s_add_u32 s46, s46, {XCH}"); a(f"s_lshl_b32 s47, s{s_cb}, 9"); a("s_add_u32 s47, s47, s46")
    a(f"buffer_store_dwordx2 v[26:27], v5, s[{SWS}:{SWS+3}], s47 offen sc1")
    lp, lpd = a.uid("L_p3_poll"), a.uid("L_p3_pd")
    a("s_mov_b32 s48, 0")
    a.label(lp)
    for q in range(8): a(f"buffer_load_dwordx2 {vr(32+2*q,2)}, v5, s[{SWS}:{SWS+3}], s46 offen offset:{q*512} sc1")
    a("s_waitcnt vmcnt(0)")
    a("v_cmp_eq_u32 vcc, -1, v32")
    for q in range(1, 16):
        a(f"v_cmp_eq_u32 s[52:53], -1, v{32+q}"); a("s_or_b64 vcc, vcc, s[52:53]")
    a(f"s_cbranch_vccz {lpd}")
    a("s_add_u32 s48, s48, 1"); a("s_cmp_lt_u32 s48, 0x100000"); a(f"s_cbranch_scc1 {lp}")
    a.label(lpd)
    for q in range(1, 8):
        a(f"v_add_f32 v32, v32, v{32+2*q}"); a(f"v_add_f32 v33, v33, v{33+2*q}")
    a("v_mul_f32 v32, 0x3b000000, v32"); a("v_mul_f32 v33, 0x3b000000, v33")
    a("v_fma_f32 v33, -v32, v32, v33"); a("v_max_f32 v33, 0, v33")
    a("v_add_f32 v34, 0x3727c5ac, v33"); a("v_rsq_f32 v35, v34")
    a("s_nop 0")
    a("v_mul_f32 v36, v35, v35"); a("v_mul_f32 v36, v36, v33")
    a("v_add_f32 v36, 0x3727c5ac, v36"); a("v_rsq_f32 v36, v36")
    a("s_nop 0")
    a("v_mul_f32 v34, v35, v36"); a("v_mul_f32 v35, v32, v34"); a("v_sub_f32 v35, 0, v35")
    a(f"v_add_u32 v6, {ST + 2048}, v5")
    a("ds_write_b64 v6, v[34:35]")
    a("s_waitcnt lgkmcnt(0)")
    a.label(lx)
    a("s_barrier")
    a(f"v_add_u32 v6, {ST + 2048}, v24")
    a("ds_read_b64 v[20:21], v6")
    a("s_waitcnt lgkmcnt(0)")
    for i in range(8): a(f"v_fma_f32 v{H+i}, v{H+i}, v20, v21")
    for j in range(4): a(f"v_cvt_pk_bf16_f32 v{HP+j}, v{H+2*j}, v{H+2*j+1}")
    a("v_lshrrev_b32 v5, 3, v24")
    a("v_bfe_u32 v6, v5, 1, 1"); a("v_lshlrev_b32 v6, 2, v6")
    a(f"s_lshl_b32 s46, s{s_kq}, 1"); a("v_xor_b32 v6, s46, v6")
    a("v_lshlrev_b32 v6, 4, v6"); a("v_lshlrev_b32 v5, 7, v5"); a("v_add_u32 v5, v5, v6")
    a("v_lshrrev_b32 v6, 5, v0"); a("v_lshlrev_b32 v6, 3, v6"); a("v_add_u32 v5, v5, v6")
    a(f"ds_write_b64 v5, {vr(HP,2)}"); a(f"ds_write_b64 v5, {vr(HP+2,2)} offset:16")
    a(f"s_lshl_b32 s46, s{s_tt}, 2")
    tr_lane_addr(a, 7, 5, 6, 'perm', colunit_sreg=46)
    a(f"s_lshl_b32 s46, s{s_kq}, 11"); a("v_add_u32 v7, s46, v7")
    a("s_waitcnt lgkmcnt(0)"); a("s_barrier")
    a("ds_read_b64_tr_b16 v[24:25], v7"); a("ds_read_b64_tr_b16 v[26:27], v7 offset:1024")
    a(f"s_lshl_b32 s46, s{s_cb}, 1"); a(f"s_add_u32 s46, s46, s{s_tt}"); a("s_lshl_b32 s46, s46, 7")
    a(f"s_lshl_b32 s47, s{s_tb}, 2"); a("s_add_u32 s46, s46, s47"); a(f"s_add_u32 s46, s46, s{s_kq}")
    a("s_lshl_b32 s46, s46, 10"); a(f"s_add_u32 s46, s46, {LF}")
    a("s_waitcnt lgkmcnt(0)")
    a(f"buffer_store_dwordx4 v[24:27], v1, s[{SWS}:{SWS+3}], s46 offen{SC()}")

def big_gemm(a, nst, act_base_sregs, SWS, SW, VWD, w_stage_stride, s_sub, s_kq, act_is_B, ACC, dep=None):
    VL, VT, AF, WF = 4, 6, 96, 112
    a("v_lshlrev_b32 v1, 4, v0")
    a("s_lshl_b32 s50, s3, 11")
    a("s_lshl_b32 s51, s3, 11"); a("s_add_u32 s51, s51, 16384")
    def issue_act(s):
        slot = (s & 3) * 32768
        for dt in range(2):
            a(f"s_add_u32 s52, s{act_base_sregs[dt]}, {s*8192}")
            dma(a, 1, SWS, 52, (50, slot + dt * 1024), flags=SC())
    def issue_w(s):
        slot = (s & 3) * 32768
        for i in range(2):
            a(f"s_mov_b32 s52, {s*w_stage_stride + i*(w_stage_stride//16)}")
            dma(a, VWD, SW, 52, (51, slot + i * 1024))
    def issue(s): issue_act(s); issue_w(s)
    for s in range(4): issue_w(s)
    if dep: dep(a)
    for s in range(4): issue_act(s)
    a(f"s_lshl_b32 s46, s{s_kq}, 12"); a(f"v_add_u32 v{VL}, s46, v1"); a(f"v_add_u32 v{VL+1}, 0x10000, v{VL}")
    a(f"s_lshl_b32 s46, s{s_sub}, 2")
    tr_lane_addr(a, VT, 2, 3, 'perm', colunit_sreg=46)
    a(f"s_lshl_b32 s46, s{s_kq}, 12"); a("s_add_u32 s46, s46, 16384")
    a(f"v_add_u32 v{VT}, s46, v{VT}"); a(f"v_add_u32 v{VT+1}, 0x10000, v{VT}")
    for i in range(32): a(f"v_mov_b32 v{ACC+i}, 0")
    def reads(n):
        s, k = n >> 1, n & 1
        slot = s & 3; hi = slot >> 1; off = (slot & 1) * 32768
        par = n & 1
        for dt in range(2):
            a(f"ds_read_b128 {vr(AF + 8*par + 4*dt, 4)}, v{VL+hi} offset:{off + k*2048 + dt*1024}")
        a(f"ds_read_b64_tr_b16 {vr(WF + 4*par, 2)}, v{VT+hi} offset:{off + k*2048}")
        a(f"ds_read_b64_tr_b16 {vr(WF + 4*par + 2, 2)}, v{VT+hi} offset:{off + k*2048 + 1024}")
    a("s_waitcnt vmcnt(6)"); a("s_barrier")
    reads(0)
    N = 2 * nst
    for n in range(N):
        s, k = n >> 1, n & 1
        if k == 1 and s < nst - 1:
            if s <= 2: vm = {0: 4, 1: 2, 2: 4}[s]
            else: vm = 4 * (min(nst - 1, s + 2) - (s + 1))
            a(f"s_waitcnt vmcnt({vm})"); a("s_barrier")
            if s >= 1 and s + 3 < nst: issue(s + 3)
        if n < N - 1:
            reads(n + 1); a("s_waitcnt lgkmcnt(4)")
        else:
            a("s_waitcnt lgkmcnt(0)")
        par = n & 1
        for dt in range(2):
            if act_is_B: mfma(a, ACC + 16 * dt, WF + 4 * par, AF + 8 * par + 4 * dt)
            else: mfma(a, ACC + 16 * dt, AF + 8 * par + 4 * dt, WF + 4 * par)
    a("s_nop 7"); a("s_nop 3")

P45_LDS = 131072
def phase4(a, hooks=None):
    hooks = hooks or {}
    s_db, s_fb, s_ft, s_kq = 26, 27, 44, 45
    SW, SWS, SB = 28, 36, 32
    ACC = 64
    a("s_and_b32 s46, s2, 7"); a("s_lshr_b32 s47, s2, 3")
    a("s_and_b32 s48, s46, 1"); a("s_lshl_b32 s48, s48, 2"); a("s_and_b32 s49, s47, 3"); a(f"s_add_u32 s{s_db}, s48, s49")
    a("s_lshr_b32 s48, s46, 1"); a("s_mul_i32 s48, s48, 7"); a("s_lshr_b32 s49, s47, 2"); a(f"s_add_u32 s{s_fb}, s48, s49")
    a(f"s_and_b32 s{s_ft}, s3, 1"); a(f"s_lshr_b32 s{s_kq}, s3, 1")
    srd(a, SW, P_W1, 2048 * 1792 * 2); srd(a, SWS, P_WS, WS_SIZE); srd(a, SB, P_B1, 1792 * 2)
    dma_row_voff(a, 10, 2, 3, 3584)
    a("s_mul_i32 s46, s3, %d" % (16 * 3584)); a(f"s_lshl_b32 s47, s{s_fb}, 7"); a("s_add_u32 s46, s46, s47"); a("v_add_u32 v10, s46, v10")
    a(f"s_lshl_b32 s46, s{s_db}, 18"); a("s_lshl_b32 s47, s3, 10"); a("s_add_u32 s46, s46, s47")
    a(f"s_add_u32 s54, s46, {LF}"); a(f"s_add_u32 s55, s46, {LF + 128*1024}")
    a(f"s_lshl_b32 s46, s{s_fb}, 7"); a(f"s_lshl_b32 s47, s{s_ft}, 6"); a("s_add_u32 s46, s46, s47")
    a(f"s_and_b32 s47, s{s_kq}, 1"); a("s_lshl_b32 s47, s47, 5"); a("s_add_u32 s46, s46, s47")
    a("v_lshrrev_b32 v2, 5, v0"); a("v_lshlrev_b32 v2, 3, v2")
    a(f"buffer_load_dwordx2 v[12:13], v2, s[{SB}:{SB+3}], s46 offen"); a(f"buffer_load_dwordx2 v[14:15], v2, s[{SB}:{SB+3}], s46 offen offset:16")
    big_gemm(a, 16, (54, 55), SWS, SW, 10, 128 * 3584, s_ft, s_kq, True, ACC, hooks.get("dep"))
    reduce_scatter(a, ACC, s_ft, s_kq, 5, 112, 0)
    for j in range(4):
        a(f"v_lshlrev_b32 v{16+2*j}, 16, v{12+j}"); a(f"v_and_b32 v{17+2*j}, 0xffff0000, v{12+j}")
    for i in range(8): a(f"v_add_f32 v{ACC+i}, v{ACC+i}, v{16+i}")
    a("s_mov_b32 s46, 0xc0135761")
    a("s_mov_b32 s47, 0xbdd2d3e8")
    a("v_mov_b32 v24, s46")
    for i in range(8): a(f"v_mul_f32 v{16+i}, v{ACC+i}, v{ACC+i}")
    for i in range(8): a(f"v_fma_f32 v{16+i}, v{16+i}, s47, v24")
    for i in range(8): a(f"v_mul_f32 v{16+i}, v{16+i}, v{ACC+i}")
    for i in range(8): a(f"v_exp_f32 v{16+i}, v{16+i}")
    for i in range(8): a(f"v_add_f32 v{16+i}, 1.0, v{16+i}")
    for i in range(8): a(f"v_rcp_f32 v{16+i}, v{16+i}")
    for i in range(8): a(f"v_mul_f32 v{16+i}, v{16+i}, v{ACC+i}")
    for j in range(4): a(f"v_cvt_pk_bf16_f32 v{28+j}, v{16+2*j}, v{17+2*j}")
    a(f"s_lshl_b32 s46, s{s_db}, 1"); a(f"s_lshr_b32 s47, s{s_kq}, 1"); a("s_add_u32 s46, s46, s47"); a("s_mul_i32 s46, s46, 112")
    a(f"s_lshl_b32 s47, s{s_fb}, 2"); a("s_add_u32 s46, s46, s47"); a(f"s_lshl_b32 s47, s{s_ft}, 1"); a("s_add_u32 s46, s46, s47")
    a(f"s_and_b32 s47, s{s_kq}, 1"); a("s_add_u32 s46, s46, s47"); a("s_lshl_b32 s46, s46, 10"); a(f"s_add_u32 s46, s46, {UF}")
    a(f"buffer_store_dwordx4 v[28:31], v1, s[{SWS}:{SWS+3}], s46 offen{SC()}")

def phase5(a, hooks=None):
    hooks = hooks or {}
    s_db, s_sb, s_st, s_kq = 26, 27, 44, 45
    SW, SWS, SB, SO = 28, 36, 32, 40
    ACC = 64
    a("; ---- P5: out = h + (u w2 + b2)^T")
    a("s_and_b32 s46, s2, 7"); a("s_lshr_b32 s47, s2, 3")
    a("s_lshl_b32 s48, s46, 2"); a("s_lshr_b32 s49, s47, 3"); a(f"s_add_u32 s{s_sb}, s48, s49"); a(f"s_and_b32 s{s_db}, s47, 7")
    a(f"s_and_b32 s{s_st}, s3, 1"); a(f"s_lshr_b32 s{s_kq}, s3, 1")
    srd(a, SW, P_W2, 1792 * 2048 * 2); srd(a, SWS, P_WS, WS_SIZE); srd(a, SB, P_B2, 2048 * 2); srd(a, SO, P_OUT, 2048 * 512 * 2)
    dma_row_voff(a, 10, 2, 3, 4096)
    a("s_lshl_b32 s46, s3, 16"); a(f"s_lshl_b32 s47, s{s_sb}, 7"); a("s_add_u32 s46, s46, s47"); a("v_add_u32 v10, s46, v10")
    a(f"s_mul_i32 s46, s{s_db}, {2*112*1024}"); a("s_lshl_b32 s47, s3, 10"); a("s_add_u32 s46, s46, s47")
    a(f"s_add_u32 s54, s46, {UF}"); a(f"s_add_u32 s55, s46, {UF + 112*1024}")
    a(f"s_lshl_b32 s46, s{s_sb}, 1"); a(f"s_add_u32 s58, s46, s{s_st}")
    a("v_and_b32 v2, 31, v0"); a("s_lshl_b32 s46, s58, 5"); a("v_add_u32 v11, s46, v2")
    a("v_lshlrev_b32 v2, 1, v11")
    a(f"buffer_load_ushort v12, v2, s[{SB}:{SB+3}], 0 offen")
    a("s_lshl_b32 s46, s58, 5"); a(f"s_lshl_b32 s47, s{s_db}, 2"); a("s_add_u32 s46, s46, s47"); a(f"s_add_u32 s46, s46, s{s_kq}")
    a("s_lshl_b32 s46, s46, 10"); a(f"s_add_u32 s46, s46, {HF}")
    a("v_lshlrev_b32 v2, 4, v0")
    if cfg.persist:
        for j in range(4): a(f"v_mov_b32 v{16+j}, v{V_HP+j}")
    else:
        a(f"buffer_load_dwordx4 v[16:19], v2, s[{SWS}:{SWS+3}], s46 offen")
    big_gemm(a, 14, (54, 55), SWS, SW, 10, 128 * 4096, s_st, s_kq, False, ACC, hooks.get("dep"))
    reduce_scatter(a, ACC, s_st, s_kq, 5, 112, 0)
    a("v_lshlrev_b32 v12, 16, v12")
    for j in range(4):
        a(f"v_lshlrev_b32 v{20+2*j}, 16, v{16+j}"); a(f"v_and_b32 v{21+2*j}, 0xffff0000, v{16+j}")
    for i in range(8): a(f"v_add_f32 v{ACC+i}, v{ACC+i}, v12")
    for i in range(8): a(f"v_add_f32 v{ACC+i}, v{ACC+i}, v{20+i}")
    for j in range(4): a(f"v_cvt_pk_bf16_f32 v{28+j}, v{ACC+2*j}, v{ACC+2*j+1}")
    a("s_nop 1")
    a("v_permlane32_swap_b32 v28, v30"); a("v_permlane32_swap_b32 v29, v31")
    a("v_lshlrev_b32 v11, 10, v11"); a("v_lshrrev_b32 v2, 5, v0"); a("v_lshlrev_b32 v2, 4, v2"); a("v_add_u32 v11, v11, v2")
    a(f"s_lshl_b32 s46, s{s_db}, 7"); a(f"s_lshl_b32 s47, s{s_kq}, 5"); a("s_add_u32 s46, s46, s47")
    a(f"buffer_store_dwordx4 v[28:31], v11, s[{SO}:{SO+3}], s46 offen")
```

```python
import sys
from asmlib import *
import phases
from phases import *
import gen_persist as gp
from gen_persist import opt, stamp, SB_WS, STAMP0, HEADER, KNAME, NAME

S_OFA, S_LFA, S_UFA, S_FB128, S_STU = 96, 97, 98, 99, 100
WREG = 128
HP = 4
STG = 131072

def map_addresses(a):
    a("s_and_b32 s46, s2, 7"); a("s_lshr_b32 s47, s2, 3")
    a("s_lshl_b32 s48, s46, 2"); a("s_lshr_b32 s49, s47, 3"); a("s_add_u32 s48, s48, s49")
    a("s_and_b32 s49, s47, 7")
    a("s_lshl_b32 s50, s49, 3"); a("s_add_u32 s50, s50, s3"); a("s_lshl_b32 s50, s50, 5"); a("s_add_u32 s50, s50, s48")
    a("s_lshl_b32 s50, s50, 10"); a(f"s_add_u32 s{S_OFA}, s50, {OF}")
    a("s_lshl_b32 s50, s49, 1"); a("s_and_b32 s51, s3, 1"); a("s_add_u32 s50, s50, s51"); a("s_lshl_b32 s50, s50, 7")
    a("s_lshl_b32 s51, s48, 2"); a("s_add_u32 s50, s50, s51"); a("s_lshr_b32 s51, s3, 1"); a("s_add_u32 s50, s50, s51")
    a("s_lshl_b32 s50, s50, 10"); a(f"s_add_u32 s{S_LFA}, s50, {LF}")
    a("s_and_b32 s50, s46, 1"); a("s_lshl_b32 s50, s50, 2"); a("s_and_b32 s51, s47, 3"); a("s_add_u32 s50, s50, s51")
    a("s_lshr_b32 s51, s46, 1"); a("s_mul_i32 s51, s51, 7"); a("s_lshr_b32 s52, s47, 2"); a("s_min_u32 s52, s52, 6"); a("s_add_u32 s51, s51, s52")
    a(f"s_lshl_b32 s{S_FB128}, s51, 7")
    a("s_cmp_lt_u32 s47, 28"); a(f"s_cselect_b32 s{S_STU}, 1, 0")
    a("s_lshl_b32 s50, s50, 1"); a("s_lshr_b32 s52, s3, 2"); a("s_add_u32 s50, s50, s52"); a("s_mul_i32 s50, s50, 112")
    a("s_lshl_b32 s51, s51, 2"); a("s_add_u32 s50, s50, s51")
    a("s_and_b32 s51, s3, 1"); a("s_lshl_b32 s51, s51, 1"); a("s_add_u32 s50, s50, s51"); a("s_bfe_u32 s51, s3, 0x10001"); a("s_add_u32 s50, s50, s51")
    a("s_lshl_b32 s50, s50, 10"); a(f"s_add_u32 s{S_UFA}, s50, {UF}")

def markers(a):
    if opt.exp == "nomark": return 0
    for i in range(4): a(f"v_mov_b32 v{120+i}, -1")
    a("v_lshlrev_b32 v124, 4, v0")
    for s in (S_OFA, S_LFA):
        a(f"buffer_store_dwordx4 v[120:123], v124, s[{SB_WS}:{SB_WS+3}], s{s} offen sc1")
    a(f"s_cmp_eq_u32 s{S_STU}, 0"); a(f"s_cselect_b32 s60, s{S_LFA}, s{S_UFA}")
    a(f"buffer_store_dwordx4 v[120:123], v124, s[{SB_WS}:{SB_WS+3}], s60 offen sc1")
    a("s_lshl_b32 s60, s2, 9"); a("s_lshl_b32 s61, s3, 6"); a("s_add_u32 s60, s60, s61"); a(f"s_add_u32 s60, s60, {XCH}")
    a("v_cmp_gt_u32 vcc, 4, v0"); a("s_and_saveexec_b64 s[62:63], vcc")
    a(f"buffer_store_dwordx4 v[120:123], v124, s[{SB_WS}:{SB_WS+3}], s60 offen sc1")
    a("s_mov_b64 exec, s[62:63]")
    return 4

def zero_flag_load(a):
    l = a.uid("L_zf")
    a("s_cmp_lg_u32 s3, 0"); a(f"s_cbranch_scc1 {l}")
    a("buffer_load_dword v247, v248, s[76:79], 0 offen sc1")
    a.label(l)

def zero_flag_store(a):
    l = a.uid("L_zs")
    a("s_cmp_lg_u32 s2, 0"); a(f"s_cbranch_scc1 {l}"); a("s_cmp_lg_u32 s3, 7"); a(f"s_cbranch_scc1 {l}")
    a("v_mov_b32 v126, 1")
    a("v_cmp_eq_u32 vcc, 0, v0"); a("s_and_saveexec_b64 s[62:63], vcc")
    a("buffer_store_dword v126, v248, s[76:79], 0 offen sc1")
    a("s_mov_b64 exec, s[62:63]")
    a.label(l)

def wait_all_groups(k, target, st):
    def dep(a):
        l, lp = a.uid("L_wait"), a.uid("L_poll")
        a("s_cmp_lg_u32 s3, 0"); a(f"s_cbranch_scc1 {l}")
        a(f"s_mov_b32 s60, {CNT + k*2048}"); a("v_lshlrev_b32 v251, 8, v0"); a("s_mov_b32 s61, 0")
        a("v_cmp_gt_u32 vcc, 8, v0"); a("s_and_saveexec_b64 s[62:63], vcc")
        a.label(lp)
        a(f"buffer_load_dword v250, v251, s[{SB_WS}:{SB_WS+3}], s60 offen sc1")
        a("s_add_u32 s61, s61, 1")
        a("s_waitcnt vmcnt(0)")
        a(f"v_cmp_gt_u32 vcc, {target}, v250")
        lx = a.uid("L_wx")
        a(f"s_cbranch_vccz {lx}")
        a("s_cmp_lt_u32 s61, 0x200000"); a(f"s_cbranch_scc1 {lp}")
        a.label(lx)
        a("s_mov_b64 exec, s[62:63]")
        a.label(l)
        a("s_barrier")
        stamp(a, st)
    return dep

def late_check(a):
    l, lp = a.uid("L_lck"), a.uid("L_lcp")
    a("s_cmp_lg_u32 s3, 0"); a(f"s_cbranch_scc1 {l}")
    a("v_cmp_gt_u32 vcc, 32, v113")
    a(f"s_cbranch_vccz {l}")
    a("s_mov_b32 s61, 0"); a(f"s_mov_b32 s60, {CNT}")
    a.label(lp)
    a(f"buffer_load_dword v113, v112, s[{SB_WS}:{SB_WS+3}], s60 offen sc1")
    a("s_add_u32 s61, s61, 1")
    a("s_waitcnt vmcnt(0)")
    a("v_cmp_gt_u32 vcc, 32, v113")
    a(f"s_cbranch_vccz {l}")
    a("s_cmp_lt_u32 s61, 0x200000"); a(f"s_cbranch_scc1 {lp}")
    a.label(l)
    a("s_barrier")

def tag_check(a, regs_, lfail):
    a(f"v_cmp_eq_u32 vcc, -1, v{regs_[0]}")
    for r in regs_[1:]:
        a(f"v_cmp_eq_u32 s[62:63], -1, v{r}"); a("s_or_b64 vcc, vcc, s[62:63]")
    a(f"s_cbranch_vccnz {lfail}")

class W1Pref:
    VD, VT = 92, 93
    def setup(self, a):
        srd(a, 28, P_W1, 2048 * 1792 * 2); srd(a, 32, P_W2, 1792 * 2048 * 2); srd(a, 40, P_WO, 512 * 512 * 2)
        a("v_and_b32 v112, 7, v0"); a("v_lshlrev_b32 v112, 8, v112"); a("v_mov_b32 v113, 0")
        dma_row_voff(a, self.VD, 2, 3, 3584)
        a(f"s_mul_i32 s60, s3, {256*3584}"); a(f"s_add_u32 s60, s60, s{S_FB128}"); a(f"v_add_u32 v{self.VD}, s60, v{self.VD}")
        tr_lane_addr(a, self.VT, 2, 3, 'perm')
        a("s_lshl_b32 s59, s3, 12"); a(f"s_add_u32 s59, s59, {STG}")
        a(f"v_add_u32 v{self.VT}, s59, v{self.VT}"); a(f"v_xor_b32 v{self.VT+1}, 64, v{self.VT}")
        a("s_and_b32 s60, s2, 7"); a("s_lshr_b32 s61, s2, 3")
        dma_row_voff(a, 95, 2, 3, 1024)
        a("s_and_b32 s62, s61, 7"); a("s_lshl_b32 s62, s62, 7"); a("s_lshl_b32 s63, s3, 16"); a("s_add_u32 s62, s62, s63"); a("v_add_u32 v95, s62, v95")
        a("s_and_b32 s62, s3, 3"); a("s_lshl_b32 s62, s62, 13"); a("s_lshr_b32 s63, s3, 2"); a("s_lshl_b32 s63, s63, 16"); a("s_add_u32 s53, s62, s63")
        a("s_lshl_b32 s62, s60, 2"); a("s_lshr_b32 s63, s61, 3"); a("s_add_u32 s62, s62, s63"); a("s_lshl_b32 s62, s62, 7")
        a("s_and_b32 s63, s61, 7"); a("s_mul_i32 s63, s63, 224"); a("s_mul_i32 s64, s3, 28"); a("s_add_u32 s63, s63, s64")
        a("v_min_u32 v96, 27, v0"); a("v_add_u32 v96, s63, v96"); a("v_lshlrev_b32 v96, 12, v96"); a("v_add_u32 v96, s62, v96")
    def tile(self, vq):
        def f(a, t):
            if t % 8 == 0:
                c = t // 8
                for j in range(4):
                    dma(a, self.VD, 28, 60, (59, j * 1024), pre=f"s_mov_b32 s60, {(32*c + 8*j)*3584}")
                vq.issue(f"w1_{c}", 4)
            if t % 8 == 7:
                c = t // 8
                vq.wait(a, f"w1_{c}")
                for kk in range(2):
                    for ft in range(2):
                        r = WREG + (2 * c + kk) * 8 + 4 * ft
                        a(f"ds_read_b64_tr_b16 {vr(r,2)}, v{self.VT+ft} offset:{kk*2048}")
                        a(f"ds_read_b64_tr_b16 {vr(r+2,2)}, v{self.VT+ft} offset:{kk*2048+1024}")
            if t in (45, 46):
                for i in range(4 * (t - 45), 4 * (t - 45) + 4):
                    dma(a, 95, 40, 60, (53, i * 1024), pre=f"s_mov_b32 s60, {i*8192}")
                vq.issue("wo", 4)
            if t == 33:
                l = a.uid("L_lc")
                a("s_cmp_lg_u32 s3, 0"); a(f"s_cbranch_scc1 {l}")
                a(f"s_mov_b32 s60, {CNT}")
                a(f"buffer_load_dword v113, v112, s[{SB_WS}:{SB_WS+3}], s60 offen sc1")
                a.label(l)
                vq.issue("maybe", 0)
            if opt.touch:
                if t == 27:
                    a("buffer_load_dword v97, v96, s[32:35], 0 offen"); vq.issue("touch")
        return f

class W2Stage:
    VD, VT, SRD, SA, SB_ = 60, 61, 28, 59, 55
    def __init__(self): self.vq = None
    def setup(self, a):
        srd(a, self.SRD, P_W2, 1792 * 2048 * 2)
        dma_row_voff(a, self.VD, 2, 3, 4096)
        a("s_and_b32 s60, s2, 7"); a("s_lshr_b32 s61, s2, 3")
        a("s_lshl_b32 s60, s60, 2"); a("s_lshr_b32 s61, s61, 3"); a("s_add_u32 s60, s60, s61"); a("s_lshl_b32 s60, s60, 7")
        a(f"s_mul_i32 s61, s3, {224*4096}"); a("s_add_u32 s60, s60, s61"); a(f"v_add_u32 v{self.VD}, s60, v{self.VD}")
        a(f"s_lshl_b32 s{self.SA}, s3, 13"); a(f"s_add_u32 s{self.SA}, s{self.SA}, {98304}")
        a(f"s_mul_i32 s{self.SB_}, s3, 12288")
        tr_lane_addr(a, self.VT, 2, 3, 'perm')
        a(f"v_add_u32 v{self.VT+2}, s{self.SB_}, v{self.VT}")
        a(f"v_add_u32 v{self.VT}, s{self.SA}, v{self.VT}"); a(f"v_xor_b32 v{self.VT+1}, 64, v{self.VT}")
    def slot(self, j):
        k = j % 10
        return (self.SA, k * 2048, True) if k < 4 else (self.SB_, (k - 4) * 2048, False)
    def dma(self, a, j):
        sreg, off, _ = self.slot(j)
        for i in range(2):
            dma(a, self.VD, self.SRD, 60, (sreg, off + i * 1024), pre=f"s_mov_b32 s60, {(16*j + 8*i)*4096}")
        if self.vq is not None: self.vq.issue(f"w2_{j}", 2)
    def read(self, a, j):
        _, off, early = self.slot(j)
        for st in range(2):
            r = WREG + 8 * j + 4 * st
            if early: v = self.VT + st
            else:
                v = self.VT + 2
                if st == 1: a(f"v_xor_b32 v3, 64, v{v}"); v = 3
            a(f"ds_read_b64_tr_b16 {vr(r,2)}, v{v} offset:{off}")
            a(f"ds_read_b64_tr_b16 {vr(r+2,2)}, v{v} offset:{off+1024}")

def phase3v2(a, w2):
    s_tb, s_cb, s_tt, s_kq = 26, 27, 44, 45
    SWO, SWS, SX = 28, 36, 32
    OFR, XR, ACC, AF, VA = 8, 40, 64, 96, 44
    a("s_and_b32 s46, s2, 7"); a("s_lshr_b32 s47, s2, 3")
    a("s_lshl_b32 s48, s46, 2"); a("s_lshr_b32 s49, s47, 3"); a(f"s_add_u32 s{s_tb}, s48, s49"); a(f"s_and_b32 s{s_cb}, s47, 7")
    a(f"s_and_b32 s{s_tt}, s3, 1"); a(f"s_lshr_b32 s{s_kq}, s3, 1")
    srd(a, SWO, P_WO, 512 * 512 * 2); srd(a, SWS, P_WS, WS_SIZE); srd(a, SX, P_X, 2048 * 512 * 2)
    a(f"s_lshl_b32 s46, s{s_tb}, 1"); a(f"s_add_u32 s58, s46, s{s_tt}")
    a(f"s_lshl_b32 s46, s58, 5"); a(f"s_lshl_b32 s47, s{s_kq}, 3"); a("s_add_u32 s46, s46, s47"); a("s_lshl_b32 s46, s46, 10"); a(f"s_add_u32 s56, s46, {OF}")
    a("s_add_u32 s57, s56, 4096")
    def oloads():
        for i in range(8):
            a(f"buffer_load_dwordx4 {vr(OFR+4*i,4)}, v1, s[{SWS}:{SWS+3}], s{56 + (i >> 2)} offen offset:{(i&3)*1024} sc1")
    a("v_lshlrev_b32 v46, 10, v0"); a("v_add_u32 v46, 1008, v46"); a("s_mov_b32 s48, 0")
    a("v_cmp_gt_u32 vcc, 8, v0"); a("s_and_saveexec_b64 s[52:53], vcc")
    lp, lx_ = a.uid("L_o_probe"), a.uid("L_o_px")
    a.label(lp)
    a(f"buffer_load_dword v47, v46, s[{SWS}:{SWS+3}], s56 offen sc1")
    a("s_add_u32 s48, s48, 1")
    a("s_waitcnt vmcnt(0)")
    a("v_cmp_eq_u32 vcc, -1, v47")
    a(f"s_cbranch_vccz {lx_}")
    a("s_cmp_lt_u32 s48, 0x100000"); a(f"s_cbranch_scc1 {lp}")
    a.label(lx_)
    a("s_mov_b64 exec, s[52:53]")
    oloads()
    a("v_and_b32 v3, 31, v0"); a("s_lshl_b32 s46, s58, 5"); a("v_add_u32 v3, s46, v3"); a("v_lshlrev_b32 v3, 10, v3")
    a("v_lshrrev_b32 v46, 5, v0"); a("v_lshlrev_b32 v46, 3, v46"); a("v_add_u32 v3, v3, v46")
    a(f"s_lshl_b32 s46, s{s_cb}, 7"); a(f"s_lshl_b32 s47, s{s_kq}, 5"); a("s_add_u32 s46, s46, s47")
    a(f"buffer_load_dwordx2 {vr(XR,2)}, v3, s[{SX}:{SX+3}], s46 offen")
    a(f"buffer_load_dwordx2 {vr(XR+2,2)}, v3, s[{SX}:{SX+3}], s46 offen offset:16")
    tr_lane_addr(a, VA, 46, 47, 'perm')
    a(f"s_and_b32 s46, s{s_kq}, 1"); a("s_lshl_b32 s46, s46, 14"); a(f"s_lshr_b32 s47, s{s_kq}, 1"); a("s_lshl_b32 s47, s47, 16"); a("s_add_u32 s46, s46, s47")
    a(f"v_add_u32 v{VA}, s46, v{VA}"); a(f"v_xor_b32 v{VA+1}, 64, v{VA}")
    for i in range(32): a(f"v_mov_b32 v{ACC+i}, 0")
    a("s_waitcnt lgkmcnt(0)"); a("s_barrier")
    w2.setup(a)
    for j in range(4): w2.dma(a, j)
    a("s_waitcnt vmcnt(8)")
    lp, lr, lok = a.uid("L_o_poll"), a.uid("L_o_retry"), a.uid("L_o_ok")
    tag_check(a, [OFR + 4 * i for i in range(8)], lr)
    a(f"s_branch {lok}")
    a.label(lr)
    a("s_mov_b32 s48, 0")
    a.label(lp)
    oloads()
    a("s_add_u32 s48, s48, 1")
    a("s_waitcnt vmcnt(0)")
    a("s_cmp_ge_u32 s48, 0x100000"); a(f"s_cbranch_scc1 {lok}")
    tag_check(a, [OFR + 4 * i for i in range(8)], lp)
    a.label(lok)
    stamp(a, 4)
    def rd(i):
        for ct in range(2):
            r = AF + 8 * (i & 1) + 4 * ct
            a(f"ds_read_b64_tr_b16 {vr(r,2)}, v{VA+ct} offset:{i*2048}")
            a(f"ds_read_b64_tr_b16 {vr(r+2,2)}, v{VA+ct} offset:{i*2048+1024}")
    rd(0)
    for i in range(8):
        if i < 7: rd(i + 1); a("s_waitcnt lgkmcnt(4)")
        else: a("s_waitcnt lgkmcnt(0)")
        for ct in range(2): mfma(a, ACC + 16 * ct, AF + 8 * (i & 1) + 4 * ct, OFR + 4 * i)
    a("s_nop 7"); a("s_nop 3")
    reduce_scatter(a, ACC, s_tt, s_kq, 46, 8, 0, sub_shift=16)
    H = 8
    for j in range(4):
        a(f"v_lshlrev_b32 v{H+2*j}, 16, v{XR+j}"); a(f"v_and_b32 v{H+2*j+1}, 0xffff0000, v{XR+j}")
    for i in range(8): a(f"v_add_f32 v{H+i}, v{H+i}, v{ACC+i}")
    for j in range(4): a(f"v_cvt_pk_bf16_f32 v{HP+j}, v{H+2*j}, v{H+2*j+1}")
    for j in range(4):
        a(f"v_lshlrev_b32 v{H+2*j}, 16, v{HP+j}"); a(f"v_and_b32 v{H+2*j+1}, 0xffff0000, v{HP+j}")
    a(f"v_add_f32 v20, v{H}, v{H+1}"); a(f"v_mul_f32 v21, v{H}, v{H}"); a(f"v_fmac_f32 v21, v{H+1}, v{H+1}")
    for i in range(2, 8):
        a(f"v_add_f32 v20, v20, v{H+i}"); a(f"v_fmac_f32 v21, v{H+i}, v{H+i}")
    a("v_mov_b32 v22, v20"); a("v_mov_b32 v23, v21"); a("s_nop 1")
    a("v_permlane32_swap_b32 v20, v22"); a("v_permlane32_swap_b32 v21, v23"); a("s_nop 1")
    a("v_add_f32 v20, v20, v22"); a("v_add_f32 v21, v21, v23")
    ST = 32768
    a("v_and_b32 v46, 31, v0"); a(f"s_lshl_b32 s46, s{s_tt}, 5"); a("v_add_u32 v46, s46, v46"); a("v_lshlrev_b32 v24, 3, v46")
    a(f"s_lshl_b32 s46, s{s_kq}, 9"); a(f"s_add_u32 s46, s46, {ST}"); a("v_add_u32 v47, s46, v24")
    a("v_cmp_gt_u32 vcc, 32, v0"); a("s_and_saveexec_b64 s[52:53], vcc")
    a("ds_write_b64 v47, v[20:21]")
    a("s_mov_b64 exec, s[52:53]")
    a("s_waitcnt lgkmcnt(0)"); a("s_barrier")
    lx = a.uid("L_p3_x")
    a("s_cmp_lg_u32 s3, 0"); a(f"s_cbranch_scc1 {lx}")
    a("v_lshlrev_b32 v48, 3, v0"); a(f"v_add_u32 v49, {ST}, v48")
    for q in range(4): a(f"ds_read_b64 {vr(26+2*q,2)}, v49 offset:{q*512}")
    a("s_waitcnt lgkmcnt(0)")
    a("v_add_f32 v26, v26, v28"); a("v_add_f32 v27, v27, v29"); a("v_add_f32 v30, v30, v32"); a("v_add_f32 v31, v31, v33")
    a("v_add_f32 v26, v26, v30"); a("v_add_f32 v27, v27, v31")
    a("v_min_u32 v26, 0xfffffffe, v26"); a("v_min_u32 v27, 0xfffffffe, v27")
    a(f"s_lshl_b32 s46, s{s_tb}, 12"); a(f"s_add_u32 s46, s46, {XCH}"); a(f"s_lshl_b32 s47, s{s_cb}, 9"); a("s_add_u32 s47, s47, s46")
    a(f"buffer_store_dwordx2 v[26:27], v48, s[{SWS}:{SWS+3}], s47 offen sc1")
    lp, lpd, lr = a.uid("L_p3_poll"), a.uid("L_p3_pd"), a.uid("L_p3_r")
    a("s_mov_b32 s48, 0")
    a.label(lp)
    for q in range(8): a(f"buffer_load_dwordx2 {vr(32+2*q,2)}, v48, s[{SWS}:{SWS+3}], s46 offen offset:{q*512} sc1")
    a("s_waitcnt vmcnt(0)")
    tag_check(a, list(range(32, 48)), lr)
    a(f"s_branch {lpd}")
    a.label(lr)
    a("s_add_u32 s48, s48, 1"); a("s_cmp_lt_u32 s48, 0x100000"); a(f"s_cbranch_scc1 {lp}")
    a.label(lpd)
    for q in range(1, 8):
        a(f"v_add_f32 v32, v32, v{32+2*q}"); a(f"v_add_f32 v33, v33, v{33+2*q}")
    a("v_mul_f32 v32, 0x3b000000, v32"); a("v_mul_f32 v33, 0x3b000000, v33")
    a("v_fma_f32 v33, -v32, v32, v33"); a("v_max_f32 v33, 0, v33")
    a("v_add_f32 v34, 0x3727c5ac, v33"); a("v_rsq_f32 v35, v34")
    a("s_nop 0")
    a("v_mul_f32 v36, v35, v35"); a("v_mul_f32 v36, v36, v33")
    a("v_add_f32 v36, 0x3727c5ac, v36"); a("v_rsq_f32 v36, v36")
    a("s_nop 0")
    a("v_mul_f32 v34, v35, v36"); a("v_mul_f32 v35, v32, v34"); a("v_sub_f32 v35, 0, v35")
    a(f"v_add_u32 v49, {ST + 2048}, v48")
    a("ds_write_b64 v49, v[34:35]")
    a("s_waitcnt lgkmcnt(0)")
    a.label(lx)
    a("s_barrier")
    stamp(a, 5)
    a(f"v_add_u32 v47, {ST + 2048}, v24")
    a("ds_read_b64 v[20:21], v47")
    a("s_waitcnt lgkmcnt(0)")
    for i in range(8): a(f"v_fma_f32 v{H+i}, v{H+i}, v20, v21")
    for j in range(4): a(f"v_cvt_pk_bf16_f32 v{16+j}, v{H+2*j}, v{H+2*j+1}")
    a("v_lshrrev_b32 v46, 3, v24")
    a("v_bfe_u32 v47, v46, 1, 1"); a("v_lshlrev_b32 v47, 2, v47")
    a(f"s_lshl_b32 s46, s{s_kq}, 1"); a("v_xor_b32 v47, s46, v47")
    a("v_lshlrev_b32 v47, 4, v47"); a("v_lshlrev_b32 v46, 7, v46"); a("v_add_u32 v46, v46, v47")
    a("v_lshrrev_b32 v47, 5, v0"); a("v_lshlrev_b32 v47, 3, v47"); a("v_add_u32 v46, v46, v47")
    a("ds_write_b64 v46, v[16:17]"); a("ds_write_b64 v46, v[18:19] offset:16")
    a(f"s_lshl_b32 s46, s{s_tt}, 2")
    tr_lane_addr(a, 48, 46, 47, 'perm', colunit_sreg=46)
    a(f"s_lshl_b32 s46, s{s_kq}, 11"); a("v_add_u32 v48, s46, v48")
    a("s_waitcnt lgkmcnt(0)"); a("s_barrier")
    a("ds_read_b64_tr_b16 v[24:25], v48"); a("ds_read_b64_tr_b16 v[26:27], v48 offset:1024")
    a("s_waitcnt lgkmcnt(0)")
    a("v_min_u32 v24, 0xfffffffe, v24")
    a(f"buffer_store_dwordx4 v[24:27], v1, s[{SWS}:{SWS+3}], s{S_LFA} offen sc1")
    a("s_barrier")

RING = 8
NR = 6
ACC = 64
def ring_load(a, s_act, i):
    for dt in range(2):
        r = RING + (i % NR) * 8 + 4 * dt
        a(f"s_add_u32 s52, s{s_act[dt]}, {i*1024}")
        a(f"buffer_load_dwordx4 {vr(r,4)}, v1, s[36:39], s52 offen sc1")

def gemm8(a, vq, nks, s_act, act_is_B, retries, probe_steps, per_step=None, after_probe=None):
    a("v_lshrrev_b32 v2, 1, v0"); a(f"v_mov_b32 v3, {probe_steps[0]}")
    for n in range(1, 4):
        a(f"v_cmp_eq_u32 vcc, {n}, v2"); a(f"v_mov_b32 v8, {probe_steps[n]}"); a("s_nop 0"); a("v_cndmask_b32 v3, v3, v8, vcc")
    a("v_lshlrev_b32 v3, 10, v3"); a("v_add_u32 v3, 1008, v3")
    a("v_and_b32 v2, 1, v0"); a(f"s_sub_u32 s52, s{s_act[1]}, s{s_act[0]}"); a("v_mul_lo_u32 v2, v2, s52"); a("v_add_u32 v3, v3, v2")
    a("s_mov_b32 s53, 0")
    a("v_cmp_gt_u32 vcc, 8, v0"); a("s_and_saveexec_b64 s[62:63], vcc")
    lp, lx = a.uid("L_probe"), a.uid("L_px")
    a.label(lp)
    a(f"buffer_load_dword v8, v3, s[36:39], s{s_act[0]} offen sc1")
    a("s_add_u32 s53, s53, 1")
    a("s_waitcnt vmcnt(0)")
    a("v_cmp_eq_u32 vcc, -1, v8")
    a(f"s_cbranch_vccz {lx}")
    a("s_cmp_lt_u32 s53, 0x100000"); a(f"s_cbranch_scc1 {lp}")
    a.label(lx)
    a("s_mov_b64 exec, s[62:63]")
    vq.q = []
    if opt.exp == "p45": stamp(a, 4 if nks == 16 else 13, force=True)
    def load(i):
        ring_load(a, s_act, i); vq.issue(f"act{i}", 2)
    for i in range(min(NR, nks)): load(i)
    if after_probe: after_probe()
    for i in range(64): a(f"v_mov_b32 v{ACC+i}, 0")
    for i in range(nks):
        r = RING + (i % NR) * 8
        vq.wait(a, f"act{i}")
        lr, lb = a.uid("L_retry"), a.uid("L_back")
        tag_check(a, [r, r + 4], lr)
        a.label(lb)
        retries.append((lr, lb, i, r, s_act, nks))
        for sub in range(2):
            for dt in range(2):
                W, A_ = WREG + 8 * i + 4 * sub, r + 4 * dt
                if act_is_B: mfma(a, ACC + 16 * (2 * dt + sub), W, A_)
                else: mfma(a, ACC + 16 * (2 * dt + sub), A_, W)
        if opt.exp == "p45" and i == 5: stamp(a, 5 if nks == 16 else 1, force=True)
        if i + NR < nks: load(i + NR)
        if per_step: per_step(i)
    a("s_nop 7"); a("s_nop 3")

def emit_retries(a, retries):
    for lr, lb, i, r, s_act, nks in retries:
        lp = a.uid("L_rp")
        a.label(lr)
        a("s_mov_b32 s53, 0")
        a.label(lp)
        for k in range(i, min(i + NR, nks)): ring_load(a, s_act, k)
        a("s_add_u32 s53, s53, 1")
        a("s_waitcnt vmcnt(0)")
        a("s_cmp_ge_u32 s53, 0x100000"); a(f"s_cbranch_scc1 {lb}")
        tag_check(a, [r, r + 4], lp)
        a(f"s_branch {lb}")

def reduce8(a):
    a("s_waitcnt lgkmcnt(0)"); a("s_barrier")
    a("s_lshl_b32 s46, s3, 11"); a("v_add_u32 v2, s46, v1"); a("v_add_u32 v3, 0x10000, v2")
    for p in range(8):
        sub, half, dt = p & 1, (p >> 1) & 1, p >> 2
        for q in range(2):
            r = ACC + 16 * (2 * dt + sub) + 8 * half + 4 * q
            a(f"ds_write_b128 v{2 + (p >> 2)}, {vr(r,4)} offset:{(p & 3)*16384 + q*1024}")
    a("s_lshl_b32 s46, s3, 14"); a("v_add_u32 v2, s46, v1")
    a("s_waitcnt lgkmcnt(0)"); a("s_barrier")
    for src in range(8):
        for q in range(2):
            a(f"ds_read_b128 {vr(ACC + 8*src + 4*q, 4)}, v2 offset:{src*2048 + q*1024}")
    for lvl, (wait, pairs) in enumerate(((12, [(0, 1)]), (8, [(2, 3)]), (4, [(4, 5)]), (0, [(6, 7)]))):
        a(f"s_waitcnt lgkmcnt({wait})")
        for x, y in pairs:
            for i in range(8): a(f"v_add_f32 v{ACC+8*x+i}, v{ACC+8*x+i}, v{ACC+8*y+i}")
    for x, y in ((0, 2), (4, 6), (0, 4)):
        for i in range(8): a(f"v_add_f32 v{ACC+8*x+i}, v{ACC+8*x+i}, v{ACC+8*y+i}")

def phase4v2(a, retries, w2):
    s_db = 26
    SB, SW2 = 32, 28
    a("s_and_b32 s46, s2, 7"); a("s_lshr_b32 s47, s2, 3")
    a("s_and_b32 s48, s46, 1"); a("s_lshl_b32 s48, s48, 2"); a("s_and_b32 s49, s47, 3"); a(f"s_add_u32 s{s_db}, s48, s49")
    srd(a, SB, P_B1, 1792 * 2)
    vq = VMQ(); w2.vq = vq
    def late_w2():
        for j in range(4, 10): w2.dma(a, j)
    a("s_and_b32 s46, s3, 1"); a("s_lshl_b32 s46, s46, 6"); a("s_bfe_u32 s47, s3, 0x10001"); a("s_lshl_b32 s47, s47, 5")
    a("s_add_u32 s46, s46, s47"); a(f"s_add_u32 s46, s46, s{S_FB128}")
    a("v_lshrrev_b32 v2, 5, v0"); a("v_lshlrev_b32 v2, 3, v2")
    a(f"buffer_load_dwordx2 v[56:57], v2, s[{SB}:{SB+3}], s46 offen"); a(f"buffer_load_dwordx2 v[58:59], v2, s[{SB}:{SB+3}], s46 offen offset:16")
    vq.issue("bias", 2)
    a(f"s_lshl_b32 s46, s{s_db}, 18"); a("s_lshl_b32 s47, s3, 14"); a("s_add_u32 s46, s46, s47")
    a(f"s_add_u32 s54, s46, {LF}"); a(f"s_add_u32 s56, s46, {LF + 128*1024}")
    def per_step(i):
        if i <= 13:
            vq.wait(a, f"w2_{i}")
            w2.read(a, i)
        if 1 <= i <= 4:
            a("s_waitcnt lgkmcnt(4)")
            w2.dma(a, i + 9)
    gemm8(a, vq, 16, (54, 56), True, retries, (3, 7, 11, 15), per_step, late_w2)
    stamp(a, 7)
    reduce8(a)
    for j in range(4):
        a(f"v_lshlrev_b32 v{16+2*j}, 16, v{56+j}"); a(f"v_and_b32 v{17+2*j}, 0xffff0000, v{56+j}")
    for i in range(8): a(f"v_add_f32 v{ACC+i}, v{ACC+i}, v{16+i}")
    a("s_mov_b32 s46, 0xc0135761")
    a("s_mov_b32 s47, 0xbdd2d3e8")
    a("v_mov_b32 v24, s46")
    for i in range(8): a(f"v_mul_f32 v{16+i}, v{ACC+i}, v{ACC+i}")
    for i in range(8): a(f"v_fma_f32 v{16+i}, v{16+i}, s47, v24")
    for i in range(8): a(f"v_mul_f32 v{16+i}, v{16+i}, v{ACC+i}")
    for i in range(8): a(f"v_exp_f32 v{16+i}, v{16+i}")
    for i in range(8): a(f"v_add_f32 v{16+i}, 1.0, v{16+i}")
    for i in range(8): a(f"v_rcp_f32 v{16+i}, v{16+i}")
    for i in range(8): a(f"v_mul_f32 v{16+i}, v{16+i}, v{ACC+i}")
    for j in range(4): a(f"v_cvt_pk_bf16_f32 v{28+j}, v{16+2*j}, v{17+2*j}")
    a("v_min_u32 v28, 0xfffffffe, v28")
    l = a.uid("L_nostu")
    a(f"s_cmp_eq_u32 s{S_STU}, 0"); a(f"s_cbranch_scc1 {l}")
    a(f"buffer_store_dwordx4 v[28:31], v1, s[36:39], s{S_UFA} offen sc1")
    a.label(l)

def phase5v2(a, retries):
    s_db, s_sb = 26, 27
    SB, SO = 32, 40
    a("; ---- P5: out = h + (u w2 + b2)^T")
    a("s_and_b32 s46, s2, 7"); a("s_lshr_b32 s47, s2, 3")
    a("s_lshl_b32 s48, s46, 2"); a("s_lshr_b32 s49, s47, 3"); a(f"s_add_u32 s{s_sb}, s48, s49"); a(f"s_and_b32 s{s_db}, s47, 7")
    srd(a, SB, P_B2, 2048 * 2); srd(a, SO, P_OUT, 2048 * 512 * 2)
    vq = VMQ(); vq.issue("ustore")
    a(f"s_lshl_b32 s46, s{s_sb}, 6"); a("s_and_b32 s47, s3, 1"); a("s_lshl_b32 s47, s47, 5"); a("s_add_u32 s46, s46, s47")
    a("v_and_b32 v2, 31, v0"); a("v_add_u32 v57, s46, v2"); a("v_lshlrev_b32 v2, 1, v57")
    a(f"buffer_load_ushort v56, v2, s[{SB}:{SB+3}], 0 offen"); vq.issue("b2")
    a(f"s_mul_i32 s46, s{s_db}, {2*112*1024}"); a(f"s_mul_i32 s47, s3, {14*1024}"); a("s_add_u32 s46, s46, s47")
    a(f"s_add_u32 s54, s46, {UF}"); a(f"s_add_u32 s56, s46, {UF + 112*1024}")
    gemm8(a, vq, 14, (54, 56), False, retries, (1, 5, 9, 13))
    stamp(a, 9)
    reduce8(a)
    a("v_lshlrev_b32 v56, 16, v56")
    for j in range(4):
        a(f"v_lshlrev_b32 v{20+2*j}, 16, v{HP+j}"); a(f"v_and_b32 v{21+2*j}, 0xffff0000, v{HP+j}")
    for i in range(8): a(f"v_add_f32 v{ACC+i}, v{ACC+i}, v56")
    for i in range(8): a(f"v_add_f32 v{ACC+i}, v{ACC+i}, v{20+i}")
    for j in range(4): a(f"v_cvt_pk_bf16_f32 v{28+j}, v{ACC+2*j}, v{ACC+2*j+1}")
    a("s_nop 1")
    a("v_permlane32_swap_b32 v28, v30"); a("v_permlane32_swap_b32 v29, v31")
    a("v_lshlrev_b32 v57, 10, v57"); a("v_lshrrev_b32 v2, 5, v0"); a("v_lshlrev_b32 v2, 4, v2"); a("v_add_u32 v57, v57, v2")
    a(f"s_lshl_b32 s46, s{s_db}, 7"); a("s_lshr_b32 s47, s3, 1"); a("s_lshl_b32 s47, s47, 5"); a("s_add_u32 s46, s46, s47")
    a(f"buffer_store_dwordx4 v[28:31], v57, s[{SO}:{SO+3}], s46 offen{opt.outflags}")

opt.outflags = ""
opt.p1stamps = False
opt.exp = None
def build():
    phases.cfg.persist = True; phases.cfg.tags = True
    a = Asm()
    a.label(KNAME)
    end = "L_end"
    if opt.stamps: a("s_memrealtime s[74:75]")
    prologue(a, 256, end)
    if opt.stamps:
        for i in range(1, 16): a(f"s_mov_b32 s{STAMP0+i}, 0")
        a(f"s_mov_b32 s{STAMP0}, s74")
    if opt.diag == "pad100":
        a("s_memrealtime s[90:91]"); a("s_waitcnt lgkmcnt(0)")
    srd(a, SB_WS, P_WS, WS_SIZE); srd(a, 76, P_DBG, 256)
    a("v_mov_b32 v248, 252"); a("v_mov_b32 v247, 0")
    if opt.codepf:
        a("s_getpc_b64 s[62:63]")
        a.label("L_pcbase")
        a("s_lshl_b32 s60, s3, 13"); a("v_lshlrev_b32 v2, 7, v0"); a("v_add_u32 v2, s60, v2")
        a("s_mov_b32 s61, L_codeend-L_pcbase"); a("v_min_u32 v2, s61, v2")
        a("global_load_dword v249, v2, s[62:63]")
    lz = a.uid("L_zero")
    a("s_cmp_lg_u32 s2, 0"); a(f"s_cbranch_scc1 {lz}")
    a("s_cmp_lg_u32 s3, 7"); a(f"s_cbranch_scc1 {lz}")
    a("v_lshlrev_b32 v2, 8, v0"); a("v_mov_b32 v3, 0")
    a("v_cmp_gt_u32 vcc, 8, v0"); a("s_and_saveexec_b64 s[62:63], vcc")
    a(f"s_mov_b32 s60, {CNT}")
    a(f"buffer_store_dword v3, v2, s[{SB_WS}:{SB_WS+3}], s60 offen sc1")
    a("s_mov_b64 exec, s[62:63]")
    a.label(lz)
    map_addresses(a)
    phase1(a, {"after_dma": markers, "post_x": zero_flag_store, "pre_store": zero_flag_load, "no_clear": True, "xfirst": True, "wtouch": opt.touch, "late_issue": True, **({"st": (lambda a, i: stamp(a, i, force=True))} if opt.p1stamps else {})})
    stamp(a, 1)
    l, lp = a.uid("L_zc"), a.uid("L_zp")
    a("s_cmp_lg_u32 s3, 0"); a(f"s_cbranch_scc1 {l}")
    a("s_mov_b32 s61, 0")
    a.label(lp)
    a("s_waitcnt vmcnt(0)")
    a("v_readfirstlane_b32 s64, v247"); a("s_add_u32 s61, s61, 1")
    a("s_cmp_lg_u32 s64, 0"); a(f"s_cbranch_scc1 {l}")
    a("buffer_load_dword v247, v248, s[76:79], 0 offen sc1")
    a("s_cmp_lt_u32 s61, 0x200000"); a(f"s_cbranch_scc1 {lp}")
    a.label(l)
    gp.arrive(a, 0, 27, 13)
    vq = VMQ(); pf = W1Pref()
    def dep2(a):
        pf.setup(a)
        a("s_and_b32 s65, s2, 7")
        gp.make_wait(0, 65, 32, 2)(a)
    phase2(a, {"dep": dep2, "vq": vq, "tile": pf.tile(vq),
               "loop_start": lambda a: (stamp(a, 10), stamp(a, 14, True)), "loop_end": lambda a: (stamp(a, 15, True), stamp(a, 11))})
    stamp(a, 3)
    late_check(a)
    retries = []
    w2 = W2Stage()
    phase3v2(a, w2)
    stamp(a, 6)
    phase4v2(a, retries, w2)
    stamp(a, 8)
    phase5v2(a, retries)
    if opt.stamps:
        a("s_waitcnt vmcnt(0)")
        stamp(a, 12)
        ls = a.uid("L_st")
        a("s_lshl_b32 s61, s2, 3"); a("s_add_u32 s61, s61, s3"); a("s_lshl_b32 s61, s61, 6"); a("s_add_u32 s61, s61, 0xF00000"); a("v_mov_b32 v3, 0")
        for i in range(16):
            a(f"v_mov_b32 v2, s{STAMP0+i}")
            a(f"buffer_store_dword v2, v3, s[{SB_WS}:{SB_WS+3}], s61 offen offset:{4*i}")
        a(f"s_cmp_lg_u32 s2, {opt.stamp_wg}"); a(f"s_cbranch_scc1 {ls}"); a("s_cmp_lg_u32 s3, 0"); a(f"s_cbranch_scc1 {ls}")
        for i in range(14):
            a(f"s_sub_u32 s60, s{STAMP0+i}, s74"); a(f"v_mov_b32 v2, s60"); a(f"v_mov_b32 v3, {4*i}")
            a("buffer_store_dword v2, v3, s[76:79], 0 offen")
        a.label(ls)
    if opt.diag == "pad100":
        a.label("L_dg"); a("s_memrealtime s[92:93]"); a("s_waitcnt lgkmcnt(0)"); a("s_sub_u32 s92, s92, s90"); a("s_cmp_lt_u32 s92, 10000"); a("s_cbranch_scc1 L_dg")
    a("s_endpgm")
    emit_retries(a, retries)
    a.label(end)
    a.label("L_codeend")
    a("s_endpgm")
    body = a.text()
    probs = check_hazards(body)
    for p in probs: print(p, file=sys.stderr)
    desc = f""".amdhsa_kernel {KNAME}
  .amdhsa_next_free_vgpr 256
  .amdhsa_next_free_sgpr 102
  .amdhsa_accum_offset 256
  .amdhsa_group_segment_fixed_size 0
  .amdhsa_kernarg_size 88
  .amdhsa_user_sgpr_count 2
  .amdhsa_user_sgpr_kernarg_segment_ptr 1
  .amdhsa_system_sgpr_workgroup_id_x 1
  .amdhsa_float_denorm_mode_32 3
.end_amdhsa_kernel
"""
    return (HEADER + "; @launch grid=(256,1,1) block=(512,1,1) lds=163840\n"
            + '.amdgcn_target "amdgcn-amd-amdhsa--gfx950"\n.text\n'
            + f".globl {KNAME}\n.p2align 8\n.type {KNAME},@function\n" + body
            + '.section .rodata,"a"\n.p2align 6\n' + desc)

if __name__ == "__main__":
    import argparse
    ap = argparse.ArgumentParser()
    ap.add_argument("-o", default=f"cdna_kernels/{NAME}.s")
    ap.add_argument("--stamps", action="store_true")
    ap.add_argument("--no-touch", action="store_true")
    ap.add_argument("--no-codepf", action="store_true")
    ap.add_argument("--diag", default=None)
    ap.add_argument("--outflags", default="")
    ap.add_argument("--p1stamps", action="store_true")
    ap.add_argument("--exp", default=None)
    args = ap.parse_args()
    opt.stamps = args.stamps; opt.touch = not args.no_touch; opt.codepf = not args.no_codepf; opt.diag = args.diag
    opt.p1stamps = args.p1stamps; opt.exp = args.exp; phases.cfg.exp = args.exp
    opt.outflags = (" " + args.outflags) if args.outflags else ""
    open(args.o, "w").write(build())
    print("wrote", args.o)
```

```python
from asmlib import *

QF, KF, VF, OF, HF, LF, UF, XCH = 0x000000, 0x200000, 0x400000, 0x600000, 0x800000, 0xA00000, 0xC00000, 0xE00000
WS_SIZE = 0x1000000
P_X, P_WQKV, P_WO, P_W1, P_B1, P_W2, P_B2, P_OUT, P_DBG, P_WS = 4, 6, 8, 12, 14, 16, 18, 20, 22, 24
S_WG, S_WAVE = 2, 3
class Cfg:
    persist = False
    stamps = False
    tags = False
cfg = Cfg()
def SC(): return " sc1" if cfg.persist else ""
CNT = 0xE40000
V_HP = 200

def srd(a, dst, ptr, nbytes):
    a(f"s_mov_b32 s{dst}, s{ptr}")
    a(f"s_mov_b32 s{dst+1}, s{ptr+1}")
    a(f"s_mov_b32 s{dst+2}, {hex(nbytes)}")
    a(f"s_mov_b32 s{dst+3}, 0x20000")

def prologue(a, nwg, end_label):
    a(f"s_cmp_ge_u32 s2, {nwg}")
    a(f"s_cbranch_scc1 {end_label}")
    a("s_load_dwordx16 s[4:19], s[0:1], 0")
    a("s_load_dwordx4 s[20:23], s[0:1], 64")
    a("s_load_dwordx2 s[24:25], s[0:1], 80")
    a("v_lshrrev_b32 v1, 6, v0")
    a("v_and_b32 v0, 63, v0")
    a("v_readfirstlane_b32 s3, v1")
    a("s_waitcnt lgkmcnt(0)")

def dma(a, voff, srd_, soff, m0, offset=0, flags="", pre=None):
    if isinstance(m0, tuple):
        if m0[1] == 0: a(f"s_mov_b32 m0, s{m0[0]}")
        else: a(f"s_add_u32 m0, s{m0[0]}, {m0[1]}")
    elif m0 is not None:
        a(f"s_mov_b32 m0, {m0}")
    if pre: a(pre)
    elif m0 is not None: a("s_nop 0")
    o = f" offset:{offset}" if offset else ""
    so = f"s{soff}" if soff is not None else "0"
    a(f"buffer_load_dwordx4 v{voff}, s[{srd_}:{srd_+3}], {so} offen{o}{flags} lds")

def tr_lane_addr(a, dst, t0, t1, rowsel, colunit_sreg=None, colunit_imm=0):
    a(f"v_lshrrev_b32 v{t0}, 5, v0")
    a(f"v_lshlrev_b32 v{t0}, {3 if rowsel=='nat' else 2}, v{t0}")
    a(f"v_bfe_u32 v{t1}, v0, 2, 2")
    a(f"v_add_u32 v{t0}, v{t0}, v{t1}")
    a(f"v_lshlrev_b32 v{dst}, 7, v{t0}")
    a(f"v_bfe_u32 v{t0}, v0, 4, 1")
    a(f"v_lshlrev_b32 v{t0}, 1, v{t0}")
    a(f"v_bfe_u32 v{t1}, v0, 1, 1")
    a(f"v_add_u32 v{t0}, v{t0}, v{t1}")
    if colunit_sreg is not None: a(f"v_add_u32 v{t0}, s{colunit_sreg}, v{t0}")
    elif colunit_imm: a(f"v_add_u32 v{t0}, {colunit_imm}, v{t0}")
    a(f"v_bfe_u32 v{t1}, v0, 3, 1")
    a(f"v_lshlrev_b32 v{t1}, 2, v{t1}")
    a(f"v_xor_b32 v{t0}, v{t0}, v{t1}")
    a(f"v_lshlrev_b32 v{t0}, 4, v{t0}")
    a(f"v_add_u32 v{dst}, v{dst}, v{t0}")
    a(f"v_and_b32 v{t0}, 1, v0")
    a(f"v_lshlrev_b32 v{t0}, 3, v{t0}")
    a(f"v_add_u32 v{dst}, v{dst}, v{t0}")

def dma_row_voff(a, dst, t0, t1, row_stride):
    a(f"v_lshrrev_b32 v{t0}, 3, v0")
    a(f"s_mov_b32 s65, {row_stride}")
    a(f"v_mul_lo_u32 v{dst}, v{t0}, s65")
    a(f"v_bfe_u32 v{t0}, v0, 4, 1")
    a(f"v_lshlrev_b32 v{t0}, 2, v{t0}")
    a(f"v_and_b32 v{t1}, 7, v0")
    a(f"v_xor_b32 v{t0}, v{t0}, v{t1}")
    a(f"v_lshlrev_b32 v{t0}, 4, v{t0}")
    a(f"v_add_u32 v{dst}, v{dst}, v{t0}")

def mfma(a, d, A, B, c=None):
    cs = vr(d, 16) if c is None else c
    a(f"v_mfma_f32_32x32x16_bf16 {vr(d,16)}, {vr(A,4)}, {vr(B,4)}, {cs}")

def phase1(a, hooks=None):
    hooks = hooks or {}
    s_tb, s_g, s_tt, s_p = 26, 27, 44, 45
    SX, SW, SWS = 28, 32, 36
    a("s_and_b32 s46, s2, 7"); a("s_lshr_b32 s47, s2, 3")
    a("s_lshr_b32 s48, s46, 1"); a("s_lshl_b32 s48, s48, 3"); a("s_and_b32 s49, s47, 7"); a(f"s_add_u32 s{s_tb}, s48, s49")
    a("s_and_b32 s48, s46, 1"); a("s_lshl_b32 s48, s48, 2"); a("s_lshr_b32 s49, s47, 3"); a(f"s_add_u32 s{s_g}, s48, s49")
    if getattr(cfg, "exp", None) == "gswap": a(f"s_xor_b32 s{s_g}, s{s_g}, 4")
    a(f"s_and_b32 s{s_tt}, s3, 1"); a(f"s_bfe_u32 s{s_p}, s3, 0x10001")
    srd(a, SX, P_X, 2048 * 512 * 2); srd(a, SW, P_WQKV, 512 * 1536 * 2); srd(a, SWS, P_WS, WS_SIZE)
    XR, VSUM, VSQ, VT, VXW, VWD, VXA, VWA, ACC, XFR, WQ, WK = 8, 40, 41, 44, 46, 47, 48, 56, 64, 96, 104, 112
    a("v_lshrrev_b32 v1, 3, v0"); a("s_lshl_b32 s46, s3, 3"); a("v_add_u32 v2, s46, v1")
    a(f"s_lshl_b32 s47, s{s_tb}, 6"); a("v_add_u32 v3, s47, v2"); a("v_lshlrev_b32 v3, 10, v3")
    a("v_and_b32 v4, 7, v0"); a("v_lshlrev_b32 v5, 4, v4"); a("v_add_u32 v3, v3, v5")
    if hooks.get("marks_first"): hooks["after_dma"](a)
    for c in range(8):
        a(f"buffer_load_dwordx4 {vr(XR+4*c,4)}, v3, s[{SX}:{SX+3}], 0 offen offset:{c*128}")
    if hooks.get("xfirst"): a("s_barrier")
    dma_row_voff(a, VWD, 5, 6, 3072)
    a("s_mul_i32 s46, s3, 24576"); a(f"s_lshl_b32 s47, s{s_g}, 7"); a("s_add_u32 s46, s46, s47")
    a(f"v_add_u32 v{VWD}, s46, v{VWD}")
    a("s_lshl_b32 s50, s3, 10"); a("s_add_u32 s50, s50, 65536")
    vq0 = VMQ(); vq0.issue('x', 8)
    def issue_chunk(ch, vq):
        slot = ch & 3
        for seg in range(3):
            dma(a, VWD, SW, 51, (50, slot * 24576 + seg * 8192), pre=f"s_mov_b32 s51, {ch*64*3072 + seg*1024}")
        vq.issue(f"c{ch}", 3)
    late = hooks.get("late_issue")
    for ch in range(2 if late else 4): issue_chunk(ch, vq0)
    def wtouch():
        a("s_lshr_b32 s46, s2, 3"); a("s_and_b32 s46, s46, 7"); a("s_lshl_b32 s46, s46, 5"); a("s_and_b32 s47, s3, 1"); a("s_lshl_b32 s47, s47, 4")
        a("s_add_u32 s46, s46, s47"); a("s_add_u32 s46, s46, 256")
        a("v_and_b32 v6, 15, v0"); a("v_add_u32 v6, s46, v6"); a("s_movk_i32 s47, 3072"); a("v_mul_lo_u32 v6, v6, s47")
        a("s_lshr_b32 s46, s3, 1"); a("s_min_u32 s46, s46, 2"); a("s_lshl_b32 s46, s46, 10"); a(f"s_lshl_b32 s47, s{s_g}, 7"); a("s_add_u32 s46, s46, s47")
        a("v_cmp_gt_u32 vcc, 16, v0"); a("s_and_saveexec_b64 s[52:53], vcc")
        a(f"buffer_load_dword v125, v6, s[{SW}:{SW+3}], s46 offen")
        a("s_mov_b64 exec, s[52:53]")
        vq0.issue("touch", 1)
    if hooks.get("wtouch") and not late: wtouch()
    if "after_dma" in hooks and not late: vq0.issue("extra", hooks["after_dma"](a))
    if not hooks.get('no_clear'):
        a("v_mov_b32 v56, -1"); a("v_mov_b32 v57, -1"); a("v_mov_b32 v58, -1"); a("v_mov_b32 v59, -1")
        a("v_lshlrev_b32 v6, 4, v0"); a("s_lshl_b32 s46, s2, 9"); a(f"s_add_u32 s46, s46, {XCH}")
        lskip = a.uid("L_p1_noclr")
        a("s_cmp_lg_u32 s3, 0"); a(f"s_cbranch_scc1 {lskip}")
        a("v_cmp_gt_u32 vcc, 32, v0"); a("s_and_saveexec_b64 s[52:53], vcc")
        a(f"buffer_store_dwordx4 v[56:59], v6, s[{SWS}:{SWS+3}], s46 offen{SC()}")
        a("s_mov_b64 exec, s[52:53]")
        a.label(lskip)
    a("v_and_b32 v5, 15, v2"); a("v_xor_b32 v5, v5, v4"); a("v_lshlrev_b32 v5, 4, v5")
    a(f"v_lshlrev_b32 v{VXW}, 10, v2"); a(f"v_add_u32 v{VXW}, v{VXW}, v5"); a(f"v_xor_b32 v43, 128, v{VXW}")
    a("v_and_b32 v1, 31, v0"); a(f"s_lshl_b32 s46, s{s_tt}, 5"); a("v_add_u32 v1, s46, v1")
    a("v_and_b32 v2, 15, v1"); a("v_lshlrev_b32 v1, 10, v1"); a("v_lshrrev_b32 v3, 5, v0")
    for b in range(8):
        a(f"v_add_u32 v4, {2*b}, v3"); a("v_xor_b32 v4, v4, v2"); a("v_lshlrev_b32 v4, 4, v4"); a(f"v_add_u32 v{VXA+b}, v1, v4")
    a(f"s_lshl_b32 s46, s{s_p}, 2")
    tr_lane_addr(a, VWA, 1, 2, 'nat', colunit_sreg=46)
    a(f"v_add_u32 v{VWA}, 0x10000, v{VWA}"); a(f"v_add_u32 v{VWA+1}, 49152, v{VWA}")
    vq0.wait(a, "x")
    if "post_x" in hooks: hooks["post_x"](a)
    if "st" in hooks: hooks["st"](a, 4)
    a(f"v_mov_b32 v{VSUM}, 0"); a(f"v_mov_b32 v{VSQ}, 0"); a("v_mov_b32 v42, 0x3f803f80")
    for i in range(32):
        a(f"v_dot2c_f32_bf16 v{VSUM}, v{XR+i}, v42")
        a(f"v_dot2c_f32_bf16 v{VSQ}, v{XR+i}, v{XR+i}")
    a("s_nop 2")
    for mod in ("quad_perm:[1,0,3,2]", "quad_perm:[2,3,0,1]", "row_half_mirror"):
        a(f"v_add_f32_dpp v{VSUM}, v{VSUM}, v{VSUM} {mod} row_mask:0xf bank_mask:0xf")
        a(f"v_add_f32_dpp v{VSQ}, v{VSQ}, v{VSQ} {mod} row_mask:0xf bank_mask:0xf")
        a("s_nop 0")
    a(f"v_mul_f32 v{VSUM}, {1/512!r}, v{VSUM}".replace("0.001953125", "0x3b000000"))
    a(f"v_mul_f32 v{VSQ}, 0x3b000000, v{VSQ}")
    a(f"v_fma_f32 v{VSQ}, -v{VSUM}, v{VSUM}, v{VSQ}")
    a(f"v_max_f32 v{VSQ}, 0, v{VSQ}")
    a(f"v_add_f32 v{VSQ}, 0x3727c5ac, v{VSQ}")
    a(f"v_rsq_f32 v60, v{VSQ}")
    a("s_nop 0")
    a(f"v_mul_f32 v62, v{VSUM}, v60"); a("v_sub_f32 v62, 0, v62")
    for i in range(32):
        if late and i == 4: issue_chunk(2, vq0)
        if late and i == 14: issue_chunk(3, vq0)
        if late and i == 24 and hooks.get("wtouch"): wtouch()
        t = VT if i % 2 == 0 else 120
        a(f"v_lshlrev_b32 v{t}, 16, v{XR+i}")
        a(f"v_and_b32 v{t+1}, 0xffff0000, v{XR+i}")
        a(f"v_pk_fma_f32 {vr(t,2)}, {vr(t,2)}, v[60:61], v[62:63] op_sel_hi:[1,0,0]")
        a(f"v_cvt_pk_bf16_f32 v{XR+i}, v{t}, v{t+1}")
    for c in range(8):
        a(f"ds_write_b128 v{VXW if c % 2 == 0 else 43}, {vr(XR+4*c,4)} offset:{(c>>1)*256}")
    lv, lend = a.uid("L_p1_v"), a.uid("L_p1_end")
    a("s_cmp_ge_u32 s3, 4"); a(f"s_cbranch_scc1 {lv}")
    def gemm(isv):
        n = 16 if isv else 32
        for i in range(n): a(f"v_mov_b32 v{ACC+i}, 0")
        D = 2
        XF3, WQ3, WK3 = 128, 140, 152
        def reads(ksg):
            ch, k = ksg >> 2, ksg & 3
            slot = ch & 3; base = VWA + (slot >> 1); off = (slot & 1) * 24576 + k * 2048
            b = ksg % 3
            a(f"ds_read_b128 {vr(XF3+4*b,4)}, v{VXA + (ksg & 7)} offset:{(ksg >> 3) * 256}")
            segs = (2,) if isv else (0, 1)
            for n_, seg in enumerate(segs):
                r = (WQ3 if n_ == 0 else WK3) + 4 * b
                a(f"ds_read_b64_tr_b16 {vr(r,2)}, v{base} offset:{off + seg*8192}")
                a(f"ds_read_b64_tr_b16 {vr(r+2,2)}, v{base} offset:{off + seg*8192 + 512}")
        nrd = 3 if isv else 5
        vq = VMQ(); vq.q = list(vq0.q)
        vq.wait(a, "c0", " lgkmcnt(0)"); a("s_barrier")
        if "st" in hooks: hooks["st"](a, 5)
        reads(0); reads(1)
        for ksg in range(32):
            ch, k = ksg >> 2, ksg & 3
            if k == 2 and ch < 7:
                vq.wait(a, f"c{ch+1}"); a("s_barrier")
                if "st" in hooks and getattr(cfg, "exp", None) == "chunks": hooks["st"](a, [6, 7, 8, 9, 10, 11, 12][ch])
                elif "st" in hooks and ch == 3: hooks["st"](a, 6)
                elif "st" in hooks and ch == 6: hooks["st"](a, 7)
                if 1 <= ch <= 4: issue_chunk(ch + 3, vq)
                if late and ch == 5 and "after_dma" in hooks and not hooks.get("marks_first"): vq.issue("extra", hooks["after_dma"](a))
            if ksg + D < 32:
                reads(ksg + D); a(f"s_waitcnt lgkmcnt({D*nrd})")
            else:
                a(f"s_waitcnt lgkmcnt({(31 - ksg) * nrd})")
            b = ksg % 3
            if isv:
                mfma(a, ACC, XF3 + 4 * b, WQ3 + 4 * b)
            else:
                mfma(a, ACC, WQ3 + 4 * b, XF3 + 4 * b)
                mfma(a, ACC + 16, WK3 + 4 * b, XF3 + 4 * b)
    gemm(False)
    a(f"s_lshl_b32 s46, s{s_g}, 2"); a(f"s_lshl_b32 s47, s{s_p}, 1"); a("s_add_u32 s46, s46, s47")
    a(f"s_lshl_b32 s47, s{s_tb}, 1"); a(f"s_add_u32 s47, s47, s{s_tt}")
    a("s_lshl_b32 s48, s46, 16"); a("s_lshl_b32 s49, s47, 10"); a("s_add_u32 s48, s48, s49")
    a("v_lshlrev_b32 v1, 4, v0")
    a("s_add_u32 s51, s48, 0x10000")
    a(f"s_add_u32 s52, s48, {KF}"); a(f"s_add_u32 s53, s51, {KF}")
    a("s_mov_b32 s54, 0x3eb8aa3b")
    a("s_nop 7")
    for i in range(16): a(f"v_mul_f32 v{ACC+i}, s54, v{ACC+i}")
    for i in range(8): a(f"v_cvt_pk_bf16_f32 v{XR+i}, v{ACC+2*i}, v{ACC+2*i+1}")
    for i in range(8): a(f"v_cvt_pk_bf16_f32 v{XR+8+i}, v{ACC+16+2*i}, v{ACC+16+2*i+1}")
    if "pre_store" in hooks: hooks["pre_store"](a)
    for n_, so in enumerate((48, 51, 52, 53)):
        a(f"buffer_store_dwordx4 {vr(XR+4*n_,4)}, v1, s[{SWS}:{SWS+3}], s{so} offen{SC()}")
    a(f"s_branch {lend}")
    a.label(lv)
    gemm(True)
    a(f"s_lshl_b32 s46, s{s_g}, 2"); a(f"s_lshl_b32 s47, s{s_p}, 1"); a("s_add_u32 s46, s46, s47")
    a(f"s_lshl_b32 s47, s{s_tb}, 1"); a(f"s_add_u32 s47, s47, s{s_tt}")
    a("s_lshl_b32 s48, s46, 16"); a("s_lshl_b32 s49, s47, 10"); a("s_add_u32 s48, s48, s49"); a(f"s_add_u32 s48, s48, {VF}")
    a("v_bfe_u32 v1, v0, 4, 1"); a("v_lshlrev_b32 v1, 16, v1"); a("v_lshrrev_b32 v2, 5, v0"); a("v_lshlrev_b32 v2, 8, v2")
    a("v_add_u32 v1, v1, v2"); a("v_and_b32 v2, 15, v0"); a("v_lshlrev_b32 v2, 4, v2"); a("v_add_u32 v1, v1, v2")
    a("s_nop 7")
    for i in range(8): a(f"v_cvt_pk_bf16_f32 v{XR+i}, v{ACC+2*i}, v{ACC+2*i+1}")
    if "pre_store" in hooks: hooks["pre_store"](a)
    a(f"buffer_store_dwordx4 {vr(XR,4)}, v1, s[{SWS}:{SWS+3}], s48 offen{SC()}")
    a(f"buffer_store_dwordx4 {vr(XR+4,4)}, v1, s[{SWS}:{SWS+3}], s48 offen offset:512{SC()}")
    a.label(lend)
P1_LDS = 163840

P2_LDS = 131072
class Att:
    Q, KFR, VFR, SA, SB, P, O, VK, VV = 4, 8, 16, 32, 48, 64, 72, 88, 89
def phase2(a, hooks=None):
    hooks = hooks or {}
    s_head, s_qb = 26, 27
    SWS = 36
    Q, KFR, VFR, SA, SB, P, O, VK, VV = Att.Q, Att.KFR, Att.VFR, Att.SA, Att.SB, Att.P, Att.O, Att.VK, Att.VV
    MASK = "s[56:57]"
    a("; ---- P2: attention")
    a("s_and_b32 s46, s2, 7"); a("s_lshr_b32 s47, s2, 3")
    a("s_lshl_b32 s48, s46, 2"); a("s_lshr_b32 s49, s47, 3"); a(f"s_add_u32 s{s_head}, s48, s49"); a(f"s_and_b32 s{s_qb}, s47, 7")
    srd(a, SWS, P_WS, WS_SIZE)
    a("v_lshlrev_b32 v1, 4, v0")
    a(f"s_lshl_b32 s46, s{s_head}, 16")
    a(f"s_lshl_b32 s47, s{s_qb}, 3"); a("s_add_u32 s47, s47, s3"); a("s_lshl_b32 s47, s47, 10"); a("s_add_u32 s47, s47, s46")
    a("s_lshl_b32 s48, s3, 11")
    a("s_add_u32 s49, s46, s48")
    a("s_mov_b32 s56, 0x0000ffff"); a("s_mov_b32 s57, 0x0000ffff")
    a("v_and_b32 v2, 27, v0"); a("v_cmp_eq_u32 vcc, 16, v2"); a("v_mov_b32 v3, 0x3f803f80"); a("v_mov_b32 v2, 0")
    a("v_cndmask_b32 v2, v2, v3, vcc")
    for i in range(16): a(f"v_mov_b32 v{VFR+i}, v2")
    a("v_and_b32 v2, 15, v0"); a("v_lshlrev_b32 v2, 4, v2"); a("v_lshrrev_b32 v3, 5, v0"); a("v_lshlrev_b32 v3, 8, v3"); a("v_add_u32 v91, v2, v3")
    a("v_add_u32 v91, 0x10000, v91")
    if "dep" in hooks: hooks["dep"](a)
    vq = hooks.get("vq") or VMQ()
    a(f"buffer_load_dwordx4 {vr(Q,4)}, v1, s[{SWS}:{SWS+3}], s47 offen{SC()}"); vq.issue("q")
    for st in range(4):
        vq.issue(f"kv{st}", 4)
        a(f"s_add_u32 s50, s49, {KF + st*16384}")
        dma(a, 1, SWS, 50, (48, st * 16384), flags=SC()); dma(a, 1, SWS, 50, None, offset=1024, flags=SC())
        a(f"s_add_u32 s50, s49, {VF + st*16384}")
        dma(a, 1, SWS, 50, (48, 65536 + st * 16384), flags=SC()); dma(a, 1, SWS, 50, None, offset=1024, flags=SC())
    vq.wait(a, "kv0"); a("s_barrier")
    if "loop_start" in hooks: hooks["loop_start"](a)
    def vread(dst, off):
        a(f"s_mov_b64 exec, {MASK}")
        a(f"ds_read_b128 {vr(dst,4)}, v{VV} offset:{off}"); a(f"ds_read_b128 {vr(dst+4,4)}, v{VV} offset:{off+512}")
        a("s_mov_b64 exec, -1")
    def tile(t, S, SN, par, koff, voff, C):
        e = lambda i: a(f"v_exp_f32 v{S+i}, v{S+i}")
        c = lambda i: a(f"v_cvt_pk_bf16_f32 v{P+i}, v{S+2*i}, v{S+2*i+1}")
        e(0); e(1)
        mfma(a, O, VFR + 8 * (par ^ 1) + 4, P + 4)
        vread(VFR + 8 * (par ^ 1), voff)
        a(f"ds_read_b128 {vr(KFR+4*par,4)}, v{VK} offset:{koff}")
        e(2); e(3); e(4); e(5)
        a("s_waitcnt lgkmcnt(3)")
        mfma(a, SN, KFR + 4 * (par ^ 1), Q, C)
        e(6); e(7); c(0); c(1); c(2); c(3); e(8); e(9)
        mfma(a, O, VFR + 8 * par, P)
        for i in range(10, 16): e(i)
        c(4); c(5); c(6); c(7)
    def start(C):
        a(f"v_mov_b32 v{VK}, v1"); a(f"v_mov_b32 v{VV}, v91")
        a(f"ds_read_b128 {vr(KFR,4)}, v{VK}")
        vread(VFR, 0)
        a(f"ds_read_b128 {vr(KFR+4,4)}, v{VK} offset:1024")
        for i in range(16): a(f"v_mov_b32 v{O+i}, 0")
        for i in range(4): a(f"v_mov_b32 v{P+4+i}, 0")
        a(f"s_mov_b64 exec, {MASK}")
        for i in range(4): a(f"v_mov_b32 v{VFR+12+i}, 0")
        a("s_mov_b64 exec, -1")
        a("s_waitcnt lgkmcnt(3)")
        mfma(a, SA, KFR, Q, C)
        a("s_nop 7"); a("s_nop 3")
    def finish():
        a("s_nop 1")
        mfma(a, O, VFR + 8 + 4, P + 4)
        a("s_waitcnt lgkmcnt(0)")
        a("s_nop 7"); a("s_nop 3")
    start("0")
    for t in range(64):
        if t in (12, 28, 44):
            if t == 28: vq.wait(a, "markers")
            vq.wait(a, {12: "kv1", 28: "kv2", 44: "kv3"}[t]); a("s_barrier")
        if "tile" in hooks: hooks["tile"](a, t)
        if t == 48:
            pass
        S, SN = (SA, SB) if t % 2 == 0 else (SB, SA)
        tile(t, S, SN, t & 1, min((t + 2), 63) * 1024, min(t + 1, 63) * 1024, "0")
    finish()
    if "loop_end" in hooks: hooks["loop_end"](a)
    ldone, lmax, lloop = a.uid("L_p2_done"), a.uid("L_p2_maxl"), a.uid("L_p2_loop")
    a("v_mov_b32 v2, 0")
    for i in range(8): a(f"v_fmac_f32 v2, 0, v{O+i}")
    a(f"v_cmp_u_f32 s[58:59], v2, v2")
    a("s_mov_b32 s62, 0x5d800000")
    a(f"v_cmp_nge_f32 s[60:61], s62, v{O+8}")
    a("s_mov_b32 s62, 0x21800000")
    a(f"v_cmp_nle_f32 s[64:65], s62, v{O+8}")
    a("s_nop 3")
    a("s_or_b64 s[58:59], s[58:59], s[60:61]"); a("s_or_b64 s[58:59], s[58:59], s[64:65]")
    a("s_mov_b32 s55, 0")
    a("s_cmp_eq_u64 s[58:59], 0"); a(f"s_cbranch_scc1 {ldone}")
    a("s_mov_b32 s55, 1")
    CN = 96
    a(f"s_lshl_b32 s46, s{s_head}, 16"); a(f"s_add_u32 s47, s46, {KF}"); a(f"s_add_u32 s48, s46, {VF}")
    a("v_mov_b32 v2, 0xff800000"); a("s_mov_b32 s54, 0")
    a.label(lmax)
    a("s_add_u32 s49, s47, s54")
    a(f"buffer_load_dwordx4 {vr(KFR,4)}, v1, s[{SWS}:{SWS+3}], s49 offen{SC()}")
    a("s_waitcnt vmcnt(0)")
    mfma(a, SA, KFR, Q, "0")
    a("s_nop 7"); a("s_nop 3")
    for i in range(8): a(f"v_max3_f32 v2, v2, v{SA+2*i}, v{SA+2*i+1}")
    a("s_add_u32 s54, s54, 1024"); a("s_cmp_lt_u32 s54, 0x10000"); a(f"s_cbranch_scc1 {lmax}")
    a("v_mov_b32 v3, v2"); a("s_nop 1")
    a("v_permlane32_swap_b32 v2, v3"); a("s_nop 1")
    a("v_max_f32 v2, v2, v3"); a("v_sub_f32 v2, 0, v2")
    for i in range(16): a(f"v_mov_b32 v{CN+i}, v2")
    for i in range(16): a(f"v_mov_b32 v{O+i}, 0")
    a(f"v_subrev_u32 v{VV}, 0x10000, v91")
    a("s_mov_b32 s54, 0")
    a.label(lloop)
    a("s_add_u32 s49, s47, s54"); a("s_add_u32 s50, s48, s54")
    a(f"buffer_load_dwordx4 {vr(KFR,4)}, v1, s[{SWS}:{SWS+3}], s49 offen{SC()}")
    a(f"s_mov_b64 exec, {MASK}")
    a(f"buffer_load_dwordx4 {vr(VFR,4)}, v{VV}, s[{SWS}:{SWS+3}], s50 offen{SC()}")
    a(f"buffer_load_dwordx4 {vr(VFR+4,4)}, v{VV}, s[{SWS}:{SWS+3}], s50 offen offset:512{SC()}")
    a("s_mov_b64 exec, -1")
    a("s_waitcnt vmcnt(0)")
    mfma(a, SA, KFR, Q, vr(CN, 16))
    a("s_nop 7"); a("s_nop 3")
    for i in range(16): a(f"v_exp_f32 v{SA+i}, v{SA+i}")
    a("s_nop 0")
    for i in range(8): a(f"v_cvt_pk_bf16_f32 v{P+i}, v{SA+2*i}, v{SA+2*i+1}")
    a("s_nop 1")
    mfma(a, O, VFR, P); mfma(a, O, VFR + 4, P + 4)
    a("s_add_u32 s54, s54, 1024"); a("s_cmp_lt_u32 s54, 0x10000"); a(f"s_cbranch_scc1 {lloop}")
    a("s_nop 7"); a("s_nop 7")
    a.label(ldone)
    a(f"v_rcp_f32 v2, v{O+8}"); a("s_nop 0")
    for i in range(8): a(f"v_mul_f32 v{O+i}, v{O+i}, v2")
    for i in range(4): a(f"v_cvt_pk_bf16_f32 v{P+i}, v{O+2*i}, v{O+2*i+1}")
    if cfg.tags: a(f"v_min_u32 v{P}, 0xfffffffe, v{P}")
    a(f"s_lshl_b32 s47, s{s_qb}, 3"); a("s_add_u32 s47, s47, s3"); a("s_lshl_b32 s47, s47, 5"); a(f"s_add_u32 s47, s47, s{s_head}")
    a("s_lshl_b32 s47, s47, 10"); a(f"s_add_u32 s47, s47, {OF}")
    a(f"buffer_store_dwordx4 {vr(P,4)}, v1, s[{SWS}:{SWS+3}], s47 offen{SC()}")
    if "after" in hooks: hooks["after"](a)

def reduce_scatter(a, ACC, s_sub, s_kq, vtmp, T, base, sub_shift=15):
    a("s_barrier")
    a(f"s_lshl_b32 s46, s{s_sub}, {sub_shift}"); a(f"s_lshl_b32 s47, s{s_kq}, 11"); a("s_add_u32 s47, s47, s46"); a(f"s_add_u32 s47, s47, {base}")
    a(f"v_lshlrev_b32 v{vtmp}, 4, v0"); a(f"v_add_u32 v{vtmp+1}, s47, v{vtmp}")
    for pc in range(4):
        for half in range(2):
            r = ACC + 16 * (pc >> 1) + 8 * (pc & 1) + 4 * half
            a(f"ds_write_b128 v{vtmp+1}, {vr(r,4)} offset:{pc*8192 + half*1024}")
    a(f"s_lshl_b32 s47, s{s_kq}, 13"); a("s_add_u32 s47, s47, s46"); a(f"s_add_u32 s47, s47, {base}")
    a(f"v_add_u32 v{vtmp+1}, s47, v{vtmp}")
    a("s_waitcnt lgkmcnt(0)"); a("s_barrier")
    for src in range(4):
        for half in range(2):
            a(f"ds_read_b128 {vr(T + 8*src + 4*half, 4)}, v{vtmp+1} offset:{src*2048 + half*1024}")
    a("s_waitcnt lgkmcnt(4)")
    for i in range(8): a(f"v_add_f32 v{ACC+i}, v{T+i}, v{T+8+i}")
    a("s_waitcnt lgkmcnt(0)")
    for i in range(8): a(f"v_add_f32 v{T+16+i}, v{T+16+i}, v{T+24+i}")
    for i in range(8): a(f"v_add_f32 v{ACC+i}, v{ACC+i}, v{T+16+i}")

P3_LDS = 131072 + 4096
def phase3(a, hooks=None):
    hooks = hooks or {}
    s_tb, s_cb, s_tt, s_kq, s_ct, s_jp = 26, 27, 44, 45, 56, 57
    SWO, SWS, SX = 28, 36, 32
    OFR, XR, ACC, AF, T, VA = 8, 40, 64, 96, 104, 4
    a("s_and_b32 s46, s2, 7"); a("s_lshr_b32 s47, s2, 3")
    a("s_lshl_b32 s48, s46, 2"); a("s_lshr_b32 s49, s47, 3"); a(f"s_add_u32 s{s_tb}, s48, s49"); a(f"s_and_b32 s{s_cb}, s47, 7")
    a(f"s_and_b32 s{s_tt}, s3, 1"); a(f"s_lshr_b32 s{s_kq}, s3, 1")
    a(f"s_lshr_b32 s{s_ct}, s{s_kq}, 1"); a(f"s_and_b32 s{s_jp}, s{s_kq}, 1")
    srd(a, SWO, P_WO, 512 * 512 * 2); srd(a, SWS, P_WS, WS_SIZE); srd(a, SX, P_X, 2048 * 512 * 2)
    dma_row_voff(a, 2, 5, 6, 1024)
    a("s_lshl_b32 s46, s3, 16"); a(f"s_lshl_b32 s47, s{s_cb}, 7"); a("s_add_u32 s46, s46, s47"); a("v_add_u32 v2, s46, v2")
    a("s_lshl_b32 s50, s3, 13")
    for i in range(8):
        a(f"s_mov_b32 s51, {i*8192}")
        dma(a, 2, SWO, 51, (50, i * 1024))
    a("v_lshlrev_b32 v1, 4, v0")
    a(f"s_lshl_b32 s46, s{s_tb}, 1"); a(f"s_add_u32 s58, s46, s{s_tt}")
    a("v_and_b32 v3, 31, v0"); a("s_lshl_b32 s46, s58, 5"); a("v_add_u32 v3, s46, v3"); a("v_lshlrev_b32 v3, 10, v3")
    a("v_lshrrev_b32 v5, 5, v0"); a("v_lshlrev_b32 v5, 3, v5"); a("v_add_u32 v3, v3, v5")
    a(f"s_lshl_b32 s46, s{s_cb}, 7"); a(f"s_lshl_b32 s47, s{s_kq}, 5"); a("s_add_u32 s46, s46, s47")
    a(f"buffer_load_dwordx2 {vr(XR,2)}, v3, s[{SX}:{SX+3}], s46 offen")
    a(f"buffer_load_dwordx2 {vr(XR+2,2)}, v3, s[{SX}:{SX+3}], s46 offen offset:16")
    if "dep" in hooks: hooks["dep"](a)
    a(f"s_lshl_b32 s46, s58, 5"); a(f"s_lshl_b32 s47, s{s_kq}, 3"); a("s_add_u32 s46, s46, s47"); a("s_lshl_b32 s46, s46, 10"); a(f"s_add_u32 s46, s46, {OF}")
    for i in range(8):
        if i == 4: a("s_add_u32 s46, s46, 4096")
        a(f"buffer_load_dwordx4 {vr(OFR+4*i,4)}, v1, s[{SWS}:{SWS+3}], s46 offen offset:{(i&3)*1024}{SC()}")
    tr_lane_addr(a, VA, 5, 6, 'perm')
    a(f"s_lshl_b32 s46, s{s_kq}, 14"); a(f"v_add_u32 v{VA}, s46, v{VA}"); a(f"v_xor_b32 v{VA+1}, 64, v{VA}")
    for i in range(32): a(f"v_mov_b32 v{ACC+i}, 0")
    a("s_waitcnt vmcnt(0)"); a("s_barrier")
    def rd(i):
        for ct in range(2):
            r = AF + 8 * (i & 1) + 4 * ct
            a(f"ds_read_b64_tr_b16 {vr(r,2)}, v{VA+ct} offset:{i*2048}")
            a(f"ds_read_b64_tr_b16 {vr(r+2,2)}, v{VA+ct} offset:{i*2048+1024}")
    rd(0)
    for i in range(8):
        if i < 7: rd(i + 1); a("s_waitcnt lgkmcnt(4)")
        else: a("s_waitcnt lgkmcnt(0)")
        for ct in range(2): mfma(a, ACC + 16 * ct, AF + 8 * (i & 1) + 4 * ct, OFR + 4 * i)
    a("s_nop 7"); a("s_nop 3")
    reduce_scatter(a, ACC, s_tt, s_kq, 5, 112, 65536)
    H = 8
    for j in range(4):
        a(f"v_lshlrev_b32 v{H+2*j}, 16, v{XR+j}"); a(f"v_and_b32 v{H+2*j+1}, 0xffff0000, v{XR+j}")
    for i in range(8): a(f"v_add_f32 v{H+i}, v{H+i}, v{ACC+i}")
    HP = 16
    for j in range(4): a(f"v_cvt_pk_bf16_f32 v{HP+j}, v{H+2*j}, v{H+2*j+1}")
    a(f"s_lshl_b32 s46, s58, 5"); a(f"s_lshl_b32 s47, s{s_cb}, 2"); a("s_add_u32 s46, s46, s47"); a(f"s_add_u32 s46, s46, s{s_kq}")
    a("s_lshl_b32 s46, s46, 10"); a(f"s_add_u32 s46, s46, {HF}")
    if cfg.persist:
        for j in range(4): a(f"v_mov_b32 v{V_HP+j}, v{HP+j}")
    else:
        a(f"buffer_store_dwordx4 {vr(HP,4)}, v1, s[{SWS}:{SWS+3}], s46 offen")
    for j in range(4):
        a(f"v_lshlrev_b32 v{H+2*j}, 16, v{HP+j}"); a(f"v_and_b32 v{H+2*j+1}, 0xffff0000, v{HP+j}")
    a(f"v_add_f32 v20, v{H}, v{H+1}"); a(f"v_mul_f32 v21, v{H}, v{H}"); a(f"v_fmac_f32 v21, v{H+1}, v{H+1}")
    for i in range(2, 8):
        a(f"v_add_f32 v20, v20, v{H+i}"); a(f"v_fmac_f32 v21, v{H+i}, v{H+i}")
    a("v_mov_b32 v22, v20"); a("v_mov_b32 v23, v21"); a("s_nop 1")
    a("v_permlane32_swap_b32 v20, v22"); a("v_permlane32_swap_b32 v21, v23"); a("s_nop 1")
    a("v_add_f32 v20, v20, v22"); a("v_add_f32 v21, v21, v23")
    ST = 131072
    a("v_and_b32 v5, 31, v0"); a(f"s_lshl_b32 s46, s{s_tt}, 5"); a("v_add_u32 v5, s46, v5"); a("v_lshlrev_b32 v24, 3, v5")
    a(f"s_lshl_b32 s46, s{s_kq}, 9"); a(f"s_add_u32 s46, s46, {ST}"); a("v_add_u32 v6, s46, v24")
    a("v_cmp_gt_u32 vcc, 32, v0"); a("s_and_saveexec_b64 s[52:53], vcc")
    a("ds_write_b64 v6, v[20:21]")
    a("s_mov_b64 exec, s[52:53]")
    a("s_waitcnt lgkmcnt(0)"); a("s_barrier")
    lx = a.uid("L_p3_x")
    a("s_cmp_lg_u32 s3, 0"); a(f"s_cbranch_scc1 {lx}")
    a("v_lshlrev_b32 v5, 3, v0"); a(f"v_add_u32 v6, {ST}, v5")
    for q in range(4): a(f"ds_read_b64 {vr(26+2*q,2)}, v6 offset:{q*512}")
    a("s_waitcnt lgkmcnt(0)")
    a("v_add_f32 v26, v26, v28"); a("v_add_f32 v27, v27, v29"); a("v_add_f32 v30, v30, v32"); a("v_add_f32 v31, v31, v33")
    a("v_add_f32 v26, v26, v30"); a("v_add_f32 v27, v27, v31")
    a("v_cmp_eq_u32 vcc, -1, v26"); a("v_mov_b32 v28, 0x7fc00000"); a("s_nop 0"); a("v_cndmask_b32 v26, v26, v28, vcc")
    a("v_cmp_eq_u32 vcc, -1, v27"); a("s_nop 1"); a("v_cndmask_b32 v27, v27, v28, vcc")
    a(f"s_lshl_b32 s46, s{s_tb}, 12"); a(f"s_add_u32 s46, s46, {XCH}"); a(f"s_lshl_b32 s47, s{s_cb}, 9"); a("s_add_u32 s47, s47, s46")
    a(f"buffer_store_dwordx2 v[26:27], v5, s[{SWS}:{SWS+3}], s47 offen sc1")
    lp, lpd = a.uid("L_p3_poll"), a.uid("L_p3_pd")
    a("s_mov_b32 s48, 0")
    a.label(lp)
    for q in range(8): a(f"buffer_load_dwordx2 {vr(32+2*q,2)}, v5, s[{SWS}:{SWS+3}], s46 offen offset:{q*512} sc1")
    a("s_waitcnt vmcnt(0)")
    a("v_cmp_eq_u32 vcc, -1, v32")
    for q in range(1, 16):
        a(f"v_cmp_eq_u32 s[52:53], -1, v{32+q}"); a("s_or_b64 vcc, vcc, s[52:53]")
    a(f"s_cbranch_vccz {lpd}")
    a("s_add_u32 s48, s48, 1"); a("s_cmp_lt_u32 s48, 0x100000"); a(f"s_cbranch_scc1 {lp}")
    a.label(lpd)
    for q in range(1, 8):
        a(f"v_add_f32 v32, v32, v{32+2*q}"); a(f"v_add_f32 v33, v33, v{33+2*q}")
    a("v_mul_f32 v32, 0x3b000000, v32"); a("v_mul_f32 v33, 0x3b000000, v33")
    a("v_fma_f32 v33, -v32, v32, v33"); a("v_max_f32 v33, 0, v33")
    a("v_add_f32 v34, 0x3727c5ac, v33"); a("v_rsq_f32 v35, v34")
    a("s_nop 0")
    a("v_mul_f32 v36, v35, v35"); a("v_mul_f32 v36, v36, v33")
    a("v_add_f32 v36, 0x3727c5ac, v36"); a("v_rsq_f32 v36, v36")
    a("s_nop 0")
    a("v_mul_f32 v34, v35, v36"); a("v_mul_f32 v35, v32, v34"); a("v_sub_f32 v35, 0, v35")
    a(f"v_add_u32 v6, {ST + 2048}, v5")
    a("ds_write_b64 v6, v[34:35]")
    a("s_waitcnt lgkmcnt(0)")
    a.label(lx)
    a("s_barrier")
    a(f"v_add_u32 v6, {ST + 2048}, v24")
    a("ds_read_b64 v[20:21], v6")
    a("s_waitcnt lgkmcnt(0)")
    for i in range(8): a(f"v_fma_f32 v{H+i}, v{H+i}, v20, v21")
    for j in range(4): a(f"v_cvt_pk_bf16_f32 v{HP+j}, v{H+2*j}, v{H+2*j+1}")
    a("v_lshrrev_b32 v5, 3, v24")
    a("v_bfe_u32 v6, v5, 1, 1"); a("v_lshlrev_b32 v6, 2, v6")
    a(f"s_lshl_b32 s46, s{s_kq}, 1"); a("v_xor_b32 v6, s46, v6")
    a("v_lshlrev_b32 v6, 4, v6"); a("v_lshlrev_b32 v5, 7, v5"); a("v_add_u32 v5, v5, v6")
    a("v_lshrrev_b32 v6, 5, v0"); a("v_lshlrev_b32 v6, 3, v6"); a("v_add_u32 v5, v5, v6")
    a(f"ds_write_b64 v5, {vr(HP,2)}"); a(f"ds_write_b64 v5, {vr(HP+2,2)} offset:16")
    a(f"s_lshl_b32 s46, s{s_tt}, 2")
    tr_lane_addr(a, 7, 5, 6, 'perm', colunit_sreg=46)
    a(f"s_lshl_b32 s46, s{s_kq}, 11"); a("v_add_u32 v7, s46, v7")
    a("s_waitcnt lgkmcnt(0)"); a("s_barrier")
    a("ds_read_b64_tr_b16 v[24:25], v7"); a("ds_read_b64_tr_b16 v[26:27], v7 offset:1024")
    a(f"s_lshl_b32 s46, s{s_cb}, 1"); a(f"s_add_u32 s46, s46, s{s_tt}"); a("s_lshl_b32 s46, s46, 7")
    a(f"s_lshl_b32 s47, s{s_tb}, 2"); a("s_add_u32 s46, s46, s47"); a(f"s_add_u32 s46, s46, s{s_kq}")
    a("s_lshl_b32 s46, s46, 10"); a(f"s_add_u32 s46, s46, {LF}")
    a("s_waitcnt lgkmcnt(0)")
    a(f"buffer_store_dwordx4 v[24:27], v1, s[{SWS}:{SWS+3}], s46 offen{SC()}")

def big_gemm(a, nst, act_base_sregs, SWS, SW, VWD, w_stage_stride, s_sub, s_kq, act_is_B, ACC, dep=None):
    VL, VT, AF, WF = 4, 6, 96, 112
    a("v_lshlrev_b32 v1, 4, v0")
    a("s_lshl_b32 s50, s3, 11")
    a("s_lshl_b32 s51, s3, 11"); a("s_add_u32 s51, s51, 16384")
    def issue_act(s):
        slot = (s & 3) * 32768
        for dt in range(2):
            a(f"s_add_u32 s52, s{act_base_sregs[dt]}, {s*8192}")
            dma(a, 1, SWS, 52, (50, slot + dt * 1024), flags=SC())
    def issue_w(s):
        slot = (s & 3) * 32768
        for i in range(2):
            a(f"s_mov_b32 s52, {s*w_stage_stride + i*(w_stage_stride//16)}")
            dma(a, VWD, SW, 52, (51, slot + i * 1024))
    def issue(s): issue_act(s); issue_w(s)
    for s in range(4): issue_w(s)
    if dep: dep(a)
    for s in range(4): issue_act(s)
    a(f"s_lshl_b32 s46, s{s_kq}, 12"); a(f"v_add_u32 v{VL}, s46, v1"); a(f"v_add_u32 v{VL+1}, 0x10000, v{VL}")
    a(f"s_lshl_b32 s46, s{s_sub}, 2")
    tr_lane_addr(a, VT, 2, 3, 'perm', colunit_sreg=46)
    a(f"s_lshl_b32 s46, s{s_kq}, 12"); a("s_add_u32 s46, s46, 16384")
    a(f"v_add_u32 v{VT}, s46, v{VT}"); a(f"v_add_u32 v{VT+1}, 0x10000, v{VT}")
    for i in range(32): a(f"v_mov_b32 v{ACC+i}, 0")
    def reads(n):
        s, k = n >> 1, n & 1
        slot = s & 3; hi = slot >> 1; off = (slot & 1) * 32768
        par = n & 1
        for dt in range(2):
            a(f"ds_read_b128 {vr(AF + 8*par + 4*dt, 4)}, v{VL+hi} offset:{off + k*2048 + dt*1024}")
        a(f"ds_read_b64_tr_b16 {vr(WF + 4*par, 2)}, v{VT+hi} offset:{off + k*2048}")
        a(f"ds_read_b64_tr_b16 {vr(WF + 4*par + 2, 2)}, v{VT+hi} offset:{off + k*2048 + 1024}")
    a("s_waitcnt vmcnt(6)"); a("s_barrier")
    reads(0)
    N = 2 * nst
    for n in range(N):
        s, k = n >> 1, n & 1
        if k == 1 and s < nst - 1:
            if s <= 2: vm = {0: 4, 1: 2, 2: 4}[s]
            else: vm = 4 * (min(nst - 1, s + 2) - (s + 1))
            a(f"s_waitcnt vmcnt({vm})"); a("s_barrier")
            if s >= 1 and s + 3 < nst: issue(s + 3)
        if n < N - 1:
            reads(n + 1); a("s_waitcnt lgkmcnt(4)")
        else:
            a("s_waitcnt lgkmcnt(0)")
        par = n & 1
        for dt in range(2):
            if act_is_B: mfma(a, ACC + 16 * dt, WF + 4 * par, AF + 8 * par + 4 * dt)
            else: mfma(a, ACC + 16 * dt, AF + 8 * par + 4 * dt, WF + 4 * par)
    a("s_nop 7"); a("s_nop 3")

P45_LDS = 131072
def phase4(a, hooks=None):
    hooks = hooks or {}
    s_db, s_fb, s_ft, s_kq = 26, 27, 44, 45
    SW, SWS, SB = 28, 36, 32
    ACC = 64
    a("s_and_b32 s46, s2, 7"); a("s_lshr_b32 s47, s2, 3")
    a("s_and_b32 s48, s46, 1"); a("s_lshl_b32 s48, s48, 2"); a("s_and_b32 s49, s47, 3"); a(f"s_add_u32 s{s_db}, s48, s49")
    a("s_lshr_b32 s48, s46, 1"); a("s_mul_i32 s48, s48, 7"); a("s_lshr_b32 s49, s47, 2"); a(f"s_add_u32 s{s_fb}, s48, s49")
    a(f"s_and_b32 s{s_ft}, s3, 1"); a(f"s_lshr_b32 s{s_kq}, s3, 1")
    srd(a, SW, P_W1, 2048 * 1792 * 2); srd(a, SWS, P_WS, WS_SIZE); srd(a, SB, P_B1, 1792 * 2)
    dma_row_voff(a, 10, 2, 3, 3584)
    a("s_mul_i32 s46, s3, %d" % (16 * 3584)); a(f"s_lshl_b32 s47, s{s_fb}, 7"); a("s_add_u32 s46, s46, s47"); a("v_add_u32 v10, s46, v10")
    a(f"s_lshl_b32 s46, s{s_db}, 18"); a("s_lshl_b32 s47, s3, 10"); a("s_add_u32 s46, s46, s47")
    a(f"s_add_u32 s54, s46, {LF}"); a(f"s_add_u32 s55, s46, {LF + 128*1024}")
    a(f"s_lshl_b32 s46, s{s_fb}, 7"); a(f"s_lshl_b32 s47, s{s_ft}, 6"); a("s_add_u32 s46, s46, s47")
    a(f"s_and_b32 s47, s{s_kq}, 1"); a("s_lshl_b32 s47, s47, 5"); a("s_add_u32 s46, s46, s47")
    a("v_lshrrev_b32 v2, 5, v0"); a("v_lshlrev_b32 v2, 3, v2")
    a(f"buffer_load_dwordx2 v[12:13], v2, s[{SB}:{SB+3}], s46 offen"); a(f"buffer_load_dwordx2 v[14:15], v2, s[{SB}:{SB+3}], s46 offen offset:16")
    big_gemm(a, 16, (54, 55), SWS, SW, 10, 128 * 3584, s_ft, s_kq, True, ACC, hooks.get("dep"))
    reduce_scatter(a, ACC, s_ft, s_kq, 5, 112, 0)
    for j in range(4):
        a(f"v_lshlrev_b32 v{16+2*j}, 16, v{12+j}"); a(f"v_and_b32 v{17+2*j}, 0xffff0000, v{12+j}")
    for i in range(8): a(f"v_add_f32 v{ACC+i}, v{ACC+i}, v{16+i}")
    a("s_mov_b32 s46, 0xc0135761")
    a("s_mov_b32 s47, 0xbdd2d3e8")
    a("v_mov_b32 v24, s46")
    for i in range(8): a(f"v_mul_f32 v{16+i}, v{ACC+i}, v{ACC+i}")
    for i in range(8): a(f"v_fma_f32 v{16+i}, v{16+i}, s47, v24")
    for i in range(8): a(f"v_mul_f32 v{16+i}, v{16+i}, v{ACC+i}")
    for i in range(8): a(f"v_exp_f32 v{16+i}, v{16+i}")
    for i in range(8): a(f"v_add_f32 v{16+i}, 1.0, v{16+i}")
    for i in range(8): a(f"v_rcp_f32 v{16+i}, v{16+i}")
    for i in range(8): a(f"v_mul_f32 v{16+i}, v{16+i}, v{ACC+i}")
    for j in range(4): a(f"v_cvt_pk_bf16_f32 v{28+j}, v{16+2*j}, v{17+2*j}")
    a(f"s_lshl_b32 s46, s{s_db}, 1"); a(f"s_lshr_b32 s47, s{s_kq}, 1"); a("s_add_u32 s46, s46, s47"); a("s_mul_i32 s46, s46, 112")
    a(f"s_lshl_b32 s47, s{s_fb}, 2"); a("s_add_u32 s46, s46, s47"); a(f"s_lshl_b32 s47, s{s_ft}, 1"); a("s_add_u32 s46, s46, s47")
    a(f"s_and_b32 s47, s{s_kq}, 1"); a("s_add_u32 s46, s46, s47"); a("s_lshl_b32 s46, s46, 10"); a(f"s_add_u32 s46, s46, {UF}")
    a(f"buffer_store_dwordx4 v[28:31], v1, s[{SWS}:{SWS+3}], s46 offen{SC()}")

def phase5(a, hooks=None):
    hooks = hooks or {}
    s_db, s_sb, s_st, s_kq = 26, 27, 44, 45
    SW, SWS, SB, SO = 28, 36, 32, 40
    ACC = 64
    a("; ---- P5: out = h + (u w2 + b2)^T")
    a("s_and_b32 s46, s2, 7"); a("s_lshr_b32 s47, s2, 3")
    a("s_lshl_b32 s48, s46, 2"); a("s_lshr_b32 s49, s47, 3"); a(f"s_add_u32 s{s_sb}, s48, s49"); a(f"s_and_b32 s{s_db}, s47, 7")
    a(f"s_and_b32 s{s_st}, s3, 1"); a(f"s_lshr_b32 s{s_kq}, s3, 1")
    srd(a, SW, P_W2, 1792 * 2048 * 2); srd(a, SWS, P_WS, WS_SIZE); srd(a, SB, P_B2, 2048 * 2); srd(a, SO, P_OUT, 2048 * 512 * 2)
    dma_row_voff(a, 10, 2, 3, 4096)
    a("s_lshl_b32 s46, s3, 16"); a(f"s_lshl_b32 s47, s{s_sb}, 7"); a("s_add_u32 s46, s46, s47"); a("v_add_u32 v10, s46, v10")
    a(f"s_mul_i32 s46, s{s_db}, {2*112*1024}"); a("s_lshl_b32 s47, s3, 10"); a("s_add_u32 s46, s46, s47")
    a(f"s_add_u32 s54, s46, {UF}"); a(f"s_add_u32 s55, s46, {UF + 112*1024}")
    a(f"s_lshl_b32 s46, s{s_sb}, 1"); a(f"s_add_u32 s58, s46, s{s_st}")
    a("v_and_b32 v2, 31, v0"); a("s_lshl_b32 s46, s58, 5"); a("v_add_u32 v11, s46, v2")
    a("v_lshlrev_b32 v2, 1, v11")
    a(f"buffer_load_ushort v12, v2, s[{SB}:{SB+3}], 0 offen")
    a("s_lshl_b32 s46, s58, 5"); a(f"s_lshl_b32 s47, s{s_db}, 2"); a("s_add_u32 s46, s46, s47"); a(f"s_add_u32 s46, s46, s{s_kq}")
    a("s_lshl_b32 s46, s46, 10"); a(f"s_add_u32 s46, s46, {HF}")
    a("v_lshlrev_b32 v2, 4, v0")
    if cfg.persist:
        for j in range(4): a(f"v_mov_b32 v{16+j}, v{V_HP+j}")
    else:
        a(f"buffer_load_dwordx4 v[16:19], v2, s[{SWS}:{SWS+3}], s46 offen")
    big_gemm(a, 14, (54, 55), SWS, SW, 10, 128 * 4096, s_st, s_kq, False, ACC, hooks.get("dep"))
    reduce_scatter(a, ACC, s_st, s_kq, 5, 112, 0)
    a("v_lshlrev_b32 v12, 16, v12")
    for j in range(4):
        a(f"v_lshlrev_b32 v{20+2*j}, 16, v{16+j}"); a(f"v_and_b32 v{21+2*j}, 0xffff0000, v{16+j}")
    for i in range(8): a(f"v_add_f32 v{ACC+i}, v{ACC+i}, v12")
    for i in range(8): a(f"v_add_f32 v{ACC+i}, v{ACC+i}, v{20+i}")
    for j in range(4): a(f"v_cvt_pk_bf16_f32 v{28+j}, v{ACC+2*j}, v{ACC+2*j+1}")
    a("s_nop 1")
    a("v_permlane32_swap_b32 v28, v30"); a("v_permlane32_swap_b32 v29, v31")
    a("v_lshlrev_b32 v11, 10, v11"); a("v_lshrrev_b32 v2, 5, v0"); a("v_lshlrev_b32 v2, 4, v2"); a("v_add_u32 v11, v11, v2")
    a(f"s_lshl_b32 s46, s{s_db}, 7"); a(f"s_lshl_b32 s47, s{s_kq}, 5"); a("s_add_u32 s46, s46, s47")
    a(f"buffer_store_dwordx4 v[28:31], v11, s[{SO}:{SO+3}], s46 offen")
```

```python
import sys
from asmlib import *
import phases
from phases import *
import gen_persist as gp
from gen_persist import opt, stamp, SB_WS, STAMP0, HEADER, KNAME, NAME

S_OFA, S_LFA, S_UFA, S_FB128, S_STU = 96, 97, 98, 99, 100
WREG = 128
HP = 4
STG = 131072

def map_addresses(a):
    a("s_and_b32 s46, s2, 7"); a("s_lshr_b32 s47, s2, 3")
    a("s_lshl_b32 s48, s46, 2"); a("s_lshr_b32 s49, s47, 3"); a("s_add_u32 s48, s48, s49")
    a("s_and_b32 s49, s47, 7")
    a("s_lshl_b32 s50, s49, 3"); a("s_add_u32 s50, s50, s3"); a("s_lshl_b32 s50, s50, 5"); a("s_add_u32 s50, s50, s48")
    a("s_lshl_b32 s50, s50, 10"); a(f"s_add_u32 s{S_OFA}, s50, {OF}")
    a("s_lshl_b32 s50, s49, 1"); a("s_and_b32 s51, s3, 1"); a("s_add_u32 s50, s50, s51"); a("s_lshl_b32 s50, s50, 7")
    a("s_lshl_b32 s51, s48, 2"); a("s_add_u32 s50, s50, s51"); a("s_lshr_b32 s51, s3, 1"); a("s_add_u32 s50, s50, s51")
    a("s_lshl_b32 s50, s50, 10"); a(f"s_add_u32 s{S_LFA}, s50, {LF}")
    a("s_and_b32 s50, s46, 1"); a("s_lshl_b32 s50, s50, 2"); a("s_and_b32 s51, s47, 3"); a("s_add_u32 s50, s50, s51")
    a("s_lshr_b32 s51, s46, 1"); a("s_mul_i32 s51, s51, 7"); a("s_lshr_b32 s52, s47, 2"); a("s_min_u32 s52, s52, 6"); a("s_add_u32 s51, s51, s52")
    a(f"s_lshl_b32 s{S_FB128}, s51, 7")
    a("s_cmp_lt_u32 s47, 28"); a(f"s_cselect_b32 s{S_STU}, 1, 0")
    a("s_lshl_b32 s50, s50, 1"); a("s_lshr_b32 s52, s3, 2"); a("s_add_u32 s50, s50, s52"); a("s_mul_i32 s50, s50, 112")
    a("s_lshl_b32 s51, s51, 2"); a("s_add_u32 s50, s50, s51")
    a("s_and_b32 s51, s3, 1"); a("s_lshl_b32 s51, s51, 1"); a("s_add_u32 s50, s50, s51"); a("s_bfe_u32 s51, s3, 0x10001"); a("s_add_u32 s50, s50, s51")
    a("s_lshl_b32 s50, s50, 10"); a(f"s_add_u32 s{S_UFA}, s50, {UF}")

def markers(a):
    if opt.exp == "nomark": return 0
    for i in range(4): a(f"v_mov_b32 v{120+i}, -1")
    a("v_mov_b32 v124, v1")
    for s in (S_OFA, S_LFA):
        a(f"buffer_store_dwordx4 v[120:123], v124, s[{SB_WS}:{SB_WS+3}], s{s} offen sc1")
    a(f"s_cmp_eq_u32 s{S_STU}, 0"); a(f"s_cselect_b32 s60, s{S_LFA}, s{S_UFA}")
    a(f"buffer_store_dwordx4 v[120:123], v124, s[{SB_WS}:{SB_WS+3}], s60 offen sc1")
    a("s_lshl_b32 s60, s2, 9"); a("s_lshl_b32 s61, s3, 6"); a("s_add_u32 s60, s60, s61"); a(f"s_add_u32 s60, s60, {XCH}")
    a("v_cmp_gt_u32 vcc, 4, v0"); a("s_and_saveexec_b64 s[62:63], vcc")
    a(f"buffer_store_dwordx4 v[120:123], v124, s[{SB_WS}:{SB_WS+3}], s60 offen sc1")
    a("s_mov_b64 exec, s[62:63]")
    return 4

def zero_flag_load(a):
    l = a.uid("L_zf")
    a("s_cmp_lg_u32 s3, 0"); a(f"s_cbranch_scc1 {l}")
    a("buffer_load_dword v247, v248, s[76:79], 0 offen sc1")
    a.label(l)

def zero_flag_store(a):
    l = a.uid("L_zs")
    a("s_cmp_lg_u32 s2, 0"); a(f"s_cbranch_scc1 {l}"); a("s_cmp_lg_u32 s3, 7"); a(f"s_cbranch_scc1 {l}")
    a("v_mov_b32 v126, 1")
    a("v_cmp_eq_u32 vcc, 0, v0"); a("s_and_saveexec_b64 s[62:63], vcc")
    a("buffer_store_dword v126, v248, s[76:79], 0 offen sc1")
    a("s_mov_b64 exec, s[62:63]")
    a.label(l)

def wait_all_groups(k, target, st):
    def dep(a):
        l, lp = a.uid("L_wait"), a.uid("L_poll")
        a("s_cmp_lg_u32 s3, 0"); a(f"s_cbranch_scc1 {l}")
        a(f"s_mov_b32 s60, {CNT + k*2048}"); a("v_lshlrev_b32 v251, 8, v0"); a("s_mov_b32 s61, 0")
        a("v_cmp_gt_u32 vcc, 8, v0"); a("s_and_saveexec_b64 s[62:63], vcc")
        a.label(lp)
        a(f"buffer_load_dword v250, v251, s[{SB_WS}:{SB_WS+3}], s60 offen sc1")
        a("s_add_u32 s61, s61, 1")
        a("s_waitcnt vmcnt(0)")
        a(f"v_cmp_gt_u32 vcc, {target}, v250")
        lx = a.uid("L_wx")
        a(f"s_cbranch_vccz {lx}")
        a("s_cmp_lt_u32 s61, 0x200000"); a(f"s_cbranch_scc1 {lp}")
        a.label(lx)
        a("s_mov_b64 exec, s[62:63]")
        a.label(l)
        a("s_barrier")
        stamp(a, st)
    return dep

def late_check(a):
    l, lp = a.uid("L_lck"), a.uid("L_lcp")
    a("s_cmp_lg_u32 s3, 0"); a(f"s_cbranch_scc1 {l}")
    a("v_cmp_gt_u32 vcc, 32, v113")
    a(f"s_cbranch_vccz {l}")
    a("s_mov_b32 s61, 0"); a(f"s_mov_b32 s60, {CNT + 2048}")
    a.label(lp)
    a(f"buffer_load_dword v113, v112, s[{SB_WS}:{SB_WS+3}], s60 offen sc1")
    a("s_add_u32 s61, s61, 1")
    a("s_waitcnt vmcnt(0)")
    a("v_cmp_gt_u32 vcc, 32, v113")
    a(f"s_cbranch_vccz {l}")
    a("s_cmp_lt_u32 s61, 0x200000"); a(f"s_cbranch_scc1 {lp}")
    a.label(l)
    a("s_barrier")

def tag_check(a, regs_, lfail):
    a(f"v_cmp_eq_u32 vcc, -1, v{regs_[0]}")
    for r in regs_[1:]:
        a(f"v_cmp_eq_u32 s[62:63], -1, v{r}"); a("s_or_b64 vcc, vcc, s[62:63]")
    a(f"s_cbranch_vccnz {lfail}")

class W1Pref:
    VD, VT = 92, 93
    def setup(self, a):
        srd(a, 28, P_W1, 2048 * 1792 * 2); srd(a, 32, P_W2, 1792 * 2048 * 2); srd(a, 40, P_WO, 512 * 512 * 2)
        a("v_and_b32 v112, 7, v0"); a("v_lshlrev_b32 v112, 8, v112"); a("v_mov_b32 v113, 0")
        dma_row_voff(a, self.VD, 2, 3, 3584)
        a(f"s_mul_i32 s60, s3, {256*3584}"); a(f"s_add_u32 s60, s60, s{S_FB128}"); a(f"v_add_u32 v{self.VD}, s60, v{self.VD}")
        tr_lane_addr(a, self.VT, 2, 3, 'perm')
        a("s_lshl_b32 s59, s3, 12"); a(f"s_add_u32 s59, s59, {STG}")
        a(f"v_add_u32 v{self.VT}, s59, v{self.VT}"); a(f"v_xor_b32 v{self.VT+1}, 64, v{self.VT}")
        a("s_and_b32 s60, s2, 7"); a("s_lshr_b32 s61, s2, 3")
        dma_row_voff(a, 95, 2, 3, 1024)
        a("s_and_b32 s62, s61, 7"); a("s_lshl_b32 s62, s62, 7"); a("s_lshl_b32 s63, s3, 16"); a("s_add_u32 s62, s62, s63"); a("v_add_u32 v95, s62, v95")
        a("s_and_b32 s62, s3, 3"); a("s_lshl_b32 s62, s62, 13"); a("s_lshr_b32 s63, s3, 2"); a("s_lshl_b32 s63, s63, 16"); a("s_add_u32 s53, s62, s63")
        a("s_lshl_b32 s62, s60, 2"); a("s_lshr_b32 s63, s61, 3"); a("s_add_u32 s62, s62, s63"); a("s_lshl_b32 s62, s62, 7")
        a("s_and_b32 s63, s61, 7"); a("s_mul_i32 s63, s63, 224"); a("s_mul_i32 s64, s3, 28"); a("s_add_u32 s63, s63, s64")
        a("v_min_u32 v96, 27, v0"); a("v_add_u32 v96, s63, v96"); a("v_lshlrev_b32 v96, 12, v96"); a("v_add_u32 v96, s62, v96")
    def tile(self, vq):
        def f(a, t):
            if t % 8 == 0:
                c = t // 8
                for j in range(4):
                    dma(a, self.VD, 28, 60, (59, j * 1024), pre=f"s_mov_b32 s60, {(32*c + 8*j)*3584}")
                vq.issue(f"w1_{c}", 4)
            if t % 8 == 7:
                c = t // 8
                vq.wait(a, f"w1_{c}")
                for kk in range(2):
                    for ft in range(2):
                        r = WREG + (2 * c + kk) * 8 + 4 * ft
                        a(f"ds_read_b64_tr_b16 {vr(r,2)}, v{self.VT+ft} offset:{kk*2048}")
                        a(f"ds_read_b64_tr_b16 {vr(r+2,2)}, v{self.VT+ft} offset:{kk*2048+1024}")
            if t in (45, 46):
                for i in range(4 * (t - 45), 4 * (t - 45) + 4):
                    dma(a, 95, 40, 60, (53, i * 1024), pre=f"s_mov_b32 s60, {i*8192}")
                vq.issue("wo", 4)
            if t == 1:
                vq.issue("markers", markers(a))
            if t == 28:
                l = a.uid("L_ma")
                a("s_cmp_lg_u32 s3, 0"); a(f"s_cbranch_scc1 {l}")
                a("s_and_b32 s60, s2, 7"); a("s_lshl_b32 s60, s60, 8"); a(f"s_add_u32 s60, s60, {CNT + 2048}")
                a("v_mov_b32 v114, 1"); a("v_mov_b32 v115, 0")
                a("v_cmp_eq_u32 vcc, 0, v0"); a("s_and_saveexec_b64 s[62:63], vcc")
                a(f"buffer_atomic_add v114, v115, s[{SB_WS}:{SB_WS+3}], s60 offen")
                a("s_mov_b64 exec, s[62:63]")
                a.label(l)
            if t == 52:
                l = a.uid("L_lc")
                a("s_cmp_lg_u32 s3, 0"); a(f"s_cbranch_scc1 {l}")
                a(f"s_mov_b32 s60, {CNT + 2048}")
                a(f"buffer_load_dword v113, v112, s[{SB_WS}:{SB_WS+3}], s60 offen sc1")
                a.label(l)
                vq.issue("maybe", 0)
            if opt.touch:
                if t == 27:
                    a("buffer_load_dword v97, v96, s[32:35], 0 offen"); vq.issue("touch")
        return f

class W2Stage:
    VD, VP, SRD, SE, SX_, SM = 60, 61, 28, 59, 55, 57
    def __init__(self): self.vq = None
    def setup(self, a):
        srd(a, self.SRD, P_W2, 1792 * 2048 * 2)
        dma_row_voff(a, self.VD, 2, 3, 4096)
        a("s_and_b32 s60, s2, 7"); a("s_lshr_b32 s61, s2, 3")
        a("s_lshl_b32 s60, s60, 2"); a("s_lshr_b32 s61, s61, 3"); a("s_add_u32 s60, s60, s61"); a("s_lshl_b32 s60, s60, 7")
        a(f"s_mul_i32 s61, s3, {224*4096}"); a("s_add_u32 s60, s60, s61"); a(f"v_add_u32 v{self.VD}, s60, v{self.VD}")
        a(f"s_lshl_b32 s{self.SE}, s3, 13"); a(f"s_add_u32 s{self.SE}, s{self.SE}, 98304")
        a(f"s_lshl_b32 s{self.SX_}, s3, 11"); a(f"s_add_u32 s{self.SX_}, s{self.SX_}, 49152")
        a("s_and_b32 s60, s3, 3"); a("s_lshl_b32 s60, s60, 13"); a("s_lshr_b32 s61, s3, 2"); a("s_lshl_b32 s61, s61, 16"); a(f"s_add_u32 s{self.SM}, s60, s61")
        tr_lane_addr(a, self.VP, 2, 3, 'perm')
        a(f"v_xor_b32 v{self.VP+1}, 64, v{self.VP}")
    def slot(self, j):
        k = j if j < 9 else j - 9
        if k < 4: return self.SE, k * 2048
        if k == 4: return self.SX_, 0
        return self.SM, (k - 5) * 2048
    def dma(self, a, j):
        sreg, off = self.slot(j)
        for i in range(2):
            dma(a, self.VD, self.SRD, 60, (sreg, off + i * 1024), pre=f"s_mov_b32 s60, {(16*j + 8*i)*4096}")
        if self.vq is not None: self.vq.issue(f"w2_{j}", 2)
    def read(self, a, j, dst=None):
        sreg, off = self.slot(j)
        dst = WREG + 8 * j if dst is None else dst
        for st in range(2):
            a(f"v_add_u32 v{2+st}, s{sreg}, v{self.VP+st}")
        for st in range(2):
            r = dst + 4 * st
            a(f"ds_read_b64_tr_b16 {vr(r,2)}, v{2+st} offset:{off}")
            a(f"ds_read_b64_tr_b16 {vr(r+2,2)}, v{2+st} offset:{off+1024}")

def phase3v2(a, w2):
    s_tb, s_cb, s_tt, s_kq = 26, 27, 44, 45
    SWO, SWS, SX = 28, 36, 32
    OFR, XR, ACC, AF, VA = 8, 40, 64, 96, 44
    a("s_and_b32 s46, s2, 7"); a("s_lshr_b32 s47, s2, 3")
    a("s_lshl_b32 s48, s46, 2"); a("s_lshr_b32 s49, s47, 3"); a(f"s_add_u32 s{s_tb}, s48, s49"); a(f"s_and_b32 s{s_cb}, s47, 7")
    a(f"s_and_b32 s{s_tt}, s3, 1"); a(f"s_lshr_b32 s{s_kq}, s3, 1")
    srd(a, SWO, P_WO, 512 * 512 * 2); srd(a, SWS, P_WS, WS_SIZE); srd(a, SX, P_X, 2048 * 512 * 2)
    a(f"s_lshl_b32 s46, s{s_tb}, 1"); a(f"s_add_u32 s58, s46, s{s_tt}")
    a(f"s_lshl_b32 s46, s58, 5"); a(f"s_lshl_b32 s47, s{s_kq}, 3"); a("s_add_u32 s46, s46, s47"); a("s_lshl_b32 s46, s46, 10"); a(f"s_add_u32 s50, s46, {OF}")
    a("s_add_u32 s51, s50, 4096")
    def oloads():
        for i in range(8):
            a(f"buffer_load_dwordx4 {vr(OFR+4*i,4)}, v1, s[{SWS}:{SWS+3}], s{50 + (i >> 2)} offen offset:{(i&3)*1024} sc1")
    a("v_lshlrev_b32 v46, 10, v0"); a("v_add_u32 v46, 1008, v46"); a("s_mov_b32 s48, 0")
    a("v_cmp_gt_u32 vcc, 8, v0"); a("s_and_saveexec_b64 s[52:53], vcc")
    lp, lx_ = a.uid("L_o_probe"), a.uid("L_o_px")
    a.label(lp)
    a(f"buffer_load_dword v47, v46, s[{SWS}:{SWS+3}], s50 offen sc1")
    a("s_add_u32 s48, s48, 1")
    a("s_waitcnt vmcnt(0)")
    a("v_cmp_eq_u32 vcc, -1, v47")
    a(f"s_cbranch_vccz {lx_}")
    a("s_cmp_lt_u32 s48, 0x100000"); a(f"s_cbranch_scc1 {lp}")
    a.label(lx_)
    a("s_mov_b64 exec, s[52:53]")
    oloads()
    a("v_and_b32 v3, 31, v0"); a("s_lshl_b32 s46, s58, 5"); a("v_add_u32 v3, s46, v3"); a("v_lshlrev_b32 v3, 10, v3")
    a("v_lshrrev_b32 v46, 5, v0"); a("v_lshlrev_b32 v46, 3, v46"); a("v_add_u32 v3, v3, v46")
    a(f"s_lshl_b32 s46, s{s_cb}, 7"); a(f"s_lshl_b32 s47, s{s_kq}, 5"); a("s_add_u32 s46, s46, s47")
    a(f"buffer_load_dwordx2 {vr(XR,2)}, v3, s[{SX}:{SX+3}], s46 offen")
    a(f"buffer_load_dwordx2 {vr(XR+2,2)}, v3, s[{SX}:{SX+3}], s46 offen offset:16")
    tr_lane_addr(a, VA, 46, 47, 'perm')
    a(f"s_and_b32 s46, s{s_kq}, 1"); a("s_lshl_b32 s46, s46, 14"); a(f"s_lshr_b32 s47, s{s_kq}, 1"); a("s_lshl_b32 s47, s47, 16"); a("s_add_u32 s46, s46, s47")
    a(f"v_add_u32 v{VA}, s46, v{VA}"); a(f"v_xor_b32 v{VA+1}, 64, v{VA}")
    for i in range(32): a(f"v_mov_b32 v{ACC+i}, 0")
    a("s_waitcnt lgkmcnt(0)"); a("s_barrier")
    w2.setup(a)
    def rd(i):
        for ct in range(2):
            r = AF + 8 * (i & 3) + 4 * ct
            a(f"ds_read_b64_tr_b16 {vr(r,2)}, v{VA+ct} offset:{i*2048}")
            a(f"ds_read_b64_tr_b16 {vr(r+2,2)}, v{VA+ct} offset:{i*2048+1024}")
    for i in range(3): rd(i)
    for j in range(5): w2.dma(a, j)
    a("s_waitcnt vmcnt(10)")
    lp, lr, lok = a.uid("L_o_poll"), a.uid("L_o_retry"), a.uid("L_o_ok")
    tag_check(a, [OFR + 4 * i for i in range(8)], lr)
    a(f"s_branch {lok}")
    a.label(lr)
    a("s_mov_b32 s48, 0")
    a.label(lp)
    oloads()
    a("s_add_u32 s48, s48, 1")
    a("s_waitcnt vmcnt(0)")
    a("s_cmp_ge_u32 s48, 0x100000"); a(f"s_cbranch_scc1 {lok}")
    tag_check(a, [OFR + 4 * i for i in range(8)], lp)
    a.label(lok)
    stamp(a, 4)
    for i in range(8):
        if i + 3 < 8: rd(i + 3); a("s_waitcnt lgkmcnt(12)")
        else: a(f"s_waitcnt lgkmcnt({(7 - i) * 4})")
        for ct in range(2): mfma(a, ACC + 16 * ct, AF + 8 * (i & 3) + 4 * ct, OFR + 4 * i)
    a("s_nop 7"); a("s_nop 3")
    reduce_scatter(a, ACC, s_tt, s_kq, 46, 8, 0, sub_shift=16)
    H = 8
    for j in range(4):
        a(f"v_lshlrev_b32 v{H+2*j}, 16, v{XR+j}"); a(f"v_and_b32 v{H+2*j+1}, 0xffff0000, v{XR+j}")
    for i in range(8): a(f"v_add_f32 v{H+i}, v{H+i}, v{ACC+i}")
    for j in range(4): a(f"v_cvt_pk_bf16_f32 v{HP+j}, v{H+2*j}, v{H+2*j+1}")
    for j in range(4):
        a(f"v_lshlrev_b32 v{H+2*j}, 16, v{HP+j}"); a(f"v_and_b32 v{H+2*j+1}, 0xffff0000, v{HP+j}")
    a(f"v_add_f32 v20, v{H}, v{H+1}"); a(f"v_mul_f32 v21, v{H}, v{H}"); a(f"v_fmac_f32 v21, v{H+1}, v{H+1}")
    for i in range(2, 8):
        a(f"v_add_f32 v20, v20, v{H+i}"); a(f"v_fmac_f32 v21, v{H+i}, v{H+i}")
    a("v_mov_b32 v22, v20"); a("v_mov_b32 v23, v21"); a("s_nop 1")
    a("v_permlane32_swap_b32 v20, v22"); a("v_permlane32_swap_b32 v21, v23"); a("s_nop 1")
    a("v_add_f32 v20, v20, v22"); a("v_add_f32 v21, v21, v23")
    ST = 32768
    a("v_and_b32 v46, 31, v0"); a(f"s_lshl_b32 s46, s{s_tt}, 5"); a("v_add_u32 v46, s46, v46"); a("v_lshlrev_b32 v24, 3, v46")
    a(f"s_lshl_b32 s46, s{s_kq}, 9"); a(f"s_add_u32 s46, s46, {ST}"); a("v_add_u32 v47, s46, v24")
    a("v_cmp_gt_u32 vcc, 32, v0"); a("s_and_saveexec_b64 s[52:53], vcc")
    a("ds_write_b64 v47, v[20:21]")
    a("s_mov_b64 exec, s[52:53]")
    a("s_waitcnt lgkmcnt(0)"); a("s_barrier")
    lx, lx0 = a.uid("L_p3_x"), a.uid("L_p3_x0")
    a("s_cmp_eq_u32 s3, 0"); a(f"s_cbranch_scc1 {lx0}")
    for j in range(5, 9): w2.dma(a, j)
    a(f"s_branch {lx}")
    a.label(lx0)
    a("v_lshlrev_b32 v48, 3, v0"); a(f"v_add_u32 v49, {ST}, v48")
    for q in range(4): a(f"ds_read_b64 {vr(26+2*q,2)}, v49 offset:{q*512}")
    a("s_waitcnt lgkmcnt(0)")
    a("v_add_f32 v26, v26, v28"); a("v_add_f32 v27, v27, v29"); a("v_add_f32 v30, v30, v32"); a("v_add_f32 v31, v31, v33")
    a("v_add_f32 v26, v26, v30"); a("v_add_f32 v27, v27, v31")
    a("v_min_u32 v26, 0xfffffffe, v26"); a("v_min_u32 v27, 0xfffffffe, v27")
    a(f"s_lshl_b32 s46, s{s_tb}, 12"); a(f"s_add_u32 s46, s46, {XCH}"); a(f"s_lshl_b32 s47, s{s_cb}, 9"); a("s_add_u32 s47, s47, s46")
    a(f"buffer_store_dwordx2 v[26:27], v48, s[{SWS}:{SWS+3}], s47 offen sc1")
    lp, lpd, lr = a.uid("L_p3_poll"), a.uid("L_p3_pd"), a.uid("L_p3_r")
    a("s_mov_b32 s48, 0")
    a.label(lp)
    for q in range(8): a(f"buffer_load_dwordx2 {vr(32+2*q,2)}, v48, s[{SWS}:{SWS+3}], s46 offen offset:{q*512} sc1")
    a("s_waitcnt vmcnt(0)")
    tag_check(a, list(range(32, 48)), lr)
    a(f"s_branch {lpd}")
    a.label(lr)
    a("s_add_u32 s48, s48, 1"); a("s_cmp_lt_u32 s48, 0x100000"); a(f"s_cbranch_scc1 {lp}")
    a.label(lpd)
    for q in range(1, 8):
        a(f"v_add_f32 v32, v32, v{32+2*q}"); a(f"v_add_f32 v33, v33, v{33+2*q}")
    a("v_mul_f32 v32, 0x3b000000, v32"); a("v_mul_f32 v33, 0x3b000000, v33")
    a("v_fma_f32 v33, -v32, v32, v33"); a("v_max_f32 v33, 0, v33")
    a("v_add_f32 v34, 0x3727c5ac, v33"); a("v_rsq_f32 v35, v34")
    a("s_nop 0")
    a("v_mul_f32 v36, v35, v35"); a("v_mul_f32 v36, v36, v33")
    a("v_add_f32 v36, 0x3727c5ac, v36"); a("v_rsq_f32 v36, v36")
    a("s_nop 0")
    a("v_mul_f32 v34, v35, v36"); a("v_mul_f32 v35, v32, v34"); a("v_sub_f32 v35, 0, v35")
    a(f"v_add_u32 v49, {ST + 2048}, v48")
    a("ds_write_b64 v49, v[34:35]")
    for j in range(5, 9): w2.dma(a, j)
    a("s_waitcnt lgkmcnt(0)")
    a.label(lx)
    a("s_barrier")
    stamp(a, 5)
    a(f"v_add_u32 v47, {ST + 2048}, v24")
    a("ds_read_b64 v[20:21], v47")
    a("s_waitcnt lgkmcnt(0)")
    for i in range(8): a(f"v_fma_f32 v{H+i}, v{H+i}, v20, v21")
    for j in range(4): a(f"v_cvt_pk_bf16_f32 v{16+j}, v{H+2*j}, v{H+2*j+1}")
    a("v_lshrrev_b32 v46, 3, v24")
    a("v_bfe_u32 v47, v46, 1, 1"); a("v_lshlrev_b32 v47, 2, v47")
    a(f"s_lshl_b32 s46, s{s_kq}, 1"); a("v_xor_b32 v47, s46, v47")
    a("v_lshlrev_b32 v47, 4, v47"); a("v_lshlrev_b32 v46, 7, v46"); a("v_add_u32 v46, v46, v47")
    a("v_lshrrev_b32 v47, 5, v0"); a("v_lshlrev_b32 v47, 3, v47"); a("v_add_u32 v46, v46, v47")
    a("ds_write_b64 v46, v[16:17] offset:36864"); a("ds_write_b64 v46, v[18:19] offset:36880")
    a(f"s_lshl_b32 s46, s{s_tt}, 2")
    tr_lane_addr(a, 48, 46, 47, 'perm', colunit_sreg=46)
    a(f"s_lshl_b32 s46, s{s_kq}, 11"); a("v_add_u32 v48, s46, v48")
    a("s_waitcnt lgkmcnt(0)"); a("s_barrier")
    a("ds_read_b64_tr_b16 v[24:25], v48 offset:36864"); a("ds_read_b64_tr_b16 v[26:27], v48 offset:37888")
    a("s_waitcnt lgkmcnt(0)")
    a("v_min_u32 v24, 0xfffffffe, v24")
    a(f"buffer_store_dwordx4 v[24:27], v1, s[{SWS}:{SWS+3}], s{S_LFA} offen sc1")

RING = 8
NR = 6
ACC = 64
def act_load(a, s_act, i, r):
    for dt in range(2):
        a(f"s_add_u32 s52, s{s_act[dt]}, {i*1024}")
        a(f"buffer_load_dwordx4 {vr(r+4*dt,4)}, v1, s[36:39], s52 offen sc1")

def probe(a, s_act, probe_steps):
    a("v_lshrrev_b32 v2, 1, v0"); a(f"v_mov_b32 v3, {probe_steps[0]}")
    for n in range(1, 4):
        a(f"v_cmp_eq_u32 vcc, {n}, v2"); a(f"v_mov_b32 v8, {probe_steps[n]}"); a("s_nop 0"); a("v_cndmask_b32 v3, v3, v8, vcc")
    a("v_lshlrev_b32 v3, 10, v3"); a("v_add_u32 v3, 1008, v3")
    a("v_and_b32 v2, 1, v0"); a(f"s_sub_u32 s52, s{s_act[1]}, s{s_act[0]}"); a("v_mul_lo_u32 v2, v2, s52"); a("v_add_u32 v3, v3, v2")
    a("s_mov_b32 s53, 0")
    a("v_cmp_gt_u32 vcc, 8, v0"); a("s_and_saveexec_b64 s[62:63], vcc")
    lp, lx = a.uid("L_probe"), a.uid("L_px")
    a.label(lp)
    a(f"buffer_load_dword v8, v3, s[36:39], s{s_act[0]} offen sc1")
    a("s_add_u32 s53, s53, 1")
    a("s_waitcnt vmcnt(0)")
    a("v_cmp_eq_u32 vcc, -1, v8")
    a(f"s_cbranch_vccz {lx}")
    a("s_cmp_lt_u32 s53, 0x100000"); a(f"s_cbranch_scc1 {lp}")
    a.label(lx)
    a("s_mov_b64 exec, s[62:63]")

def gemm8(a, vq, nks, s_act, act_is_B, retries, probe_steps, free, wreg, frees_w, after_step=None, after_fill=None):
    probe(a, s_act, probe_steps)
    vq.q = []
    if (opt.exp == "p4steps" and nks == 16) or (opt.exp == "p5steps" and nks == 14): stamp(a, 1, force=True)
    if opt.exp == "probes": stamp(a, 1 if nks == 16 else 13, force=True)
    free = list(free); blk = {}; nxt = [0]
    def fill():
        while free and nxt[0] < nks:
            i = nxt[0]; blk[i] = free.pop(0); act_load(a, s_act, i, blk[i]); vq.issue(f"act{i}", 2); nxt[0] += 1
    fill()
    if after_fill: after_fill()
    for i in range(64): a(f"v_mov_b32 v{ACC+i}, 0")
    for i in range(nks):
        r = blk[i]
        vq.wait(a, f"act{i}")
        lr, lb = a.uid("L_retry"), a.uid("L_back")
        tag_check(a, [r, r + 4], lr)
        a.label(lb)
        retries.append((lr, lb, [(k, blk[k]) for k in range(i, min(i + 4, nxt[0]))], s_act))
        W0 = wreg(i)
        for sub in range(2):
            for dt in range(2):
                W, A_ = W0 + 4 * sub, r + 4 * dt
                if act_is_B: mfma(a, ACC + 16 * (2 * dt + sub), W, A_)
                else: mfma(a, ACC + 16 * (2 * dt + sub), A_, W)
        if opt.exp == "p4steps" and nks == 16 and i in (0, 1, 3, 5, 7, 9, 11, 13): stamp(a, {0: 2, 1: 3, 3: 4, 5: 5, 7: 9, 9: 10, 11: 11, 13: 12}[i], force=True)
        if opt.exp == "p5steps" and nks == 14 and i in (0, 1, 3, 5, 7, 9, 11, 13): stamp(a, {0: 2, 1: 3, 3: 4, 5: 5, 7: 6, 9: 10, 11: 11, 13: 7}[i], force=True)
        free.append(r)
        if frees_w: free.append(W0)
        if after_step: after_step(i, free)
        fill()
    a("s_nop 7"); a("s_nop 3")

def emit_retries(a, retries):
    for lr, lb, steps, s_act in retries:
        lp = a.uid("L_rp")
        r = steps[0][1]
        a.label(lr)
        a("s_mov_b32 s53, 0")
        a.label(lp)
        for k, rk in steps: act_load(a, s_act, k, rk)
        a("s_add_u32 s53, s53, 1")
        a("s_waitcnt vmcnt(0)")
        a("s_cmp_ge_u32 s53, 0x100000"); a(f"s_cbranch_scc1 {lb}")
        tag_check(a, [r, r + 4], lp)
        a(f"s_branch {lb}")

RING_BLOCKS = [8 + 8 * i for i in range(6)]
def reduce8(a, w2, tail_barrier):
    a(f"v_add_u32 v2, s{w2.SE}, v1"); a(f"v_add_u32 v3, s{w2.SM}, v1")
    a("s_waitcnt lgkmcnt(0)")
    for p in range(8):
        sub, half, dt = p & 1, (p >> 1) & 1, p >> 2
        for q in range(2):
            r = ACC + 16 * (2 * dt + sub) + 8 * half + 4 * q
            a(f"ds_write_b128 v{2 + (p >> 2)}, {vr(r,4)} offset:{(p & 3)*2048 + q*1024}")
    a("s_and_b32 s46, s3, 3"); a("s_lshl_b32 s46, s46, 11")
    a("s_mov_b32 s48, 65536"); a("s_cmp_lt_u32 s3, 4"); a("s_cselect_b32 s47, 98304, 0"); a("s_cselect_b32 s48, 32768, s48")
    a("s_add_u32 s46, s46, s47"); a("v_add_u32 v2, s46, v1"); a("v_add_u32 v3, s48, v2")
    a("s_waitcnt lgkmcnt(0)"); a("s_barrier")
    for src in range(8):
        for q in range(2):
            a(f"ds_read_b128 {vr(ACC + 8*src + 4*q, 4)}, v{2 + (src >> 2)} offset:{(src & 3)*8192 + q*1024}")
    for lvl, (wait, pairs) in enumerate(((12, [(0, 1)]), (8, [(2, 3)]), (4, [(4, 5)]), (0, [(6, 7)]))):
        a(f"s_waitcnt lgkmcnt({wait})")
        for x, y in pairs:
            for i in range(8): a(f"v_add_f32 v{ACC+8*x+i}, v{ACC+8*x+i}, v{ACC+8*y+i}")
        if lvl == 3 and tail_barrier: a("s_barrier")
    for x, y in ((0, 2), (4, 6), (0, 4)):
        for i in range(8): a(f"v_add_f32 v{ACC+8*x+i}, v{ACC+8*x+i}, v{ACC+8*y+i}")

def phase4v2(a, retries, w2):
    s_db = 26
    SB, SW2 = 32, 28
    a("s_and_b32 s46, s2, 7"); a("s_lshr_b32 s47, s2, 3")
    a("s_and_b32 s48, s46, 1"); a("s_lshl_b32 s48, s48, 2"); a("s_and_b32 s49, s47, 3"); a(f"s_add_u32 s{s_db}, s48, s49")
    srd(a, SB, P_B1, 1792 * 2)
    vq = VMQ(); w2.vq = vq
    a("s_and_b32 s46, s3, 1"); a("s_lshl_b32 s46, s46, 6"); a("s_bfe_u32 s47, s3, 0x10001"); a("s_lshl_b32 s47, s47, 5")
    a("s_add_u32 s46, s46, s47"); a(f"s_add_u32 s46, s46, s{S_FB128}")
    a("v_lshrrev_b32 v2, 5, v0"); a("v_lshlrev_b32 v2, 3, v2")
    a(f"buffer_load_dwordx2 v[56:57], v2, s[{SB}:{SB+3}], s46 offen"); a(f"buffer_load_dwordx2 v[58:59], v2, s[{SB}:{SB+3}], s46 offen offset:16")
    vq.issue("bias", 2)
    a(f"s_lshl_b32 s46, s{s_db}, 18"); a("s_lshl_b32 s47, s3, 14"); a("s_add_u32 s46, s46, s47")
    a(f"s_add_u32 s54, s46, {LF}"); a(f"s_add_u32 s56, s46, {LF + 128*1024}")
    def after4(i, free):
        j = i if 5 <= i <= 8 and i != 7 else None
        if j is not None: free.remove(WREG + 8 * j); w2.read(a, j)
        if i == 7: free.remove(WREG + 8 * 7); w2.read(a, 7)
        if i in (7, 9, 11, 13, 15):
            j = (i - 7) // 2; free.remove(WREG + 8 * j); w2.read(a, j)
    gemm8(a, vq, 16, (54, 56), True, retries, (3, 7, 11, 15), RING_BLOCKS, lambda i: WREG + 8 * i, True, after4)
    stamp(a, 7)
    reduce8(a, w2, True)
    for j in range(4):
        a(f"v_lshlrev_b32 v{16+2*j}, 16, v{56+j}"); a(f"v_and_b32 v{17+2*j}, 0xffff0000, v{56+j}")
    for i in range(8): a(f"v_add_f32 v{ACC+i}, v{ACC+i}, v{16+i}")
    a("s_mov_b32 s46, 0xc0135761")
    a("s_mov_b32 s47, 0xbdd2d3e8")
    a("v_mov_b32 v24, s46")
    for i in range(8): a(f"v_mul_f32 v{16+i}, v{ACC+i}, v{ACC+i}")
    for i in range(8): a(f"v_fma_f32 v{16+i}, v{16+i}, s47, v24")
    for i in range(8): a(f"v_mul_f32 v{16+i}, v{16+i}, v{ACC+i}")
    for i in range(8): a(f"v_exp_f32 v{16+i}, v{16+i}")
    for i in range(8): a(f"v_add_f32 v{16+i}, 1.0, v{16+i}")
    for i in range(8): a(f"v_rcp_f32 v{16+i}, v{16+i}")
    for i in range(8): a(f"v_mul_f32 v{16+i}, v{16+i}, v{ACC+i}")
    for j in range(4): a(f"v_cvt_pk_bf16_f32 v{28+j}, v{16+2*j}, v{17+2*j}")
    a("v_min_u32 v28, 0xfffffffe, v28")
    l = a.uid("L_nostu")
    a(f"s_cmp_eq_u32 s{S_STU}, 0"); a(f"s_cbranch_scc1 {l}")
    a(f"buffer_store_dwordx4 v[28:31], v1, s[36:39], s{S_UFA} offen sc1")
    a.label(l)
    if opt.exp != "w2late":
        w2.vq = None
        for j in range(9, 14): w2.dma(a, j)

def phase5v2(a, retries, w2):
    s_db, s_sb = 26, 27
    SB, SO = 32, 40
    a("; ---- P5: out = h + (u w2 + b2)^T")
    a("s_and_b32 s46, s2, 7"); a("s_lshr_b32 s47, s2, 3")
    a("s_lshl_b32 s48, s46, 2"); a("s_lshr_b32 s49, s47, 3"); a(f"s_add_u32 s{s_sb}, s48, s49"); a(f"s_and_b32 s{s_db}, s47, 7")
    srd(a, SB, P_B2, 2048 * 2); srd(a, SO, P_OUT, 2048 * 512 * 2)
    vq = VMQ(); vq.issue("ustore")
    a(f"s_lshl_b32 s46, s{s_sb}, 6"); a("s_and_b32 s47, s3, 1"); a("s_lshl_b32 s47, s47, 5"); a("s_add_u32 s46, s46, s47")
    a("v_and_b32 v2, 31, v0"); a("v_add_u32 v57, s46, v2"); a("v_lshlrev_b32 v2, 1, v57")
    a(f"buffer_load_ushort v56, v2, s[{SB}:{SB+3}], 0 offen"); vq.issue("b2")
    a(f"s_mul_i32 s46, s{s_db}, {2*112*1024}"); a(f"s_mul_i32 s47, s3, {14*1024}"); a("s_add_u32 s46, s46, s47")
    a(f"s_add_u32 s54, s46, {UF}"); a(f"s_add_u32 s56, s46, {UF + 112*1024}")
    wblk = {j: WREG + 8 * j for j in range(9)}
    spare = [WREG + 8 * j for j in range(9, 16)]
    def rest_of_w2():
        if opt.exp != "w2late": return
        w2.vq = vq
        for j in range(9, 14): w2.dma(a, j)
    def after5(i, free):
        if i <= 1: free += [spare.pop(0), spare.pop(0)]
        if i == 2: free.append(spare.pop(0))
        if i == 6:
            vq.wait(a, "w2_13")
            for j in (9, 10): wblk[j] = spare.pop(0); w2.read(a, j, wblk[j])
        if i == 7:
            for j in (11, 12): wblk[j] = free.pop(0); w2.read(a, j, wblk[j])
        if i == 8:
            wblk[13] = free.pop(0); a("s_waitcnt lgkmcnt(8)"); w2.read(a, 13, wblk[13]); a("s_waitcnt lgkmcnt(4)")
        if i == 11: a("s_waitcnt lgkmcnt(0)")
    gemm8(a, vq, 14, (54, 56), False, retries, (1, 5, 9, 13), RING_BLOCKS, lambda i: wblk[i], False, after5, rest_of_w2)
    stamp(a, 9)
    reduce8(a, w2, False)
    a("v_lshlrev_b32 v56, 16, v56")
    for j in range(4):
        a(f"v_lshlrev_b32 v{20+2*j}, 16, v{HP+j}"); a(f"v_and_b32 v{21+2*j}, 0xffff0000, v{HP+j}")
    for i in range(8): a(f"v_add_f32 v{ACC+i}, v{ACC+i}, v56")
    for i in range(8): a(f"v_add_f32 v{ACC+i}, v{ACC+i}, v{20+i}")
    for j in range(4): a(f"v_cvt_pk_bf16_f32 v{28+j}, v{ACC+2*j}, v{ACC+2*j+1}")
    a("s_nop 1")
    a("v_permlane32_swap_b32 v28, v30"); a("v_permlane32_swap_b32 v29, v31")
    a("v_lshlrev_b32 v57, 10, v57"); a("v_lshrrev_b32 v2, 5, v0"); a("v_lshlrev_b32 v2, 4, v2"); a("v_add_u32 v57, v57, v2")
    a(f"s_lshl_b32 s46, s{s_db}, 7"); a("s_lshr_b32 s47, s3, 1"); a("s_lshl_b32 s47, s47, 5"); a("s_add_u32 s46, s46, s47")
    a(f"buffer_store_dwordx4 v[28:31], v57, s[{SO}:{SO+3}], s46 offen{opt.outflags}")

opt.outflags = ""
opt.p1stamps = False
opt.exp = None
opt.stamp_wave = 0
def build():
    phases.cfg.persist = True; phases.cfg.tags = True
    a = Asm()
    a.label(KNAME)
    end = "L_end"
    if opt.stamps: a("s_memrealtime s[74:75]")
    prologue(a, 256, end)
    if opt.stamps:
        for i in range(1, 16): a(f"s_mov_b32 s{STAMP0+i}, 0")
        a(f"s_mov_b32 s{STAMP0}, s74")
    if opt.diag == "pad100":
        a("s_memrealtime s[90:91]"); a("s_waitcnt lgkmcnt(0)")
    srd(a, SB_WS, P_WS, WS_SIZE); srd(a, 76, P_DBG, 256)
    a("v_mov_b32 v248, 252"); a("v_mov_b32 v247, 0")
    if opt.codepf:
        a("s_getpc_b64 s[62:63]")
        a.label("L_pcbase")
        a("s_lshl_b32 s60, s3, 13"); a("v_lshlrev_b32 v2, 7, v0"); a("v_add_u32 v2, s60, v2")
        a("s_mov_b32 s61, L_codeend-L_pcbase"); a("v_min_u32 v2, s61, v2")
        a("global_load_dword v249, v2, s[62:63]")
    lz = a.uid("L_zero")
    a("s_cmp_lg_u32 s2, 0"); a(f"s_cbranch_scc1 {lz}")
    a("s_cmp_lg_u32 s3, 7"); a(f"s_cbranch_scc1 {lz}")
    a("v_lshlrev_b32 v2, 8, v0"); a("v_mov_b32 v3, 0")
    a("v_cmp_gt_u32 vcc, 16, v0"); a("s_and_saveexec_b64 s[62:63], vcc")
    a(f"s_mov_b32 s60, {CNT}")
    a(f"buffer_store_dword v3, v2, s[{SB_WS}:{SB_WS+3}], s60 offen sc1")
    a("s_mov_b64 exec, s[62:63]")
    a.label(lz)
    map_addresses(a)
    phase1(a, {"post_x": zero_flag_store, "pre_store": zero_flag_load, "no_clear": True, "xfirst": True, "wtouch": opt.touch, "late_issue": True, **({"st": (lambda a, i: stamp(a, i, force=True))} if opt.p1stamps else {})})
    stamp(a, 1)
    l, lp = a.uid("L_zc"), a.uid("L_zp")
    a("s_cmp_lg_u32 s3, 0"); a(f"s_cbranch_scc1 {l}")
    a("s_mov_b32 s61, 0")
    a.label(lp)
    a("s_waitcnt vmcnt(0)")
    a("v_readfirstlane_b32 s64, v247"); a("s_add_u32 s61, s61, 1")
    a("s_cmp_lg_u32 s64, 0"); a(f"s_cbranch_scc1 {l}")
    a("buffer_load_dword v247, v248, s[76:79], 0 offen sc1")
    a("s_cmp_lt_u32 s61, 0x200000"); a(f"s_cbranch_scc1 {lp}")
    a.label(l)
    gp.arrive(a, 0, 27, 13)
    vq = VMQ(); pf = W1Pref()
    def dep2(a):
        pf.setup(a)
        a("s_and_b32 s65, s2, 7")
        gp.make_wait(0, 65, 32, 2)(a)
    phase2(a, {"dep": dep2, "vq": vq, "tile": pf.tile(vq),
               "loop_start": lambda a: (stamp(a, 10), stamp(a, 14, True)), "loop_end": lambda a: (stamp(a, 15, True), stamp(a, 11))})
    stamp(a, 3)
    late_check(a)
    retries = []
    w2 = W2Stage()
    phase3v2(a, w2)
    stamp(a, 6)
    phase4v2(a, retries, w2)
    stamp(a, 8)
    phase5v2(a, retries, w2)
    if opt.stamps:
        a("s_waitcnt vmcnt(0)")
        stamp(a, 12)
        ls = a.uid("L_st")
        a("s_lshl_b32 s61, s2, 3"); a("s_add_u32 s61, s61, s3"); a("s_lshl_b32 s61, s61, 6"); a("s_add_u32 s61, s61, 0xF00000"); a("v_mov_b32 v3, 0")
        for i in range(16):
            a(f"v_mov_b32 v2, s{STAMP0+i}")
            a(f"buffer_store_dword v2, v3, s[{SB_WS}:{SB_WS+3}], s61 offen offset:{4*i}")
        a(f"s_cmp_lg_u32 s2, {opt.stamp_wg}"); a(f"s_cbranch_scc1 {ls}"); a(f"s_cmp_lg_u32 s3, {opt.stamp_wave}"); a(f"s_cbranch_scc1 {ls}")
        for i in range(14):
            a(f"s_sub_u32 s60, s{STAMP0+i}, s74"); a(f"v_mov_b32 v2, s60"); a(f"v_mov_b32 v3, {4*i}")
            a("buffer_store_dword v2, v3, s[76:79], 0 offen")
        a.label(ls)
    if opt.diag == "pad100":
        a.label("L_dg"); a("s_memrealtime s[92:93]"); a("s_waitcnt lgkmcnt(0)"); a("s_sub_u32 s92, s92, s90"); a("s_cmp_lt_u32 s92, 10000"); a("s_cbranch_scc1 L_dg")
    a("s_endpgm")
    emit_retries(a, retries)
    a.label(end)
    a.label("L_codeend")
    a("s_endpgm")
    body = a.text()
    probs = check_hazards(body)
    for p in probs: print(p, file=sys.stderr)
    desc = f""".amdhsa_kernel {KNAME}
  .amdhsa_next_free_vgpr 256
  .amdhsa_next_free_sgpr 102
  .amdhsa_accum_offset 256
  .amdhsa_group_segment_fixed_size 0
  .amdhsa_kernarg_size 88
  .amdhsa_user_sgpr_count 2
  .amdhsa_user_sgpr_kernarg_segment_ptr 1
  .amdhsa_system_sgpr_workgroup_id_x 1
  .amdhsa_float_denorm_mode_32 3
.end_amdhsa_kernel
"""
    return (HEADER + "; @launch grid=(256,1,1) block=(512,1,1) lds=163840\n"
            + '.amdgcn_target "amdgcn-amd-amdhsa--gfx950"\n.text\n'
            + f".globl {KNAME}\n.p2align 8\n.type {KNAME},@function\n" + body
            + '.section .rodata,"a"\n.p2align 6\n' + desc)

if __name__ == "__main__":
    import argparse
    ap = argparse.ArgumentParser()
    ap.add_argument("-o", default=f"cdna_kernels/{NAME}.s")
    ap.add_argument("--stamps", action="store_true")
    ap.add_argument("--no-touch", action="store_true")
    ap.add_argument("--no-codepf", action="store_true")
    ap.add_argument("--diag", default=None)
    ap.add_argument("--outflags", default="")
    ap.add_argument("--p1stamps", action="store_true")
    ap.add_argument("--exp", default=None)
    ap.add_argument("--stamp-wg", type=int, default=0)
    ap.add_argument("--stamp-wave", type=int, default=0)
    args = ap.parse_args()
    opt.stamps = args.stamps; opt.touch = not args.no_touch; opt.codepf = not args.no_codepf; opt.diag = args.diag
    opt.stamp_wg = args.stamp_wg; opt.stamp_wave = args.stamp_wave
    opt.p1stamps = args.p1stamps; opt.exp = args.exp; phases.cfg.exp = args.exp
    opt.outflags = (" " + args.outflags) if args.outflags else ""
    open(args.o, "w").write(build())
    print("wrote", args.o)
```

```python
from asmlib import *

QF, KF, VF, OF, HF, LF, UF, XCH = 0x000000, 0x200000, 0x400000, 0x600000, 0x800000, 0xA00000, 0xC00000, 0xE00000
WS_SIZE = 0x1000000
P_X, P_WQKV, P_WO, P_W1, P_B1, P_W2, P_B2, P_OUT, P_DBG, P_WS = 4, 6, 8, 12, 14, 16, 18, 20, 22, 24
S_WG, S_WAVE = 2, 3
class Cfg:
    persist = False
    stamps = False
    tags = False
cfg = Cfg()
def SC(): return " sc1" if cfg.persist else ""
CNT = 0xE40000
V_HP = 200

def srd(a, dst, ptr, nbytes):
    a(f"s_mov_b32 s{dst}, s{ptr}")
    a(f"s_mov_b32 s{dst+1}, s{ptr+1}")
    a(f"s_mov_b32 s{dst+2}, {hex(nbytes)}")
    a(f"s_mov_b32 s{dst+3}, 0x20000")

def prologue(a, nwg, end_label):
    a(f"s_cmp_ge_u32 s2, {nwg}")
    a(f"s_cbranch_scc1 {end_label}")
    a("s_load_dwordx16 s[4:19], s[0:1], 0")
    a("s_load_dwordx4 s[20:23], s[0:1], 64")
    a("s_load_dwordx2 s[24:25], s[0:1], 80")
    a("v_lshrrev_b32 v1, 6, v0")
    a("v_and_b32 v0, 63, v0")
    a("v_readfirstlane_b32 s3, v1")
    a("s_waitcnt lgkmcnt(0)")

def dma(a, voff, srd_, soff, m0, offset=0, flags="", pre=None):
    if isinstance(m0, tuple):
        if m0[1] == 0: a(f"s_mov_b32 m0, s{m0[0]}")
        else: a(f"s_add_u32 m0, s{m0[0]}, {m0[1]}")
    elif m0 is not None:
        a(f"s_mov_b32 m0, {m0}")
    if pre: a(pre)
    elif m0 is not None: a("s_nop 0")
    o = f" offset:{offset}" if offset else ""
    so = f"s{soff}" if soff is not None else "0"
    a(f"buffer_load_dwordx4 v{voff}, s[{srd_}:{srd_+3}], {so} offen{o}{flags} lds")

def tr_lane_addr(a, dst, t0, t1, rowsel, colunit_sreg=None, colunit_imm=0):
    a(f"v_lshrrev_b32 v{t0}, 5, v0")
    a(f"v_lshlrev_b32 v{t0}, {3 if rowsel=='nat' else 2}, v{t0}")
    a(f"v_bfe_u32 v{t1}, v0, 2, 2")
    a(f"v_add_u32 v{t0}, v{t0}, v{t1}")
    a(f"v_lshlrev_b32 v{dst}, 7, v{t0}")
    a(f"v_bfe_u32 v{t0}, v0, 4, 1")
    a(f"v_lshlrev_b32 v{t0}, 1, v{t0}")
    a(f"v_bfe_u32 v{t1}, v0, 1, 1")
    a(f"v_add_u32 v{t0}, v{t0}, v{t1}")
    if colunit_sreg is not None: a(f"v_add_u32 v{t0}, s{colunit_sreg}, v{t0}")
    elif colunit_imm: a(f"v_add_u32 v{t0}, {colunit_imm}, v{t0}")
    a(f"v_bfe_u32 v{t1}, v0, 3, 1")
    a(f"v_lshlrev_b32 v{t1}, 2, v{t1}")
    a(f"v_xor_b32 v{t0}, v{t0}, v{t1}")
    a(f"v_lshlrev_b32 v{t0}, 4, v{t0}")
    a(f"v_add_u32 v{dst}, v{dst}, v{t0}")
    a(f"v_and_b32 v{t0}, 1, v0")
    a(f"v_lshlrev_b32 v{t0}, 3, v{t0}")
    a(f"v_add_u32 v{dst}, v{dst}, v{t0}")

def dma_row_voff(a, dst, t0, t1, row_stride):
    a(f"v_lshrrev_b32 v{t0}, 3, v0")
    a(f"s_mov_b32 s65, {row_stride}")
    a(f"v_mul_lo_u32 v{dst}, v{t0}, s65")
    a(f"v_bfe_u32 v{t0}, v0, 4, 1")
    a(f"v_lshlrev_b32 v{t0}, 2, v{t0}")
    a(f"v_and_b32 v{t1}, 7, v0")
    a(f"v_xor_b32 v{t0}, v{t0}, v{t1}")
    a(f"v_lshlrev_b32 v{t0}, 4, v{t0}")
    a(f"v_add_u32 v{dst}, v{dst}, v{t0}")

def mfma(a, d, A, B, c=None):
    cs = vr(d, 16) if c is None else c
    a(f"v_mfma_f32_32x32x16_bf16 {vr(d,16)}, {vr(A,4)}, {vr(B,4)}, {cs}")

def phase1(a, hooks=None):
    hooks = hooks or {}
    s_tb, s_g, s_tt, s_p = 26, 27, 44, 45
    SX, SW, SWS = 28, 32, 36
    a("s_and_b32 s46, s2, 7"); a("s_lshr_b32 s47, s2, 3")
    a("s_lshr_b32 s48, s46, 1"); a("s_lshl_b32 s48, s48, 3"); a("s_and_b32 s49, s47, 7"); a(f"s_add_u32 s{s_tb}, s48, s49")
    a("s_and_b32 s48, s46, 1"); a("s_lshl_b32 s48, s48, 2"); a("s_lshr_b32 s49, s47, 3"); a(f"s_add_u32 s{s_g}, s48, s49")
    if getattr(cfg, "exp", None) == "gswap": a(f"s_xor_b32 s{s_g}, s{s_g}, 4")
    a(f"s_and_b32 s{s_tt}, s3, 1"); a(f"s_bfe_u32 s{s_p}, s3, 0x10001")
    srd(a, SX, P_X, 2048 * 512 * 2); srd(a, SW, P_WQKV, 512 * 1536 * 2); srd(a, SWS, P_WS, WS_SIZE)
    XR, VSUM, VSQ, VT, VXW, VWD, VXA, VWA, ACC, XFR, WQ, WK = 8, 40, 41, 44, 46, 47, 48, 56, 64, 96, 104, 112
    a("v_lshrrev_b32 v1, 3, v0"); a("s_lshl_b32 s46, s3, 3"); a("v_add_u32 v2, s46, v1")
    a(f"s_lshl_b32 s47, s{s_tb}, 6"); a("v_add_u32 v3, s47, v2"); a("v_lshlrev_b32 v3, 10, v3")
    a("v_and_b32 v4, 7, v0"); a("v_lshlrev_b32 v5, 4, v4"); a("v_add_u32 v3, v3, v5")
    if hooks.get("marks_first"): hooks["after_dma"](a)
    for c in range(8):
        a(f"buffer_load_dwordx4 {vr(XR+4*c,4)}, v3, s[{SX}:{SX+3}], 0 offen offset:{c*128}")
    if hooks.get("xfirst"): a("s_barrier")
    dma_row_voff(a, VWD, 5, 6, 3072)
    a("s_mul_i32 s46, s3, 24576"); a(f"s_lshl_b32 s47, s{s_g}, 7"); a("s_add_u32 s46, s46, s47")
    a(f"v_add_u32 v{VWD}, s46, v{VWD}")
    a("s_lshl_b32 s50, s3, 10"); a("s_add_u32 s50, s50, 65536")
    vq0 = VMQ(); vq0.issue('x', 8)
    def issue_chunk(ch, vq):
        slot = ch & 3
        for seg in range(3):
            dma(a, VWD, SW, 51, (50, slot * 24576 + seg * 8192), pre=f"s_mov_b32 s51, {ch*64*3072 + seg*1024}")
        vq.issue(f"c{ch}", 3)
    late = hooks.get("late_issue")
    for ch in range(2 if late else 4): issue_chunk(ch, vq0)
    def wtouch():
        a("s_lshr_b32 s46, s2, 3"); a("s_and_b32 s46, s46, 7"); a("s_lshl_b32 s46, s46, 5"); a("s_and_b32 s47, s3, 1"); a("s_lshl_b32 s47, s47, 4")
        a("s_add_u32 s46, s46, s47"); a("s_add_u32 s46, s46, 256")
        a("v_and_b32 v6, 15, v0"); a("v_add_u32 v6, s46, v6"); a("s_movk_i32 s47, 3072"); a("v_mul_lo_u32 v6, v6, s47")
        a("s_lshr_b32 s46, s3, 1"); a("s_min_u32 s46, s46, 2"); a("s_lshl_b32 s46, s46, 10"); a(f"s_lshl_b32 s47, s{s_g}, 7"); a("s_add_u32 s46, s46, s47")
        a("v_cmp_gt_u32 vcc, 16, v0"); a("s_and_saveexec_b64 s[52:53], vcc")
        a(f"buffer_load_dword v125, v6, s[{SW}:{SW+3}], s46 offen")
        a("s_mov_b64 exec, s[52:53]")
        vq0.issue("touch", 1)
    if hooks.get("wtouch") and not late: wtouch()
    if "after_dma" in hooks and not late: vq0.issue("extra", hooks["after_dma"](a))
    if not hooks.get('no_clear'):
        a("v_mov_b32 v56, -1"); a("v_mov_b32 v57, -1"); a("v_mov_b32 v58, -1"); a("v_mov_b32 v59, -1")
        a("v_lshlrev_b32 v6, 4, v0"); a("s_lshl_b32 s46, s2, 9"); a(f"s_add_u32 s46, s46, {XCH}")
        lskip = a.uid("L_p1_noclr")
        a("s_cmp_lg_u32 s3, 0"); a(f"s_cbranch_scc1 {lskip}")
        a("v_cmp_gt_u32 vcc, 32, v0"); a("s_and_saveexec_b64 s[52:53], vcc")
        a(f"buffer_store_dwordx4 v[56:59], v6, s[{SWS}:{SWS+3}], s46 offen{SC()}")
        a("s_mov_b64 exec, s[52:53]")
        a.label(lskip)
    a("v_and_b32 v5, 15, v2"); a("v_xor_b32 v5, v5, v4"); a("v_lshlrev_b32 v5, 4, v5")
    a(f"v_lshlrev_b32 v{VXW}, 10, v2"); a(f"v_add_u32 v{VXW}, v{VXW}, v5"); a(f"v_xor_b32 v43, 128, v{VXW}")
    a("v_and_b32 v1, 31, v0"); a(f"s_lshl_b32 s46, s{s_tt}, 5"); a("v_add_u32 v1, s46, v1")
    a("v_and_b32 v2, 15, v1"); a("v_lshlrev_b32 v1, 10, v1"); a("v_lshrrev_b32 v3, 5, v0")
    for b in range(8):
        a(f"v_add_u32 v4, {2*b}, v3"); a("v_xor_b32 v4, v4, v2"); a("v_lshlrev_b32 v4, 4, v4"); a(f"v_add_u32 v{VXA+b}, v1, v4")
    a(f"s_lshl_b32 s46, s{s_p}, 2")
    tr_lane_addr(a, VWA, 1, 2, 'nat', colunit_sreg=46)
    a(f"v_add_u32 v{VWA}, 0x10000, v{VWA}"); a(f"v_add_u32 v{VWA+1}, 49152, v{VWA}")
    vq0.wait(a, "x")
    if "post_x" in hooks: hooks["post_x"](a)
    if "st" in hooks: hooks["st"](a, 4)
    a(f"v_mov_b32 v{VSUM}, 0"); a(f"v_mov_b32 v{VSQ}, 0"); a("v_mov_b32 v42, 0x3f803f80")
    for i in range(32):
        a(f"v_dot2c_f32_bf16 v{VSUM}, v{XR+i}, v42")
        a(f"v_dot2c_f32_bf16 v{VSQ}, v{XR+i}, v{XR+i}")
    a("s_nop 2")
    for mod in ("quad_perm:[1,0,3,2]", "quad_perm:[2,3,0,1]", "row_half_mirror"):
        a(f"v_add_f32_dpp v{VSUM}, v{VSUM}, v{VSUM} {mod} row_mask:0xf bank_mask:0xf")
        a(f"v_add_f32_dpp v{VSQ}, v{VSQ}, v{VSQ} {mod} row_mask:0xf bank_mask:0xf")
        a("s_nop 0")
    a(f"v_mul_f32 v{VSUM}, {1/512!r}, v{VSUM}".replace("0.001953125", "0x3b000000"))
    a(f"v_mul_f32 v{VSQ}, 0x3b000000, v{VSQ}")
    a(f"v_fma_f32 v{VSQ}, -v{VSUM}, v{VSUM}, v{VSQ}")
    a(f"v_max_f32 v{VSQ}, 0, v{VSQ}")
    a(f"v_add_f32 v{VSQ}, 0x3727c5ac, v{VSQ}")
    a(f"v_rsq_f32 v60, v{VSQ}")
    a("s_nop 0")
    a(f"v_mul_f32 v62, v{VSUM}, v60"); a("v_sub_f32 v62, 0, v62")
    def normalise(c):
        for i in range(4 * c, 4 * c + 4):
            t = VT if i % 2 == 0 else 120
            a(f"v_lshlrev_b32 v{t}, 16, v{XR+i}")
            a(f"v_and_b32 v{t+1}, 0xffff0000, v{XR+i}")
            a(f"v_pk_fma_f32 {vr(t,2)}, {vr(t,2)}, v[60:61], v[62:63] op_sel_hi:[1,0,0]")
            a(f"v_cvt_pk_bf16_f32 v{XR+i}, v{t}, v{t+1}")
        a(f"ds_write_b128 v{VXW if c % 2 == 0 else 43}, {vr(XR+4*c,4)} offset:{(c>>1)*256}")
    pipe_ln = bool(hooks.get("pipe_ln"))
    if pipe_ln:
        issue_chunk(2, vq0)
        normalise(0)
        issue_chunk(3, vq0)
        if hooks.get("wtouch"): wtouch()
    else:
        for c in range(8):
            if late and c == 1: issue_chunk(2, vq0)
            if late and c == 3: issue_chunk(3, vq0)
            if late and c == 6 and hooks.get("wtouch"): wtouch()
            normalise(c)
    lv, lend = a.uid("L_p1_v"), a.uid("L_p1_end")
    a("s_cmp_ge_u32 s3, 4"); a(f"s_cbranch_scc1 {lv}")
    def gemm(isv):
        n = 16 if isv else 32
        for i in range(n): a(f"v_mov_b32 v{ACC+i}, 0")
        D = 2
        XF3, WQ3, WK3 = 128, 140, 152
        def reads(ksg):
            ch, k = ksg >> 2, ksg & 3
            slot = ch & 3; base = VWA + (slot >> 1); off = (slot & 1) * 24576 + k * 2048
            b = ksg % 3
            a(f"ds_read_b128 {vr(XF3+4*b,4)}, v{VXA + (ksg & 7)} offset:{(ksg >> 3) * 256}")
            segs = (2,) if isv else (0, 1)
            for n_, seg in enumerate(segs):
                r = (WQ3 if n_ == 0 else WK3) + 4 * b
                a(f"ds_read_b64_tr_b16 {vr(r,2)}, v{base} offset:{off + seg*8192}")
                a(f"ds_read_b64_tr_b16 {vr(r+2,2)}, v{base} offset:{off + seg*8192 + 512}")
        nrd = 3 if isv else 5
        vq = VMQ(); vq.q = list(vq0.q)
        vq.wait(a, "c0", " lgkmcnt(0)"); a("s_barrier")
        if "st" in hooks: hooks["st"](a, 5)
        lq = []
        def lwait(tag):
            if tag in lq:
                last = len(lq) - 1 - lq[::-1].index(tag)
                n_ = len(lq) - 1 - last
                assert n_ <= 15
                a(f"s_waitcnt lgkmcnt({n_})"); del lq[:last + 1]
        def rd(n_): reads(n_); lq.extend([f"r{n_}"] * nrd)
        rd(0); rd(1)
        for ksg in range(32):
            ch, k = ksg >> 2, ksg & 3
            if k == 2 and ch < 7:
                if pipe_ln: lwait(f"x{ch+1}")
                vq.wait(a, f"c{ch+1}"); a("s_barrier")
                if "st" in hooks and getattr(cfg, "exp", None) == "chunks": hooks["st"](a, [6, 7, 8, 9, 10, 11, 12][ch])
                elif "st" in hooks and ch == 3: hooks["st"](a, 6)
                elif "st" in hooks and ch == 6: hooks["st"](a, 7)
                if 1 <= ch <= 4: issue_chunk(ch + 3, vq)
                if late and ch == 5 and "after_dma" in hooks and not hooks.get("marks_first"): vq.issue("extra", hooks["after_dma"](a))
            if ksg + D < 32: rd(ksg + D)
            lwait(f"r{ksg}")
            if pipe_ln and k == 0 and ch < 7:
                pend = ch + 1
            else: pend = None
            b = ksg % 3
            if isv:
                mfma(a, ACC, XF3 + 4 * b, WQ3 + 4 * b)
            else:
                mfma(a, ACC, WQ3 + 4 * b, XF3 + 4 * b)
                mfma(a, ACC + 16, WK3 + 4 * b, XF3 + 4 * b)
            if pend is not None:
                normalise(pend); lq.append(f"x{pend}")
    gemm(False)
    a(f"s_lshl_b32 s46, s{s_g}, 2"); a(f"s_lshl_b32 s47, s{s_p}, 1"); a("s_add_u32 s46, s46, s47")
    a(f"s_lshl_b32 s47, s{s_tb}, 1"); a(f"s_add_u32 s47, s47, s{s_tt}")
    a("s_lshl_b32 s48, s46, 16"); a("s_lshl_b32 s49, s47, 10"); a("s_add_u32 s48, s48, s49")
    a("v_lshlrev_b32 v1, 4, v0")
    a("s_add_u32 s51, s48, 0x10000")
    a(f"s_add_u32 s52, s48, {KF}"); a(f"s_add_u32 s53, s51, {KF}")
    a("s_mov_b32 s54, 0x3eb8aa3b")
    a("s_nop 7")
    for i in range(16): a(f"v_mul_f32 v{ACC+i}, s54, v{ACC+i}")
    for i in range(8): a(f"v_cvt_pk_bf16_f32 v{XR+i}, v{ACC+2*i}, v{ACC+2*i+1}")
    for i in range(8): a(f"v_cvt_pk_bf16_f32 v{XR+8+i}, v{ACC+16+2*i}, v{ACC+16+2*i+1}")
    if "pre_store" in hooks: hooks["pre_store"](a)
    for n_, so in enumerate((48, 51, 52, 53)):
        a(f"buffer_store_dwordx4 {vr(XR+4*n_,4)}, v1, s[{SWS}:{SWS+3}], s{so} offen{SC()}")
    a(f"s_branch {lend}")
    a.label(lv)
    gemm(True)
    a(f"s_lshl_b32 s46, s{s_g}, 2"); a(f"s_lshl_b32 s47, s{s_p}, 1"); a("s_add_u32 s46, s46, s47")
    a(f"s_lshl_b32 s47, s{s_tb}, 1"); a(f"s_add_u32 s47, s47, s{s_tt}")
    a("s_lshl_b32 s48, s46, 16"); a("s_lshl_b32 s49, s47, 10"); a("s_add_u32 s48, s48, s49"); a(f"s_add_u32 s48, s48, {VF}")
    a("v_bfe_u32 v1, v0, 4, 1"); a("v_lshlrev_b32 v1, 16, v1"); a("v_lshrrev_b32 v2, 5, v0"); a("v_lshlrev_b32 v2, 8, v2")
    a("v_add_u32 v1, v1, v2"); a("v_and_b32 v2, 15, v0"); a("v_lshlrev_b32 v2, 4, v2"); a("v_add_u32 v1, v1, v2")
    a("s_nop 7")
    for i in range(8): a(f"v_cvt_pk_bf16_f32 v{XR+i}, v{ACC+2*i}, v{ACC+2*i+1}")
    if "pre_store" in hooks: hooks["pre_store"](a)
    a(f"buffer_store_dwordx4 {vr(XR,4)}, v1, s[{SWS}:{SWS+3}], s48 offen{SC()}")
    a(f"buffer_store_dwordx4 {vr(XR+4,4)}, v1, s[{SWS}:{SWS+3}], s48 offen offset:512{SC()}")
    a.label(lend)
P1_LDS = 163840

P2_LDS = 131072
class Att:
    Q, KFR, VFR, SA, SB, P, O, VK, VV = 4, 8, 16, 32, 48, 64, 72, 88, 89
def phase2(a, hooks=None):
    hooks = hooks or {}
    s_head, s_qb = 26, 27
    SWS = 36
    Q, KFR, VFR, SA, SB, P, O, VK, VV = Att.Q, Att.KFR, Att.VFR, Att.SA, Att.SB, Att.P, Att.O, Att.VK, Att.VV
    MASK = "s[56:57]"
    a("; ---- P2: attention")
    a("s_and_b32 s46, s2, 7"); a("s_lshr_b32 s47, s2, 3")
    a("s_lshl_b32 s48, s46, 2"); a("s_lshr_b32 s49, s47, 3"); a(f"s_add_u32 s{s_head}, s48, s49"); a(f"s_and_b32 s{s_qb}, s47, 7")
    srd(a, SWS, P_WS, WS_SIZE)
    a("v_lshlrev_b32 v1, 4, v0")
    a(f"s_lshl_b32 s46, s{s_head}, 16")
    a(f"s_lshl_b32 s47, s{s_qb}, 3"); a("s_add_u32 s47, s47, s3"); a("s_lshl_b32 s47, s47, 10"); a("s_add_u32 s47, s47, s46")
    a("s_lshl_b32 s48, s3, 11")
    a("s_add_u32 s49, s46, s48")
    a("s_mov_b32 s56, 0x0000ffff"); a("s_mov_b32 s57, 0x0000ffff")
    a("v_and_b32 v2, 27, v0"); a("v_cmp_eq_u32 vcc, 16, v2"); a("v_mov_b32 v3, 0x3f803f80"); a("v_mov_b32 v2, 0")
    a("v_cndmask_b32 v2, v2, v3, vcc")
    for i in range(16): a(f"v_mov_b32 v{VFR+i}, v2")
    a("v_and_b32 v2, 15, v0"); a("v_lshlrev_b32 v2, 4, v2"); a("v_lshrrev_b32 v3, 5, v0"); a("v_lshlrev_b32 v3, 8, v3"); a("v_add_u32 v91, v2, v3")
    a("v_add_u32 v91, 0x10000, v91")
    if "dep" in hooks: hooks["dep"](a)
    vq = hooks.get("vq") or VMQ()
    a(f"buffer_load_dwordx4 {vr(Q,4)}, v1, s[{SWS}:{SWS+3}], s47 offen{SC()}"); vq.issue("q")
    for st in range(4):
        vq.issue(f"kv{st}", 4)
        a(f"s_add_u32 s50, s49, {KF + st*16384}")
        dma(a, 1, SWS, 50, (48, st * 16384), flags=SC()); dma(a, 1, SWS, 50, None, offset=1024, flags=SC())
        a(f"s_add_u32 s50, s49, {VF + st*16384}")
        dma(a, 1, SWS, 50, (48, 65536 + st * 16384), flags=SC()); dma(a, 1, SWS, 50, None, offset=1024, flags=SC())
    vq.wait(a, "kv0"); a("s_barrier")
    if "loop_start" in hooks: hooks["loop_start"](a)
    def vread(dst, off):
        a(f"s_mov_b64 exec, {MASK}")
        a(f"ds_read_b128 {vr(dst,4)}, v{VV} offset:{off}"); a(f"ds_read_b128 {vr(dst+4,4)}, v{VV} offset:{off+512}")
        a("s_mov_b64 exec, -1")
    def tile(t, S, SN, par, koff, voff, C):
        e = lambda i: a(f"v_exp_f32 v{S+i}, v{S+i}")
        c = lambda i: a(f"v_cvt_pk_bf16_f32 v{P+i}, v{S+2*i}, v{S+2*i+1}")
        e(0); e(1)
        mfma(a, O, VFR + 8 * (par ^ 1) + 4, P + 4)
        vread(VFR + 8 * (par ^ 1), voff)
        a(f"ds_read_b128 {vr(KFR+4*par,4)}, v{VK} offset:{koff}")
        e(2); e(3); e(4); e(5)
        a("s_waitcnt lgkmcnt(3)")
        mfma(a, SN, KFR + 4 * (par ^ 1), Q, C)
        e(6); e(7); c(0); c(1); c(2); c(3); e(8); e(9)
        mfma(a, O, VFR + 8 * par, P)
        for i in range(10, 16): e(i)
        c(4); c(5); c(6); c(7)
    def start(C):
        a(f"v_mov_b32 v{VK}, v1"); a(f"v_mov_b32 v{VV}, v91")
        a(f"ds_read_b128 {vr(KFR,4)}, v{VK}")
        vread(VFR, 0)
        a(f"ds_read_b128 {vr(KFR+4,4)}, v{VK} offset:1024")
        for i in range(16): a(f"v_mov_b32 v{O+i}, 0")
        for i in range(4): a(f"v_mov_b32 v{P+4+i}, 0")
        a(f"s_mov_b64 exec, {MASK}")
        for i in range(4): a(f"v_mov_b32 v{VFR+12+i}, 0")
        a("s_mov_b64 exec, -1")
        a("s_waitcnt lgkmcnt(3)")
        mfma(a, SA, KFR, Q, C)
        a("s_nop 7"); a("s_nop 3")
    def finish():
        a("s_nop 1")
        mfma(a, O, VFR + 8 + 4, P + 4)
        a("s_waitcnt lgkmcnt(0)")
        a("s_nop 7"); a("s_nop 3")
    start("0")
    for t in range(64):
        if t in (12, 28, 44):
            if t == 28: vq.wait(a, "markers")
            vq.wait(a, {12: "kv1", 28: "kv2", 44: "kv3"}[t]); a("s_barrier")
        if "tile" in hooks: hooks["tile"](a, t)
        if t == 48:
            pass
        S, SN = (SA, SB) if t % 2 == 0 else (SB, SA)
        tile(t, S, SN, t & 1, min((t + 2), 63) * 1024, min(t + 1, 63) * 1024, "0")
    finish()
    if "loop_end" in hooks: hooks["loop_end"](a)
    ldone, lmax, lloop = a.uid("L_p2_done"), a.uid("L_p2_maxl"), a.uid("L_p2_loop")
    a("v_mov_b32 v2, 0")
    for i in range(8): a(f"v_fmac_f32 v2, 0, v{O+i}")
    a(f"v_cmp_u_f32 s[58:59], v2, v2")
    a("s_mov_b32 s62, 0x5d800000")
    a(f"v_cmp_nge_f32 s[60:61], s62, v{O+8}")
    a("s_mov_b32 s62, 0x21800000")
    a(f"v_cmp_nle_f32 s[64:65], s62, v{O+8}")
    a("s_nop 3")
    a("s_or_b64 s[58:59], s[58:59], s[60:61]"); a("s_or_b64 s[58:59], s[58:59], s[64:65]")
    a("s_mov_b32 s55, 0")
    a("s_cmp_eq_u64 s[58:59], 0"); a(f"s_cbranch_scc1 {ldone}")
    a("s_mov_b32 s55, 1")
    CN = 96
    a(f"s_lshl_b32 s46, s{s_head}, 16"); a(f"s_add_u32 s47, s46, {KF}"); a(f"s_add_u32 s48, s46, {VF}")
    a("v_mov_b32 v2, 0xff800000"); a("s_mov_b32 s54, 0")
    a.label(lmax)
    a("s_add_u32 s49, s47, s54")
    a(f"buffer_load_dwordx4 {vr(KFR,4)}, v1, s[{SWS}:{SWS+3}], s49 offen{SC()}")
    a("s_waitcnt vmcnt(0)")
    mfma(a, SA, KFR, Q, "0")
    a("s_nop 7"); a("s_nop 3")
    for i in range(8): a(f"v_max3_f32 v2, v2, v{SA+2*i}, v{SA+2*i+1}")
    a("s_add_u32 s54, s54, 1024"); a("s_cmp_lt_u32 s54, 0x10000"); a(f"s_cbranch_scc1 {lmax}")
    a("v_mov_b32 v3, v2"); a("s_nop 1")
    a("v_permlane32_swap_b32 v2, v3"); a("s_nop 1")
    a("v_max_f32 v2, v2, v3"); a("v_sub_f32 v2, 0, v2")
    for i in range(16): a(f"v_mov_b32 v{CN+i}, v2")
    for i in range(16): a(f"v_mov_b32 v{O+i}, 0")
    a(f"v_subrev_u32 v{VV}, 0x10000, v91")
    a("s_mov_b32 s54, 0")
    a.label(lloop)
    a("s_add_u32 s49, s47, s54"); a("s_add_u32 s50, s48, s54")
    a(f"buffer_load_dwordx4 {vr(KFR,4)}, v1, s[{SWS}:{SWS+3}], s49 offen{SC()}")
    a(f"s_mov_b64 exec, {MASK}")
    a(f"buffer_load_dwordx4 {vr(VFR,4)}, v{VV}, s[{SWS}:{SWS+3}], s50 offen{SC()}")
    a(f"buffer_load_dwordx4 {vr(VFR+4,4)}, v{VV}, s[{SWS}:{SWS+3}], s50 offen offset:512{SC()}")
    a("s_mov_b64 exec, -1")
    a("s_waitcnt vmcnt(0)")
    mfma(a, SA, KFR, Q, vr(CN, 16))
    a("s_nop 7"); a("s_nop 3")
    for i in range(16): a(f"v_exp_f32 v{SA+i}, v{SA+i}")
    a("s_nop 0")
    for i in range(8): a(f"v_cvt_pk_bf16_f32 v{P+i}, v{SA+2*i}, v{SA+2*i+1}")
    a("s_nop 1")
    mfma(a, O, VFR, P); mfma(a, O, VFR + 4, P + 4)
    a("s_add_u32 s54, s54, 1024"); a("s_cmp_lt_u32 s54, 0x10000"); a(f"s_cbranch_scc1 {lloop}")
    a("s_nop 7"); a("s_nop 7")
    a.label(ldone)
    a(f"v_rcp_f32 v2, v{O+8}"); a("s_nop 0")
    for i in range(8): a(f"v_mul_f32 v{O+i}, v{O+i}, v2")
    for i in range(4): a(f"v_cvt_pk_bf16_f32 v{P+i}, v{O+2*i}, v{O+2*i+1}")
    if cfg.tags: a(f"v_min_u32 v{P}, 0xfffffffe, v{P}")
    a(f"s_lshl_b32 s47, s{s_qb}, 3"); a("s_add_u32 s47, s47, s3"); a("s_lshl_b32 s47, s47, 5"); a(f"s_add_u32 s47, s47, s{s_head}")
    a("s_lshl_b32 s47, s47, 10"); a(f"s_add_u32 s47, s47, {OF}")
    a(f"buffer_store_dwordx4 {vr(P,4)}, v1, s[{SWS}:{SWS+3}], s47 offen{SC()}")
    if "after" in hooks: hooks["after"](a)

def reduce_scatter(a, ACC, s_sub, s_kq, vtmp, T, base, sub_shift=15):
    a("s_barrier")
    a(f"s_lshl_b32 s46, s{s_sub}, {sub_shift}"); a(f"s_lshl_b32 s47, s{s_kq}, 11"); a("s_add_u32 s47, s47, s46"); a(f"s_add_u32 s47, s47, {base}")
    a(f"v_lshlrev_b32 v{vtmp}, 4, v0"); a(f"v_add_u32 v{vtmp+1}, s47, v{vtmp}")
    for pc in range(4):
        for half in range(2):
            r = ACC + 16 * (pc >> 1) + 8 * (pc & 1) + 4 * half
            a(f"ds_write_b128 v{vtmp+1}, {vr(r,4)} offset:{pc*8192 + half*1024}")
    a(f"s_lshl_b32 s47, s{s_kq}, 13"); a("s_add_u32 s47, s47, s46"); a(f"s_add_u32 s47, s47, {base}")
    a(f"v_add_u32 v{vtmp+1}, s47, v{vtmp}")
    a("s_waitcnt lgkmcnt(0)"); a("s_barrier")
    for src in range(4):
        for half in range(2):
            a(f"ds_read_b128 {vr(T + 8*src + 4*half, 4)}, v{vtmp+1} offset:{src*2048 + half*1024}")
    a("s_waitcnt lgkmcnt(4)")
    for i in range(8): a(f"v_add_f32 v{ACC+i}, v{T+i}, v{T+8+i}")
    a("s_waitcnt lgkmcnt(0)")
    for i in range(8): a(f"v_add_f32 v{T+16+i}, v{T+16+i}, v{T+24+i}")
    for i in range(8): a(f"v_add_f32 v{ACC+i}, v{ACC+i}, v{T+16+i}")

P3_LDS = 131072 + 4096
def phase3(a, hooks=None):
    hooks = hooks or {}
    s_tb, s_cb, s_tt, s_kq, s_ct, s_jp = 26, 27, 44, 45, 56, 57
    SWO, SWS, SX = 28, 36, 32
    OFR, XR, ACC, AF, T, VA = 8, 40, 64, 96, 104, 4
    a("s_and_b32 s46, s2, 7"); a("s_lshr_b32 s47, s2, 3")
    a("s_lshl_b32 s48, s46, 2"); a("s_lshr_b32 s49, s47, 3"); a(f"s_add_u32 s{s_tb}, s48, s49"); a(f"s_and_b32 s{s_cb}, s47, 7")
    a(f"s_and_b32 s{s_tt}, s3, 1"); a(f"s_lshr_b32 s{s_kq}, s3, 1")
    a(f"s_lshr_b32 s{s_ct}, s{s_kq}, 1"); a(f"s_and_b32 s{s_jp}, s{s_kq}, 1")
    srd(a, SWO, P_WO, 512 * 512 * 2); srd(a, SWS, P_WS, WS_SIZE); srd(a, SX, P_X, 2048 * 512 * 2)
    dma_row_voff(a, 2, 5, 6, 1024)
    a("s_lshl_b32 s46, s3, 16"); a(f"s_lshl_b32 s47, s{s_cb}, 7"); a("s_add_u32 s46, s46, s47"); a("v_add_u32 v2, s46, v2")
    a("s_lshl_b32 s50, s3, 13")
    for i in range(8):
        a(f"s_mov_b32 s51, {i*8192}")
        dma(a, 2, SWO, 51, (50, i * 1024))
    a("v_lshlrev_b32 v1, 4, v0")
    a(f"s_lshl_b32 s46, s{s_tb}, 1"); a(f"s_add_u32 s58, s46, s{s_tt}")
    a("v_and_b32 v3, 31, v0"); a("s_lshl_b32 s46, s58, 5"); a("v_add_u32 v3, s46, v3"); a("v_lshlrev_b32 v3, 10, v3")
    a("v_lshrrev_b32 v5, 5, v0"); a("v_lshlrev_b32 v5, 3, v5"); a("v_add_u32 v3, v3, v5")
    a(f"s_lshl_b32 s46, s{s_cb}, 7"); a(f"s_lshl_b32 s47, s{s_kq}, 5"); a("s_add_u32 s46, s46, s47")
    a(f"buffer_load_dwordx2 {vr(XR,2)}, v3, s[{SX}:{SX+3}], s46 offen")
    a(f"buffer_load_dwordx2 {vr(XR+2,2)}, v3, s[{SX}:{SX+3}], s46 offen offset:16")
    if "dep" in hooks: hooks["dep"](a)
    a(f"s_lshl_b32 s46, s58, 5"); a(f"s_lshl_b32 s47, s{s_kq}, 3"); a("s_add_u32 s46, s46, s47"); a("s_lshl_b32 s46, s46, 10"); a(f"s_add_u32 s46, s46, {OF}")
    for i in range(8):
        if i == 4: a("s_add_u32 s46, s46, 4096")
        a(f"buffer_load_dwordx4 {vr(OFR+4*i,4)}, v1, s[{SWS}:{SWS+3}], s46 offen offset:{(i&3)*1024}{SC()}")
    tr_lane_addr(a, VA, 5, 6, 'perm')
    a(f"s_lshl_b32 s46, s{s_kq}, 14"); a(f"v_add_u32 v{VA}, s46, v{VA}"); a(f"v_xor_b32 v{VA+1}, 64, v{VA}")
    for i in range(32): a(f"v_mov_b32 v{ACC+i}, 0")
    a("s_waitcnt vmcnt(0)"); a("s_barrier")
    def rd(i):
        for ct in range(2):
            r = AF + 8 * (i & 1) + 4 * ct
            a(f"ds_read_b64_tr_b16 {vr(r,2)}, v{VA+ct} offset:{i*2048}")
            a(f"ds_read_b64_tr_b16 {vr(r+2,2)}, v{VA+ct} offset:{i*2048+1024}")
    rd(0)
    for i in range(8):
        if i < 7: rd(i + 1); a("s_waitcnt lgkmcnt(4)")
        else: a("s_waitcnt lgkmcnt(0)")
        for ct in range(2): mfma(a, ACC + 16 * ct, AF + 8 * (i & 1) + 4 * ct, OFR + 4 * i)
    a("s_nop 7"); a("s_nop 3")
    reduce_scatter(a, ACC, s_tt, s_kq, 5, 112, 65536)
    H = 8
    for j in range(4):
        a(f"v_lshlrev_b32 v{H+2*j}, 16, v{XR+j}"); a(f"v_and_b32 v{H+2*j+1}, 0xffff0000, v{XR+j}")
    for i in range(8): a(f"v_add_f32 v{H+i}, v{H+i}, v{ACC+i}")
    HP = 16
    for j in range(4): a(f"v_cvt_pk_bf16_f32 v{HP+j}, v{H+2*j}, v{H+2*j+1}")
    a(f"s_lshl_b32 s46, s58, 5"); a(f"s_lshl_b32 s47, s{s_cb}, 2"); a("s_add_u32 s46, s46, s47"); a(f"s_add_u32 s46, s46, s{s_kq}")
    a("s_lshl_b32 s46, s46, 10"); a(f"s_add_u32 s46, s46, {HF}")
    if cfg.persist:
        for j in range(4): a(f"v_mov_b32 v{V_HP+j}, v{HP+j}")
    else:
        a(f"buffer_store_dwordx4 {vr(HP,4)}, v1, s[{SWS}:{SWS+3}], s46 offen")
    for j in range(4):
        a(f"v_lshlrev_b32 v{H+2*j}, 16, v{HP+j}"); a(f"v_and_b32 v{H+2*j+1}, 0xffff0000, v{HP+j}")
    a(f"v_add_f32 v20, v{H}, v{H+1}"); a(f"v_mul_f32 v21, v{H}, v{H}"); a(f"v_fmac_f32 v21, v{H+1}, v{H+1}")
    for i in range(2, 8):
        a(f"v_add_f32 v20, v20, v{H+i}"); a(f"v_fmac_f32 v21, v{H+i}, v{H+i}")
    a("v_mov_b32 v22, v20"); a("v_mov_b32 v23, v21"); a("s_nop 1")
    a("v_permlane32_swap_b32 v20, v22"); a("v_permlane32_swap_b32 v21, v23"); a("s_nop 1")
    a("v_add_f32 v20, v20, v22"); a("v_add_f32 v21, v21, v23")
    ST = 131072
    a("v_and_b32 v5, 31, v0"); a(f"s_lshl_b32 s46, s{s_tt}, 5"); a("v_add_u32 v5, s46, v5"); a("v_lshlrev_b32 v24, 3, v5")
    a(f"s_lshl_b32 s46, s{s_kq}, 9"); a(f"s_add_u32 s46, s46, {ST}"); a("v_add_u32 v6, s46, v24")
    a("v_cmp_gt_u32 vcc, 32, v0"); a("s_and_saveexec_b64 s[52:53], vcc")
    a("ds_write_b64 v6, v[20:21]")
    a("s_mov_b64 exec, s[52:53]")
    a("s_waitcnt lgkmcnt(0)"); a("s_barrier")
    lx = a.uid("L_p3_x")
    a("s_cmp_lg_u32 s3, 0"); a(f"s_cbranch_scc1 {lx}")
    a("v_lshlrev_b32 v5, 3, v0"); a(f"v_add_u32 v6, {ST}, v5")
    for q in range(4): a(f"ds_read_b64 {vr(26+2*q,2)}, v6 offset:{q*512}")
    a("s_waitcnt lgkmcnt(0)")
    a("v_add_f32 v26, v26, v28"); a("v_add_f32 v27, v27, v29"); a("v_add_f32 v30, v30, v32"); a("v_add_f32 v31, v31, v33")
    a("v_add_f32 v26, v26, v30"); a("v_add_f32 v27, v27, v31")
    a("v_cmp_eq_u32 vcc, -1, v26"); a("v_mov_b32 v28, 0x7fc00000"); a("s_nop 0"); a("v_cndmask_b32 v26, v26, v28, vcc")
    a("v_cmp_eq_u32 vcc, -1, v27"); a("s_nop 1"); a("v_cndmask_b32 v27, v27, v28, vcc")
    a(f"s_lshl_b32 s46, s{s_tb}, 12"); a(f"s_add_u32 s46, s46, {XCH}"); a(f"s_lshl_b32 s47, s{s_cb}, 9"); a("s_add_u32 s47, s47, s46")
    a(f"buffer_store_dwordx2 v[26:27], v5, s[{SWS}:{SWS+3}], s47 offen sc1")
    lp, lpd = a.uid("L_p3_poll"), a.uid("L_p3_pd")
    a("s_mov_b32 s48, 0")
    a.label(lp)
    for q in range(8): a(f"buffer_load_dwordx2 {vr(32+2*q,2)}, v5, s[{SWS}:{SWS+3}], s46 offen offset:{q*512} sc1")
    a("s_waitcnt vmcnt(0)")
    a("v_cmp_eq_u32 vcc, -1, v32")
    for q in range(1, 16):
        a(f"v_cmp_eq_u32 s[52:53], -1, v{32+q}"); a("s_or_b64 vcc, vcc, s[52:53]")
    a(f"s_cbranch_vccz {lpd}")
    a("s_add_u32 s48, s48, 1"); a("s_cmp_lt_u32 s48, 0x100000"); a(f"s_cbranch_scc1 {lp}")
    a.label(lpd)
    for q in range(1, 8):
        a(f"v_add_f32 v32, v32, v{32+2*q}"); a(f"v_add_f32 v33, v33, v{33+2*q}")
    a("v_mul_f32 v32, 0x3b000000, v32"); a("v_mul_f32 v33, 0x3b000000, v33")
    a("v_fma_f32 v33, -v32, v32, v33"); a("v_max_f32 v33, 0, v33")
    a("v_add_f32 v34, 0x3727c5ac, v33"); a("v_rsq_f32 v35, v34")
    a("s_nop 0")
    a("v_mul_f32 v36, v35, v35"); a("v_mul_f32 v36, v36, v33")
    a("v_add_f32 v36, 0x3727c5ac, v36"); a("v_rsq_f32 v36, v36")
    a("s_nop 0")
    a("v_mul_f32 v34, v35, v36"); a("v_mul_f32 v35, v32, v34"); a("v_sub_f32 v35, 0, v35")
    a(f"v_add_u32 v6, {ST + 2048}, v5")
    a("ds_write_b64 v6, v[34:35]")
    a("s_waitcnt lgkmcnt(0)")
    a.label(lx)
    a("s_barrier")
    a(f"v_add_u32 v6, {ST + 2048}, v24")
    a("ds_read_b64 v[20:21], v6")
    a("s_waitcnt lgkmcnt(0)")
    for i in range(8): a(f"v_fma_f32 v{H+i}, v{H+i}, v20, v21")
    for j in range(4): a(f"v_cvt_pk_bf16_f32 v{HP+j}, v{H+2*j}, v{H+2*j+1}")
    a("v_lshrrev_b32 v5, 3, v24")
    a("v_bfe_u32 v6, v5, 1, 1"); a("v_lshlrev_b32 v6, 2, v6")
    a(f"s_lshl_b32 s46, s{s_kq}, 1"); a("v_xor_b32 v6, s46, v6")
    a("v_lshlrev_b32 v6, 4, v6"); a("v_lshlrev_b32 v5, 7, v5"); a("v_add_u32 v5, v5, v6")
    a("v_lshrrev_b32 v6, 5, v0"); a("v_lshlrev_b32 v6, 3, v6"); a("v_add_u32 v5, v5, v6")
    a(f"ds_write_b64 v5, {vr(HP,2)}"); a(f"ds_write_b64 v5, {vr(HP+2,2)} offset:16")
    a(f"s_lshl_b32 s46, s{s_tt}, 2")
    tr_lane_addr(a, 7, 5, 6, 'perm', colunit_sreg=46)
    a(f"s_lshl_b32 s46, s{s_kq}, 11"); a("v_add_u32 v7, s46, v7")
    a("s_waitcnt lgkmcnt(0)"); a("s_barrier")
    a("ds_read_b64_tr_b16 v[24:25], v7"); a("ds_read_b64_tr_b16 v[26:27], v7 offset:1024")
    a(f"s_lshl_b32 s46, s{s_cb}, 1"); a(f"s_add_u32 s46, s46, s{s_tt}"); a("s_lshl_b32 s46, s46, 7")
    a(f"s_lshl_b32 s47, s{s_tb}, 2"); a("s_add_u32 s46, s46, s47"); a(f"s_add_u32 s46, s46, s{s_kq}")
    a("s_lshl_b32 s46, s46, 10"); a(f"s_add_u32 s46, s46, {LF}")
    a("s_waitcnt lgkmcnt(0)")
    a(f"buffer_store_dwordx4 v[24:27], v1, s[{SWS}:{SWS+3}], s46 offen{SC()}")

def big_gemm(a, nst, act_base_sregs, SWS, SW, VWD, w_stage_stride, s_sub, s_kq, act_is_B, ACC, dep=None):
    VL, VT, AF, WF = 4, 6, 96, 112
    a("v_lshlrev_b32 v1, 4, v0")
    a("s_lshl_b32 s50, s3, 11")
    a("s_lshl_b32 s51, s3, 11"); a("s_add_u32 s51, s51, 16384")
    def issue_act(s):
        slot = (s & 3) * 32768
        for dt in range(2):
            a(f"s_add_u32 s52, s{act_base_sregs[dt]}, {s*8192}")
            dma(a, 1, SWS, 52, (50, slot + dt * 1024), flags=SC())
    def issue_w(s):
        slot = (s & 3) * 32768
        for i in range(2):
            a(f"s_mov_b32 s52, {s*w_stage_stride + i*(w_stage_stride//16)}")
            dma(a, VWD, SW, 52, (51, slot + i * 1024))
    def issue(s): issue_act(s); issue_w(s)
    for s in range(4): issue_w(s)
    if dep: dep(a)
    for s in range(4): issue_act(s)
    a(f"s_lshl_b32 s46, s{s_kq}, 12"); a(f"v_add_u32 v{VL}, s46, v1"); a(f"v_add_u32 v{VL+1}, 0x10000, v{VL}")
    a(f"s_lshl_b32 s46, s{s_sub}, 2")
    tr_lane_addr(a, VT, 2, 3, 'perm', colunit_sreg=46)
    a(f"s_lshl_b32 s46, s{s_kq}, 12"); a("s_add_u32 s46, s46, 16384")
    a(f"v_add_u32 v{VT}, s46, v{VT}"); a(f"v_add_u32 v{VT+1}, 0x10000, v{VT}")
    for i in range(32): a(f"v_mov_b32 v{ACC+i}, 0")
    def reads(n):
        s, k = n >> 1, n & 1
        slot = s & 3; hi = slot >> 1; off = (slot & 1) * 32768
        par = n & 1
        for dt in range(2):
            a(f"ds_read_b128 {vr(AF + 8*par + 4*dt, 4)}, v{VL+hi} offset:{off + k*2048 + dt*1024}")
        a(f"ds_read_b64_tr_b16 {vr(WF + 4*par, 2)}, v{VT+hi} offset:{off + k*2048}")
        a(f"ds_read_b64_tr_b16 {vr(WF + 4*par + 2, 2)}, v{VT+hi} offset:{off + k*2048 + 1024}")
    a("s_waitcnt vmcnt(6)"); a("s_barrier")
    reads(0)
    N = 2 * nst
    for n in range(N):
        s, k = n >> 1, n & 1
        if k == 1 and s < nst - 1:
            if s <= 2: vm = {0: 4, 1: 2, 2: 4}[s]
            else: vm = 4 * (min(nst - 1, s + 2) - (s + 1))
            a(f"s_waitcnt vmcnt({vm})"); a("s_barrier")
            if s >= 1 and s + 3 < nst: issue(s + 3)
        if n < N - 1:
            reads(n + 1); a("s_waitcnt lgkmcnt(4)")
        else:
            a("s_waitcnt lgkmcnt(0)")
        par = n & 1
        for dt in range(2):
            if act_is_B: mfma(a, ACC + 16 * dt, WF + 4 * par, AF + 8 * par + 4 * dt)
            else: mfma(a, ACC + 16 * dt, AF + 8 * par + 4 * dt, WF + 4 * par)
    a("s_nop 7"); a("s_nop 3")

P45_LDS = 131072
def phase4(a, hooks=None):
    hooks = hooks or {}
    s_db, s_fb, s_ft, s_kq = 26, 27, 44, 45
    SW, SWS, SB = 28, 36, 32
    ACC = 64
    a("s_and_b32 s46, s2, 7"); a("s_lshr_b32 s47, s2, 3")
    a("s_and_b32 s48, s46, 1"); a("s_lshl_b32 s48, s48, 2"); a("s_and_b32 s49, s47, 3"); a(f"s_add_u32 s{s_db}, s48, s49")
    a("s_lshr_b32 s48, s46, 1"); a("s_mul_i32 s48, s48, 7"); a("s_lshr_b32 s49, s47, 2"); a(f"s_add_u32 s{s_fb}, s48, s49")
    a(f"s_and_b32 s{s_ft}, s3, 1"); a(f"s_lshr_b32 s{s_kq}, s3, 1")
    srd(a, SW, P_W1, 2048 * 1792 * 2); srd(a, SWS, P_WS, WS_SIZE); srd(a, SB, P_B1, 1792 * 2)
    dma_row_voff(a, 10, 2, 3, 3584)
    a("s_mul_i32 s46, s3, %d" % (16 * 3584)); a(f"s_lshl_b32 s47, s{s_fb}, 7"); a("s_add_u32 s46, s46, s47"); a("v_add_u32 v10, s46, v10")
    a(f"s_lshl_b32 s46, s{s_db}, 18"); a("s_lshl_b32 s47, s3, 10"); a("s_add_u32 s46, s46, s47")
    a(f"s_add_u32 s54, s46, {LF}"); a(f"s_add_u32 s55, s46, {LF + 128*1024}")
    a(f"s_lshl_b32 s46, s{s_fb}, 7"); a(f"s_lshl_b32 s47, s{s_ft}, 6"); a("s_add_u32 s46, s46, s47")
    a(f"s_and_b32 s47, s{s_kq}, 1"); a("s_lshl_b32 s47, s47, 5"); a("s_add_u32 s46, s46, s47")
    a("v_lshrrev_b32 v2, 5, v0"); a("v_lshlrev_b32 v2, 3, v2")
    a(f"buffer_load_dwordx2 v[12:13], v2, s[{SB}:{SB+3}], s46 offen"); a(f"buffer_load_dwordx2 v[14:15], v2, s[{SB}:{SB+3}], s46 offen offset:16")
    big_gemm(a, 16, (54, 55), SWS, SW, 10, 128 * 3584, s_ft, s_kq, True, ACC, hooks.get("dep"))
    reduce_scatter(a, ACC, s_ft, s_kq, 5, 112, 0)
    for j in range(4):
        a(f"v_lshlrev_b32 v{16+2*j}, 16, v{12+j}"); a(f"v_and_b32 v{17+2*j}, 0xffff0000, v{12+j}")
    for i in range(8): a(f"v_add_f32 v{ACC+i}, v{ACC+i}, v{16+i}")
    a("s_mov_b32 s46, 0xc0135761")
    a("s_mov_b32 s47, 0xbdd2d3e8")
    a("v_mov_b32 v24, s46")
    for i in range(8): a(f"v_mul_f32 v{16+i}, v{ACC+i}, v{ACC+i}")
    for i in range(8): a(f"v_fma_f32 v{16+i}, v{16+i}, s47, v24")
    for i in range(8): a(f"v_mul_f32 v{16+i}, v{16+i}, v{ACC+i}")
    for i in range(8): a(f"v_exp_f32 v{16+i}, v{16+i}")
    for i in range(8): a(f"v_add_f32 v{16+i}, 1.0, v{16+i}")
    for i in range(8): a(f"v_rcp_f32 v{16+i}, v{16+i}")
    for i in range(8): a(f"v_mul_f32 v{16+i}, v{16+i}, v{ACC+i}")
    for j in range(4): a(f"v_cvt_pk_bf16_f32 v{28+j}, v{16+2*j}, v{17+2*j}")
    a(f"s_lshl_b32 s46, s{s_db}, 1"); a(f"s_lshr_b32 s47, s{s_kq}, 1"); a("s_add_u32 s46, s46, s47"); a("s_mul_i32 s46, s46, 112")
    a(f"s_lshl_b32 s47, s{s_fb}, 2"); a("s_add_u32 s46, s46, s47"); a(f"s_lshl_b32 s47, s{s_ft}, 1"); a("s_add_u32 s46, s46, s47")
    a(f"s_and_b32 s47, s{s_kq}, 1"); a("s_add_u32 s46, s46, s47"); a("s_lshl_b32 s46, s46, 10"); a(f"s_add_u32 s46, s46, {UF}")
    a(f"buffer_store_dwordx4 v[28:31], v1, s[{SWS}:{SWS+3}], s46 offen{SC()}")

def phase5(a, hooks=None):
    hooks = hooks or {}
    s_db, s_sb, s_st, s_kq = 26, 27, 44, 45
    SW, SWS, SB, SO = 28, 36, 32, 40
    ACC = 64
    a("; ---- P5: out = h + (u w2 + b2)^T")
    a("s_and_b32 s46, s2, 7"); a("s_lshr_b32 s47, s2, 3")
    a("s_lshl_b32 s48, s46, 2"); a("s_lshr_b32 s49, s47, 3"); a(f"s_add_u32 s{s_sb}, s48, s49"); a(f"s_and_b32 s{s_db}, s47, 7")
    a(f"s_and_b32 s{s_st}, s3, 1"); a(f"s_lshr_b32 s{s_kq}, s3, 1")
    srd(a, SW, P_W2, 1792 * 2048 * 2); srd(a, SWS, P_WS, WS_SIZE); srd(a, SB, P_B2, 2048 * 2); srd(a, SO, P_OUT, 2048 * 512 * 2)
    dma_row_voff(a, 10, 2, 3, 4096)
    a("s_lshl_b32 s46, s3, 16"); a(f"s_lshl_b32 s47, s{s_sb}, 7"); a("s_add_u32 s46, s46, s47"); a("v_add_u32 v10, s46, v10")
    a(f"s_mul_i32 s46, s{s_db}, {2*112*1024}"); a("s_lshl_b32 s47, s3, 10"); a("s_add_u32 s46, s46, s47")
    a(f"s_add_u32 s54, s46, {UF}"); a(f"s_add_u32 s55, s46, {UF + 112*1024}")
    a(f"s_lshl_b32 s46, s{s_sb}, 1"); a(f"s_add_u32 s58, s46, s{s_st}")
    a("v_and_b32 v2, 31, v0"); a("s_lshl_b32 s46, s58, 5"); a("v_add_u32 v11, s46, v2")
    a("v_lshlrev_b32 v2, 1, v11")
    a(f"buffer_load_ushort v12, v2, s[{SB}:{SB+3}], 0 offen")
    a("s_lshl_b32 s46, s58, 5"); a(f"s_lshl_b32 s47, s{s_db}, 2"); a("s_add_u32 s46, s46, s47"); a(f"s_add_u32 s46, s46, s{s_kq}")
    a("s_lshl_b32 s46, s46, 10"); a(f"s_add_u32 s46, s46, {HF}")
    a("v_lshlrev_b32 v2, 4, v0")
    if cfg.persist:
        for j in range(4): a(f"v_mov_b32 v{16+j}, v{V_HP+j}")
    else:
        a(f"buffer_load_dwordx4 v[16:19], v2, s[{SWS}:{SWS+3}], s46 offen")
    big_gemm(a, 14, (54, 55), SWS, SW, 10, 128 * 4096, s_st, s_kq, False, ACC, hooks.get("dep"))
    reduce_scatter(a, ACC, s_st, s_kq, 5, 112, 0)
    a("v_lshlrev_b32 v12, 16, v12")
    for j in range(4):
        a(f"v_lshlrev_b32 v{20+2*j}, 16, v{16+j}"); a(f"v_and_b32 v{21+2*j}, 0xffff0000, v{16+j}")
    for i in range(8): a(f"v_add_f32 v{ACC+i}, v{ACC+i}, v12")
    for i in range(8): a(f"v_add_f32 v{ACC+i}, v{ACC+i}, v{20+i}")
    for j in range(4): a(f"v_cvt_pk_bf16_f32 v{28+j}, v{ACC+2*j}, v{ACC+2*j+1}")
    a("s_nop 1")
    a("v_permlane32_swap_b32 v28, v30"); a("v_permlane32_swap_b32 v29, v31")
    a("v_lshlrev_b32 v11, 10, v11"); a("v_lshrrev_b32 v2, 5, v0"); a("v_lshlrev_b32 v2, 4, v2"); a("v_add_u32 v11, v11, v2")
    a(f"s_lshl_b32 s46, s{s_db}, 7"); a(f"s_lshl_b32 s47, s{s_kq}, 5"); a("s_add_u32 s46, s46, s47")
    a(f"buffer_store_dwordx4 v[28:31], v11, s[{SO}:{SO+3}], s46 offen")
```

```python
import sys
from asmlib import *
import phases
from phases import *
import gen_persist as gp
from gen_persist import opt, stamp, SB_WS, STAMP0, HEADER, KNAME, NAME

S_OFA, S_LFA, S_UFA, S_FB128, S_STU = 96, 97, 98, 99, 100
WREG = 128
HP = 4
STG = 131072

def map_addresses(a):
    a("s_and_b32 s46, s2, 7"); a("s_lshr_b32 s47, s2, 3")
    a("s_lshl_b32 s48, s46, 2"); a("s_lshr_b32 s49, s47, 3"); a("s_add_u32 s48, s48, s49")
    a("s_and_b32 s49, s47, 7")
    a("s_lshl_b32 s50, s49, 3"); a("s_add_u32 s50, s50, s3"); a("s_lshl_b32 s50, s50, 5"); a("s_add_u32 s50, s50, s48")
    a("s_lshl_b32 s50, s50, 10"); a(f"s_add_u32 s{S_OFA}, s50, {OF}")
    a("s_lshl_b32 s50, s49, 1"); a("s_and_b32 s51, s3, 1"); a("s_add_u32 s50, s50, s51"); a("s_lshl_b32 s50, s50, 7")
    a("s_lshl_b32 s51, s48, 2"); a("s_add_u32 s50, s50, s51"); a("s_lshr_b32 s51, s3, 1"); a("s_add_u32 s50, s50, s51")
    a("s_lshl_b32 s50, s50, 10"); a(f"s_add_u32 s{S_LFA}, s50, {LF}")
    a("s_and_b32 s50, s46, 1"); a("s_lshl_b32 s50, s50, 2"); a("s_and_b32 s51, s47, 3"); a("s_add_u32 s50, s50, s51")
    a("s_lshr_b32 s51, s46, 1"); a("s_mul_i32 s51, s51, 7"); a("s_lshr_b32 s52, s47, 2"); a("s_min_u32 s52, s52, 6"); a("s_add_u32 s51, s51, s52")
    a(f"s_lshl_b32 s{S_FB128}, s51, 7")
    a("s_cmp_lt_u32 s47, 28"); a(f"s_cselect_b32 s{S_STU}, 1, 0")
    a("s_lshl_b32 s50, s50, 1"); a("s_lshr_b32 s52, s3, 2"); a("s_add_u32 s50, s50, s52"); a("s_mul_i32 s50, s50, 112")
    a("s_lshl_b32 s51, s51, 2"); a("s_add_u32 s50, s50, s51")
    a("s_and_b32 s51, s3, 1"); a("s_lshl_b32 s51, s51, 1"); a("s_add_u32 s50, s50, s51"); a("s_bfe_u32 s51, s3, 0x10001"); a("s_add_u32 s50, s50, s51")
    a("s_lshl_b32 s50, s50, 10"); a(f"s_add_u32 s{S_UFA}, s50, {UF}")

def markers(a):
    if opt.exp == "nomark": return 0
    for i in range(4): a(f"v_mov_b32 v{120+i}, -1")
    a("v_mov_b32 v124, v1")
    for s in (S_OFA, S_LFA):
        a(f"buffer_store_dwordx4 v[120:123], v124, s[{SB_WS}:{SB_WS+3}], s{s} offen sc1")
    a(f"s_cmp_eq_u32 s{S_STU}, 0"); a(f"s_cselect_b32 s60, s{S_LFA}, s{S_UFA}")
    a(f"buffer_store_dwordx4 v[120:123], v124, s[{SB_WS}:{SB_WS+3}], s60 offen sc1")
    a("s_lshl_b32 s60, s2, 9"); a("s_lshl_b32 s61, s3, 6"); a("s_add_u32 s60, s60, s61"); a(f"s_add_u32 s60, s60, {XCH}")
    a("v_cmp_gt_u32 vcc, 4, v0"); a("s_and_saveexec_b64 s[62:63], vcc")
    a(f"buffer_store_dwordx4 v[120:123], v124, s[{SB_WS}:{SB_WS+3}], s60 offen sc1")
    a("s_mov_b64 exec, s[62:63]")
    return 4

def markers_p1(a):
    a("v_lshlrev_b32 v1, 4, v0")
    return markers(a)

def zero_flag_load(a):
    l = a.uid("L_zf")
    a("s_cmp_lg_u32 s3, 0"); a(f"s_cbranch_scc1 {l}")
    a("buffer_load_dword v247, v248, s[76:79], 0 offen sc1")
    a.label(l)

def zero_flag_store(a):
    l = a.uid("L_zs")
    a("s_cmp_lg_u32 s2, 0"); a(f"s_cbranch_scc1 {l}"); a("s_cmp_lg_u32 s3, 7"); a(f"s_cbranch_scc1 {l}")
    a("v_mov_b32 v126, 1")
    a("v_cmp_eq_u32 vcc, 0, v0"); a("s_and_saveexec_b64 s[62:63], vcc")
    a("buffer_store_dword v126, v248, s[76:79], 0 offen sc1")
    a("s_mov_b64 exec, s[62:63]")
    a.label(l)

def wait_all_groups(k, target, st):
    def dep(a):
        l, lp = a.uid("L_wait"), a.uid("L_poll")
        a("s_cmp_lg_u32 s3, 0"); a(f"s_cbranch_scc1 {l}")
        a(f"s_mov_b32 s60, {CNT + k*2048}"); a("v_lshlrev_b32 v251, 8, v0"); a("s_mov_b32 s61, 0")
        a("v_cmp_gt_u32 vcc, 8, v0"); a("s_and_saveexec_b64 s[62:63], vcc")
        a.label(lp)
        a(f"buffer_load_dword v250, v251, s[{SB_WS}:{SB_WS+3}], s60 offen sc1")
        a("s_add_u32 s61, s61, 1")
        a("s_waitcnt vmcnt(0)")
        a(f"v_cmp_gt_u32 vcc, {target}, v250")
        lx = a.uid("L_wx")
        a(f"s_cbranch_vccz {lx}")
        a("s_cmp_lt_u32 s61, 0x200000"); a(f"s_cbranch_scc1 {lp}")
        a.label(lx)
        a("s_mov_b64 exec, s[62:63]")
        a.label(l)
        a("s_barrier")
        stamp(a, st)
    return dep

def late_check(a):
    l, lp = a.uid("L_lck"), a.uid("L_lcp")
    a("s_cmp_lg_u32 s3, 0"); a(f"s_cbranch_scc1 {l}")
    a("v_cmp_gt_u32 vcc, 32, v113")
    a(f"s_cbranch_vccz {l}")
    a("s_mov_b32 s61, 0"); a(f"s_mov_b32 s60, {CNT + (0 if opt.exp == 'mk_p1' else 2048)}")
    a.label(lp)
    a(f"buffer_load_dword v113, v112, s[{SB_WS}:{SB_WS+3}], s60 offen sc1")
    a("s_add_u32 s61, s61, 1")
    a("s_waitcnt vmcnt(0)")
    a("v_cmp_gt_u32 vcc, 32, v113")
    a(f"s_cbranch_vccz {l}")
    a("s_cmp_lt_u32 s61, 0x200000"); a(f"s_cbranch_scc1 {lp}")
    a.label(l)
    a("s_barrier")

def tag_check(a, regs_, lfail):
    a(f"v_cmp_eq_u32 vcc, -1, v{regs_[0]}")
    for r in regs_[1:]:
        a(f"v_cmp_eq_u32 s[62:63], -1, v{r}"); a("s_or_b64 vcc, vcc, s[62:63]")
    a(f"s_cbranch_vccnz {lfail}")

class W1Pref:
    VD, VT = 92, 93
    def setup(self, a):
        srd(a, 28, P_W1, 2048 * 1792 * 2); srd(a, 32, P_W2, 1792 * 2048 * 2); srd(a, 40, P_WO, 512 * 512 * 2)
        a("v_and_b32 v112, 7, v0"); a("v_lshlrev_b32 v112, 8, v112"); a("v_mov_b32 v113, 0")
        dma_row_voff(a, self.VD, 2, 3, 3584)
        a(f"s_mul_i32 s60, s3, {256*3584}"); a(f"s_add_u32 s60, s60, s{S_FB128}"); a(f"v_add_u32 v{self.VD}, s60, v{self.VD}")
        tr_lane_addr(a, self.VT, 2, 3, 'perm')
        a("s_lshl_b32 s59, s3, 12"); a(f"s_add_u32 s59, s59, {STG}")
        a(f"v_add_u32 v{self.VT}, s59, v{self.VT}"); a(f"v_xor_b32 v{self.VT+1}, 64, v{self.VT}")
        a("s_and_b32 s60, s2, 7"); a("s_lshr_b32 s61, s2, 3")
        dma_row_voff(a, 95, 2, 3, 1024)
        a("s_and_b32 s62, s61, 7"); a("s_lshl_b32 s62, s62, 7"); a("s_lshl_b32 s63, s3, 16"); a("s_add_u32 s62, s62, s63"); a("v_add_u32 v95, s62, v95")
        a("s_and_b32 s62, s3, 3"); a("s_lshl_b32 s62, s62, 13"); a("s_lshr_b32 s63, s3, 2"); a("s_lshl_b32 s63, s63, 16"); a("s_add_u32 s53, s62, s63")
        a("s_and_b32 s62, s61, 3"); a("s_lshl_b32 s62, s62, 6"); a("s_lshl_b32 s63, s3, 8"); a("s_add_u32 s62, s62, s63")
        a("v_add_u32 v116, s62, v0"); a("s_movk_i32 s63, 3584"); a("v_mul_lo_u32 v116, v116, s63"); a(f"v_add_u32 v116, s{S_FB128}, v116")
        a("s_lshl_b32 s62, s60, 2"); a("s_lshr_b32 s63, s61, 3"); a("s_add_u32 s62, s62, s63"); a("s_lshl_b32 s62, s62, 7")
        a("s_and_b32 s63, s61, 7"); a("s_mul_i32 s63, s63, 224"); a("s_mul_i32 s64, s3, 28"); a("s_add_u32 s63, s63, s64")
        a("v_min_u32 v96, 27, v0"); a("v_add_u32 v96, s63, v96"); a("v_lshlrev_b32 v96, 12, v96"); a("v_add_u32 v96, s62, v96")
    def tile(self, vq):
        def f(a, t):
            if t % 8 == 0:
                c = t // 8
                for j in range(4):
                    dma(a, self.VD, 28, 60, (59, j * 1024), pre=f"s_mov_b32 s60, {(32*c + 8*j)*3584}")
                vq.issue(f"w1_{c}", 4)
            if t % 8 == 7:
                c = t // 8
                vq.wait(a, f"w1_{c}")
                for kk in range(2):
                    for ft in range(2):
                        r = WREG + (2 * c + kk) * 8 + 4 * ft
                        a(f"ds_read_b64_tr_b16 {vr(r,2)}, v{self.VT+ft} offset:{kk*2048}")
                        a(f"ds_read_b64_tr_b16 {vr(r+2,2)}, v{self.VT+ft} offset:{kk*2048+1024}")
            if t in (45, 46):
                for i in range(4 * (t - 45), 4 * (t - 45) + 4):
                    dma(a, 95, 40, 60, (53, i * 1024), pre=f"s_mov_b32 s60, {i*8192}")
                vq.issue("wo", 4)
            MK = opt.exp == "mk_p1"
            if t == 1 and not MK:
                vq.issue("markers", markers(a))
            if t == 28 and not MK:
                l = a.uid("L_ma")
                a("s_cmp_lg_u32 s3, 0"); a(f"s_cbranch_scc1 {l}")
                a("s_and_b32 s60, s2, 7"); a("s_lshl_b32 s60, s60, 8"); a(f"s_add_u32 s60, s60, {CNT + 2048}")
                a("v_mov_b32 v114, 1"); a("v_mov_b32 v115, 0")
                a("v_cmp_eq_u32 vcc, 0, v0"); a("s_and_saveexec_b64 s[62:63], vcc")
                a(f"buffer_atomic_add v114, v115, s[{SB_WS}:{SB_WS+3}], s60 offen")
                a("s_mov_b64 exec, s[62:63]")
                a.label(l)
            if t == 52:
                l = a.uid("L_lc")
                a("s_cmp_lg_u32 s3, 0"); a(f"s_cbranch_scc1 {l}")
                a(f"s_mov_b32 s60, {CNT + (0 if MK else 2048)}")
                a(f"buffer_load_dword v113, v112, s[{SB_WS}:{SB_WS+3}], s60 offen sc1")
                a.label(l)
                vq.issue("maybe", 0)
            if opt.touch and t == 3 and opt.exp == "btouch":
                srd(a, 44, P_B1, 1792 * 2); a("v_lshlrev_b32 v117, 7, v0")
                a("buffer_load_dword v97, v117, s[44:47], 0 offen"); vq.issue("touch")
                srd(a, 44, P_B2, 2048 * 2)
                a("buffer_load_dword v97, v117, s[44:47], 0 offen"); vq.issue("touch")
            if opt.touch and t == 2 and opt.exp == "w1touch":
                a("buffer_load_dword v97, v116, s[28:31], 0 offen"); vq.issue("touch")
            if opt.touch:
                if t == 27:
                    a("buffer_load_dword v97, v96, s[32:35], 0 offen"); vq.issue("touch")
        return f

class W2Stage:
    VD, VP, SRD, SE, SX_, SM = 60, 61, 28, 59, 55, 57
    def __init__(self): self.vq = None
    def setup(self, a):
        srd(a, self.SRD, P_W2, 1792 * 2048 * 2)
        dma_row_voff(a, self.VD, 2, 3, 4096)
        a("s_and_b32 s60, s2, 7"); a("s_lshr_b32 s61, s2, 3")
        a("s_lshl_b32 s60, s60, 2"); a("s_lshr_b32 s61, s61, 3"); a("s_add_u32 s60, s60, s61"); a("s_lshl_b32 s60, s60, 7")
        a(f"s_mul_i32 s61, s3, {224*4096}"); a("s_add_u32 s60, s60, s61"); a(f"v_add_u32 v{self.VD}, s60, v{self.VD}")
        a(f"s_lshl_b32 s{self.SE}, s3, 13"); a(f"s_add_u32 s{self.SE}, s{self.SE}, 98304")
        a(f"s_lshl_b32 s{self.SX_}, s3, 11"); a(f"s_add_u32 s{self.SX_}, s{self.SX_}, 49152")
        a("s_and_b32 s60, s3, 3"); a("s_lshl_b32 s60, s60, 13"); a("s_lshr_b32 s61, s3, 2"); a("s_lshl_b32 s61, s61, 16"); a(f"s_add_u32 s{self.SM}, s60, s61")
        tr_lane_addr(a, self.VP, 2, 3, 'perm')
        a(f"v_xor_b32 v{self.VP+1}, 64, v{self.VP}")
    def slot(self, j):
        k = j if j < 9 else j - 9
        if k < 4: return self.SE, k * 2048
        if k == 4: return self.SX_, 0
        return self.SM, (k - 5) * 2048
    def dma(self, a, j):
        sreg, off = self.slot(j)
        for i in range(2):
            dma(a, self.VD, self.SRD, 60, (sreg, off + i * 1024), pre=f"s_mov_b32 s60, {(16*j + 8*i)*4096}")
        if self.vq is not None: self.vq.issue(f"w2_{j}", 2)
    def read(self, a, j, dst=None):
        sreg, off = self.slot(j)
        dst = WREG + 8 * j if dst is None else dst
        for st in range(2):
            a(f"v_add_u32 v{2+st}, s{sreg}, v{self.VP+st}")
        for st in range(2):
            r = dst + 4 * st
            a(f"ds_read_b64_tr_b16 {vr(r,2)}, v{2+st} offset:{off}")
            a(f"ds_read_b64_tr_b16 {vr(r+2,2)}, v{2+st} offset:{off+1024}")

def phase3v2(a, w2):
    s_tb, s_cb, s_tt, s_kq = 26, 27, 44, 45
    SWO, SWS, SX = 28, 36, 32
    OFR, XR, ACC, AF, VA = 8, 40, 64, 96, 44
    a("s_and_b32 s46, s2, 7"); a("s_lshr_b32 s47, s2, 3")
    a("s_lshl_b32 s48, s46, 2"); a("s_lshr_b32 s49, s47, 3"); a(f"s_add_u32 s{s_tb}, s48, s49"); a(f"s_and_b32 s{s_cb}, s47, 7")
    a(f"s_and_b32 s{s_tt}, s3, 1"); a(f"s_lshr_b32 s{s_kq}, s3, 1")
    srd(a, SWO, P_WO, 512 * 512 * 2); srd(a, SWS, P_WS, WS_SIZE); srd(a, SX, P_X, 2048 * 512 * 2)
    a(f"s_lshl_b32 s46, s{s_tb}, 1"); a(f"s_add_u32 s58, s46, s{s_tt}")
    a(f"s_lshl_b32 s46, s58, 5"); a(f"s_lshl_b32 s47, s{s_kq}, 3"); a("s_add_u32 s46, s46, s47"); a("s_lshl_b32 s46, s46, 10"); a(f"s_add_u32 s50, s46, {OF}")
    a("s_add_u32 s51, s50, 4096")
    def oloads():
        for i in range(8):
            a(f"buffer_load_dwordx4 {vr(OFR+4*i,4)}, v1, s[{SWS}:{SWS+3}], s{50 + (i >> 2)} offen offset:{(i&3)*1024} sc1")
    a("v_lshlrev_b32 v46, 10, v0"); a("v_add_u32 v46, 1008, v46"); a("s_mov_b32 s48, 0")
    a("v_cmp_gt_u32 vcc, 8, v0"); a("s_and_saveexec_b64 s[52:53], vcc")
    lp, lx_ = a.uid("L_o_probe"), a.uid("L_o_px")
    a.label(lp)
    a(f"buffer_load_dword v47, v46, s[{SWS}:{SWS+3}], s50 offen sc1")
    a("s_add_u32 s48, s48, 1")
    a("s_waitcnt vmcnt(0)")
    a("v_cmp_eq_u32 vcc, -1, v47")
    a(f"s_cbranch_vccz {lx_}")
    a("s_cmp_lt_u32 s48, 0x100000"); a(f"s_cbranch_scc1 {lp}")
    a.label(lx_)
    a("s_mov_b64 exec, s[52:53]")
    oloads()
    a("v_and_b32 v3, 31, v0"); a("s_lshl_b32 s46, s58, 5"); a("v_add_u32 v3, s46, v3"); a("v_lshlrev_b32 v3, 10, v3")
    a("v_lshrrev_b32 v46, 5, v0"); a("v_lshlrev_b32 v46, 3, v46"); a("v_add_u32 v3, v3, v46")
    a(f"s_lshl_b32 s46, s{s_cb}, 7"); a(f"s_lshl_b32 s47, s{s_kq}, 5"); a("s_add_u32 s46, s46, s47")
    a(f"buffer_load_dwordx2 {vr(XR,2)}, v3, s[{SX}:{SX+3}], s46 offen")
    a(f"buffer_load_dwordx2 {vr(XR+2,2)}, v3, s[{SX}:{SX+3}], s46 offen offset:16")
    tr_lane_addr(a, VA, 46, 47, 'perm')
    a(f"s_and_b32 s46, s{s_kq}, 1"); a("s_lshl_b32 s46, s46, 14"); a(f"s_lshr_b32 s47, s{s_kq}, 1"); a("s_lshl_b32 s47, s47, 16"); a("s_add_u32 s46, s46, s47")
    a(f"v_add_u32 v{VA}, s46, v{VA}"); a(f"v_xor_b32 v{VA+1}, 64, v{VA}")
    for i in range(32): a(f"v_mov_b32 v{ACC+i}, 0")
    a("s_waitcnt lgkmcnt(0)"); a("s_barrier")
    w2.setup(a)
    def rd(i):
        for ct in range(2):
            r = AF + 8 * (i & 3) + 4 * ct
            a(f"ds_read_b64_tr_b16 {vr(r,2)}, v{VA+ct} offset:{i*2048}")
            a(f"ds_read_b64_tr_b16 {vr(r+2,2)}, v{VA+ct} offset:{i*2048+1024}")
    for i in range(3): rd(i)
    for j in range(5): w2.dma(a, j)
    a("s_waitcnt vmcnt(10)")
    def biases():
        srd(a, 40, P_B1, 1792 * 2)
        a("s_and_b32 s46, s3, 1"); a("s_lshl_b32 s46, s46, 6"); a("s_bfe_u32 s47, s3, 0x10001"); a("s_lshl_b32 s47, s47, 5")
        a("s_add_u32 s46, s46, s47"); a(f"s_add_u32 s46, s46, s{S_FB128}")
        a("v_lshrrev_b32 v2, 5, v0"); a("v_lshlrev_b32 v2, 3, v2")
        a("buffer_load_dwordx2 v[56:57], v2, s[40:43], s46 offen"); a("buffer_load_dwordx2 v[58:59], v2, s[40:43], s46 offen offset:16")
        srd(a, 40, P_B2, 2048 * 2)
        a("v_and_b32 v2, 31, v0"); a("s_lshl_b32 s46, s58, 5"); a("v_add_u32 v2, s46, v2"); a("v_lshlrev_b32 v2, 1, v2")
        a("buffer_load_ushort v63, v2, s[40:43], 0 offen")
    lp, lr, lok = a.uid("L_o_poll"), a.uid("L_o_retry"), a.uid("L_o_ok")
    tag_check(a, [OFR + 4 * i for i in range(8)], lr)
    a(f"s_branch {lok}")
    a.label(lr)
    a("s_mov_b32 s48, 0")
    a.label(lp)
    oloads()
    a("s_add_u32 s48, s48, 1")
    a("s_waitcnt vmcnt(0)")
    a("s_cmp_ge_u32 s48, 0x100000"); a(f"s_cbranch_scc1 {lok}")
    tag_check(a, [OFR + 4 * i for i in range(8)], lp)
    a.label(lok)
    stamp(a, 4)
    if opt.exp == "earlybias": biases()
    for i in range(8):
        if i + 3 < 8: rd(i + 3); a("s_waitcnt lgkmcnt(12)")
        else: a(f"s_waitcnt lgkmcnt({(7 - i) * 4})")
        for ct in range(2): mfma(a, ACC + 16 * ct, AF + 8 * (i & 3) + 4 * ct, OFR + 4 * i)
    a("s_nop 7"); a("s_nop 3")
    reduce_scatter(a, ACC, s_tt, s_kq, 46, 8, 0, sub_shift=16)
    H = 8
    for j in range(4):
        a(f"v_lshlrev_b32 v{H+2*j}, 16, v{XR+j}"); a(f"v_and_b32 v{H+2*j+1}, 0xffff0000, v{XR+j}")
    for i in range(8): a(f"v_add_f32 v{H+i}, v{H+i}, v{ACC+i}")
    for j in range(4): a(f"v_cvt_pk_bf16_f32 v{HP+j}, v{H+2*j}, v{H+2*j+1}")
    for j in range(4):
        a(f"v_lshlrev_b32 v{H+2*j}, 16, v{HP+j}"); a(f"v_and_b32 v{H+2*j+1}, 0xffff0000, v{HP+j}")
    a(f"v_add_f32 v20, v{H}, v{H+1}"); a(f"v_mul_f32 v21, v{H}, v{H}"); a(f"v_fmac_f32 v21, v{H+1}, v{H+1}")
    for i in range(2, 8):
        a(f"v_add_f32 v20, v20, v{H+i}"); a(f"v_fmac_f32 v21, v{H+i}, v{H+i}")
    a("v_mov_b32 v22, v20"); a("v_mov_b32 v23, v21"); a("s_nop 1")
    a("v_permlane32_swap_b32 v20, v22"); a("v_permlane32_swap_b32 v21, v23"); a("s_nop 1")
    a("v_add_f32 v20, v20, v22"); a("v_add_f32 v21, v21, v23")
    ST = 32768
    a("v_and_b32 v46, 31, v0"); a(f"s_lshl_b32 s46, s{s_tt}, 5"); a("v_add_u32 v46, s46, v46"); a("v_lshlrev_b32 v24, 3, v46")
    a(f"s_lshl_b32 s46, s{s_kq}, 9"); a(f"s_add_u32 s46, s46, {ST}"); a("v_add_u32 v47, s46, v24")
    a("v_cmp_gt_u32 vcc, 32, v0"); a("s_and_saveexec_b64 s[52:53], vcc")
    a("ds_write_b64 v47, v[20:21]")
    a("s_mov_b64 exec, s[52:53]")
    a("s_waitcnt lgkmcnt(0)"); a("s_barrier")
    lx, lx0, lx1 = a.uid("L_p3_x"), a.uid("L_p3_x0"), a.uid("L_p3_x1")
    a(f"s_lshl_b32 s46, s{s_tb}, 12"); a(f"s_add_u32 s46, s46, {XCH}"); a(f"s_lshl_b32 s47, s{s_cb}, 9"); a("s_add_u32 s47, s47, s46")
    a("v_lshlrev_b32 v48, 3, v0")
    a("s_cmp_eq_u32 s3, 0"); a(f"s_cbranch_scc1 {lx0}")
    a("s_cmp_lg_u32 s3, 1"); a(f"s_cbranch_scc1 {lx1}")
    a(f"v_add_u32 v49, {ST}, v48")
    for q in range(4): a(f"ds_read_b64 {vr(26+2*q,2)}, v49 offset:{q*512}")
    a("s_waitcnt lgkmcnt(0)")
    a("v_add_f32 v26, v26, v28"); a("v_add_f32 v27, v27, v29"); a("v_add_f32 v30, v30, v32"); a("v_add_f32 v31, v31, v33")
    a("v_add_f32 v26, v26, v30"); a("v_add_f32 v27, v27, v31")
    a("v_min_u32 v26, 0xfffffffe, v26"); a("v_min_u32 v27, 0xfffffffe, v27")
    a(f"buffer_store_dwordx2 v[26:27], v48, s[{SWS}:{SWS+3}], s47 offen sc1")
    a.label(lx1)
    for j in range(5, 9): w2.dma(a, j)
    a(f"s_branch {lx}")
    a.label(lx0)
    lp, lpd, lr = a.uid("L_p3_poll"), a.uid("L_p3_pd"), a.uid("L_p3_r")
    a("s_mov_b32 s48, 0")
    a.label(lp)
    for q in range(8): a(f"buffer_load_dwordx2 {vr(32+2*q,2)}, v48, s[{SWS}:{SWS+3}], s46 offen offset:{q*512} sc1")
    a("s_waitcnt vmcnt(0)")
    tag_check(a, list(range(32, 48)), lr)
    a(f"s_branch {lpd}")
    a.label(lr)
    a("s_add_u32 s48, s48, 1"); a("s_cmp_lt_u32 s48, 0x100000"); a(f"s_cbranch_scc1 {lp}")
    a.label(lpd)
    for q in range(1, 8):
        a(f"v_add_f32 v32, v32, v{32+2*q}"); a(f"v_add_f32 v33, v33, v{33+2*q}")
    a("v_mul_f32 v32, 0x3b000000, v32"); a("v_mul_f32 v33, 0x3b000000, v33")
    a("v_fma_f32 v33, -v32, v32, v33"); a("v_max_f32 v33, 0, v33")
    a("v_add_f32 v34, 0x3727c5ac, v33"); a("v_rsq_f32 v35, v34")
    a("s_nop 0")
    a("v_mul_f32 v36, v35, v35"); a("v_mul_f32 v36, v36, v33")
    a("v_add_f32 v36, 0x3727c5ac, v36"); a("v_rsq_f32 v36, v36")
    a("s_nop 0")
    a("v_mul_f32 v34, v35, v36"); a("v_mul_f32 v35, v32, v34"); a("v_sub_f32 v35, 0, v35")
    a(f"v_add_u32 v49, {ST + 2048}, v48")
    a("ds_write_b64 v49, v[34:35]")
    for j in range(5, 9): w2.dma(a, j)
    a("s_waitcnt lgkmcnt(0)")
    a.label(lx)
    a("s_barrier")
    stamp(a, 5)
    a(f"v_add_u32 v47, {ST + 2048}, v24")
    a("ds_read_b64 v[20:21], v47")
    a("s_waitcnt lgkmcnt(0)")
    for i in range(8): a(f"v_fma_f32 v{H+i}, v{H+i}, v20, v21")
    for j in range(4): a(f"v_cvt_pk_bf16_f32 v{16+j}, v{H+2*j}, v{H+2*j+1}")
    a("v_lshrrev_b32 v46, 3, v24")
    a("v_bfe_u32 v47, v46, 1, 1"); a("v_lshlrev_b32 v47, 2, v47")
    a(f"s_lshl_b32 s46, s{s_kq}, 1"); a("v_xor_b32 v47, s46, v47")
    a("v_lshlrev_b32 v47, 4, v47"); a("v_lshlrev_b32 v46, 7, v46"); a("v_add_u32 v46, v46, v47")
    a("v_lshrrev_b32 v47, 5, v0"); a("v_lshlrev_b32 v47, 3, v47"); a("v_add_u32 v46, v46, v47")
    a("ds_write_b64 v46, v[16:17] offset:36864"); a("ds_write_b64 v46, v[18:19] offset:36880")
    a(f"s_lshl_b32 s46, s{s_tt}, 2")
    tr_lane_addr(a, 48, 46, 47, 'perm', colunit_sreg=46)
    a(f"s_lshl_b32 s46, s{s_kq}, 11"); a("v_add_u32 v48, s46, v48")
    a("s_waitcnt lgkmcnt(0)"); a("s_barrier")
    a("ds_read_b64_tr_b16 v[24:25], v48 offset:36864"); a("ds_read_b64_tr_b16 v[26:27], v48 offset:37888")
    a("s_waitcnt lgkmcnt(0)")
    a("v_min_u32 v24, 0xfffffffe, v24")
    a(f"buffer_store_dwordx4 v[24:27], v1, s[{SWS}:{SWS+3}], s{S_LFA} offen sc1")

RING = 8
NR = 6
ACC = 64
def act_load(a, s_act, i, r):
    for dt in range(2):
        a(f"s_add_u32 s52, s{s_act[dt]}, {i*1024}")
        a(f"buffer_load_dwordx4 {vr(r+4*dt,4)}, v1, s[36:39], s52 offen sc1")

def probe(a, s_act, probe_steps):
    a("v_lshrrev_b32 v2, 1, v0"); a(f"v_mov_b32 v3, {probe_steps[0]}")
    for n in range(1, 4):
        a(f"v_cmp_eq_u32 vcc, {n}, v2"); a(f"v_mov_b32 v8, {probe_steps[n]}"); a("s_nop 0"); a("v_cndmask_b32 v3, v3, v8, vcc")
    a("v_lshlrev_b32 v3, 10, v3"); a("v_add_u32 v3, 1008, v3")
    a("v_and_b32 v2, 1, v0"); a(f"s_sub_u32 s52, s{s_act[1]}, s{s_act[0]}"); a("v_mul_lo_u32 v2, v2, s52"); a("v_add_u32 v3, v3, v2")
    a("s_mov_b32 s53, 0")
    a("v_cmp_gt_u32 vcc, 8, v0"); a("s_and_saveexec_b64 s[62:63], vcc")
    lp, lx = a.uid("L_probe"), a.uid("L_px")
    a.label(lp)
    a(f"buffer_load_dword v8, v3, s[36:39], s{s_act[0]} offen sc1")
    a("s_add_u32 s53, s53, 1")
    a("s_waitcnt vmcnt(0)")
    a("v_cmp_eq_u32 vcc, -1, v8")
    a(f"s_cbranch_vccz {lx}")
    a("s_cmp_lt_u32 s53, 0x100000"); a(f"s_cbranch_scc1 {lp}")
    a.label(lx)
    a("s_mov_b64 exec, s[62:63]")

def gemm8(a, vq, nks, s_act, act_is_B, retries, probe_steps, free, wreg, frees_w, after_step=None, after_fill=None):
    probe(a, s_act, probe_steps)
    vq.q = []
    if (opt.exp == "p4steps" and nks == 16) or (opt.exp == "p5steps" and nks == 14): stamp(a, 1, force=True)
    if opt.exp == "probes": stamp(a, 1 if nks == 16 else 13, force=True)
    free = list(free); blk = {}; nxt = [0]
    def fill():
        while free and nxt[0] < nks:
            i = nxt[0]; blk[i] = free.pop(0); act_load(a, s_act, i, blk[i]); vq.issue(f"act{i}", 2); nxt[0] += 1
    fill()
    if after_fill: after_fill()
    for i in range(64): a(f"v_mov_b32 v{ACC+i}, 0")
    for i in range(nks):
        r = blk[i]
        vq.wait(a, f"act{i}")
        lr, lb = a.uid("L_retry"), a.uid("L_back")
        if opt.exp != "notag": tag_check(a, [r, r + 4], lr)
        a.label(lb)
        retries.append((lr, lb, [(k, blk[k]) for k in range(i, min(i + 4, nxt[0]))], s_act))
        W0 = wreg(i)
        for sub in range(2):
            for dt in range(2):
                W, A_ = W0 + 4 * sub, r + 4 * dt
                if opt.exp == "nomfma": continue
                if act_is_B: mfma(a, ACC + 16 * (2 * dt + sub), W, A_)
                else: mfma(a, ACC + 16 * (2 * dt + sub), A_, W)
        if opt.exp == "p4steps" and nks == 16 and i in (0, 1, 3, 5, 7, 9, 11, 13): stamp(a, {0: 2, 1: 3, 3: 4, 5: 5, 7: 9, 9: 10, 11: 11, 13: 12}[i], force=True)
        if opt.exp == "p5steps" and nks == 14 and i in (0, 1, 3, 5, 7, 9, 11, 13): stamp(a, {0: 2, 1: 3, 3: 4, 5: 5, 7: 6, 9: 10, 11: 11, 13: 7}[i], force=True)
        free.append(r)
        if frees_w: free.append(W0)
        if after_step: after_step(i, free)
        fill()
    a("s_nop 7"); a("s_nop 3")

def emit_retries(a, retries):
    for lr, lb, steps, s_act in retries:
        lp = a.uid("L_rp")
        r = steps[0][1]
        a.label(lr)
        a("s_mov_b32 s53, 0")
        a.label(lp)
        for k, rk in steps: act_load(a, s_act, k, rk)
        a("s_add_u32 s53, s53, 1")
        a("s_waitcnt vmcnt(0)")
        a("s_cmp_ge_u32 s53, 0x100000"); a(f"s_cbranch_scc1 {lb}")
        tag_check(a, [r, r + 4], lp)
        a(f"s_branch {lb}")

RING_BLOCKS = [8 + 8 * i for i in range(6)]
def reduce8(a, w2, tail_barrier):
    a(f"v_add_u32 v2, s{w2.SE}, v1"); a(f"v_add_u32 v3, s{w2.SM}, v1")
    a("s_waitcnt lgkmcnt(0)")
    for p in range(8):
        sub, half, dt = p & 1, (p >> 1) & 1, p >> 2
        for q in range(2):
            r = ACC + 16 * (2 * dt + sub) + 8 * half + 4 * q
            a(f"ds_write_b128 v{2 + (p >> 2)}, {vr(r,4)} offset:{(p & 3)*2048 + q*1024}")
    a("s_and_b32 s46, s3, 3"); a("s_lshl_b32 s46, s46, 11")
    a("s_mov_b32 s48, 65536"); a("s_cmp_lt_u32 s3, 4"); a("s_cselect_b32 s47, 98304, 0"); a("s_cselect_b32 s48, 32768, s48")
    a("s_add_u32 s46, s46, s47"); a("v_add_u32 v2, s46, v1"); a("v_add_u32 v3, s48, v2")
    a("s_waitcnt lgkmcnt(0)"); a("s_barrier")
    for src in range(8):
        for q in range(2):
            a(f"ds_read_b128 {vr(ACC + 8*src + 4*q, 4)}, v{2 + (src >> 2)} offset:{(src & 3)*8192 + q*1024}")
    for lvl, (wait, pairs) in enumerate(((12, [(0, 1)]), (8, [(2, 3)]), (4, [(4, 5)]), (0, [(6, 7)]))):
        a(f"s_waitcnt lgkmcnt({wait})")
        for x, y in pairs:
            for i in range(8): a(f"v_add_f32 v{ACC+8*x+i}, v{ACC+8*x+i}, v{ACC+8*y+i}")
        if lvl == 3 and tail_barrier: a("s_barrier")
    for x, y in ((0, 2), (4, 6), (0, 4)):
        for i in range(8): a(f"v_add_f32 v{ACC+8*x+i}, v{ACC+8*x+i}, v{ACC+8*y+i}")

def phase4v2(a, retries, w2):
    s_db = 26
    SB, SW2 = 32, 28
    a("s_and_b32 s46, s2, 7"); a("s_lshr_b32 s47, s2, 3")
    a("s_and_b32 s48, s46, 1"); a("s_lshl_b32 s48, s48, 2"); a("s_and_b32 s49, s47, 3"); a(f"s_add_u32 s{s_db}, s48, s49")
    srd(a, SB, P_B1, 1792 * 2)
    vq = VMQ(); w2.vq = vq
    if opt.exp != "earlybias":
        a("s_and_b32 s46, s3, 1"); a("s_lshl_b32 s46, s46, 6"); a("s_bfe_u32 s47, s3, 0x10001"); a("s_lshl_b32 s47, s47, 5")
        a("s_add_u32 s46, s46, s47"); a(f"s_add_u32 s46, s46, s{S_FB128}")
        a("v_lshrrev_b32 v2, 5, v0"); a("v_lshlrev_b32 v2, 3, v2")
        a(f"buffer_load_dwordx2 v[56:57], v2, s[{SB}:{SB+3}], s46 offen"); a(f"buffer_load_dwordx2 v[58:59], v2, s[{SB}:{SB+3}], s46 offen offset:16")
        vq.issue("bias", 2)
    a(f"s_lshl_b32 s46, s{s_db}, 18"); a("s_lshl_b32 s47, s3, 14"); a("s_add_u32 s46, s46, s47")
    a(f"s_add_u32 s54, s46, {LF}"); a(f"s_add_u32 s56, s46, {LF + 128*1024}")
    ldup, ljoin = a.uid("L_p4_idle"), a.uid("L_p4_join")
    if opt.exp == "skipdup":
        a(f"s_cmp_eq_u32 s{S_STU}, 0"); a(f"s_cbranch_scc1 {ldup}")
    def after4(i, free):
        j = i if 5 <= i <= 8 and i != 7 else None
        if j is not None: free.remove(WREG + 8 * j); w2.read(a, j)
        if i == 7: free.remove(WREG + 8 * 7); w2.read(a, 7)
        if i in (7, 9, 11, 13, 15):
            j = (i - 7) // 2; free.remove(WREG + 8 * j); w2.read(a, j)
    gemm8(a, vq, 16, (54, 56), True, retries, (3, 7, 11, 15), RING_BLOCKS, lambda i: WREG + 8 * i, True, after4)
    stamp(a, 7)
    reduce8(a, w2, True)
    for j in range(4):
        a(f"v_lshlrev_b32 v{16+2*j}, 16, v{56+j}"); a(f"v_and_b32 v{17+2*j}, 0xffff0000, v{56+j}")
    for i in range(8): a(f"v_add_f32 v{ACC+i}, v{ACC+i}, v{16+i}")
    a("s_mov_b32 s46, 0xc0135761")
    a("s_mov_b32 s47, 0xbdd2d3e8")
    a("v_mov_b32 v24, s46")
    for i in range(8): a(f"v_mul_f32 v{16+i}, v{ACC+i}, v{ACC+i}")
    for i in range(8): a(f"v_fma_f32 v{16+i}, v{16+i}, s47, v24")
    for i in range(8): a(f"v_mul_f32 v{16+i}, v{16+i}, v{ACC+i}")
    for i in range(8): a(f"v_exp_f32 v{16+i}, v{16+i}")
    for i in range(8): a(f"v_add_f32 v{16+i}, 1.0, v{16+i}")
    for i in range(8): a(f"v_rcp_f32 v{16+i}, v{16+i}")
    for i in range(8): a(f"v_mul_f32 v{16+i}, v{16+i}, v{ACC+i}")
    for j in range(4): a(f"v_cvt_pk_bf16_f32 v{28+j}, v{16+2*j}, v{17+2*j}")
    a("v_min_u32 v28, 0xfffffffe, v28")
    l = a.uid("L_nostu")
    a(f"s_cmp_eq_u32 s{S_STU}, 0"); a(f"s_cbranch_scc1 {l}")
    a(f"buffer_store_dwordx4 v[28:31], v1, s[36:39], s{S_UFA} offen sc1")
    a.label(l)
    if opt.exp == "skipdup":
        a(f"s_branch {ljoin}")
        a.label(ldup)
        a("s_waitcnt vmcnt(0)")
        for j in range(9):
            if j % 3 == 0 and j: a("s_waitcnt lgkmcnt(0)")
            w2.read(a, j)
        a("s_waitcnt lgkmcnt(0)")
        a.label(ljoin)
    if opt.exp != "w2late":
        w2.vq = None
        for j in range(9, 14): w2.dma(a, j)

def phase5v2(a, retries, w2):
    s_db, s_sb = 26, 27
    SB, SO = 32, 40
    a("; ---- P5: out = h + (u w2 + b2)^T")
    a("s_and_b32 s46, s2, 7"); a("s_lshr_b32 s47, s2, 3")
    a("s_lshl_b32 s48, s46, 2"); a("s_lshr_b32 s49, s47, 3"); a(f"s_add_u32 s{s_sb}, s48, s49"); a(f"s_and_b32 s{s_db}, s47, 7")
    srd(a, SB, P_B2, 2048 * 2); srd(a, SO, P_OUT, 2048 * 512 * 2)
    vq = VMQ(); vq.issue("ustore")
    a(f"s_lshl_b32 s46, s{s_sb}, 6"); a("s_and_b32 s47, s3, 1"); a("s_lshl_b32 s47, s47, 5"); a("s_add_u32 s46, s46, s47")
    a("v_and_b32 v2, 31, v0"); a("v_add_u32 v57, s46, v2"); a("v_lshlrev_b32 v2, 1, v57")
    if opt.exp != "earlybias": a(f"buffer_load_ushort v63, v2, s[{SB}:{SB+3}], 0 offen"); vq.issue("b2")
    a(f"s_mul_i32 s46, s{s_db}, {2*112*1024}"); a(f"s_mul_i32 s47, s3, {14*1024}"); a("s_add_u32 s46, s46, s47")
    a(f"s_add_u32 s54, s46, {UF}"); a(f"s_add_u32 s56, s46, {UF + 112*1024}")
    wblk = {j: WREG + 8 * j for j in range(9)}
    spare = [WREG + 8 * j for j in range(9, 16)]
    def rest_of_w2():
        if opt.exp != "w2late": return
        w2.vq = vq
        for j in range(9, 14): w2.dma(a, j)
    def after5(i, free):
        if i <= 1: free += [spare.pop(0), spare.pop(0)]
        if i == 2: free.append(spare.pop(0))
        if i == 6:
            vq.wait(a, "w2_13")
            for j in (9, 10): wblk[j] = spare.pop(0); w2.read(a, j, wblk[j])
        if i == 7:
            for j in (11, 12): wblk[j] = free.pop(0); w2.read(a, j, wblk[j])
        if i == 8:
            wblk[13] = free.pop(0); a("s_waitcnt lgkmcnt(8)"); w2.read(a, 13, wblk[13]); a("s_waitcnt lgkmcnt(4)")
        if i == 11: a("s_waitcnt lgkmcnt(0)")
    gemm8(a, vq, 14, (54, 56), False, retries, (1, 5, 9, 13), RING_BLOCKS, lambda i: wblk[i], False, after5, rest_of_w2)
    stamp(a, 9)
    reduce8(a, w2, False)
    a("v_lshlrev_b32 v56, 16, v63")
    for j in range(4):
        a(f"v_lshlrev_b32 v{20+2*j}, 16, v{HP+j}"); a(f"v_and_b32 v{21+2*j}, 0xffff0000, v{HP+j}")
    for i in range(8): a(f"v_add_f32 v{ACC+i}, v{ACC+i}, v56")
    for i in range(8): a(f"v_add_f32 v{ACC+i}, v{ACC+i}, v{20+i}")
    for j in range(4): a(f"v_cvt_pk_bf16_f32 v{28+j}, v{ACC+2*j}, v{ACC+2*j+1}")
    a("s_nop 1")
    a("v_permlane32_swap_b32 v28, v30"); a("v_permlane32_swap_b32 v29, v31")
    a("v_lshlrev_b32 v57, 10, v57"); a("v_lshrrev_b32 v2, 5, v0"); a("v_lshlrev_b32 v2, 4, v2"); a("v_add_u32 v57, v57, v2")
    a(f"s_lshl_b32 s46, s{s_db}, 7"); a("s_lshr_b32 s47, s3, 1"); a("s_lshl_b32 s47, s47, 5"); a("s_add_u32 s46, s46, s47")
    a(f"buffer_store_dwordx4 v[28:31], v57, s[{SO}:{SO+3}], s46 offen{opt.outflags}")

opt.outflags = ""
opt.p1stamps = False
opt.exp = None
opt.stamp_wave = 0
def build():
    phases.cfg.persist = True; phases.cfg.tags = True
    a = Asm()
    a.label(KNAME)
    end = "L_end"
    if opt.stamps: a("s_memrealtime s[74:75]")
    prologue(a, 256, end)
    if opt.stamps:
        for i in range(1, 16): a(f"s_mov_b32 s{STAMP0+i}, 0")
        a(f"s_mov_b32 s{STAMP0}, s74")
    if opt.diag == "pad100":
        a("s_memrealtime s[90:91]"); a("s_waitcnt lgkmcnt(0)")
    srd(a, SB_WS, P_WS, WS_SIZE); srd(a, 76, P_DBG, 256)
    a("v_mov_b32 v248, 252"); a("v_mov_b32 v247, 0")
    if opt.codepf:
        a("s_getpc_b64 s[62:63]")
        a.label("L_pcbase")
        a("s_lshl_b32 s60, s3, 13"); a("v_lshlrev_b32 v2, 7, v0"); a("v_add_u32 v2, s60, v2")
        a("s_mov_b32 s61, L_codeend-L_pcbase"); a("v_min_u32 v2, s61, v2")
        a("global_load_dword v249, v2, s[62:63]")
    lz = a.uid("L_zero")
    a("s_cmp_lg_u32 s2, 0"); a(f"s_cbranch_scc1 {lz}")
    a("s_cmp_lg_u32 s3, 7"); a(f"s_cbranch_scc1 {lz}")
    a("v_lshlrev_b32 v2, 8, v0"); a("v_mov_b32 v3, 0")
    a("v_cmp_gt_u32 vcc, 16, v0"); a("s_and_saveexec_b64 s[62:63], vcc")
    a(f"s_mov_b32 s60, {CNT}")
    a(f"buffer_store_dword v3, v2, s[{SB_WS}:{SB_WS+3}], s60 offen sc1")
    a("s_mov_b64 exec, s[62:63]")
    a.label(lz)
    map_addresses(a)
    phase1(a, {**({"after_dma": markers_p1} if opt.exp == "mk_p1" else {}), "post_x": zero_flag_store, "pre_store": zero_flag_load, "no_clear": True, "xfirst": True, "wtouch": opt.touch, "late_issue": True, "pipe_ln": opt.exp == "pipeln", **({"st": (lambda a, i: stamp(a, i, force=True))} if opt.p1stamps else {})})
    stamp(a, 1)
    l, lp = a.uid("L_zc"), a.uid("L_zp")
    a("s_cmp_lg_u32 s3, 0"); a(f"s_cbranch_scc1 {l}")
    a("s_mov_b32 s61, 0")
    a.label(lp)
    a("s_waitcnt vmcnt(0)")
    a("v_readfirstlane_b32 s64, v247"); a("s_add_u32 s61, s61, 1")
    a("s_cmp_lg_u32 s64, 0"); a(f"s_cbranch_scc1 {l}")
    a("buffer_load_dword v247, v248, s[76:79], 0 offen sc1")
    a("s_cmp_lt_u32 s61, 0x200000"); a(f"s_cbranch_scc1 {lp}")
    a.label(l)
    gp.arrive(a, 0, 27, 13)
    vq = VMQ(); pf = W1Pref()
    def dep2(a):
        pf.setup(a)
        a("s_and_b32 s65, s2, 7")
        gp.make_wait(0, 65, 32, 2)(a)
    phase2(a, {"dep": dep2, "vq": vq, "tile": pf.tile(vq),
               "loop_start": lambda a: (stamp(a, 10), stamp(a, 14, True)), "loop_end": lambda a: (stamp(a, 15, True), stamp(a, 11))})
    stamp(a, 3)
    late_check(a)
    retries = []
    w2 = W2Stage()
    phase3v2(a, w2)
    stamp(a, 6)
    phase4v2(a, retries, w2)
    stamp(a, 8)
    phase5v2(a, retries, w2)
    if opt.stamps:
        a("s_waitcnt vmcnt(0)")
        stamp(a, 12)
        ls = a.uid("L_st")
        a("s_lshl_b32 s61, s2, 3"); a("s_add_u32 s61, s61, s3"); a("s_lshl_b32 s61, s61, 6"); a("s_add_u32 s61, s61, 0xF00000"); a("v_mov_b32 v3, 0")
        for i in range(16):
            a(f"v_mov_b32 v2, s{STAMP0+i}")
            a(f"buffer_store_dword v2, v3, s[{SB_WS}:{SB_WS+3}], s61 offen offset:{4*i}")
        a(f"s_cmp_lg_u32 s2, {opt.stamp_wg}"); a(f"s_cbranch_scc1 {ls}"); a(f"s_cmp_lg_u32 s3, {opt.stamp_wave}"); a(f"s_cbranch_scc1 {ls}")
        for i in range(14):
            a(f"s_sub_u32 s60, s{STAMP0+i}, s74"); a(f"v_mov_b32 v2, s60"); a(f"v_mov_b32 v3, {4*i}")
            a("buffer_store_dword v2, v3, s[76:79], 0 offen")
        a.label(ls)
    if opt.diag == "pad100":
        a.label("L_dg"); a("s_memrealtime s[92:93]"); a("s_waitcnt lgkmcnt(0)"); a("s_sub_u32 s92, s92, s90"); a("s_cmp_lt_u32 s92, 10000"); a("s_cbranch_scc1 L_dg")
    a("s_endpgm")
    emit_retries(a, retries)
    a.label(end)
    a.label("L_codeend")
    a("s_endpgm")
    body = a.text()
    probs = check_hazards(body)
    for p in probs: print(p, file=sys.stderr)
    desc = f""".amdhsa_kernel {KNAME}
  .amdhsa_next_free_vgpr 256
  .amdhsa_next_free_sgpr 102
  .amdhsa_accum_offset 256
  .amdhsa_group_segment_fixed_size 0
  .amdhsa_kernarg_size 88
  .amdhsa_user_sgpr_count 2
  .amdhsa_user_sgpr_kernarg_segment_ptr 1
  .amdhsa_system_sgpr_workgroup_id_x 1
  .amdhsa_float_denorm_mode_32 3
.end_amdhsa_kernel
"""
    return (HEADER + "; @launch grid=(256,1,1) block=(512,1,1) lds=163840\n"
            + '.amdgcn_target "amdgcn-amd-amdhsa--gfx950"\n.text\n'
            + f".globl {KNAME}\n.p2align 8\n.type {KNAME},@function\n" + body
            + '.section .rodata,"a"\n.p2align 6\n' + desc)

if __name__ == "__main__":
    import argparse
    ap = argparse.ArgumentParser()
    ap.add_argument("-o", default=f"cdna_kernels/{NAME}.s")
    ap.add_argument("--stamps", action="store_true")
    ap.add_argument("--no-touch", action="store_true")
    ap.add_argument("--no-codepf", action="store_true")
    ap.add_argument("--diag", default=None)
    ap.add_argument("--outflags", default="")
    ap.add_argument("--p1stamps", action="store_true")
    ap.add_argument("--exp", default=None)
    ap.add_argument("--stamp-wg", type=int, default=0)
    ap.add_argument("--stamp-wave", type=int, default=0)
    args = ap.parse_args()
    opt.stamps = args.stamps; opt.touch = not args.no_touch; opt.codepf = not args.no_codepf; opt.diag = args.diag
    opt.stamp_wg = args.stamp_wg; opt.stamp_wave = args.stamp_wave
    opt.p1stamps = args.p1stamps; opt.exp = args.exp; phases.cfg.exp = args.exp
    opt.outflags = (" " + args.outflags) if args.outflags else ""
    open(args.o, "w").write(build())
    print("wrote", args.o)
```

```python
import sys
from asmlib import *
import phases
from phases import *
import gen_persist as gp
from gen_persist import opt, stamp, SB_WS, STAMP0, HEADER, KNAME, NAME

S_OFA, S_LFA, S_UFA, S_FB128, S_STU = 96, 97, 98, 99, 100
WREG = 128
HP = 4
STG = 131072

def map_addresses(a):
    a("s_and_b32 s46, s2, 7"); a("s_lshr_b32 s47, s2, 3")
    a("s_lshl_b32 s48, s46, 2"); a("s_lshr_b32 s49, s47, 3"); a("s_add_u32 s48, s48, s49")
    a("s_and_b32 s49, s47, 7")
    a("s_lshl_b32 s50, s49, 3"); a("s_add_u32 s50, s50, s3"); a("s_lshl_b32 s50, s50, 5"); a("s_add_u32 s50, s50, s48")
    a("s_lshl_b32 s50, s50, 10"); a(f"s_add_u32 s{S_OFA}, s50, {OF}")
    a("s_lshl_b32 s50, s49, 1"); a("s_and_b32 s51, s3, 1"); a("s_add_u32 s50, s50, s51"); a("s_lshl_b32 s50, s50, 7")
    a("s_lshl_b32 s51, s48, 2"); a("s_add_u32 s50, s50, s51"); a("s_lshr_b32 s51, s3, 1"); a("s_add_u32 s50, s50, s51")
    a("s_lshl_b32 s50, s50, 10"); a(f"s_add_u32 s{S_LFA}, s50, {LF}")
    a("s_and_b32 s50, s46, 1"); a("s_lshl_b32 s50, s50, 2"); a("s_and_b32 s51, s47, 3"); a("s_add_u32 s50, s50, s51")
    a("s_lshr_b32 s51, s46, 1"); a("s_mul_i32 s51, s51, 7"); a("s_lshr_b32 s52, s47, 2"); a("s_min_u32 s52, s52, 6"); a("s_add_u32 s51, s51, s52")
    a(f"s_lshl_b32 s{S_FB128}, s51, 7")
    a("s_cmp_lt_u32 s47, 28"); a(f"s_cselect_b32 s{S_STU}, 1, 0")
    a("s_lshl_b32 s50, s50, 1"); a("s_lshr_b32 s52, s3, 2"); a("s_add_u32 s50, s50, s52"); a("s_mul_i32 s50, s50, 112")
    a("s_lshl_b32 s51, s51, 2"); a("s_add_u32 s50, s50, s51")
    a("s_and_b32 s51, s3, 1"); a("s_lshl_b32 s51, s51, 1"); a("s_add_u32 s50, s50, s51"); a("s_bfe_u32 s51, s3, 0x10001"); a("s_add_u32 s50, s50, s51")
    a("s_lshl_b32 s50, s50, 10"); a(f"s_add_u32 s{S_UFA}, s50, {UF}")

def markers(a):
    if opt.exp == "nomark": return 0
    for i in range(4): a(f"v_mov_b32 v{120+i}, -1")
    a("v_mov_b32 v124, v1")
    for s in (S_OFA, S_LFA):
        a(f"buffer_store_dwordx4 v[120:123], v124, s[{SB_WS}:{SB_WS+3}], s{s} offen sc1")
    a(f"s_cmp_eq_u32 s{S_STU}, 0"); a(f"s_cselect_b32 s60, s{S_LFA}, s{S_UFA}")
    a(f"buffer_store_dwordx4 v[120:123], v124, s[{SB_WS}:{SB_WS+3}], s60 offen sc1")
    a("s_lshl_b32 s60, s2, 9"); a("s_lshl_b32 s61, s3, 6"); a("s_add_u32 s60, s60, s61"); a(f"s_add_u32 s60, s60, {XCH}")
    a("v_cmp_gt_u32 vcc, 4, v0"); a("s_and_saveexec_b64 s[62:63], vcc")
    a(f"buffer_store_dwordx4 v[120:123], v124, s[{SB_WS}:{SB_WS+3}], s60 offen sc1")
    a("s_mov_b64 exec, s[62:63]")
    return 4

def markers_p1(a):
    a("v_lshlrev_b32 v1, 4, v0")
    return markers(a)

def zero_flag_load(a):
    l = a.uid("L_zf")
    a("s_cmp_lg_u32 s3, 0"); a(f"s_cbranch_scc1 {l}")
    a("buffer_load_dword v247, v248, s[76:79], 0 offen sc1")
    a.label(l)

def zero_flag_store(a):
    l = a.uid("L_zs")
    a("s_cmp_lg_u32 s2, 0"); a(f"s_cbranch_scc1 {l}"); a("s_cmp_lg_u32 s3, 7"); a(f"s_cbranch_scc1 {l}")
    a("v_mov_b32 v126, 1")
    a("v_cmp_eq_u32 vcc, 0, v0"); a("s_and_saveexec_b64 s[62:63], vcc")
    a("buffer_store_dword v126, v248, s[76:79], 0 offen sc1")
    a("s_mov_b64 exec, s[62:63]")
    a.label(l)

def wait_all_groups(k, target, st):
    def dep(a):
        l, lp = a.uid("L_wait"), a.uid("L_poll")
        a("s_cmp_lg_u32 s3, 0"); a(f"s_cbranch_scc1 {l}")
        a(f"s_mov_b32 s60, {CNT + k*2048}"); a("v_lshlrev_b32 v251, 8, v0"); a("s_mov_b32 s61, 0")
        a("v_cmp_gt_u32 vcc, 8, v0"); a("s_and_saveexec_b64 s[62:63], vcc")
        a.label(lp)
        a(f"buffer_load_dword v250, v251, s[{SB_WS}:{SB_WS+3}], s60 offen sc1")
        a("s_add_u32 s61, s61, 1")
        a("s_waitcnt vmcnt(0)")
        a(f"v_cmp_gt_u32 vcc, {target}, v250")
        lx = a.uid("L_wx")
        a(f"s_cbranch_vccz {lx}")
        a("s_cmp_lt_u32 s61, 0x200000"); a(f"s_cbranch_scc1 {lp}")
        a.label(lx)
        a("s_mov_b64 exec, s[62:63]")
        a.label(l)
        a("s_barrier")
        stamp(a, st)
    return dep

def late_check(a):
    l, lp = a.uid("L_lck"), a.uid("L_lcp")
    a("s_cmp_lg_u32 s3, 0"); a(f"s_cbranch_scc1 {l}")
    a("v_cmp_gt_u32 vcc, 32, v113")
    a(f"s_cbranch_vccz {l}")
    a("s_mov_b32 s61, 0"); a(f"s_mov_b32 s60, {CNT + (0 if opt.exp == 'mk_p1' else 2048)}")
    a.label(lp)
    a(f"buffer_load_dword v113, v112, s[{SB_WS}:{SB_WS+3}], s60 offen sc1")
    a("s_add_u32 s61, s61, 1")
    a("s_waitcnt vmcnt(0)")
    a("v_cmp_gt_u32 vcc, 32, v113")
    a(f"s_cbranch_vccz {l}")
    a("s_cmp_lt_u32 s61, 0x200000"); a(f"s_cbranch_scc1 {lp}")
    a.label(l)
    a("s_barrier")

def tag_check(a, regs_, lfail):
    a(f"v_cmp_eq_u32 vcc, -1, v{regs_[0]}")
    for r in regs_[1:]:
        a(f"v_cmp_eq_u32 s[62:63], -1, v{r}"); a("s_or_b64 vcc, vcc, s[62:63]")
    a(f"s_cbranch_vccnz {lfail}")

class W1Pref:
    VD, VT = 92, 93
    def setup(self, a):
        srd(a, 28, P_W1, 2048 * 1792 * 2); srd(a, 32, P_W2, 1792 * 2048 * 2); srd(a, 40, P_WO, 512 * 512 * 2)
        a("v_and_b32 v112, 7, v0"); a("v_lshlrev_b32 v112, 8, v112"); a("v_mov_b32 v113, 0")
        dma_row_voff(a, self.VD, 2, 3, 3584)
        a(f"s_mul_i32 s60, s3, {256*3584}"); a(f"s_add_u32 s60, s60, s{S_FB128}"); a(f"v_add_u32 v{self.VD}, s60, v{self.VD}")
        tr_lane_addr(a, self.VT, 2, 3, 'perm')
        a("s_lshl_b32 s59, s3, 12"); a(f"s_add_u32 s59, s59, {STG}")
        a(f"v_add_u32 v{self.VT}, s59, v{self.VT}"); a(f"v_xor_b32 v{self.VT+1}, 64, v{self.VT}")
        a("s_and_b32 s60, s2, 7"); a("s_lshr_b32 s61, s2, 3")
        dma_row_voff(a, 95, 2, 3, 1024)
        a("s_and_b32 s62, s61, 7"); a("s_lshl_b32 s62, s62, 7"); a("s_lshl_b32 s63, s3, 16"); a("s_add_u32 s62, s62, s63"); a("v_add_u32 v95, s62, v95")
        a("s_and_b32 s62, s3, 3"); a("s_lshl_b32 s62, s62, 13"); a("s_lshr_b32 s63, s3, 2"); a("s_lshl_b32 s63, s63, 16"); a("s_add_u32 s53, s62, s63")
        a("s_and_b32 s62, s61, 3"); a("s_lshl_b32 s62, s62, 6"); a("s_lshl_b32 s63, s3, 8"); a("s_add_u32 s62, s62, s63")
        a("v_add_u32 v116, s62, v0"); a("s_movk_i32 s63, 3584"); a("v_mul_lo_u32 v116, v116, s63"); a(f"v_add_u32 v116, s{S_FB128}, v116")
        a("s_lshl_b32 s62, s60, 2"); a("s_lshr_b32 s63, s61, 3"); a("s_add_u32 s62, s62, s63"); a("s_lshl_b32 s62, s62, 7")
        a("s_and_b32 s63, s61, 7"); a("s_mul_i32 s63, s63, 224"); a("s_mul_i32 s64, s3, 28"); a("s_add_u32 s63, s63, s64")
        a("v_min_u32 v96, 27, v0"); a("v_add_u32 v96, s63, v96"); a("v_lshlrev_b32 v96, 12, v96"); a("v_add_u32 v96, s62, v96")
    def tile(self, vq):
        def f(a, t):
            if t % 8 == 0:
                c = t // 8
                for j in range(4):
                    dma(a, self.VD, 28, 60, (59, j * 1024), pre=f"s_mov_b32 s60, {(32*c + 8*j)*3584}")
                vq.issue(f"w1_{c}", 4)
            if t % 8 == 7:
                c = t // 8
                vq.wait(a, f"w1_{c}")
                for kk in range(2):
                    for ft in range(2):
                        r = WREG + (2 * c + kk) * 8 + 4 * ft
                        a(f"ds_read_b64_tr_b16 {vr(r,2)}, v{self.VT+ft} offset:{kk*2048}")
                        a(f"ds_read_b64_tr_b16 {vr(r+2,2)}, v{self.VT+ft} offset:{kk*2048+1024}")
            if t in (45, 46):
                for i in range(4 * (t - 45), 4 * (t - 45) + 4):
                    dma(a, 95, 40, 60, (53, i * 1024), pre=f"s_mov_b32 s60, {i*8192}")
                vq.issue("wo", 4)
            MK = opt.exp == "mk_p1"
            if t == 1 and not MK:
                vq.issue("markers", markers(a))
            if t == 28 and not MK:
                l = a.uid("L_ma")
                a("s_cmp_lg_u32 s3, 0"); a(f"s_cbranch_scc1 {l}")
                a("s_and_b32 s60, s2, 7"); a("s_lshl_b32 s60, s60, 8"); a(f"s_add_u32 s60, s60, {CNT + 2048}")
                a("v_mov_b32 v114, 1"); a("v_mov_b32 v115, 0")
                a("v_cmp_eq_u32 vcc, 0, v0"); a("s_and_saveexec_b64 s[62:63], vcc")
                a(f"buffer_atomic_add v114, v115, s[{SB_WS}:{SB_WS+3}], s60 offen")
                a("s_mov_b64 exec, s[62:63]")
                a.label(l)
            if t == 52:
                l = a.uid("L_lc")
                a("s_cmp_lg_u32 s3, 0"); a(f"s_cbranch_scc1 {l}")
                a(f"s_mov_b32 s60, {CNT + (0 if MK else 2048)}")
                a(f"buffer_load_dword v113, v112, s[{SB_WS}:{SB_WS+3}], s60 offen sc1")
                a.label(l)
                vq.issue("maybe", 0)
            if opt.touch and t == 3 and opt.exp == "btouch":
                srd(a, 44, P_B1, 1792 * 2); a("v_lshlrev_b32 v117, 7, v0")
                a("buffer_load_dword v97, v117, s[44:47], 0 offen"); vq.issue("touch")
                srd(a, 44, P_B2, 2048 * 2)
                a("buffer_load_dword v97, v117, s[44:47], 0 offen"); vq.issue("touch")
            if opt.touch and t == 2 and opt.exp == "w1touch":
                a("buffer_load_dword v97, v116, s[28:31], 0 offen"); vq.issue("touch")
            if opt.touch:
                if t == 27:
                    a("buffer_load_dword v97, v96, s[32:35], 0 offen"); vq.issue("touch")
        return f

class W2Stage:
    VD, VP, SRD, SE, SX_, SM = 60, 61, 28, 59, 55, 57
    def __init__(self): self.vq = None
    def setup(self, a):
        srd(a, self.SRD, P_W2, 1792 * 2048 * 2)
        dma_row_voff(a, self.VD, 2, 3, 4096)
        a("s_and_b32 s60, s2, 7"); a("s_lshr_b32 s61, s2, 3")
        a("s_lshl_b32 s60, s60, 2"); a("s_lshr_b32 s61, s61, 3"); a("s_add_u32 s60, s60, s61"); a("s_lshl_b32 s60, s60, 7")
        a(f"s_mul_i32 s61, s3, {224*4096}"); a("s_add_u32 s60, s60, s61"); a(f"v_add_u32 v{self.VD}, s60, v{self.VD}")
        a(f"s_lshl_b32 s{self.SE}, s3, 13"); a(f"s_add_u32 s{self.SE}, s{self.SE}, 98304")
        a(f"s_lshl_b32 s{self.SX_}, s3, 11"); a(f"s_add_u32 s{self.SX_}, s{self.SX_}, 49152")
        a("s_and_b32 s60, s3, 3"); a("s_lshl_b32 s60, s60, 13"); a("s_lshr_b32 s61, s3, 2"); a("s_lshl_b32 s61, s61, 16"); a(f"s_add_u32 s{self.SM}, s60, s61")
        tr_lane_addr(a, self.VP, 2, 3, 'perm')
        a(f"v_xor_b32 v{self.VP+1}, 64, v{self.VP}")
    def slot(self, j):
        k = j if j < 9 else j - 9
        if k < 4: return self.SE, k * 2048
        if k == 4: return self.SX_, 0
        return self.SM, (k - 5) * 2048
    def dma(self, a, j):
        sreg, off = self.slot(j)
        for i in range(2):
            dma(a, self.VD, self.SRD, 60, (sreg, off + i * 1024), pre=f"s_mov_b32 s60, {(16*j + 8*i)*4096}")
        if self.vq is not None: self.vq.issue(f"w2_{j}", 2)
    def read(self, a, j, dst=None):
        sreg, off = self.slot(j)
        dst = WREG + 8 * j if dst is None else dst
        for st in range(2):
            a(f"v_add_u32 v{2+st}, s{sreg}, v{self.VP+st}")
        for st in range(2):
            r = dst + 4 * st
            a(f"ds_read_b64_tr_b16 {vr(r,2)}, v{2+st} offset:{off}")
            a(f"ds_read_b64_tr_b16 {vr(r+2,2)}, v{2+st} offset:{off+1024}")

def phase3v2(a, w2):
    s_tb, s_cb, s_tt, s_kq = 26, 27, 44, 45
    SWO, SWS, SX = 28, 36, 32
    OFR, XR, ACC, AF, VA = 8, 40, 64, 96, 44
    a("s_and_b32 s46, s2, 7"); a("s_lshr_b32 s47, s2, 3")
    a("s_lshl_b32 s48, s46, 2"); a("s_lshr_b32 s49, s47, 3"); a(f"s_add_u32 s{s_tb}, s48, s49"); a(f"s_and_b32 s{s_cb}, s47, 7")
    a(f"s_and_b32 s{s_tt}, s3, 1"); a(f"s_lshr_b32 s{s_kq}, s3, 1")
    srd(a, SWO, P_WO, 512 * 512 * 2); srd(a, SWS, P_WS, WS_SIZE); srd(a, SX, P_X, 2048 * 512 * 2)
    a(f"s_lshl_b32 s46, s{s_tb}, 1"); a(f"s_add_u32 s58, s46, s{s_tt}")
    a(f"s_lshl_b32 s46, s58, 5"); a(f"s_lshl_b32 s47, s{s_kq}, 3"); a("s_add_u32 s46, s46, s47"); a("s_lshl_b32 s46, s46, 10"); a(f"s_add_u32 s50, s46, {OF}")
    a("s_add_u32 s51, s50, 4096")
    def oloads():
        for i in range(8):
            a(f"buffer_load_dwordx4 {vr(OFR+4*i,4)}, v1, s[{SWS}:{SWS+3}], s{50 + (i >> 2)} offen offset:{(i&3)*1024} sc1")
    if opt.exp != "odirect":
        a("v_lshlrev_b32 v46, 10, v0"); a("v_add_u32 v46, 1008, v46"); a("s_mov_b32 s48, 0")
        a("v_cmp_gt_u32 vcc, 8, v0"); a("s_and_saveexec_b64 s[52:53], vcc")
        lp, lx_ = a.uid("L_o_probe"), a.uid("L_o_px")
        a.label(lp)
        a(f"buffer_load_dword v47, v46, s[{SWS}:{SWS+3}], s50 offen sc1")
        a("s_add_u32 s48, s48, 1")
        a("s_waitcnt vmcnt(0)")
        a("v_cmp_eq_u32 vcc, -1, v47")
        a(f"s_cbranch_vccz {lx_}")
        a("s_cmp_lt_u32 s48, 0x100000"); a(f"s_cbranch_scc1 {lp}")
        a.label(lx_)
        a("s_mov_b64 exec, s[52:53]")
    oloads()
    a("v_and_b32 v3, 31, v0"); a("s_lshl_b32 s46, s58, 5"); a("v_add_u32 v3, s46, v3"); a("v_lshlrev_b32 v3, 10, v3")
    a("v_lshrrev_b32 v46, 5, v0"); a("v_lshlrev_b32 v46, 3, v46"); a("v_add_u32 v3, v3, v46")
    a(f"s_lshl_b32 s46, s{s_cb}, 7"); a(f"s_lshl_b32 s47, s{s_kq}, 5"); a("s_add_u32 s46, s46, s47")
    a(f"buffer_load_dwordx2 {vr(XR,2)}, v3, s[{SX}:{SX+3}], s46 offen")
    a(f"buffer_load_dwordx2 {vr(XR+2,2)}, v3, s[{SX}:{SX+3}], s46 offen offset:16")
    tr_lane_addr(a, VA, 46, 47, 'perm')
    a(f"s_and_b32 s46, s{s_kq}, 1"); a("s_lshl_b32 s46, s46, 14"); a(f"s_lshr_b32 s47, s{s_kq}, 1"); a("s_lshl_b32 s47, s47, 16"); a("s_add_u32 s46, s46, s47")
    a(f"v_add_u32 v{VA}, s46, v{VA}"); a(f"v_xor_b32 v{VA+1}, 64, v{VA}")
    for i in range(32): a(f"v_mov_b32 v{ACC+i}, 0")
    a("s_waitcnt lgkmcnt(0)"); a("s_barrier")
    w2.setup(a)
    def rd(i):
        for ct in range(2):
            r = AF + 8 * (i & 3) + 4 * ct
            a(f"ds_read_b64_tr_b16 {vr(r,2)}, v{VA+ct} offset:{i*2048}")
            a(f"ds_read_b64_tr_b16 {vr(r+2,2)}, v{VA+ct} offset:{i*2048+1024}")
    for i in range(3): rd(i)
    for j in range(5): w2.dma(a, j)
    a("s_waitcnt vmcnt(10)")
    def biases():
        srd(a, 40, P_B1, 1792 * 2)
        a("s_and_b32 s46, s3, 1"); a("s_lshl_b32 s46, s46, 6"); a("s_bfe_u32 s47, s3, 0x10001"); a("s_lshl_b32 s47, s47, 5")
        a("s_add_u32 s46, s46, s47"); a(f"s_add_u32 s46, s46, s{S_FB128}")
        a("v_lshrrev_b32 v2, 5, v0"); a("v_lshlrev_b32 v2, 3, v2")
        a("buffer_load_dwordx2 v[56:57], v2, s[40:43], s46 offen"); a("buffer_load_dwordx2 v[58:59], v2, s[40:43], s46 offen offset:16")
        srd(a, 40, P_B2, 2048 * 2)
        a("v_and_b32 v2, 31, v0"); a("s_lshl_b32 s46, s58, 5"); a("v_add_u32 v2, s46, v2"); a("v_lshlrev_b32 v2, 1, v2")
        a("buffer_load_ushort v63, v2, s[40:43], 0 offen")
    lp, lr, lok = a.uid("L_o_poll"), a.uid("L_o_retry"), a.uid("L_o_ok")
    if opt.exp == "odirect":
        a("s_mov_b32 s48, 0")
        a.label(lp)
        a("s_mov_b32 s49, 0")
        for i in range(8):
            ls_ = a.uid("L_o_sk")
            a(f"v_cmp_eq_u32 vcc, -1, v{OFR+4*i}")
            a(f"s_cbranch_vccz {ls_}")
            a(f"buffer_load_dwordx4 {vr(OFR+4*i,4)}, v1, s[{SWS}:{SWS+3}], s{50 + (i >> 2)} offen offset:{(i&3)*1024} sc1")
            a("s_mov_b32 s49, 1")
            a.label(ls_)
        a("s_cmp_eq_u32 s49, 0"); a(f"s_cbranch_scc1 {lok}")
        a("s_add_u32 s48, s48, 1")
        a("s_waitcnt vmcnt(0)")
        a("s_cmp_lt_u32 s48, 0x100000"); a(f"s_cbranch_scc1 {lp}")
        a.label(lok)
    else:
        tag_check(a, [OFR + 4 * i for i in range(8)], lr)
        a(f"s_branch {lok}")
        a.label(lr)
        a("s_mov_b32 s48, 0")
        a.label(lp)
        oloads()
        a("s_add_u32 s48, s48, 1")
        a("s_waitcnt vmcnt(0)")
        a("s_cmp_ge_u32 s48, 0x100000"); a(f"s_cbranch_scc1 {lok}")
        tag_check(a, [OFR + 4 * i for i in range(8)], lp)
        a.label(lok)
    stamp(a, 4)
    if opt.exp == "earlybias": biases()
    for i in range(8):
        if i + 3 < 8: rd(i + 3); a("s_waitcnt lgkmcnt(12)")
        else: a(f"s_waitcnt lgkmcnt({(7 - i) * 4})")
        for ct in range(2): mfma(a, ACC + 16 * ct, AF + 8 * (i & 3) + 4 * ct, OFR + 4 * i)
    a("s_nop 7"); a("s_nop 3")
    reduce_scatter(a, ACC, s_tt, s_kq, 46, 8, 0, sub_shift=16)
    H = 8
    for j in range(4):
        a(f"v_lshlrev_b32 v{H+2*j}, 16, v{XR+j}"); a(f"v_and_b32 v{H+2*j+1}, 0xffff0000, v{XR+j}")
    for i in range(8): a(f"v_add_f32 v{H+i}, v{H+i}, v{ACC+i}")
    for j in range(4): a(f"v_cvt_pk_bf16_f32 v{HP+j}, v{H+2*j}, v{H+2*j+1}")
    for j in range(4):
        a(f"v_lshlrev_b32 v{H+2*j}, 16, v{HP+j}"); a(f"v_and_b32 v{H+2*j+1}, 0xffff0000, v{HP+j}")
    a(f"v_add_f32 v20, v{H}, v{H+1}"); a(f"v_mul_f32 v21, v{H}, v{H}"); a(f"v_fmac_f32 v21, v{H+1}, v{H+1}")
    for i in range(2, 8):
        a(f"v_add_f32 v20, v20, v{H+i}"); a(f"v_fmac_f32 v21, v{H+i}, v{H+i}")
    a("v_mov_b32 v22, v20"); a("v_mov_b32 v23, v21"); a("s_nop 1")
    a("v_permlane32_swap_b32 v20, v22"); a("v_permlane32_swap_b32 v21, v23"); a("s_nop 1")
    a("v_add_f32 v20, v20, v22"); a("v_add_f32 v21, v21, v23")
    ST = 32768
    a("v_and_b32 v46, 31, v0"); a(f"s_lshl_b32 s46, s{s_tt}, 5"); a("v_add_u32 v46, s46, v46"); a("v_lshlrev_b32 v24, 3, v46")
    a(f"s_lshl_b32 s46, s{s_kq}, 9"); a(f"s_add_u32 s46, s46, {ST}"); a("v_add_u32 v47, s46, v24")
    a("v_cmp_gt_u32 vcc, 32, v0"); a("s_and_saveexec_b64 s[52:53], vcc")
    a("ds_write_b64 v47, v[20:21]")
    a("s_mov_b64 exec, s[52:53]")
    a("s_waitcnt lgkmcnt(0)"); a("s_barrier")
    lx, lx0, lx1 = a.uid("L_p3_x"), a.uid("L_p3_x0"), a.uid("L_p3_x1")
    a(f"s_lshl_b32 s46, s{s_tb}, 12"); a(f"s_add_u32 s46, s46, {XCH}"); a(f"s_lshl_b32 s47, s{s_cb}, 9"); a("s_add_u32 s47, s47, s46")
    a("v_lshlrev_b32 v48, 3, v0")
    a("s_cmp_eq_u32 s3, 0"); a(f"s_cbranch_scc1 {lx0}")
    a("s_cmp_lg_u32 s3, 1"); a(f"s_cbranch_scc1 {lx1}")
    a(f"v_add_u32 v49, {ST}, v48")
    for q in range(4): a(f"ds_read_b64 {vr(26+2*q,2)}, v49 offset:{q*512}")
    a("s_waitcnt lgkmcnt(0)")
    a("v_add_f32 v26, v26, v28"); a("v_add_f32 v27, v27, v29"); a("v_add_f32 v30, v30, v32"); a("v_add_f32 v31, v31, v33")
    a("v_add_f32 v26, v26, v30"); a("v_add_f32 v27, v27, v31")
    a("v_min_u32 v26, 0xfffffffe, v26"); a("v_min_u32 v27, 0xfffffffe, v27")
    a(f"buffer_store_dwordx2 v[26:27], v48, s[{SWS}:{SWS+3}], s47 offen sc1")
    a.label(lx1)
    for j in range(5, 9): w2.dma(a, j)
    a(f"s_branch {lx}")
    a.label(lx0)
    lp, lpd, lr = a.uid("L_p3_poll"), a.uid("L_p3_pd"), a.uid("L_p3_r")
    a("s_mov_b32 s48, 0")
    a.label(lp)
    for q in range(8): a(f"buffer_load_dwordx2 {vr(32+2*q,2)}, v48, s[{SWS}:{SWS+3}], s46 offen offset:{q*512} sc1")
    a("s_waitcnt vmcnt(0)")
    tag_check(a, list(range(32, 48)), lr)
    a(f"s_branch {lpd}")
    a.label(lr)
    a("s_add_u32 s48, s48, 1"); a("s_cmp_lt_u32 s48, 0x100000"); a(f"s_cbranch_scc1 {lp}")
    a.label(lpd)
    for q in range(1, 8):
        a(f"v_add_f32 v32, v32, v{32+2*q}"); a(f"v_add_f32 v33, v33, v{33+2*q}")
    a("v_mul_f32 v32, 0x3b000000, v32"); a("v_mul_f32 v33, 0x3b000000, v33")
    a("v_fma_f32 v33, -v32, v32, v33"); a("v_max_f32 v33, 0, v33")
    a("v_add_f32 v34, 0x3727c5ac, v33"); a("v_rsq_f32 v35, v34")
    a("s_nop 0")
    a("v_mul_f32 v36, v35, v35"); a("v_mul_f32 v36, v36, v33")
    a("v_add_f32 v36, 0x3727c5ac, v36"); a("v_rsq_f32 v36, v36")
    a("s_nop 0")
    a("v_mul_f32 v34, v35, v36"); a("v_mul_f32 v35, v32, v34"); a("v_sub_f32 v35, 0, v35")
    a(f"v_add_u32 v49, {ST + 2048}, v48")
    a("ds_write_b64 v49, v[34:35]")
    for j in range(5, 9): w2.dma(a, j)
    a("s_waitcnt lgkmcnt(0)")
    a.label(lx)
    a("s_barrier")
    stamp(a, 5)
    a(f"v_add_u32 v47, {ST + 2048}, v24")
    a("ds_read_b64 v[20:21], v47")
    a("s_waitcnt lgkmcnt(0)")
    for i in range(8): a(f"v_fma_f32 v{H+i}, v{H+i}, v20, v21")
    for j in range(4): a(f"v_cvt_pk_bf16_f32 v{16+j}, v{H+2*j}, v{H+2*j+1}")
    a("v_lshrrev_b32 v46, 3, v24")
    a("v_bfe_u32 v47, v46, 1, 1"); a("v_lshlrev_b32 v47, 2, v47")
    a(f"s_lshl_b32 s46, s{s_kq}, 1"); a("v_xor_b32 v47, s46, v47")
    a("v_lshlrev_b32 v47, 4, v47"); a("v_lshlrev_b32 v46, 7, v46"); a("v_add_u32 v46, v46, v47")
    a("v_lshrrev_b32 v47, 5, v0"); a("v_lshlrev_b32 v47, 3, v47"); a("v_add_u32 v46, v46, v47")
    a("ds_write_b64 v46, v[16:17] offset:36864"); a("ds_write_b64 v46, v[18:19] offset:36880")
    a(f"s_lshl_b32 s46, s{s_tt}, 2")
    tr_lane_addr(a, 48, 46, 47, 'perm', colunit_sreg=46)
    a(f"s_lshl_b32 s46, s{s_kq}, 11"); a("v_add_u32 v48, s46, v48")
    a("s_waitcnt lgkmcnt(0)"); a("s_barrier")
    a("ds_read_b64_tr_b16 v[24:25], v48 offset:36864"); a("ds_read_b64_tr_b16 v[26:27], v48 offset:37888")
    a("s_waitcnt lgkmcnt(0)")
    a("v_min_u32 v24, 0xfffffffe, v24")
    a(f"buffer_store_dwordx4 v[24:27], v1, s[{SWS}:{SWS+3}], s{S_LFA} offen sc1")

RING = 8
NR = 6
ACC = 64
def act_load(a, s_act, i, r):
    for dt in range(2):
        a(f"s_add_u32 s52, s{s_act[dt]}, {i*1024}")
        a(f"buffer_load_dwordx4 {vr(r+4*dt,4)}, v1, s[36:39], s52 offen sc1")

def probe(a, s_act, probe_steps):
    a("v_lshrrev_b32 v2, 1, v0"); a(f"v_mov_b32 v3, {probe_steps[0]}")
    for n in range(1, 4):
        a(f"v_cmp_eq_u32 vcc, {n}, v2"); a(f"v_mov_b32 v8, {probe_steps[n]}"); a("s_nop 0"); a("v_cndmask_b32 v3, v3, v8, vcc")
    a("v_lshlrev_b32 v3, 10, v3"); a("v_add_u32 v3, 1008, v3")
    a("v_and_b32 v2, 1, v0"); a(f"s_sub_u32 s52, s{s_act[1]}, s{s_act[0]}"); a("v_mul_lo_u32 v2, v2, s52"); a("v_add_u32 v3, v3, v2")
    a("s_mov_b32 s53, 0")
    a("v_cmp_gt_u32 vcc, 8, v0"); a("s_and_saveexec_b64 s[62:63], vcc")
    lp, lx = a.uid("L_probe"), a.uid("L_px")
    a.label(lp)
    a(f"buffer_load_dword v8, v3, s[36:39], s{s_act[0]} offen sc1")
    a("s_add_u32 s53, s53, 1")
    a("s_waitcnt vmcnt(0)")
    a("v_cmp_eq_u32 vcc, -1, v8")
    a(f"s_cbranch_vccz {lx}")
    a("s_cmp_lt_u32 s53, 0x100000"); a(f"s_cbranch_scc1 {lp}")
    a.label(lx)
    a("s_mov_b64 exec, s[62:63]")

def gemm8(a, vq, nks, s_act, act_is_B, retries, probe_steps, free, wreg, frees_w, after_step=None, after_fill=None):
    probe(a, s_act, probe_steps)
    vq.q = []
    if (opt.exp == "p4steps" and nks == 16) or (opt.exp == "p5steps" and nks == 14): stamp(a, 1, force=True)
    if opt.exp == "probes": stamp(a, 1 if nks == 16 else 13, force=True)
    free = list(free); blk = {}; nxt = [0]
    def fill():
        while free and nxt[0] < nks:
            i = nxt[0]; blk[i] = free.pop(0); act_load(a, s_act, i, blk[i]); vq.issue(f"act{i}", 2); nxt[0] += 1
    fill()
    if after_fill: after_fill()
    for i in range(64): a(f"v_mov_b32 v{ACC+i}, 0")
    for i in range(nks):
        r = blk[i]
        vq.wait(a, f"act{i}")
        lr, lb = a.uid("L_retry"), a.uid("L_back")
        if opt.exp != "notag": tag_check(a, [r, r + 4], lr)
        a.label(lb)
        retries.append((lr, lb, [(k, blk[k]) for k in range(i, min(i + 4, nxt[0]))], s_act))
        W0 = wreg(i)
        for sub in range(2):
            for dt in range(2):
                W, A_ = W0 + 4 * sub, r + 4 * dt
                if opt.exp == "nomfma": continue
                if act_is_B: mfma(a, ACC + 16 * (2 * dt + sub), W, A_)
                else: mfma(a, ACC + 16 * (2 * dt + sub), A_, W)
        if opt.exp == "p4steps" and nks == 16 and i in (0, 1, 3, 5, 7, 9, 11, 13): stamp(a, {0: 2, 1: 3, 3: 4, 5: 5, 7: 9, 9: 10, 11: 11, 13: 12}[i], force=True)
        if opt.exp == "p5steps" and nks == 14 and i in (0, 1, 3, 5, 7, 9, 11, 13): stamp(a, {0: 2, 1: 3, 3: 4, 5: 5, 7: 6, 9: 10, 11: 11, 13: 7}[i], force=True)
        free.append(r)
        if frees_w: free.append(W0)
        if after_step: after_step(i, free)
        fill()
    a("s_nop 7"); a("s_nop 3")

def emit_retries(a, retries):
    for lr, lb, steps, s_act in retries:
        lp = a.uid("L_rp")
        r = steps[0][1]
        a.label(lr)
        a("s_mov_b32 s53, 0")
        a.label(lp)
        for k, rk in steps: act_load(a, s_act, k, rk)
        a("s_add_u32 s53, s53, 1")
        a("s_waitcnt vmcnt(0)")
        a("s_cmp_ge_u32 s53, 0x100000"); a(f"s_cbranch_scc1 {lb}")
        tag_check(a, [r, r + 4], lp)
        a(f"s_branch {lb}")

RING_BLOCKS = [8 + 8 * i for i in range(6)]
def reduce8(a, w2, tail_barrier):
    a(f"v_add_u32 v2, s{w2.SE}, v1"); a(f"v_add_u32 v3, s{w2.SM}, v1")
    a("s_waitcnt lgkmcnt(0)")
    for p in range(8):
        sub, half, dt = p & 1, (p >> 1) & 1, p >> 2
        for q in range(2):
            r = ACC + 16 * (2 * dt + sub) + 8 * half + 4 * q
            a(f"ds_write_b128 v{2 + (p >> 2)}, {vr(r,4)} offset:{(p & 3)*2048 + q*1024}")
    a("s_and_b32 s46, s3, 3"); a("s_lshl_b32 s46, s46, 11")
    a("s_mov_b32 s48, 65536"); a("s_cmp_lt_u32 s3, 4"); a("s_cselect_b32 s47, 98304, 0"); a("s_cselect_b32 s48, 32768, s48")
    a("s_add_u32 s46, s46, s47"); a("v_add_u32 v2, s46, v1"); a("v_add_u32 v3, s48, v2")
    a("s_waitcnt lgkmcnt(0)"); a("s_barrier")
    for src in range(8):
        for q in range(2):
            a(f"ds_read_b128 {vr(ACC + 8*src + 4*q, 4)}, v{2 + (src >> 2)} offset:{(src & 3)*8192 + q*1024}")
    for lvl, (wait, pairs) in enumerate(((12, [(0, 1)]), (8, [(2, 3)]), (4, [(4, 5)]), (0, [(6, 7)]))):
        a(f"s_waitcnt lgkmcnt({wait})")
        for x, y in pairs:
            for i in range(8): a(f"v_add_f32 v{ACC+8*x+i}, v{ACC+8*x+i}, v{ACC+8*y+i}")
        if lvl == 3 and tail_barrier: a("s_barrier")
    for x, y in ((0, 2), (4, 6), (0, 4)):
        for i in range(8): a(f"v_add_f32 v{ACC+8*x+i}, v{ACC+8*x+i}, v{ACC+8*y+i}")

def phase4v2(a, retries, w2):
    s_db = 26
    SB, SW2 = 32, 28
    a("s_and_b32 s46, s2, 7"); a("s_lshr_b32 s47, s2, 3")
    a("s_and_b32 s48, s46, 1"); a("s_lshl_b32 s48, s48, 2"); a("s_and_b32 s49, s47, 3"); a(f"s_add_u32 s{s_db}, s48, s49")
    srd(a, SB, P_B1, 1792 * 2)
    vq = VMQ(); w2.vq = vq
    if opt.exp != "earlybias":
        a("s_and_b32 s46, s3, 1"); a("s_lshl_b32 s46, s46, 6"); a("s_bfe_u32 s47, s3, 0x10001"); a("s_lshl_b32 s47, s47, 5")
        a("s_add_u32 s46, s46, s47"); a(f"s_add_u32 s46, s46, s{S_FB128}")
        a("v_lshrrev_b32 v2, 5, v0"); a("v_lshlrev_b32 v2, 3, v2")
        a(f"buffer_load_dwordx2 v[56:57], v2, s[{SB}:{SB+3}], s46 offen"); a(f"buffer_load_dwordx2 v[58:59], v2, s[{SB}:{SB+3}], s46 offen offset:16")
        vq.issue("bias", 2)
    a(f"s_lshl_b32 s46, s{s_db}, 18"); a("s_lshl_b32 s47, s3, 14"); a("s_add_u32 s46, s46, s47")
    a(f"s_add_u32 s54, s46, {LF}"); a(f"s_add_u32 s56, s46, {LF + 128*1024}")
    ldup, ljoin = a.uid("L_p4_idle"), a.uid("L_p4_join")
    if opt.exp == "skipdup":
        a(f"s_cmp_eq_u32 s{S_STU}, 0"); a(f"s_cbranch_scc1 {ldup}")
    def after4(i, free):
        j = i if 5 <= i <= 8 and i != 7 else None
        if j is not None: free.remove(WREG + 8 * j); w2.read(a, j)
        if i == 7: free.remove(WREG + 8 * 7); w2.read(a, 7)
        if i in (7, 9, 11, 13, 15):
            j = (i - 7) // 2; free.remove(WREG + 8 * j); w2.read(a, j)
    gemm8(a, vq, 16, (54, 56), True, retries, (3, 7, 11, 15), RING_BLOCKS, lambda i: WREG + 8 * i, True, after4)
    stamp(a, 7)
    reduce8(a, w2, True)
    for j in range(4):
        a(f"v_lshlrev_b32 v{16+2*j}, 16, v{56+j}"); a(f"v_and_b32 v{17+2*j}, 0xffff0000, v{56+j}")
    for i in range(8): a(f"v_add_f32 v{ACC+i}, v{ACC+i}, v{16+i}")
    a("s_mov_b32 s46, 0xc0135761")
    a("s_mov_b32 s47, 0xbdd2d3e8")
    a("v_mov_b32 v24, s46")
    for i in range(8): a(f"v_mul_f32 v{16+i}, v{ACC+i}, v{ACC+i}")
    for i in range(8): a(f"v_fma_f32 v{16+i}, v{16+i}, s47, v24")
    for i in range(8): a(f"v_mul_f32 v{16+i}, v{16+i}, v{ACC+i}")
    for i in range(8): a(f"v_exp_f32 v{16+i}, v{16+i}")
    for i in range(8): a(f"v_add_f32 v{16+i}, 1.0, v{16+i}")
    for i in range(8): a(f"v_rcp_f32 v{16+i}, v{16+i}")
    for i in range(8): a(f"v_mul_f32 v{16+i}, v{16+i}, v{ACC+i}")
    for j in range(4): a(f"v_cvt_pk_bf16_f32 v{28+j}, v{16+2*j}, v{17+2*j}")
    a("v_min_u32 v28, 0xfffffffe, v28")
    l = a.uid("L_nostu")
    a(f"s_cmp_eq_u32 s{S_STU}, 0"); a(f"s_cbranch_scc1 {l}")
    a(f"buffer_store_dwordx4 v[28:31], v1, s[36:39], s{S_UFA} offen sc1")
    a.label(l)
    if opt.exp == "skipdup":
        a(f"s_branch {ljoin}")
        a.label(ldup)
        a("s_waitcnt vmcnt(0)")
        for j in range(9):
            if j % 3 == 0 and j: a("s_waitcnt lgkmcnt(0)")
            w2.read(a, j)
        a("s_waitcnt lgkmcnt(0)")
        a.label(ljoin)
    if opt.exp != "w2late":
        w2.vq = None
        for j in range(9, 14): w2.dma(a, j)

def phase5v2(a, retries, w2):
    s_db, s_sb = 26, 27
    SB, SO = 32, 40
    a("; ---- P5: out = h + (u w2 + b2)^T")
    a("s_and_b32 s46, s2, 7"); a("s_lshr_b32 s47, s2, 3")
    a("s_lshl_b32 s48, s46, 2"); a("s_lshr_b32 s49, s47, 3"); a(f"s_add_u32 s{s_sb}, s48, s49"); a(f"s_and_b32 s{s_db}, s47, 7")
    srd(a, SB, P_B2, 2048 * 2); srd(a, SO, P_OUT, 2048 * 512 * 2)
    vq = VMQ(); vq.issue("ustore")
    a(f"s_lshl_b32 s46, s{s_sb}, 6"); a("s_and_b32 s47, s3, 1"); a("s_lshl_b32 s47, s47, 5"); a("s_add_u32 s46, s46, s47")
    a("v_and_b32 v2, 31, v0"); a("v_add_u32 v57, s46, v2"); a("v_lshlrev_b32 v2, 1, v57")
    if opt.exp != "earlybias": a(f"buffer_load_ushort v63, v2, s[{SB}:{SB+3}], 0 offen"); vq.issue("b2")
    a(f"s_mul_i32 s46, s{s_db}, {2*112*1024}"); a(f"s_mul_i32 s47, s3, {14*1024}"); a("s_add_u32 s46, s46, s47")
    a(f"s_add_u32 s54, s46, {UF}"); a(f"s_add_u32 s56, s46, {UF + 112*1024}")
    wblk = {j: WREG + 8 * j for j in range(9)}
    spare = [WREG + 8 * j for j in range(9, 16)]
    def rest_of_w2():
        if opt.exp != "w2late": return
        w2.vq = vq
        for j in range(9, 14): w2.dma(a, j)
    def after5(i, free):
        if i <= 1: free += [spare.pop(0), spare.pop(0)]
        if i == 2: free.append(spare.pop(0))
        if i == 6:
            vq.wait(a, "w2_13")
            for j in (9, 10): wblk[j] = spare.pop(0); w2.read(a, j, wblk[j])
        if i == 7:
            for j in (11, 12): wblk[j] = free.pop(0); w2.read(a, j, wblk[j])
        if i == 8:
            wblk[13] = free.pop(0); a("s_waitcnt lgkmcnt(8)"); w2.read(a, 13, wblk[13]); a("s_waitcnt lgkmcnt(4)")
        if i == 11: a("s_waitcnt lgkmcnt(0)")
    gemm8(a, vq, 14, (54, 56), False, retries, (1, 5, 9, 13), RING_BLOCKS, lambda i: wblk[i], False, after5, rest_of_w2)
    stamp(a, 9)
    reduce8(a, w2, False)
    a("v_lshlrev_b32 v56, 16, v63")
    for j in range(4):
        a(f"v_lshlrev_b32 v{20+2*j}, 16, v{HP+j}"); a(f"v_and_b32 v{21+2*j}, 0xffff0000, v{HP+j}")
    for i in range(8): a(f"v_add_f32 v{ACC+i}, v{ACC+i}, v56")
    for i in range(8): a(f"v_add_f32 v{ACC+i}, v{ACC+i}, v{20+i}")
    for j in range(4): a(f"v_cvt_pk_bf16_f32 v{28+j}, v{ACC+2*j}, v{ACC+2*j+1}")
    a("s_nop 1")
    a("v_permlane32_swap_b32 v28, v30"); a("v_permlane32_swap_b32 v29, v31")
    a("v_lshlrev_b32 v57, 10, v57"); a("v_lshrrev_b32 v2, 5, v0"); a("v_lshlrev_b32 v2, 4, v2"); a("v_add_u32 v57, v57, v2")
    a(f"s_lshl_b32 s46, s{s_db}, 7"); a("s_lshr_b32 s47, s3, 1"); a("s_lshl_b32 s47, s47, 5"); a("s_add_u32 s46, s46, s47")
    a(f"buffer_store_dwordx4 v[28:31], v57, s[{SO}:{SO+3}], s46 offen{opt.outflags}")

opt.outflags = ""
opt.p1stamps = False
opt.exp = None
opt.stamp_wave = 0
def build():
    phases.cfg.persist = True; phases.cfg.tags = True
    a = Asm()
    a.label(KNAME)
    end = "L_end"
    if opt.stamps: a("s_memrealtime s[74:75]")
    prologue(a, 256, end)
    if opt.stamps:
        for i in range(1, 16): a(f"s_mov_b32 s{STAMP0+i}, 0")
        a(f"s_mov_b32 s{STAMP0}, s74")
    if opt.diag == "pad100":
        a("s_memrealtime s[90:91]"); a("s_waitcnt lgkmcnt(0)")
    srd(a, SB_WS, P_WS, WS_SIZE); srd(a, 76, P_DBG, 256)
    a("v_mov_b32 v248, 252"); a("v_mov_b32 v247, 0")
    if opt.codepf:
        a("s_getpc_b64 s[62:63]")
        a.label("L_pcbase")
        a("s_lshl_b32 s60, s3, 13"); a("v_lshlrev_b32 v2, 7, v0"); a("v_add_u32 v2, s60, v2")
        a("s_mov_b32 s61, L_codeend-L_pcbase"); a("v_min_u32 v2, s61, v2")
        a("global_load_dword v249, v2, s[62:63]")
    lz = a.uid("L_zero")
    a("s_cmp_lg_u32 s2, 0"); a(f"s_cbranch_scc1 {lz}")
    a("s_cmp_lg_u32 s3, 7"); a(f"s_cbranch_scc1 {lz}")
    a("v_lshlrev_b32 v2, 8, v0"); a("v_mov_b32 v3, 0")
    a("v_cmp_gt_u32 vcc, 16, v0"); a("s_and_saveexec_b64 s[62:63], vcc")
    a(f"s_mov_b32 s60, {CNT}")
    a(f"buffer_store_dword v3, v2, s[{SB_WS}:{SB_WS+3}], s60 offen sc1")
    a("s_mov_b64 exec, s[62:63]")
    a.label(lz)
    map_addresses(a)
    phase1(a, {**({"after_dma": markers_p1} if opt.exp == "mk_p1" else {}), "post_x": zero_flag_store, "pre_store": zero_flag_load, "no_clear": True, "xfirst": True, "wtouch": opt.touch, "late_issue": True, "pipe_ln": opt.exp == "pipeln", **({"st": (lambda a, i: stamp(a, i, force=True))} if opt.p1stamps else {})})
    stamp(a, 1)
    l, lp = a.uid("L_zc"), a.uid("L_zp")
    a("s_cmp_lg_u32 s3, 0"); a(f"s_cbranch_scc1 {l}")
    a("s_mov_b32 s61, 0")
    a.label(lp)
    a("s_waitcnt vmcnt(0)")
    a("v_readfirstlane_b32 s64, v247"); a("s_add_u32 s61, s61, 1")
    a("s_cmp_lg_u32 s64, 0"); a(f"s_cbranch_scc1 {l}")
    a("buffer_load_dword v247, v248, s[76:79], 0 offen sc1")
    a("s_cmp_lt_u32 s61, 0x200000"); a(f"s_cbranch_scc1 {lp}")
    a.label(l)
    gp.arrive(a, 0, 27, 13)
    vq = VMQ(); pf = W1Pref()
    def dep2(a):
        pf.setup(a)
        a("s_and_b32 s65, s2, 7")
        gp.make_wait(0, 65, 32, 2)(a)
    phase2(a, {"dep": dep2, "vq": vq, "tile": pf.tile(vq),
               "loop_start": lambda a: (stamp(a, 10), stamp(a, 14, True)), "loop_end": lambda a: (stamp(a, 15, True), stamp(a, 11))})
    stamp(a, 3)
    late_check(a)
    retries = []
    w2 = W2Stage()
    phase3v2(a, w2)
    stamp(a, 6)
    phase4v2(a, retries, w2)
    stamp(a, 8)
    phase5v2(a, retries, w2)
    if opt.stamps:
        a("s_waitcnt vmcnt(0)")
        stamp(a, 12)
        ls = a.uid("L_st")
        a("s_lshl_b32 s61, s2, 3"); a("s_add_u32 s61, s61, s3"); a("s_lshl_b32 s61, s61, 6"); a("s_add_u32 s61, s61, 0xF00000"); a("v_mov_b32 v3, 0")
        for i in range(16):
            a(f"v_mov_b32 v2, s{STAMP0+i}")
            a(f"buffer_store_dword v2, v3, s[{SB_WS}:{SB_WS+3}], s61 offen offset:{4*i}")
        a(f"s_cmp_lg_u32 s2, {opt.stamp_wg}"); a(f"s_cbranch_scc1 {ls}"); a(f"s_cmp_lg_u32 s3, {opt.stamp_wave}"); a(f"s_cbranch_scc1 {ls}")
        for i in range(14):
            a(f"s_sub_u32 s60, s{STAMP0+i}, s74"); a(f"v_mov_b32 v2, s60"); a(f"v_mov_b32 v3, {4*i}")
            a("buffer_store_dword v2, v3, s[76:79], 0 offen")
        a.label(ls)
    if opt.diag == "pad100":
        a.label("L_dg"); a("s_memrealtime s[92:93]"); a("s_waitcnt lgkmcnt(0)"); a("s_sub_u32 s92, s92, s90"); a("s_cmp_lt_u32 s92, 10000"); a("s_cbranch_scc1 L_dg")
    a("s_endpgm")
    emit_retries(a, retries)
    a.label(end)
    a.label("L_codeend")
    a("s_endpgm")
    body = a.text()
    probs = check_hazards(body)
    for p in probs: print(p, file=sys.stderr)
    desc = f""".amdhsa_kernel {KNAME}
  .amdhsa_next_free_vgpr 256
  .amdhsa_next_free_sgpr 102
  .amdhsa_accum_offset 256
  .amdhsa_group_segment_fixed_size 0
  .amdhsa_kernarg_size 88
  .amdhsa_user_sgpr_count 2
  .amdhsa_user_sgpr_kernarg_segment_ptr 1
  .amdhsa_system_sgpr_workgroup_id_x 1
  .amdhsa_float_denorm_mode_32 3
.end_amdhsa_kernel
"""
    return (HEADER + "; @launch grid=(256,1,1) block=(512,1,1) lds=163840\n"
            + '.amdgcn_target "amdgcn-amd-amdhsa--gfx950"\n.text\n'
            + f".globl {KNAME}\n.p2align 8\n.type {KNAME},@function\n" + body
            + '.section .rodata,"a"\n.p2align 6\n' + desc)

if __name__ == "__main__":
    import argparse
    ap = argparse.ArgumentParser()
    ap.add_argument("-o", default=f"cdna_kernels/{NAME}.s")
    ap.add_argument("--stamps", action="store_true")
    ap.add_argument("--no-touch", action="store_true")
    ap.add_argument("--no-codepf", action="store_true")
    ap.add_argument("--diag", default=None)
    ap.add_argument("--outflags", default="")
    ap.add_argument("--p1stamps", action="store_true")
    ap.add_argument("--exp", default=None)
    ap.add_argument("--stamp-wg", type=int, default=0)
    ap.add_argument("--stamp-wave", type=int, default=0)
    args = ap.parse_args()
    opt.stamps = args.stamps; opt.touch = not args.no_touch; opt.codepf = not args.no_codepf; opt.diag = args.diag
    opt.stamp_wg = args.stamp_wg; opt.stamp_wave = args.stamp_wave
    opt.p1stamps = args.p1stamps; opt.exp = args.exp; phases.cfg.exp = args.exp
    opt.outflags = (" " + args.outflags) if args.outflags else ""
    open(args.o, "w").write(build())
    print("wrote", args.o)
```

```python
from asmlib import *

QF, KF, VF, OF, HF, LF, UF, XCH = 0x000000, 0x200000, 0x400000, 0x600000, 0x800000, 0xA00000, 0xC00000, 0xE00000
WS_SIZE = 0x1000000
P_X, P_WQKV, P_WO, P_W1, P_B1, P_W2, P_B2, P_OUT, P_DBG, P_WS = 4, 6, 8, 12, 14, 16, 18, 20, 22, 24
S_WG, S_WAVE = 2, 3
class Cfg:
    persist = False
    stamps = False
    tags = False
cfg = Cfg()
def SC(): return " sc1" if cfg.persist else ""
CNT = 0xE40000
V_HP = 200

def srd(a, dst, ptr, nbytes):
    a(f"s_mov_b32 s{dst}, s{ptr}")
    a(f"s_mov_b32 s{dst+1}, s{ptr+1}")
    a(f"s_mov_b32 s{dst+2}, {hex(nbytes)}")
    a(f"s_mov_b32 s{dst+3}, 0x20000")

def prologue(a, nwg, end_label):
    a(f"s_cmp_ge_u32 s2, {nwg}")
    a(f"s_cbranch_scc1 {end_label}")
    a("s_load_dwordx16 s[4:19], s[0:1], 0")
    a("s_load_dwordx4 s[20:23], s[0:1], 64")
    a("s_load_dwordx2 s[24:25], s[0:1], 80")
    a("v_lshrrev_b32 v1, 6, v0")
    a("v_and_b32 v0, 63, v0")
    a("v_readfirstlane_b32 s3, v1")
    a("s_waitcnt lgkmcnt(0)")

def dma(a, voff, srd_, soff, m0, offset=0, flags="", pre=None):
    if isinstance(m0, tuple):
        if m0[1] == 0: a(f"s_mov_b32 m0, s{m0[0]}")
        else: a(f"s_add_u32 m0, s{m0[0]}, {m0[1]}")
    elif m0 is not None:
        a(f"s_mov_b32 m0, {m0}")
    if pre: a(pre)
    elif m0 is not None: a("s_nop 0")
    o = f" offset:{offset}" if offset else ""
    so = f"s{soff}" if soff is not None else "0"
    a(f"buffer_load_dwordx4 v{voff}, s[{srd_}:{srd_+3}], {so} offen{o}{flags} lds")

def tr_lane_addr(a, dst, t0, t1, rowsel, colunit_sreg=None, colunit_imm=0):
    a(f"v_lshrrev_b32 v{t0}, 5, v0")
    a(f"v_lshlrev_b32 v{t0}, {3 if rowsel=='nat' else 2}, v{t0}")
    a(f"v_bfe_u32 v{t1}, v0, 2, 2")
    a(f"v_add_u32 v{t0}, v{t0}, v{t1}")
    a(f"v_lshlrev_b32 v{dst}, 7, v{t0}")
    a(f"v_bfe_u32 v{t0}, v0, 4, 1")
    a(f"v_lshlrev_b32 v{t0}, 1, v{t0}")
    a(f"v_bfe_u32 v{t1}, v0, 1, 1")
    a(f"v_add_u32 v{t0}, v{t0}, v{t1}")
    if colunit_sreg is not None: a(f"v_add_u32 v{t0}, s{colunit_sreg}, v{t0}")
    elif colunit_imm: a(f"v_add_u32 v{t0}, {colunit_imm}, v{t0}")
    a(f"v_bfe_u32 v{t1}, v0, 3, 1")
    a(f"v_lshlrev_b32 v{t1}, 2, v{t1}")
    a(f"v_xor_b32 v{t0}, v{t0}, v{t1}")
    a(f"v_lshlrev_b32 v{t0}, 4, v{t0}")
    a(f"v_add_u32 v{dst}, v{dst}, v{t0}")
    a(f"v_and_b32 v{t0}, 1, v0")
    a(f"v_lshlrev_b32 v{t0}, 3, v{t0}")
    a(f"v_add_u32 v{dst}, v{dst}, v{t0}")

def dma_row_voff(a, dst, t0, t1, row_stride):
    a(f"v_lshrrev_b32 v{t0}, 3, v0")
    a(f"s_mov_b32 s65, {row_stride}")
    a(f"v_mul_lo_u32 v{dst}, v{t0}, s65")
    a(f"v_bfe_u32 v{t0}, v0, 4, 1")
    a(f"v_lshlrev_b32 v{t0}, 2, v{t0}")
    a(f"v_and_b32 v{t1}, 7, v0")
    a(f"v_xor_b32 v{t0}, v{t0}, v{t1}")
    a(f"v_lshlrev_b32 v{t0}, 4, v{t0}")
    a(f"v_add_u32 v{dst}, v{dst}, v{t0}")

def mfma(a, d, A, B, c=None):
    if getattr(cfg, "fake16", False) and c is None:
        for q in range(2): a(f"v_mfma_f32_16x16x32_bf16 {vr(d+8*q,4)}, {vr(A,4)}, {vr(B,4)}, {vr(d+8*q,4)}")
        return
    cs = vr(d, 16) if c is None else c
    a(f"v_mfma_f32_32x32x16_bf16 {vr(d,16)}, {vr(A,4)}, {vr(B,4)}, {cs}")

def phase1(a, hooks=None):
    hooks = hooks or {}
    s_tb, s_g, s_tt, s_p = 26, 27, 44, 45
    SX, SW, SWS = 28, 32, 36
    a("s_and_b32 s46, s2, 7"); a("s_lshr_b32 s47, s2, 3")
    a("s_lshr_b32 s48, s46, 1"); a("s_lshl_b32 s48, s48, 3"); a("s_and_b32 s49, s47, 7"); a(f"s_add_u32 s{s_tb}, s48, s49")
    a("s_and_b32 s48, s46, 1"); a("s_lshl_b32 s48, s48, 2"); a("s_lshr_b32 s49, s47, 3"); a(f"s_add_u32 s{s_g}, s48, s49")
    if getattr(cfg, "exp", None) == "gswap": a(f"s_xor_b32 s{s_g}, s{s_g}, 4")
    a(f"s_and_b32 s{s_tt}, s3, 1"); a(f"s_bfe_u32 s{s_p}, s3, 0x10001")
    srd(a, SX, P_X, 2048 * 512 * 2); srd(a, SW, P_WQKV, 512 * 1536 * 2); srd(a, SWS, P_WS, WS_SIZE)
    XR, VSUM, VSQ, VT, VXW, VWD, VXA, VWA, ACC, XFR, WQ, WK = 8, 40, 41, 44, 46, 47, 48, 56, 64, 96, 104, 112
    a("v_lshrrev_b32 v1, 3, v0"); a("s_lshl_b32 s46, s3, 3"); a("v_add_u32 v2, s46, v1")
    a(f"s_lshl_b32 s47, s{s_tb}, 6"); a("v_add_u32 v3, s47, v2"); a("v_lshlrev_b32 v3, 10, v3")
    a("v_and_b32 v4, 7, v0"); a("v_lshlrev_b32 v5, 4, v4"); a("v_add_u32 v3, v3, v5")
    if hooks.get("marks_first"): hooks["after_dma"](a)
    for c in range(8):
        a(f"buffer_load_dwordx4 {vr(XR+4*c,4)}, v3, s[{SX}:{SX+3}], 0 offen offset:{c*128}")
    if hooks.get("xfirst"): a("s_barrier")
    dma_row_voff(a, VWD, 5, 6, 3072)
    a("s_mul_i32 s46, s3, 24576"); a(f"s_lshl_b32 s47, s{s_g}, 7"); a("s_add_u32 s46, s46, s47")
    a(f"v_add_u32 v{VWD}, s46, v{VWD}")
    a("s_lshl_b32 s50, s3, 10"); a("s_add_u32 s50, s50, 65536")
    vq0 = VMQ(); vq0.issue('x', 8)
    def issue_chunk(ch, vq):
        slot = ch & 3
        for seg in range(3):
            dma(a, VWD, SW, 51, (50, slot * 24576 + seg * 8192), pre=f"s_mov_b32 s51, {ch*64*3072 + seg*1024}")
        vq.issue(f"c{ch}", 3)
    late = hooks.get("late_issue")
    for ch in range(2 if late else 4): issue_chunk(ch, vq0)
    def wtouch():
        a("s_lshr_b32 s46, s2, 3"); a("s_and_b32 s46, s46, 7"); a("s_lshl_b32 s46, s46, 5"); a("s_and_b32 s47, s3, 1"); a("s_lshl_b32 s47, s47, 4")
        a("s_add_u32 s46, s46, s47"); a("s_add_u32 s46, s46, 256")
        a("v_and_b32 v6, 15, v0"); a("v_add_u32 v6, s46, v6"); a("s_movk_i32 s47, 3072"); a("v_mul_lo_u32 v6, v6, s47")
        a("s_lshr_b32 s46, s3, 1"); a("s_min_u32 s46, s46, 2"); a("s_lshl_b32 s46, s46, 10"); a(f"s_lshl_b32 s47, s{s_g}, 7"); a("s_add_u32 s46, s46, s47")
        a("v_cmp_gt_u32 vcc, 16, v0"); a("s_and_saveexec_b64 s[52:53], vcc")
        a(f"buffer_load_dword v125, v6, s[{SW}:{SW+3}], s46 offen")
        a("s_mov_b64 exec, s[52:53]")
        vq0.issue("touch", 1)
    if hooks.get("wtouch") and not late: wtouch()
    if "after_dma" in hooks and not late: vq0.issue("extra", hooks["after_dma"](a))
    if not hooks.get('no_clear'):
        a("v_mov_b32 v56, -1"); a("v_mov_b32 v57, -1"); a("v_mov_b32 v58, -1"); a("v_mov_b32 v59, -1")
        a("v_lshlrev_b32 v6, 4, v0"); a("s_lshl_b32 s46, s2, 9"); a(f"s_add_u32 s46, s46, {XCH}")
        lskip = a.uid("L_p1_noclr")
        a("s_cmp_lg_u32 s3, 0"); a(f"s_cbranch_scc1 {lskip}")
        a("v_cmp_gt_u32 vcc, 32, v0"); a("s_and_saveexec_b64 s[52:53], vcc")
        a(f"buffer_store_dwordx4 v[56:59], v6, s[{SWS}:{SWS+3}], s46 offen{SC()}")
        a("s_mov_b64 exec, s[52:53]")
        a.label(lskip)
    a("v_and_b32 v5, 15, v2"); a("v_xor_b32 v5, v5, v4"); a("v_lshlrev_b32 v5, 4, v5")
    a(f"v_lshlrev_b32 v{VXW}, 10, v2"); a(f"v_add_u32 v{VXW}, v{VXW}, v5"); a(f"v_xor_b32 v43, 128, v{VXW}")
    a("v_and_b32 v1, 31, v0"); a(f"s_lshl_b32 s46, s{s_tt}, 5"); a("v_add_u32 v1, s46, v1")
    a("v_and_b32 v2, 15, v1"); a("v_lshlrev_b32 v1, 10, v1"); a("v_lshrrev_b32 v3, 5, v0")
    for b in range(8):
        a(f"v_add_u32 v4, {2*b}, v3"); a("v_xor_b32 v4, v4, v2"); a("v_lshlrev_b32 v4, 4, v4"); a(f"v_add_u32 v{VXA+b}, v1, v4")
    a(f"s_lshl_b32 s46, s{s_p}, 2")
    tr_lane_addr(a, VWA, 1, 2, 'nat', colunit_sreg=46)
    a(f"v_add_u32 v{VWA}, 0x10000, v{VWA}"); a(f"v_add_u32 v{VWA+1}, 49152, v{VWA}")
    vq0.wait(a, "x")
    if "post_x" in hooks: hooks["post_x"](a)
    if "st" in hooks: hooks["st"](a, 4)
    a(f"v_mov_b32 v{VSUM}, 0"); a(f"v_mov_b32 v{VSQ}, 0"); a("v_mov_b32 v42, 0x3f803f80")
    for i in range(32):
        a(f"v_dot2c_f32_bf16 v{VSUM}, v{XR+i}, v42")
        a(f"v_dot2c_f32_bf16 v{VSQ}, v{XR+i}, v{XR+i}")
    a("s_nop 2")
    for mod in ("quad_perm:[1,0,3,2]", "quad_perm:[2,3,0,1]", "row_half_mirror"):
        a(f"v_add_f32_dpp v{VSUM}, v{VSUM}, v{VSUM} {mod} row_mask:0xf bank_mask:0xf")
        a(f"v_add_f32_dpp v{VSQ}, v{VSQ}, v{VSQ} {mod} row_mask:0xf bank_mask:0xf")
        a("s_nop 0")
    a(f"v_mul_f32 v{VSUM}, {1/512!r}, v{VSUM}".replace("0.001953125", "0x3b000000"))
    a(f"v_mul_f32 v{VSQ}, 0x3b000000, v{VSQ}")
    a(f"v_fma_f32 v{VSQ}, -v{VSUM}, v{VSUM}, v{VSQ}")
    a(f"v_max_f32 v{VSQ}, 0, v{VSQ}")
    a(f"v_add_f32 v{VSQ}, 0x3727c5ac, v{VSQ}")
    a(f"v_rsq_f32 v60, v{VSQ}")
    a("s_nop 0")
    a(f"v_mul_f32 v62, v{VSUM}, v60"); a("v_sub_f32 v62, 0, v62")
    def normalise(c):
        for i in range(4 * c, 4 * c + 4):
            t = VT if i % 2 == 0 else 120
            a(f"v_lshlrev_b32 v{t}, 16, v{XR+i}")
            a(f"v_and_b32 v{t+1}, 0xffff0000, v{XR+i}")
            a(f"v_pk_fma_f32 {vr(t,2)}, {vr(t,2)}, v[60:61], v[62:63] op_sel_hi:[1,0,0]")
            a(f"v_cvt_pk_bf16_f32 v{XR+i}, v{t}, v{t+1}")
        a(f"ds_write_b128 v{VXW if c % 2 == 0 else 43}, {vr(XR+4*c,4)} offset:{(c>>1)*256}")
    pipe_ln = bool(hooks.get("pipe_ln"))
    if pipe_ln:
        issue_chunk(2, vq0)
        normalise(0)
        issue_chunk(3, vq0)
        if hooks.get("wtouch"): wtouch()
    else:
        for c in range(8):
            if late and c == 1: issue_chunk(2, vq0)
            if late and c == 3: issue_chunk(3, vq0)
            if late and c == 6 and hooks.get("wtouch"): wtouch()
            normalise(c)
    lv, lend = a.uid("L_p1_v"), a.uid("L_p1_end")
    a("s_cmp_ge_u32 s3, 4"); a(f"s_cbranch_scc1 {lv}")
    def gemm(isv):
        n = 16 if isv else 32
        for i in range(n): a(f"v_mov_b32 v{ACC+i}, 0")
        D = 2
        XF3, WQ3, WK3 = 128, 140, 152
        def reads(ksg):
            ch, k = ksg >> 2, ksg & 3
            slot = ch & 3; base = VWA + (slot >> 1); off = (slot & 1) * 24576 + k * 2048
            b = ksg % 3
            a(f"ds_read_b128 {vr(XF3+4*b,4)}, v{VXA + (ksg & 7)} offset:{(ksg >> 3) * 256}")
            segs = (2,) if isv else (0, 1)
            for n_, seg in enumerate(segs):
                r = (WQ3 if n_ == 0 else WK3) + 4 * b
                a(f"ds_read_b64_tr_b16 {vr(r,2)}, v{base} offset:{off + seg*8192}")
                a(f"ds_read_b64_tr_b16 {vr(r+2,2)}, v{base} offset:{off + seg*8192 + 512}")
        nrd = 3 if isv else 5
        vq = VMQ(); vq.q = list(vq0.q)
        vq.wait(a, "c0", " lgkmcnt(0)"); a("s_barrier")
        if "st" in hooks: hooks["st"](a, 5)
        if "cyc0" in hooks: hooks["cyc0"](a)
        lq = []
        def lwait(tag):
            if tag in lq:
                last = len(lq) - 1 - lq[::-1].index(tag)
                n_ = len(lq) - 1 - last
                assert n_ <= 15
                a(f"s_waitcnt lgkmcnt({n_})"); del lq[:last + 1]
        def rd(n_): reads(n_); lq.extend([f"r{n_}"] * nrd)
        rd(0); rd(1)
        for ksg in range(32):
            ch, k = ksg >> 2, ksg & 3
            if k == 2 and ch < 7:
                if pipe_ln: lwait(f"x{ch+1}")
                if getattr(cfg, "exp", None) == "p1nowait": vq.q = []
                vq.wait(a, f"c{ch+1}")
                if getattr(cfg, "exp", None) != "p1nobar": a("s_barrier")
                if "st" in hooks and getattr(cfg, "exp", None) == "chunks": hooks["st"](a, [6, 7, 8, 9, 10, 11, 12][ch])
                elif "st" in hooks and ch == 3: hooks["st"](a, 6)
                elif "st" in hooks and ch == 6: hooks["st"](a, 7)
                if 1 <= ch <= 4: issue_chunk(ch + 3, vq)
                if late and ch == 5 and "after_dma" in hooks and not hooks.get("marks_first"): vq.issue("extra", hooks["after_dma"](a))
            if ksg + D < 32: rd(ksg + D)
            lwait(f"r{ksg}")
            if pipe_ln and k == 0 and ch < 7:
                pend = ch + 1
            else: pend = None
            b = ksg % 3
            if isv:
                mfma(a, ACC, XF3 + 4 * b, WQ3 + 4 * b)
            else:
                mfma(a, ACC, WQ3 + 4 * b, XF3 + 4 * b)
                mfma(a, ACC + 16, WK3 + 4 * b, XF3 + 4 * b)
            if pend is not None:
                normalise(pend); lq.append(f"x{pend}")
        if "cyc1" in hooks: hooks["cyc1"](a)
    gemm(False)
    a(f"s_lshl_b32 s46, s{s_g}, 2"); a(f"s_lshl_b32 s47, s{s_p}, 1"); a("s_add_u32 s46, s46, s47")
    a(f"s_lshl_b32 s47, s{s_tb}, 1"); a(f"s_add_u32 s47, s47, s{s_tt}")
    a("s_lshl_b32 s48, s46, 16"); a("s_lshl_b32 s49, s47, 10"); a("s_add_u32 s48, s48, s49")
    a("v_lshlrev_b32 v1, 4, v0")
    a("s_add_u32 s51, s48, 0x10000")
    a(f"s_add_u32 s52, s48, {KF}"); a(f"s_add_u32 s53, s51, {KF}")
    a("s_mov_b32 s54, 0x3eb8aa3b")
    a("s_nop 7")
    for i in range(16): a(f"v_mul_f32 v{ACC+i}, s54, v{ACC+i}")
    for i in range(8): a(f"v_cvt_pk_bf16_f32 v{XR+i}, v{ACC+2*i}, v{ACC+2*i+1}")
    for i in range(8): a(f"v_cvt_pk_bf16_f32 v{XR+8+i}, v{ACC+16+2*i}, v{ACC+16+2*i+1}")
    if "pre_store" in hooks: hooks["pre_store"](a)
    for n_, so in enumerate((48, 51, 52, 53)):
        a(f"buffer_store_dwordx4 {vr(XR+4*n_,4)}, v1, s[{SWS}:{SWS+3}], s{so} offen{SC()}")
    a(f"s_branch {lend}")
    a.label(lv)
    gemm(True)
    a(f"s_lshl_b32 s46, s{s_g}, 2"); a(f"s_lshl_b32 s47, s{s_p}, 1"); a("s_add_u32 s46, s46, s47")
    a(f"s_lshl_b32 s47, s{s_tb}, 1"); a(f"s_add_u32 s47, s47, s{s_tt}")
    a("s_lshl_b32 s48, s46, 16"); a("s_lshl_b32 s49, s47, 10"); a("s_add_u32 s48, s48, s49"); a(f"s_add_u32 s48, s48, {VF}")
    a("v_bfe_u32 v1, v0, 4, 1"); a("v_lshlrev_b32 v1, 16, v1"); a("v_lshrrev_b32 v2, 5, v0"); a("v_lshlrev_b32 v2, 8, v2")
    a("v_add_u32 v1, v1, v2"); a("v_and_b32 v2, 15, v0"); a("v_lshlrev_b32 v2, 4, v2"); a("v_add_u32 v1, v1, v2")
    a("s_nop 7")
    for i in range(8): a(f"v_cvt_pk_bf16_f32 v{XR+i}, v{ACC+2*i}, v{ACC+2*i+1}")
    if "pre_store" in hooks: hooks["pre_store"](a)
    a(f"buffer_store_dwordx4 {vr(XR,4)}, v1, s[{SWS}:{SWS+3}], s48 offen{SC()}")
    a(f"buffer_store_dwordx4 {vr(XR+4,4)}, v1, s[{SWS}:{SWS+3}], s48 offen offset:512{SC()}")
    a.label(lend)
P1_LDS = 163840

P2_LDS = 131072
class Att:
    Q, KFR, VFR, SA, SB, P, O, VK, VV = 4, 8, 16, 32, 48, 64, 72, 88, 89
def phase2(a, hooks=None):
    hooks = hooks or {}
    s_head, s_qb = 26, 27
    SWS = 36
    Q, KFR, VFR, SA, SB, P, O, VK, VV = Att.Q, Att.KFR, Att.VFR, Att.SA, Att.SB, Att.P, Att.O, Att.VK, Att.VV
    MASK = "s[56:57]"
    a("; ---- P2: attention")
    a("s_and_b32 s46, s2, 7"); a("s_lshr_b32 s47, s2, 3")
    a("s_lshl_b32 s48, s46, 2"); a("s_lshr_b32 s49, s47, 3"); a(f"s_add_u32 s{s_head}, s48, s49"); a(f"s_and_b32 s{s_qb}, s47, 7")
    srd(a, SWS, P_WS, WS_SIZE)
    a("v_lshlrev_b32 v1, 4, v0")
    a(f"s_lshl_b32 s46, s{s_head}, 16")
    a(f"s_lshl_b32 s47, s{s_qb}, 3"); a("s_add_u32 s47, s47, s3"); a("s_lshl_b32 s47, s47, 10"); a("s_add_u32 s47, s47, s46")
    a("s_lshl_b32 s48, s3, 11")
    a("s_add_u32 s49, s46, s48")
    a("s_mov_b32 s56, 0x0000ffff"); a("s_mov_b32 s57, 0x0000ffff")
    a("v_and_b32 v2, 27, v0"); a("v_cmp_eq_u32 vcc, 16, v2"); a("v_mov_b32 v3, 0x3f803f80"); a("v_mov_b32 v2, 0")
    a("v_cndmask_b32 v2, v2, v3, vcc")
    for i in range(16): a(f"v_mov_b32 v{VFR+i}, v2")
    a("v_and_b32 v2, 15, v0"); a("v_lshlrev_b32 v2, 4, v2"); a("v_lshrrev_b32 v3, 5, v0"); a("v_lshlrev_b32 v3, 8, v3"); a("v_add_u32 v91, v2, v3")
    a("v_add_u32 v91, 0x10000, v91")
    if "dep" in hooks: hooks["dep"](a)
    vq = hooks.get("vq") or VMQ()
    a(f"buffer_load_dwordx4 {vr(Q,4)}, v1, s[{SWS}:{SWS+3}], s47 offen{SC()}"); vq.issue("q")
    def kv_stage(st):
        vq.issue(f"kv{st}", 4)
        dma(a, 1, SWS, 50, (48, st * 16384), flags=SC(), pre=f"s_add_u32 s50, s49, {KF + st*16384}"); dma(a, 1, SWS, 50, None, offset=1024, flags=SC())
        dma(a, 1, SWS, 50, (48, 65536 + st * 16384), flags=SC(), pre=f"s_add_u32 s50, s49, {VF + st*16384}"); dma(a, 1, SWS, 50, None, offset=1024, flags=SC())
    staged = bool(getattr(cfg, "kvstaged", False))
    for st in range(1 if staged else 4): kv_stage(st)
    vq.wait(a, "kv0"); a("s_barrier")
    if "loop_start" in hooks: hooks["loop_start"](a)
    def vread(dst, off):
        a(f"s_mov_b64 exec, {MASK}")
        a(f"ds_read_b128 {vr(dst,4)}, v{VV} offset:{off}"); a(f"ds_read_b128 {vr(dst+4,4)}, v{VV} offset:{off+512}")
        a("s_mov_b64 exec, -1")
    def tile(t, S, SN, par, koff, voff, C):
        e = lambda i: a(f"v_exp_f32 v{S+i}, v{S+i}")
        c = lambda i: a(f"v_cvt_pk_bf16_f32 v{P+i}, v{S+2*i}, v{S+2*i+1}")
        e(0); e(1)
        mfma(a, O, VFR + 8 * (par ^ 1) + 4, P + 4)
        vread(VFR + 8 * (par ^ 1), voff)
        a(f"ds_read_b128 {vr(KFR+4*par,4)}, v{VK} offset:{koff}")
        e(2); e(3); e(4); e(5)
        a("s_waitcnt lgkmcnt(3)")
        mfma(a, SN, KFR + 4 * (par ^ 1), Q, C)
        if getattr(cfg, "prio", False): a("s_setprio 1")
        e(6); e(7); c(0); c(1); c(2); c(3); e(8); e(9)
        mfma(a, O, VFR + 8 * par, P)
        if getattr(cfg, "prio", False): a("s_setprio 0")
        for i in range(10, 16): e(i)
        c(4); c(5); c(6); c(7)
    def start(C):
        a(f"v_mov_b32 v{VK}, v1"); a(f"v_mov_b32 v{VV}, v91")
        a(f"ds_read_b128 {vr(KFR,4)}, v{VK}")
        vread(VFR, 0)
        a(f"ds_read_b128 {vr(KFR+4,4)}, v{VK} offset:1024")
        for i in range(16): a(f"v_mov_b32 v{O+i}, 0")
        for i in range(4): a(f"v_mov_b32 v{P+4+i}, 0")
        a(f"s_mov_b64 exec, {MASK}")
        for i in range(4): a(f"v_mov_b32 v{VFR+12+i}, 0")
        a("s_mov_b64 exec, -1")
        a("s_waitcnt lgkmcnt(3)")
        mfma(a, SA, KFR, Q, C)
        a("s_nop 7"); a("s_nop 3")
    def finish():
        a("s_nop 1")
        mfma(a, O, VFR + 8 + 4, P + 4)
        a("s_waitcnt lgkmcnt(0)")
        a("s_nop 7"); a("s_nop 3")
    start("0")
    for t in range(64):
        if t in (12, 28, 44):
            if t == 28: vq.wait(a, "markers")
            vq.wait(a, {12: "kv1", 28: "kv2", 44: "kv3"}[t]); a("s_barrier")
        if staged and t in (0, 1, 2): kv_stage(t + 1)
        if "tile" in hooks: hooks["tile"](a, t)
        if t == 48:
            pass
        S, SN = (SA, SB) if t % 2 == 0 else (SB, SA)
        tile(t, S, SN, t & 1, min((t + 2), 63) * 1024, min(t + 1, 63) * 1024, "0")
    finish()
    if "loop_end" in hooks: hooks["loop_end"](a)
    ldone, lmax, lloop = a.uid("L_p2_done"), a.uid("L_p2_maxl"), a.uid("L_p2_loop")
    a("v_mov_b32 v2, 0")
    for i in range(8): a(f"v_fmac_f32 v2, 0, v{O+i}")
    a(f"v_cmp_u_f32 s[58:59], v2, v2")
    a("s_mov_b32 s62, 0x5d800000")
    a(f"v_cmp_nge_f32 s[60:61], s62, v{O+8}")
    a("s_mov_b32 s62, 0x21800000")
    a(f"v_cmp_nle_f32 s[64:65], s62, v{O+8}")
    a("s_nop 3")
    a("s_or_b64 s[58:59], s[58:59], s[60:61]"); a("s_or_b64 s[58:59], s[58:59], s[64:65]")
    a("s_mov_b32 s55, 0")
    a("s_cmp_eq_u64 s[58:59], 0"); a(f"s_cbranch_scc1 {ldone}")
    a("s_mov_b32 s55, 1")
    CN = 96
    a(f"s_lshl_b32 s46, s{s_head}, 16"); a(f"s_add_u32 s47, s46, {KF}"); a(f"s_add_u32 s48, s46, {VF}")
    a("v_mov_b32 v2, 0xff800000"); a("s_mov_b32 s54, 0")
    a.label(lmax)
    a("s_add_u32 s49, s47, s54")
    a(f"buffer_load_dwordx4 {vr(KFR,4)}, v1, s[{SWS}:{SWS+3}], s49 offen{SC()}")
    a("s_waitcnt vmcnt(0)")
    mfma(a, SA, KFR, Q, "0")
    a("s_nop 7"); a("s_nop 3")
    for i in range(8): a(f"v_max3_f32 v2, v2, v{SA+2*i}, v{SA+2*i+1}")
    a("s_add_u32 s54, s54, 1024"); a("s_cmp_lt_u32 s54, 0x10000"); a(f"s_cbranch_scc1 {lmax}")
    a("v_mov_b32 v3, v2"); a("s_nop 1")
    a("v_permlane32_swap_b32 v2, v3"); a("s_nop 1")
    a("v_max_f32 v2, v2, v3"); a("v_sub_f32 v2, 0, v2")
    for i in range(16): a(f"v_mov_b32 v{CN+i}, v2")
    for i in range(16): a(f"v_mov_b32 v{O+i}, 0")
    a(f"v_subrev_u32 v{VV}, 0x10000, v91")
    a("s_mov_b32 s54, 0")
    a.label(lloop)
    a("s_add_u32 s49, s47, s54"); a("s_add_u32 s50, s48, s54")
    a(f"buffer_load_dwordx4 {vr(KFR,4)}, v1, s[{SWS}:{SWS+3}], s49 offen{SC()}")
    a(f"s_mov_b64 exec, {MASK}")
    a(f"buffer_load_dwordx4 {vr(VFR,4)}, v{VV}, s[{SWS}:{SWS+3}], s50 offen{SC()}")
    a(f"buffer_load_dwordx4 {vr(VFR+4,4)}, v{VV}, s[{SWS}:{SWS+3}], s50 offen offset:512{SC()}")
    a("s_mov_b64 exec, -1")
    a("s_waitcnt vmcnt(0)")
    mfma(a, SA, KFR, Q, vr(CN, 16))
    a("s_nop 7"); a("s_nop 3")
    for i in range(16): a(f"v_exp_f32 v{SA+i}, v{SA+i}")
    a("s_nop 0")
    for i in range(8): a(f"v_cvt_pk_bf16_f32 v{P+i}, v{SA+2*i}, v{SA+2*i+1}")
    a("s_nop 1")
    mfma(a, O, VFR, P); mfma(a, O, VFR + 4, P + 4)
    a("s_add_u32 s54, s54, 1024"); a("s_cmp_lt_u32 s54, 0x10000"); a(f"s_cbranch_scc1 {lloop}")
    a("s_nop 7"); a("s_nop 7")
    a.label(ldone)
    a(f"v_rcp_f32 v2, v{O+8}"); a("s_nop 0")
    for i in range(8): a(f"v_mul_f32 v{O+i}, v{O+i}, v2")
    for i in range(4): a(f"v_cvt_pk_bf16_f32 v{P+i}, v{O+2*i}, v{O+2*i+1}")
    if cfg.tags: a(f"v_min_u32 v{P}, 0xfffffffe, v{P}")
    a(f"s_lshl_b32 s47, s{s_qb}, 3"); a("s_add_u32 s47, s47, s3"); a("s_lshl_b32 s47, s47, 5"); a(f"s_add_u32 s47, s47, s{s_head}")
    a("s_lshl_b32 s47, s47, 10"); a(f"s_add_u32 s47, s47, {OF}")
    a(f"buffer_store_dwordx4 {vr(P,4)}, v1, s[{SWS}:{SWS+3}], s47 offen{SC()}")
    if "after" in hooks: hooks["after"](a)

def reduce_scatter(a, ACC, s_sub, s_kq, vtmp, T, base, sub_shift=15):
    a("s_barrier")
    a(f"s_lshl_b32 s46, s{s_sub}, {sub_shift}"); a(f"s_lshl_b32 s47, s{s_kq}, 11"); a("s_add_u32 s47, s47, s46"); a(f"s_add_u32 s47, s47, {base}")
    a(f"v_lshlrev_b32 v{vtmp}, 4, v0"); a(f"v_add_u32 v{vtmp+1}, s47, v{vtmp}")
    for pc in range(4):
        for half in range(2):
            r = ACC + 16 * (pc >> 1) + 8 * (pc & 1) + 4 * half
            a(f"ds_write_b128 v{vtmp+1}, {vr(r,4)} offset:{pc*8192 + half*1024}")
    a(f"s_lshl_b32 s47, s{s_kq}, 13"); a("s_add_u32 s47, s47, s46"); a(f"s_add_u32 s47, s47, {base}")
    a(f"v_add_u32 v{vtmp+1}, s47, v{vtmp}")
    a("s_waitcnt lgkmcnt(0)"); a("s_barrier")
    for src in range(4):
        for half in range(2):
            a(f"ds_read_b128 {vr(T + 8*src + 4*half, 4)}, v{vtmp+1} offset:{src*2048 + half*1024}")
    a("s_waitcnt lgkmcnt(4)")
    for i in range(8): a(f"v_add_f32 v{ACC+i}, v{T+i}, v{T+8+i}")
    a("s_waitcnt lgkmcnt(0)")
    for i in range(8): a(f"v_add_f32 v{T+16+i}, v{T+16+i}, v{T+24+i}")
    for i in range(8): a(f"v_add_f32 v{ACC+i}, v{ACC+i}, v{T+16+i}")

P3_LDS = 131072 + 4096
def phase3(a, hooks=None):
    hooks = hooks or {}
    s_tb, s_cb, s_tt, s_kq, s_ct, s_jp = 26, 27, 44, 45, 56, 57
    SWO, SWS, SX = 28, 36, 32
    OFR, XR, ACC, AF, T, VA = 8, 40, 64, 96, 104, 4
    a("s_and_b32 s46, s2, 7"); a("s_lshr_b32 s47, s2, 3")
    a("s_lshl_b32 s48, s46, 2"); a("s_lshr_b32 s49, s47, 3"); a(f"s_add_u32 s{s_tb}, s48, s49"); a(f"s_and_b32 s{s_cb}, s47, 7")
    a(f"s_and_b32 s{s_tt}, s3, 1"); a(f"s_lshr_b32 s{s_kq}, s3, 1")
    a(f"s_lshr_b32 s{s_ct}, s{s_kq}, 1"); a(f"s_and_b32 s{s_jp}, s{s_kq}, 1")
    srd(a, SWO, P_WO, 512 * 512 * 2); srd(a, SWS, P_WS, WS_SIZE); srd(a, SX, P_X, 2048 * 512 * 2)
    dma_row_voff(a, 2, 5, 6, 1024)
    a("s_lshl_b32 s46, s3, 16"); a(f"s_lshl_b32 s47, s{s_cb}, 7"); a("s_add_u32 s46, s46, s47"); a("v_add_u32 v2, s46, v2")
    a("s_lshl_b32 s50, s3, 13")
    for i in range(8):
        a(f"s_mov_b32 s51, {i*8192}")
        dma(a, 2, SWO, 51, (50, i * 1024))
    a("v_lshlrev_b32 v1, 4, v0")
    a(f"s_lshl_b32 s46, s{s_tb}, 1"); a(f"s_add_u32 s58, s46, s{s_tt}")
    a("v_and_b32 v3, 31, v0"); a("s_lshl_b32 s46, s58, 5"); a("v_add_u32 v3, s46, v3"); a("v_lshlrev_b32 v3, 10, v3")
    a("v_lshrrev_b32 v5, 5, v0"); a("v_lshlrev_b32 v5, 3, v5"); a("v_add_u32 v3, v3, v5")
    a(f"s_lshl_b32 s46, s{s_cb}, 7"); a(f"s_lshl_b32 s47, s{s_kq}, 5"); a("s_add_u32 s46, s46, s47")
    a(f"buffer_load_dwordx2 {vr(XR,2)}, v3, s[{SX}:{SX+3}], s46 offen")
    a(f"buffer_load_dwordx2 {vr(XR+2,2)}, v3, s[{SX}:{SX+3}], s46 offen offset:16")
    if "dep" in hooks: hooks["dep"](a)
    a(f"s_lshl_b32 s46, s58, 5"); a(f"s_lshl_b32 s47, s{s_kq}, 3"); a("s_add_u32 s46, s46, s47"); a("s_lshl_b32 s46, s46, 10"); a(f"s_add_u32 s46, s46, {OF}")
    for i in range(8):
        if i == 4: a("s_add_u32 s46, s46, 4096")
        a(f"buffer_load_dwordx4 {vr(OFR+4*i,4)}, v1, s[{SWS}:{SWS+3}], s46 offen offset:{(i&3)*1024}{SC()}")
    tr_lane_addr(a, VA, 5, 6, 'perm')
    a(f"s_lshl_b32 s46, s{s_kq}, 14"); a(f"v_add_u32 v{VA}, s46, v{VA}"); a(f"v_xor_b32 v{VA+1}, 64, v{VA}")
    for i in range(32): a(f"v_mov_b32 v{ACC+i}, 0")
    a("s_waitcnt vmcnt(0)"); a("s_barrier")
    def rd(i):
        for ct in range(2):
            r = AF + 8 * (i & 1) + 4 * ct
            a(f"ds_read_b64_tr_b16 {vr(r,2)}, v{VA+ct} offset:{i*2048}")
            a(f"ds_read_b64_tr_b16 {vr(r+2,2)}, v{VA+ct} offset:{i*2048+1024}")
    rd(0)
    for i in range(8):
        if i < 7: rd(i + 1); a("s_waitcnt lgkmcnt(4)")
        else: a("s_waitcnt lgkmcnt(0)")
        for ct in range(2): mfma(a, ACC + 16 * ct, AF + 8 * (i & 1) + 4 * ct, OFR + 4 * i)
    a("s_nop 7"); a("s_nop 3")
    reduce_scatter(a, ACC, s_tt, s_kq, 5, 112, 65536)
    H = 8
    for j in range(4):
        a(f"v_lshlrev_b32 v{H+2*j}, 16, v{XR+j}"); a(f"v_and_b32 v{H+2*j+1}, 0xffff0000, v{XR+j}")
    for i in range(8): a(f"v_add_f32 v{H+i}, v{H+i}, v{ACC+i}")
    HP = 16
    for j in range(4): a(f"v_cvt_pk_bf16_f32 v{HP+j}, v{H+2*j}, v{H+2*j+1}")
    a(f"s_lshl_b32 s46, s58, 5"); a(f"s_lshl_b32 s47, s{s_cb}, 2"); a("s_add_u32 s46, s46, s47"); a(f"s_add_u32 s46, s46, s{s_kq}")
    a("s_lshl_b32 s46, s46, 10"); a(f"s_add_u32 s46, s46, {HF}")
    if cfg.persist:
        for j in range(4): a(f"v_mov_b32 v{V_HP+j}, v{HP+j}")
    else:
        a(f"buffer_store_dwordx4 {vr(HP,4)}, v1, s[{SWS}:{SWS+3}], s46 offen")
    for j in range(4):
        a(f"v_lshlrev_b32 v{H+2*j}, 16, v{HP+j}"); a(f"v_and_b32 v{H+2*j+1}, 0xffff0000, v{HP+j}")
    a(f"v_add_f32 v20, v{H}, v{H+1}"); a(f"v_mul_f32 v21, v{H}, v{H}"); a(f"v_fmac_f32 v21, v{H+1}, v{H+1}")
    for i in range(2, 8):
        a(f"v_add_f32 v20, v20, v{H+i}"); a(f"v_fmac_f32 v21, v{H+i}, v{H+i}")
    a("v_mov_b32 v22, v20"); a("v_mov_b32 v23, v21"); a("s_nop 1")
    a("v_permlane32_swap_b32 v20, v22"); a("v_permlane32_swap_b32 v21, v23"); a("s_nop 1")
    a("v_add_f32 v20, v20, v22"); a("v_add_f32 v21, v21, v23")
    ST = 131072
    a("v_and_b32 v5, 31, v0"); a(f"s_lshl_b32 s46, s{s_tt}, 5"); a("v_add_u32 v5, s46, v5"); a("v_lshlrev_b32 v24, 3, v5")
    a(f"s_lshl_b32 s46, s{s_kq}, 9"); a(f"s_add_u32 s46, s46, {ST}"); a("v_add_u32 v6, s46, v24")
    a("v_cmp_gt_u32 vcc, 32, v0"); a("s_and_saveexec_b64 s[52:53], vcc")
    a("ds_write_b64 v6, v[20:21]")
    a("s_mov_b64 exec, s[52:53]")
    a("s_waitcnt lgkmcnt(0)"); a("s_barrier")
    lx = a.uid("L_p3_x")
    a("s_cmp_lg_u32 s3, 0"); a(f"s_cbranch_scc1 {lx}")
    a("v_lshlrev_b32 v5, 3, v0"); a(f"v_add_u32 v6, {ST}, v5")
    for q in range(4): a(f"ds_read_b64 {vr(26+2*q,2)}, v6 offset:{q*512}")
    a("s_waitcnt lgkmcnt(0)")
    a("v_add_f32 v26, v26, v28"); a("v_add_f32 v27, v27, v29"); a("v_add_f32 v30, v30, v32"); a("v_add_f32 v31, v31, v33")
    a("v_add_f32 v26, v26, v30"); a("v_add_f32 v27, v27, v31")
    a("v_cmp_eq_u32 vcc, -1, v26"); a("v_mov_b32 v28, 0x7fc00000"); a("s_nop 0"); a("v_cndmask_b32 v26, v26, v28, vcc")
    a("v_cmp_eq_u32 vcc, -1, v27"); a("s_nop 1"); a("v_cndmask_b32 v27, v27, v28, vcc")
    a(f"s_lshl_b32 s46, s{s_tb}, 12"); a(f"s_add_u32 s46, s46, {XCH}"); a(f"s_lshl_b32 s47, s{s_cb}, 9"); a("s_add_u32 s47, s47, s46")
    a(f"buffer_store_dwordx2 v[26:27], v5, s[{SWS}:{SWS+3}], s47 offen sc1")
    lp, lpd = a.uid("L_p3_poll"), a.uid("L_p3_pd")
    a("s_mov_b32 s48, 0")
    a.label(lp)
    for q in range(8): a(f"buffer_load_dwordx2 {vr(32+2*q,2)}, v5, s[{SWS}:{SWS+3}], s46 offen offset:{q*512} sc1")
    a("s_waitcnt vmcnt(0)")
    a("v_cmp_eq_u32 vcc, -1, v32")
    for q in range(1, 16):
        a(f"v_cmp_eq_u32 s[52:53], -1, v{32+q}"); a("s_or_b64 vcc, vcc, s[52:53]")
    a(f"s_cbranch_vccz {lpd}")
    a("s_add_u32 s48, s48, 1"); a("s_cmp_lt_u32 s48, 0x100000"); a(f"s_cbranch_scc1 {lp}")
    a.label(lpd)
    for q in range(1, 8):
        a(f"v_add_f32 v32, v32, v{32+2*q}"); a(f"v_add_f32 v33, v33, v{33+2*q}")
    a("v_mul_f32 v32, 0x3b000000, v32"); a("v_mul_f32 v33, 0x3b000000, v33")
    a("v_fma_f32 v33, -v32, v32, v33"); a("v_max_f32 v33, 0, v33")
    a("v_add_f32 v34, 0x3727c5ac, v33"); a("v_rsq_f32 v35, v34")
    a("s_nop 0")
    a("v_mul_f32 v36, v35, v35"); a("v_mul_f32 v36, v36, v33")
    a("v_add_f32 v36, 0x3727c5ac, v36"); a("v_rsq_f32 v36, v36")
    a("s_nop 0")
    a("v_mul_f32 v34, v35, v36"); a("v_mul_f32 v35, v32, v34"); a("v_sub_f32 v35, 0, v35")
    a(f"v_add_u32 v6, {ST + 2048}, v5")
    a("ds_write_b64 v6, v[34:35]")
    a("s_waitcnt lgkmcnt(0)")
    a.label(lx)
    a("s_barrier")
    a(f"v_add_u32 v6, {ST + 2048}, v24")
    a("ds_read_b64 v[20:21], v6")
    a("s_waitcnt lgkmcnt(0)")
    for i in range(8): a(f"v_fma_f32 v{H+i}, v{H+i}, v20, v21")
    for j in range(4): a(f"v_cvt_pk_bf16_f32 v{HP+j}, v{H+2*j}, v{H+2*j+1}")
    a("v_lshrrev_b32 v5, 3, v24")
    a("v_bfe_u32 v6, v5, 1, 1"); a("v_lshlrev_b32 v6, 2, v6")
    a(f"s_lshl_b32 s46, s{s_kq}, 1"); a("v_xor_b32 v6, s46, v6")
    a("v_lshlrev_b32 v6, 4, v6"); a("v_lshlrev_b32 v5, 7, v5"); a("v_add_u32 v5, v5, v6")
    a("v_lshrrev_b32 v6, 5, v0"); a("v_lshlrev_b32 v6, 3, v6"); a("v_add_u32 v5, v5, v6")
    a(f"ds_write_b64 v5, {vr(HP,2)}"); a(f"ds_write_b64 v5, {vr(HP+2,2)} offset:16")
    a(f"s_lshl_b32 s46, s{s_tt}, 2")
    tr_lane_addr(a, 7, 5, 6, 'perm', colunit_sreg=46)
    a(f"s_lshl_b32 s46, s{s_kq}, 11"); a("v_add_u32 v7, s46, v7")
    a("s_waitcnt lgkmcnt(0)"); a("s_barrier")
    a("ds_read_b64_tr_b16 v[24:25], v7"); a("ds_read_b64_tr_b16 v[26:27], v7 offset:1024")
    a(f"s_lshl_b32 s46, s{s_cb}, 1"); a(f"s_add_u32 s46, s46, s{s_tt}"); a("s_lshl_b32 s46, s46, 7")
    a(f"s_lshl_b32 s47, s{s_tb}, 2"); a("s_add_u32 s46, s46, s47"); a(f"s_add_u32 s46, s46, s{s_kq}")
    a("s_lshl_b32 s46, s46, 10"); a(f"s_add_u32 s46, s46, {LF}")
    a("s_waitcnt lgkmcnt(0)")
    a(f"buffer_store_dwordx4 v[24:27], v1, s[{SWS}:{SWS+3}], s46 offen{SC()}")

def big_gemm(a, nst, act_base_sregs, SWS, SW, VWD, w_stage_stride, s_sub, s_kq, act_is_B, ACC, dep=None):
    VL, VT, AF, WF = 4, 6, 96, 112
    a("v_lshlrev_b32 v1, 4, v0")
    a("s_lshl_b32 s50, s3, 11")
    a("s_lshl_b32 s51, s3, 11"); a("s_add_u32 s51, s51, 16384")
    def issue_act(s):
        slot = (s & 3) * 32768
        for dt in range(2):
            a(f"s_add_u32 s52, s{act_base_sregs[dt]}, {s*8192}")
            dma(a, 1, SWS, 52, (50, slot + dt * 1024), flags=SC())
    def issue_w(s):
        slot = (s & 3) * 32768
        for i in range(2):
            a(f"s_mov_b32 s52, {s*w_stage_stride + i*(w_stage_stride//16)}")
            dma(a, VWD, SW, 52, (51, slot + i * 1024))
    def issue(s): issue_act(s); issue_w(s)
    for s in range(4): issue_w(s)
    if dep: dep(a)
    for s in range(4): issue_act(s)
    a(f"s_lshl_b32 s46, s{s_kq}, 12"); a(f"v_add_u32 v{VL}, s46, v1"); a(f"v_add_u32 v{VL+1}, 0x10000, v{VL}")
    a(f"s_lshl_b32 s46, s{s_sub}, 2")
    tr_lane_addr(a, VT, 2, 3, 'perm', colunit_sreg=46)
    a(f"s_lshl_b32 s46, s{s_kq}, 12"); a("s_add_u32 s46, s46, 16384")
    a(f"v_add_u32 v{VT}, s46, v{VT}"); a(f"v_add_u32 v{VT+1}, 0x10000, v{VT}")
    for i in range(32): a(f"v_mov_b32 v{ACC+i}, 0")
    def reads(n):
        s, k = n >> 1, n & 1
        slot = s & 3; hi = slot >> 1; off = (slot & 1) * 32768
        par = n & 1
        for dt in range(2):
            a(f"ds_read_b128 {vr(AF + 8*par + 4*dt, 4)}, v{VL+hi} offset:{off + k*2048 + dt*1024}")
        a(f"ds_read_b64_tr_b16 {vr(WF + 4*par, 2)}, v{VT+hi} offset:{off + k*2048}")
        a(f"ds_read_b64_tr_b16 {vr(WF + 4*par + 2, 2)}, v{VT+hi} offset:{off + k*2048 + 1024}")
    a("s_waitcnt vmcnt(6)"); a("s_barrier")
    reads(0)
    N = 2 * nst
    for n in range(N):
        s, k = n >> 1, n & 1
        if k == 1 and s < nst - 1:
            if s <= 2: vm = {0: 4, 1: 2, 2: 4}[s]
            else: vm = 4 * (min(nst - 1, s + 2) - (s + 1))
            a(f"s_waitcnt vmcnt({vm})"); a("s_barrier")
            if s >= 1 and s + 3 < nst: issue(s + 3)
        if n < N - 1:
            reads(n + 1); a("s_waitcnt lgkmcnt(4)")
        else:
            a("s_waitcnt lgkmcnt(0)")
        par = n & 1
        for dt in range(2):
            if act_is_B: mfma(a, ACC + 16 * dt, WF + 4 * par, AF + 8 * par + 4 * dt)
            else: mfma(a, ACC + 16 * dt, AF + 8 * par + 4 * dt, WF + 4 * par)
    a("s_nop 7"); a("s_nop 3")

P45_LDS = 131072
def phase4(a, hooks=None):
    hooks = hooks or {}
    s_db, s_fb, s_ft, s_kq = 26, 27, 44, 45
    SW, SWS, SB = 28, 36, 32
    ACC = 64
    a("s_and_b32 s46, s2, 7"); a("s_lshr_b32 s47, s2, 3")
    a("s_and_b32 s48, s46, 1"); a("s_lshl_b32 s48, s48, 2"); a("s_and_b32 s49, s47, 3"); a(f"s_add_u32 s{s_db}, s48, s49")
    a("s_lshr_b32 s48, s46, 1"); a("s_mul_i32 s48, s48, 7"); a("s_lshr_b32 s49, s47, 2"); a(f"s_add_u32 s{s_fb}, s48, s49")
    a(f"s_and_b32 s{s_ft}, s3, 1"); a(f"s_lshr_b32 s{s_kq}, s3, 1")
    srd(a, SW, P_W1, 2048 * 1792 * 2); srd(a, SWS, P_WS, WS_SIZE); srd(a, SB, P_B1, 1792 * 2)
    dma_row_voff(a, 10, 2, 3, 3584)
    a("s_mul_i32 s46, s3, %d" % (16 * 3584)); a(f"s_lshl_b32 s47, s{s_fb}, 7"); a("s_add_u32 s46, s46, s47"); a("v_add_u32 v10, s46, v10")
    a(f"s_lshl_b32 s46, s{s_db}, 18"); a("s_lshl_b32 s47, s3, 10"); a("s_add_u32 s46, s46, s47")
    a(f"s_add_u32 s54, s46, {LF}"); a(f"s_add_u32 s55, s46, {LF + 128*1024}")
    a(f"s_lshl_b32 s46, s{s_fb}, 7"); a(f"s_lshl_b32 s47, s{s_ft}, 6"); a("s_add_u32 s46, s46, s47")
    a(f"s_and_b32 s47, s{s_kq}, 1"); a("s_lshl_b32 s47, s47, 5"); a("s_add_u32 s46, s46, s47")
    a("v_lshrrev_b32 v2, 5, v0"); a("v_lshlrev_b32 v2, 3, v2")
    a(f"buffer_load_dwordx2 v[12:13], v2, s[{SB}:{SB+3}], s46 offen"); a(f"buffer_load_dwordx2 v[14:15], v2, s[{SB}:{SB+3}], s46 offen offset:16")
    big_gemm(a, 16, (54, 55), SWS, SW, 10, 128 * 3584, s_ft, s_kq, True, ACC, hooks.get("dep"))
    reduce_scatter(a, ACC, s_ft, s_kq, 5, 112, 0)
    for j in range(4):
        a(f"v_lshlrev_b32 v{16+2*j}, 16, v{12+j}"); a(f"v_and_b32 v{17+2*j}, 0xffff0000, v{12+j}")
    for i in range(8): a(f"v_add_f32 v{ACC+i}, v{ACC+i}, v{16+i}")
    a("s_mov_b32 s46, 0xc0135761")
    a("s_mov_b32 s47, 0xbdd2d3e8")
    a("v_mov_b32 v24, s46")
    for i in range(8): a(f"v_mul_f32 v{16+i}, v{ACC+i}, v{ACC+i}")
    for i in range(8): a(f"v_fma_f32 v{16+i}, v{16+i}, s47, v24")
    for i in range(8): a(f"v_mul_f32 v{16+i}, v{16+i}, v{ACC+i}")
    for i in range(8): a(f"v_exp_f32 v{16+i}, v{16+i}")
    for i in range(8): a(f"v_add_f32 v{16+i}, 1.0, v{16+i}")
    for i in range(8): a(f"v_rcp_f32 v{16+i}, v{16+i}")
    for i in range(8): a(f"v_mul_f32 v{16+i}, v{16+i}, v{ACC+i}")
    for j in range(4): a(f"v_cvt_pk_bf16_f32 v{28+j}, v{16+2*j}, v{17+2*j}")
    a(f"s_lshl_b32 s46, s{s_db}, 1"); a(f"s_lshr_b32 s47, s{s_kq}, 1"); a("s_add_u32 s46, s46, s47"); a("s_mul_i32 s46, s46, 112")
    a(f"s_lshl_b32 s47, s{s_fb}, 2"); a("s_add_u32 s46, s46, s47"); a(f"s_lshl_b32 s47, s{s_ft}, 1"); a("s_add_u32 s46, s46, s47")
    a(f"s_and_b32 s47, s{s_kq}, 1"); a("s_add_u32 s46, s46, s47"); a("s_lshl_b32 s46, s46, 10"); a(f"s_add_u32 s46, s46, {UF}")
    a(f"buffer_store_dwordx4 v[28:31], v1, s[{SWS}:{SWS+3}], s46 offen{SC()}")

def phase5(a, hooks=None):
    hooks = hooks or {}
    s_db, s_sb, s_st, s_kq = 26, 27, 44, 45
    SW, SWS, SB, SO = 28, 36, 32, 40
    ACC = 64
    a("; ---- P5: out = h + (u w2 + b2)^T")
    a("s_and_b32 s46, s2, 7"); a("s_lshr_b32 s47, s2, 3")
    a("s_lshl_b32 s48, s46, 2"); a("s_lshr_b32 s49, s47, 3"); a(f"s_add_u32 s{s_sb}, s48, s49"); a(f"s_and_b32 s{s_db}, s47, 7")
    a(f"s_and_b32 s{s_st}, s3, 1"); a(f"s_lshr_b32 s{s_kq}, s3, 1")
    srd(a, SW, P_W2, 1792 * 2048 * 2); srd(a, SWS, P_WS, WS_SIZE); srd(a, SB, P_B2, 2048 * 2); srd(a, SO, P_OUT, 2048 * 512 * 2)
    dma_row_voff(a, 10, 2, 3, 4096)
    a("s_lshl_b32 s46, s3, 16"); a(f"s_lshl_b32 s47, s{s_sb}, 7"); a("s_add_u32 s46, s46, s47"); a("v_add_u32 v10, s46, v10")
    a(f"s_mul_i32 s46, s{s_db}, {2*112*1024}"); a("s_lshl_b32 s47, s3, 10"); a("s_add_u32 s46, s46, s47")
    a(f"s_add_u32 s54, s46, {UF}"); a(f"s_add_u32 s55, s46, {UF + 112*1024}")
    a(f"s_lshl_b32 s46, s{s_sb}, 1"); a(f"s_add_u32 s58, s46, s{s_st}")
    a("v_and_b32 v2, 31, v0"); a("s_lshl_b32 s46, s58, 5"); a("v_add_u32 v11, s46, v2")
    a("v_lshlrev_b32 v2, 1, v11")
    a(f"buffer_load_ushort v12, v2, s[{SB}:{SB+3}], 0 offen")
    a("s_lshl_b32 s46, s58, 5"); a(f"s_lshl_b32 s47, s{s_db}, 2"); a("s_add_u32 s46, s46, s47"); a(f"s_add_u32 s46, s46, s{s_kq}")
    a("s_lshl_b32 s46, s46, 10"); a(f"s_add_u32 s46, s46, {HF}")
    a("v_lshlrev_b32 v2, 4, v0")
    if cfg.persist:
        for j in range(4): a(f"v_mov_b32 v{16+j}, v{V_HP+j}")
    else:
        a(f"buffer_load_dwordx4 v[16:19], v2, s[{SWS}:{SWS+3}], s46 offen")
    big_gemm(a, 14, (54, 55), SWS, SW, 10, 128 * 4096, s_st, s_kq, False, ACC, hooks.get("dep"))
    reduce_scatter(a, ACC, s_st, s_kq, 5, 112, 0)
    a("v_lshlrev_b32 v12, 16, v12")
    for j in range(4):
        a(f"v_lshlrev_b32 v{20+2*j}, 16, v{16+j}"); a(f"v_and_b32 v{21+2*j}, 0xffff0000, v{16+j}")
    for i in range(8): a(f"v_add_f32 v{ACC+i}, v{ACC+i}, v12")
    for i in range(8): a(f"v_add_f32 v{ACC+i}, v{ACC+i}, v{20+i}")
    for j in range(4): a(f"v_cvt_pk_bf16_f32 v{28+j}, v{ACC+2*j}, v{ACC+2*j+1}")
    a("s_nop 1")
    a("v_permlane32_swap_b32 v28, v30"); a("v_permlane32_swap_b32 v29, v31")
    a("v_lshlrev_b32 v11, 10, v11"); a("v_lshrrev_b32 v2, 5, v0"); a("v_lshlrev_b32 v2, 4, v2"); a("v_add_u32 v11, v11, v2")
    a(f"s_lshl_b32 s46, s{s_db}, 7"); a(f"s_lshl_b32 s47, s{s_kq}, 5"); a("s_add_u32 s46, s46, s47")
    a(f"buffer_store_dwordx4 v[28:31], v11, s[{SO}:{SO+3}], s46 offen")
```

```python
import sys
from asmlib import *
import phases
from phases import *
import gen_persist as gp
from gen_persist import opt, stamp, SB_WS, STAMP0, HEADER, KNAME, NAME

S_OFA, S_LFA, S_UFA, S_FB128, S_STU = 96, 97, 98, 99, 100
WREG = 128
HP = 4
STG = 131072

def map_addresses(a):
    a("s_and_b32 s46, s2, 7"); a("s_lshr_b32 s47, s2, 3")
    a("s_lshl_b32 s48, s46, 2"); a("s_lshr_b32 s49, s47, 3"); a("s_add_u32 s48, s48, s49")
    a("s_and_b32 s49, s47, 7")
    a("s_lshl_b32 s50, s49, 3"); a("s_add_u32 s50, s50, s3"); a("s_lshl_b32 s50, s50, 5"); a("s_add_u32 s50, s50, s48")
    a("s_lshl_b32 s50, s50, 10"); a(f"s_add_u32 s{S_OFA}, s50, {OF}")
    a("s_lshl_b32 s50, s49, 1"); a("s_and_b32 s51, s3, 1"); a("s_add_u32 s50, s50, s51"); a("s_lshl_b32 s50, s50, 7")
    a("s_lshl_b32 s51, s48, 2"); a("s_add_u32 s50, s50, s51"); a("s_lshr_b32 s51, s3, 1"); a("s_add_u32 s50, s50, s51")
    a("s_lshl_b32 s50, s50, 10"); a(f"s_add_u32 s{S_LFA}, s50, {LF}")
    a("s_and_b32 s50, s46, 1"); a("s_lshl_b32 s50, s50, 2"); a("s_and_b32 s51, s47, 3"); a("s_add_u32 s50, s50, s51")
    a("s_lshr_b32 s51, s46, 1"); a("s_mul_i32 s51, s51, 7"); a("s_lshr_b32 s52, s47, 2"); a("s_min_u32 s52, s52, 6"); a("s_add_u32 s51, s51, s52")
    a(f"s_lshl_b32 s{S_FB128}, s51, 7")
    a("s_cmp_lt_u32 s47, 28"); a(f"s_cselect_b32 s{S_STU}, 1, 0")
    a("s_lshl_b32 s50, s50, 1"); a("s_lshr_b32 s52, s3, 2"); a("s_add_u32 s50, s50, s52"); a("s_mul_i32 s50, s50, 112")
    a("s_lshl_b32 s51, s51, 2"); a("s_add_u32 s50, s50, s51")
    a("s_and_b32 s51, s3, 1"); a("s_lshl_b32 s51, s51, 1"); a("s_add_u32 s50, s50, s51"); a("s_bfe_u32 s51, s3, 0x10001"); a("s_add_u32 s50, s50, s51")
    a("s_lshl_b32 s50, s50, 10"); a(f"s_add_u32 s{S_UFA}, s50, {UF}")

def markers(a):
    if opt.exp == "nomark": return 0
    for i in range(4): a(f"v_mov_b32 v{120+i}, -1")
    a("v_mov_b32 v124, v1")
    for s in (S_OFA, S_LFA):
        a(f"buffer_store_dwordx4 v[120:123], v124, s[{SB_WS}:{SB_WS+3}], s{s} offen sc1")
    a(f"s_cmp_eq_u32 s{S_STU}, 0"); a(f"s_cselect_b32 s60, s{S_LFA}, s{S_UFA}")
    a(f"buffer_store_dwordx4 v[120:123], v124, s[{SB_WS}:{SB_WS+3}], s60 offen sc1")
    a("s_lshl_b32 s60, s2, 9"); a("s_lshl_b32 s61, s3, 6"); a("s_add_u32 s60, s60, s61"); a(f"s_add_u32 s60, s60, {XCH}")
    a("v_cmp_gt_u32 vcc, 4, v0"); a("s_and_saveexec_b64 s[62:63], vcc")
    a(f"buffer_store_dwordx4 v[120:123], v124, s[{SB_WS}:{SB_WS+3}], s60 offen sc1")
    a("s_mov_b64 exec, s[62:63]")
    return 4

def markers_p1(a):
    a("v_lshlrev_b32 v1, 4, v0")
    return markers(a)

def zero_flag_load(a):
    l = a.uid("L_zf")
    a("s_cmp_lg_u32 s3, 0"); a(f"s_cbranch_scc1 {l}")
    a("buffer_load_dword v247, v248, s[76:79], 0 offen sc1")
    a.label(l)

def zero_flag_store(a):
    l = a.uid("L_zs")
    a("s_cmp_lg_u32 s2, 0"); a(f"s_cbranch_scc1 {l}"); a("s_cmp_lg_u32 s3, 7"); a(f"s_cbranch_scc1 {l}")
    a("v_mov_b32 v126, 1")
    a("v_cmp_eq_u32 vcc, 0, v0"); a("s_and_saveexec_b64 s[62:63], vcc")
    a("buffer_store_dword v126, v248, s[76:79], 0 offen sc1")
    a("s_mov_b64 exec, s[62:63]")
    a.label(l)

def wait_all_groups(k, target, st):
    def dep(a):
        l, lp = a.uid("L_wait"), a.uid("L_poll")
        a("s_cmp_lg_u32 s3, 0"); a(f"s_cbranch_scc1 {l}")
        a(f"s_mov_b32 s60, {CNT + k*2048}"); a("v_lshlrev_b32 v251, 8, v0"); a("s_mov_b32 s61, 0")
        a("v_cmp_gt_u32 vcc, 8, v0"); a("s_and_saveexec_b64 s[62:63], vcc")
        a.label(lp)
        a(f"buffer_load_dword v250, v251, s[{SB_WS}:{SB_WS+3}], s60 offen sc1")
        a("s_add_u32 s61, s61, 1")
        a("s_waitcnt vmcnt(0)")
        a(f"v_cmp_gt_u32 vcc, {target}, v250")
        lx = a.uid("L_wx")
        a(f"s_cbranch_vccz {lx}")
        a("s_cmp_lt_u32 s61, 0x200000"); a(f"s_cbranch_scc1 {lp}")
        a.label(lx)
        a("s_mov_b64 exec, s[62:63]")
        a.label(l)
        a("s_barrier")
        stamp(a, st)
    return dep

def late_check(a):
    l, lp = a.uid("L_lck"), a.uid("L_lcp")
    a("s_cmp_lg_u32 s3, 0"); a(f"s_cbranch_scc1 {l}")
    a("v_cmp_gt_u32 vcc, 32, v113")
    a(f"s_cbranch_vccz {l}")
    a("s_mov_b32 s61, 0"); a(f"s_mov_b32 s60, {CNT + (0 if opt.exp == 'mk_p1' else 2048)}")
    a.label(lp)
    a(f"buffer_load_dword v113, v112, s[{SB_WS}:{SB_WS+3}], s60 offen sc1")
    a("s_add_u32 s61, s61, 1")
    a("s_waitcnt vmcnt(0)")
    a("v_cmp_gt_u32 vcc, 32, v113")
    a(f"s_cbranch_vccz {l}")
    a("s_cmp_lt_u32 s61, 0x200000"); a(f"s_cbranch_scc1 {lp}")
    a.label(l)
    a("s_barrier")

def tag_check(a, regs_, lfail):
    a(f"v_cmp_eq_u32 vcc, -1, v{regs_[0]}")
    for r in regs_[1:]:
        a(f"v_cmp_eq_u32 s[62:63], -1, v{r}"); a("s_or_b64 vcc, vcc, s[62:63]")
    a(f"s_cbranch_vccnz {lfail}")

class W1Pref:
    VD, VT = 92, 93
    def setup(self, a):
        srd(a, 28, P_W1, 2048 * 1792 * 2); srd(a, 32, P_W2, 1792 * 2048 * 2); srd(a, 40, P_WO, 512 * 512 * 2)
        a("v_and_b32 v112, 7, v0"); a("v_lshlrev_b32 v112, 8, v112"); a("v_mov_b32 v113, 0")
        dma_row_voff(a, self.VD, 2, 3, 3584)
        a(f"s_mul_i32 s60, s3, {256*3584}"); a(f"s_add_u32 s60, s60, s{S_FB128}"); a(f"v_add_u32 v{self.VD}, s60, v{self.VD}")
        if "off" in opt.flags:
            for j in range(1, 4): a(f"v_add_u32 v{116 + j}, {j * (8 * 3584 - 1024)}, v{self.VD}")
        tr_lane_addr(a, self.VT, 2, 3, 'perm')
        a("s_lshl_b32 s59, s3, 12"); a(f"s_add_u32 s59, s59, {STG}")
        a(f"v_add_u32 v{self.VT}, s59, v{self.VT}"); a(f"v_xor_b32 v{self.VT+1}, 64, v{self.VT}")
        a("s_and_b32 s60, s2, 7"); a("s_lshr_b32 s61, s2, 3")
        dma_row_voff(a, 95, 2, 3, 1024)
        a("s_and_b32 s62, s61, 7"); a("s_lshl_b32 s62, s62, 7"); a("s_lshl_b32 s63, s3, 16"); a("s_add_u32 s62, s62, s63"); a("v_add_u32 v95, s62, v95")
        a("s_and_b32 s62, s3, 3"); a("s_lshl_b32 s62, s62, 13"); a("s_lshr_b32 s63, s3, 2"); a("s_lshl_b32 s63, s63, 16"); a("s_add_u32 s53, s62, s63")
        a("s_and_b32 s62, s61, 3"); a("s_lshl_b32 s62, s62, 6"); a("s_lshl_b32 s63, s3, 8"); a("s_add_u32 s62, s62, s63")
        a("v_add_u32 v116, s62, v0"); a("s_movk_i32 s63, 3584"); a("v_mul_lo_u32 v116, v116, s63"); a(f"v_add_u32 v116, s{S_FB128}, v116")
        a("s_lshl_b32 s62, s60, 2"); a("s_lshr_b32 s63, s61, 3"); a("s_add_u32 s62, s62, s63"); a("s_lshl_b32 s62, s62, 7")
        a("s_and_b32 s63, s61, 7"); a("s_mul_i32 s63, s63, 224"); a("s_mul_i32 s64, s3, 28"); a("s_add_u32 s63, s63, s64")
        a("v_min_u32 v96, 27, v0"); a("v_add_u32 v96, s63, v96"); a("v_lshlrev_b32 v96, 12, v96"); a("v_add_u32 v96, s62, v96")
    def tile(self, vq):
        def f(a, t):
            if t % 8 == 0:
                c = t // 8
                if "off" in opt.flags:
                    for j in range(4):
                        dma(a, self.VD if j == 0 else 116 + j, 28, 60, (59, 0) if j == 0 else None, offset=j * 1024,
                            pre=f"s_mov_b32 s60, {32*c*3584}" if j == 0 else None)
                else:
                    for j in range(4):
                        dma(a, self.VD, 28, 60, (59, j * 1024), pre=f"s_mov_b32 s60, {(32*c + 8*j)*3584}")
                vq.issue(f"w1_{c}", 4)
            if t % 8 == 7:
                c = t // 8
                vq.wait(a, f"w1_{c}")
                for kk in range(2):
                    for ft in range(2):
                        r = WREG + (2 * c + kk) * 8 + 4 * ft
                        a(f"ds_read_b64_tr_b16 {vr(r,2)}, v{self.VT+ft} offset:{kk*2048}")
                        a(f"ds_read_b64_tr_b16 {vr(r+2,2)}, v{self.VT+ft} offset:{kk*2048+1024}")
            if t in (45, 46):
                for i in range(4 * (t - 45), 4 * (t - 45) + 4):
                    dma(a, 95, 40, 60, (53, i * 1024), pre=f"s_mov_b32 s60, {i*8192}")
                vq.issue("wo", 4)
            MK = opt.exp == "mk_p1"
            if t == 1 and not MK:
                vq.issue("markers", markers(a))
            if t == 28 and not MK:
                l = a.uid("L_ma")
                a("s_cmp_lg_u32 s3, 0"); a(f"s_cbranch_scc1 {l}")
                a("s_and_b32 s60, s2, 7"); a("s_lshl_b32 s60, s60, 8"); a(f"s_add_u32 s60, s60, {CNT + 2048}")
                a("v_mov_b32 v114, 1"); a("v_mov_b32 v115, 0")
                a("v_cmp_eq_u32 vcc, 0, v0"); a("s_and_saveexec_b64 s[62:63], vcc")
                a(f"buffer_atomic_add v114, v115, s[{SB_WS}:{SB_WS+3}], s60 offen")
                a("s_mov_b64 exec, s[62:63]")
                a.label(l)
            if t == 52:
                l = a.uid("L_lc")
                a("s_cmp_lg_u32 s3, 0"); a(f"s_cbranch_scc1 {l}")
                a(f"s_mov_b32 s60, {CNT + (0 if MK else 2048)}")
                a(f"buffer_load_dword v113, v112, s[{SB_WS}:{SB_WS+3}], s60 offen sc1")
                a.label(l)
                vq.issue("maybe", 0)
            if opt.touch and t == 3 and opt.exp == "btouch":
                srd(a, 44, P_B1, 1792 * 2); a("v_lshlrev_b32 v117, 7, v0")
                a("buffer_load_dword v97, v117, s[44:47], 0 offen"); vq.issue("touch")
                srd(a, 44, P_B2, 2048 * 2)
                a("buffer_load_dword v97, v117, s[44:47], 0 offen"); vq.issue("touch")
            if opt.touch and t == 2 and opt.exp == "w1touch":
                a("buffer_load_dword v97, v116, s[28:31], 0 offen"); vq.issue("touch")
            if opt.touch:
                if t == 27:
                    a("buffer_load_dword v97, v96, s[32:35], 0 offen"); vq.issue("touch")
        return f

class W2Stage:
    VD, VP, SRD, SE, SX_, SM = 60, 61, 28, 59, 55, 57
    def __init__(self): self.vq = None
    def setup(self, a):
        srd(a, self.SRD, P_W2, 1792 * 2048 * 2)
        dma_row_voff(a, self.VD, 2, 3, 4096)
        a("s_and_b32 s60, s2, 7"); a("s_lshr_b32 s61, s2, 3")
        a("s_lshl_b32 s60, s60, 2"); a("s_lshr_b32 s61, s61, 3"); a("s_add_u32 s60, s60, s61"); a("s_lshl_b32 s60, s60, 7")
        a(f"s_mul_i32 s61, s3, {224*4096}"); a("s_add_u32 s60, s60, s61"); a(f"v_add_u32 v{self.VD}, s60, v{self.VD}")
        a(f"s_lshl_b32 s{self.SE}, s3, 13"); a(f"s_add_u32 s{self.SE}, s{self.SE}, 98304")
        a(f"s_lshl_b32 s{self.SX_}, s3, 11"); a(f"s_add_u32 s{self.SX_}, s{self.SX_}, 49152")
        a("s_and_b32 s60, s3, 3"); a("s_lshl_b32 s60, s60, 13"); a("s_lshr_b32 s61, s3, 2"); a("s_lshl_b32 s61, s61, 16"); a(f"s_add_u32 s{self.SM}, s60, s61")
        tr_lane_addr(a, self.VP, 2, 3, 'perm')
        a(f"v_xor_b32 v{self.VP+1}, 64, v{self.VP}")
    def slot(self, j):
        k = j if j < 9 else j - 9
        if k < 4: return self.SE, k * 2048
        if k == 4: return self.SX_, 0
        return self.SM, (k - 5) * 2048
    def dma(self, a, j):
        sreg, off = self.slot(j)
        for i in range(2):
            dma(a, self.VD, self.SRD, 60, (sreg, off + i * 1024), pre=f"s_mov_b32 s60, {(16*j + 8*i)*4096}")
        if self.vq is not None: self.vq.issue(f"w2_{j}", 2)
    def read(self, a, j, dst=None):
        sreg, off = self.slot(j)
        dst = WREG + 8 * j if dst is None else dst
        for st in range(2):
            a(f"v_add_u32 v{2+st}, s{sreg}, v{self.VP+st}")
        for st in range(2):
            r = dst + 4 * st
            a(f"ds_read_b64_tr_b16 {vr(r,2)}, v{2+st} offset:{off}")
            a(f"ds_read_b64_tr_b16 {vr(r+2,2)}, v{2+st} offset:{off+1024}")

def phase3v2(a, w2):
    s_tb, s_cb, s_tt, s_kq = 26, 27, 44, 45
    SWO, SWS, SX = 28, 36, 32
    OFR, XR, ACC, AF, VA = 8, 40, 64, 96, 44
    a("s_and_b32 s46, s2, 7"); a("s_lshr_b32 s47, s2, 3")
    a("s_lshl_b32 s48, s46, 2"); a("s_lshr_b32 s49, s47, 3"); a(f"s_add_u32 s{s_tb}, s48, s49"); a(f"s_and_b32 s{s_cb}, s47, 7")
    a(f"s_and_b32 s{s_tt}, s3, 1"); a(f"s_lshr_b32 s{s_kq}, s3, 1")
    srd(a, SWO, P_WO, 512 * 512 * 2); srd(a, SWS, P_WS, WS_SIZE); srd(a, SX, P_X, 2048 * 512 * 2)
    a(f"s_lshl_b32 s46, s{s_tb}, 1"); a(f"s_add_u32 s58, s46, s{s_tt}")
    a(f"s_lshl_b32 s46, s58, 5"); a(f"s_lshl_b32 s47, s{s_kq}, 3"); a("s_add_u32 s46, s46, s47"); a("s_lshl_b32 s46, s46, 10"); a(f"s_add_u32 s50, s46, {OF}")
    a("s_add_u32 s51, s50, 4096")
    def oloads():
        for i in range(8):
            a(f"buffer_load_dwordx4 {vr(OFR+4*i,4)}, v1, s[{SWS}:{SWS+3}], s{50 + (i >> 2)} offen offset:{(i&3)*1024} sc1")
    if "oprobe" in opt.flags:
        a("v_lshlrev_b32 v46, 10, v0"); a("v_add_u32 v46, 1008, v46"); a("s_mov_b32 s48, 0")
        a("v_cmp_gt_u32 vcc, 8, v0"); a("s_and_saveexec_b64 s[52:53], vcc")
        lp, lx_ = a.uid("L_o_probe"), a.uid("L_o_px")
        a.label(lp)
        a(f"buffer_load_dword v47, v46, s[{SWS}:{SWS+3}], s50 offen sc1")
        a("s_add_u32 s48, s48, 1")
        a("s_waitcnt vmcnt(0)")
        a("v_cmp_eq_u32 vcc, -1, v47")
        a(f"s_cbranch_vccz {lx_}")
        a("s_cmp_lt_u32 s48, 0x100000"); a(f"s_cbranch_scc1 {lp}")
        a.label(lx_)
        a("s_mov_b64 exec, s[52:53]")
    if "ackwait_o" in opt.flags: a("s_waitcnt vmcnt(0)")
    oloads()
    a("v_and_b32 v3, 31, v0"); a("s_lshl_b32 s46, s58, 5"); a("v_add_u32 v3, s46, v3"); a("v_lshlrev_b32 v3, 10, v3")
    a("v_lshrrev_b32 v46, 5, v0"); a("v_lshlrev_b32 v46, 3, v46"); a("v_add_u32 v3, v3, v46")
    a(f"s_lshl_b32 s46, s{s_cb}, 7"); a(f"s_lshl_b32 s47, s{s_kq}, 5"); a("s_add_u32 s46, s46, s47")
    a(f"buffer_load_dwordx2 {vr(XR,2)}, v3, s[{SX}:{SX+3}], s46 offen")
    a(f"buffer_load_dwordx2 {vr(XR+2,2)}, v3, s[{SX}:{SX+3}], s46 offen offset:16")
    tr_lane_addr(a, VA, 46, 47, 'perm')
    a(f"s_and_b32 s46, s{s_kq}, 1"); a("s_lshl_b32 s46, s46, 14"); a(f"s_lshr_b32 s47, s{s_kq}, 1"); a("s_lshl_b32 s47, s47, 16"); a("s_add_u32 s46, s46, s47")
    a(f"v_add_u32 v{VA}, s46, v{VA}"); a(f"v_xor_b32 v{VA+1}, 64, v{VA}")
    for i in range(32): a(f"v_mov_b32 v{ACC+i}, 0")
    a("s_waitcnt lgkmcnt(0)"); a("s_barrier")
    w2.setup(a)
    def rd(i):
        for ct in range(2):
            r = AF + 8 * (i & 3) + 4 * ct
            a(f"ds_read_b64_tr_b16 {vr(r,2)}, v{VA+ct} offset:{i*2048}")
            a(f"ds_read_b64_tr_b16 {vr(r+2,2)}, v{VA+ct} offset:{i*2048+1024}")
    for i in range(3): rd(i)
    if "early_after_o" not in opt.flags:
        for j in range(5): w2.dma(a, j)
        a("s_waitcnt vmcnt(10)")
    else:
        a("s_waitcnt vmcnt(0)")
    def biases():
        srd(a, 40, P_B1, 1792 * 2)
        a("s_and_b32 s46, s3, 1"); a("s_lshl_b32 s46, s46, 6"); a("s_bfe_u32 s47, s3, 0x10001"); a("s_lshl_b32 s47, s47, 5")
        a("s_add_u32 s46, s46, s47"); a(f"s_add_u32 s46, s46, s{S_FB128}")
        a("v_lshrrev_b32 v2, 5, v0"); a("v_lshlrev_b32 v2, 3, v2")
        a("buffer_load_dwordx2 v[56:57], v2, s[40:43], s46 offen"); a("buffer_load_dwordx2 v[58:59], v2, s[40:43], s46 offen offset:16")
        srd(a, 40, P_B2, 2048 * 2)
        a("v_and_b32 v2, 31, v0"); a("s_lshl_b32 s46, s58, 5"); a("v_add_u32 v2, s46, v2"); a("v_lshlrev_b32 v2, 1, v2")
        a("buffer_load_ushort v63, v2, s[40:43], 0 offen")
    lp, lr, lok = a.uid("L_o_poll"), a.uid("L_o_retry"), a.uid("L_o_ok")
    if "oprobe" not in opt.flags:
        a("s_mov_b32 s48, 0")
        a.label(lp)
        a("s_mov_b32 s49, 0")
        for i in range(8):
            ls_ = a.uid("L_o_sk")
            a(f"v_cmp_eq_u32 vcc, -1, v{OFR+4*i}")
            a(f"s_cbranch_vccz {ls_}")
            a(f"buffer_load_dwordx4 {vr(OFR+4*i,4)}, v1, s[{SWS}:{SWS+3}], s{50 + (i >> 2)} offen offset:{(i&3)*1024} sc1")
            a("s_mov_b32 s49, 1")
            a.label(ls_)
        a("s_cmp_eq_u32 s49, 0"); a(f"s_cbranch_scc1 {lok}")
        a("s_add_u32 s48, s48, 1")
        a("s_waitcnt vmcnt(0)")
        a("s_cmp_lt_u32 s48, 0x100000"); a(f"s_cbranch_scc1 {lp}")
        a.label(lok)
    else:
        tag_check(a, [OFR + 4 * i for i in range(8)], lr)
        a(f"s_branch {lok}")
        a.label(lr)
        a("s_mov_b32 s48, 0")
        a.label(lp)
        oloads()
        a("s_add_u32 s48, s48, 1")
        a("s_waitcnt vmcnt(0)")
        a("s_cmp_ge_u32 s48, 0x100000"); a(f"s_cbranch_scc1 {lok}")
        tag_check(a, [OFR + 4 * i for i in range(8)], lp)
        a.label(lok)
    stamp(a, 4)
    if "early_after_o" in opt.flags:
        for j in range(5): w2.dma(a, j)
    if opt.exp == "earlybias": biases()
    for i in range(8):
        if i + 3 < 8: rd(i + 3); a("s_waitcnt lgkmcnt(12)")
        else: a(f"s_waitcnt lgkmcnt({(7 - i) * 4})")
        for ct in range(2): mfma(a, ACC + 16 * ct, AF + 8 * (i & 3) + 4 * ct, OFR + 4 * i)
    a("s_nop 7"); a("s_nop 3")
    reduce_scatter(a, ACC, s_tt, s_kq, 46, 8, 0, sub_shift=16)
    H = 8
    for j in range(4):
        a(f"v_lshlrev_b32 v{H+2*j}, 16, v{XR+j}"); a(f"v_and_b32 v{H+2*j+1}, 0xffff0000, v{XR+j}")
    for i in range(8): a(f"v_add_f32 v{H+i}, v{H+i}, v{ACC+i}")
    for j in range(4): a(f"v_cvt_pk_bf16_f32 v{HP+j}, v{H+2*j}, v{H+2*j+1}")
    for j in range(4):
        a(f"v_lshlrev_b32 v{H+2*j}, 16, v{HP+j}"); a(f"v_and_b32 v{H+2*j+1}, 0xffff0000, v{HP+j}")
    a(f"v_add_f32 v20, v{H}, v{H+1}"); a(f"v_mul_f32 v21, v{H}, v{H}"); a(f"v_fmac_f32 v21, v{H+1}, v{H+1}")
    for i in range(2, 8):
        a(f"v_add_f32 v20, v20, v{H+i}"); a(f"v_fmac_f32 v21, v{H+i}, v{H+i}")
    a("v_mov_b32 v22, v20"); a("v_mov_b32 v23, v21"); a("s_nop 1")
    a("v_permlane32_swap_b32 v20, v22"); a("v_permlane32_swap_b32 v21, v23"); a("s_nop 1")
    a("v_add_f32 v20, v20, v22"); a("v_add_f32 v21, v21, v23")
    ST = 32768
    a("v_and_b32 v46, 31, v0"); a(f"s_lshl_b32 s46, s{s_tt}, 5"); a("v_add_u32 v46, s46, v46"); a("v_lshlrev_b32 v24, 3, v46")
    a(f"s_lshl_b32 s46, s{s_kq}, 9"); a(f"s_add_u32 s46, s46, {ST}"); a("v_add_u32 v47, s46, v24")
    a("v_cmp_gt_u32 vcc, 32, v0"); a("s_and_saveexec_b64 s[52:53], vcc")
    a("ds_write_b64 v47, v[20:21]")
    a("s_mov_b64 exec, s[52:53]")
    a("s_waitcnt lgkmcnt(0)"); a("s_barrier")
    lx, lx0, lx1 = a.uid("L_p3_x"), a.uid("L_p3_x0"), a.uid("L_p3_x1")
    a(f"s_lshl_b32 s46, s{s_tb}, 12"); a(f"s_add_u32 s46, s46, {XCH}"); a(f"s_lshl_b32 s47, s{s_cb}, 9"); a("s_add_u32 s47, s47, s46")
    a("v_lshlrev_b32 v48, 3, v0")
    a("s_cmp_eq_u32 s3, 0"); a(f"s_cbranch_scc1 {lx0}")
    a("s_cmp_lg_u32 s3, 1"); a(f"s_cbranch_scc1 {lx1}")
    a(f"v_add_u32 v49, {ST}, v48")
    for q in range(4): a(f"ds_read_b64 {vr(26+2*q,2)}, v49 offset:{q*512}")
    a("s_waitcnt lgkmcnt(0)")
    a("v_add_f32 v26, v26, v28"); a("v_add_f32 v27, v27, v29"); a("v_add_f32 v30, v30, v32"); a("v_add_f32 v31, v31, v33")
    a("v_add_f32 v26, v26, v30"); a("v_add_f32 v27, v27, v31")
    a("v_min_u32 v26, 0xfffffffe, v26"); a("v_min_u32 v27, 0xfffffffe, v27")
    a(f"buffer_store_dwordx2 v[26:27], v48, s[{SWS}:{SWS+3}], s47 offen sc1")
    a.label(lx1)
    if "pubbar" in opt.flags: a("s_barrier")
    if "middma_early" in opt.flags:
        for j in range(5, 9): w2.dma(a, j)
    a(f"s_branch {lx}")
    a.label(lx0)
    if "pubbar" in opt.flags: a("s_barrier")
    lp, lpd, lr = a.uid("L_p3_poll"), a.uid("L_p3_pd"), a.uid("L_p3_r")
    a("s_mov_b32 s48, 0")
    a.label(lp)
    for q in range(8): a(f"buffer_load_dwordx2 {vr(32+2*q,2)}, v48, s[{SWS}:{SWS+3}], s46 offen offset:{q*512} sc1")
    a("s_waitcnt vmcnt(0)")
    tag_check(a, list(range(32, 48)), lr)
    a(f"s_branch {lpd}")
    a.label(lr)
    a("s_add_u32 s48, s48, 1"); a("s_cmp_lt_u32 s48, 0x100000"); a(f"s_cbranch_scc1 {lp}")
    a.label(lpd)
    for q in range(1, 8):
        a(f"v_add_f32 v32, v32, v{32+2*q}"); a(f"v_add_f32 v33, v33, v{33+2*q}")
    a("v_mul_f32 v32, 0x3b000000, v32"); a("v_mul_f32 v33, 0x3b000000, v33")
    a("v_fma_f32 v33, -v32, v32, v33"); a("v_max_f32 v33, 0, v33")
    a("v_add_f32 v34, 0x3727c5ac, v33"); a("v_rsq_f32 v35, v34")
    a("s_nop 0")
    a("v_mul_f32 v36, v35, v35"); a("v_mul_f32 v36, v36, v33")
    a("v_add_f32 v36, 0x3727c5ac, v36"); a("v_rsq_f32 v36, v36")
    a("s_nop 0")
    a("v_mul_f32 v34, v35, v36"); a("v_mul_f32 v35, v32, v34"); a("v_sub_f32 v35, 0, v35")
    a(f"v_add_u32 v49, {ST + 2048}, v48")
    a("ds_write_b64 v49, v[34:35]")
    if "middma_early" in opt.flags:
        for j in range(5, 9): w2.dma(a, j)
    a("s_waitcnt lgkmcnt(0)")
    a.label(lx)
    a("s_barrier")
    stamp(a, 5)
    a(f"v_add_u32 v47, {ST + 2048}, v24")
    a("ds_read_b64 v[20:21], v47")
    a("s_waitcnt lgkmcnt(0)")
    for i in range(8): a(f"v_fma_f32 v{H+i}, v{H+i}, v20, v21")
    for j in range(4): a(f"v_cvt_pk_bf16_f32 v{16+j}, v{H+2*j}, v{H+2*j+1}")
    a("v_lshrrev_b32 v46, 3, v24")
    a("v_bfe_u32 v47, v46, 1, 1"); a("v_lshlrev_b32 v47, 2, v47")
    a(f"s_lshl_b32 s46, s{s_kq}, 1"); a("v_xor_b32 v47, s46, v47")
    a("v_lshlrev_b32 v47, 4, v47"); a("v_lshlrev_b32 v46, 7, v46"); a("v_add_u32 v46, v46, v47")
    a("v_lshrrev_b32 v47, 5, v0"); a("v_lshlrev_b32 v47, 3, v47"); a("v_add_u32 v46, v46, v47")
    a("ds_write_b64 v46, v[16:17] offset:36864"); a("ds_write_b64 v46, v[18:19] offset:36880")
    a(f"s_lshl_b32 s46, s{s_tt}, 2")
    tr_lane_addr(a, 48, 46, 47, 'perm', colunit_sreg=46)
    a(f"s_lshl_b32 s46, s{s_kq}, 11"); a("v_add_u32 v48, s46, v48")
    a("s_waitcnt lgkmcnt(0)"); a("s_barrier")
    a("ds_read_b64_tr_b16 v[24:25], v48 offset:36864"); a("ds_read_b64_tr_b16 v[26:27], v48 offset:37888")
    a("s_waitcnt lgkmcnt(0)")
    a("v_min_u32 v24, 0xfffffffe, v24")
    a(f"buffer_store_dwordx4 v[24:27], v1, s[{SWS}:{SWS+3}], s{S_LFA} offen sc1")
    if "middma_early" not in opt.flags:
        a("s_barrier")
        for j in range(5, 9): w2.dma(a, j)

RING = 8
NR = 6
ACC = 64
def act_load(a, s_act, i, r):
    for dt in range(2):
        a(f"s_add_u32 s52, s{s_act[dt]}, {i*1024}")
        a(f"buffer_load_dwordx4 {vr(r+4*dt,4)}, v1, s[36:39], s52 offen sc1")

def probe(a, s_act, probe_steps):
    a("v_lshrrev_b32 v2, 1, v0"); a(f"v_mov_b32 v3, {probe_steps[0]}")
    for n in range(1, 4):
        a(f"v_cmp_eq_u32 vcc, {n}, v2"); a(f"v_mov_b32 v8, {probe_steps[n]}"); a("s_nop 0"); a("v_cndmask_b32 v3, v3, v8, vcc")
    a("v_lshlrev_b32 v3, 10, v3"); a("v_add_u32 v3, 1008, v3")
    a("v_and_b32 v2, 1, v0"); a(f"s_sub_u32 s52, s{s_act[1]}, s{s_act[0]}"); a("v_mul_lo_u32 v2, v2, s52"); a("v_add_u32 v3, v3, v2")
    a("s_mov_b32 s53, 0")
    a("v_cmp_gt_u32 vcc, 8, v0"); a("s_and_saveexec_b64 s[62:63], vcc")
    lp, lx = a.uid("L_probe"), a.uid("L_px")
    a.label(lp)
    a(f"buffer_load_dword v8, v3, s[36:39], s{s_act[0]} offen sc1")
    a("s_add_u32 s53, s53, 1")
    a("s_waitcnt vmcnt(0)")
    a("v_cmp_eq_u32 vcc, -1, v8")
    a(f"s_cbranch_vccz {lx}")
    a("s_cmp_lt_u32 s53, 0x100000"); a(f"s_cbranch_scc1 {lp}")
    a.label(lx)
    a("s_mov_b64 exec, s[62:63]")

def gemm8(a, vq, nks, s_act, act_is_B, retries, probe_steps, free, wreg, frees_w, after_step=None, after_fill=None):
    dpoll = "dpoll" in opt.flags
    if dpoll and "ackwait" in opt.flags:
        a(f"s_waitcnt vmcnt({0 if nks == 16 else 10})")
    if not dpoll: probe(a, s_act, probe_steps)
    else: a("s_nop 0")
    if not dpoll: vq.q = []
    if (opt.exp == "p4steps" and nks == 16) or (opt.exp == "p5steps" and nks == 14): stamp(a, 1, force=True)
    if opt.exp == "probes": stamp(a, 1 if nks == 16 else 13, force=True)
    free = list(free); blk = {}; nxt = [0]
    def fill():
        while free and nxt[0] < nks:
            i = nxt[0]; blk[i] = free.pop(0); act_load(a, s_act, i, blk[i]); vq.issue(f"act{i}", 2); nxt[0] += 1
    fill()
    if after_fill: after_fill()
    for i in range(64): a(f"v_mov_b32 v{ACC+i}, 0")
    if dpoll:
        lp, lok = a.uid("L_dp"), a.uid("L_dpok")
        a("s_mov_b32 s53, 0")
        a.label(lp)
        a("s_waitcnt vmcnt(0)")
        a("s_mov_b32 s49, 0")
        for i in range(nxt[0]):
            for dt in range(2):
                ls_ = a.uid("L_dsk")
                a(f"v_cmp_eq_u32 vcc, -1, v{blk[i] + 4*dt}")
                a(f"s_cbranch_vccz {ls_}")
                a(f"s_add_u32 s52, s{s_act[dt]}, {i*1024}")
                a(f"buffer_load_dwordx4 {vr(blk[i]+4*dt,4)}, v1, s[36:39], s52 offen sc1")
                a("s_mov_b32 s49, 1")
                a.label(ls_)
        a("s_add_u32 s53, s53, 1")
        a("s_cmp_eq_u32 s49, 0"); a(f"s_cbranch_scc1 {lok}")
        a("s_cmp_lt_u32 s53, 0x100000"); a(f"s_cbranch_scc1 {lp}")
        a("s_waitcnt vmcnt(0)")
        a.label(lok)
        vq.q = []
    for i in range(nks):
        r = blk[i]
        vq.wait(a, f"act{i}")
        lr, lb = a.uid("L_retry"), a.uid("L_back")
        if opt.exp != "notag": tag_check(a, [r, r + 4], lr)
        a.label(lb)
        retries.append((lr, lb, [(k, blk[k]) for k in range(i, min(i + 4, nxt[0]))], s_act))
        W0 = wreg(i)
        for sub in range(2):
            for dt in range(2):
                W, A_ = W0 + 4 * sub, r + 4 * dt
                if opt.exp == "nomfma": continue
                if act_is_B: mfma(a, ACC + 16 * (2 * dt + sub), W, A_)
                else: mfma(a, ACC + 16 * (2 * dt + sub), A_, W)
        if opt.exp == "p4steps" and nks == 16 and i in (0, 1, 3, 5, 7, 9, 11, 13): stamp(a, {0: 2, 1: 3, 3: 4, 5: 5, 7: 9, 9: 10, 11: 11, 13: 12}[i], force=True)
        if opt.exp == "p5steps" and nks == 14 and i in (0, 1, 3, 5, 7, 9, 11, 13): stamp(a, {0: 2, 1: 3, 3: 4, 5: 5, 7: 6, 9: 10, 11: 11, 13: 7}[i], force=True)
        free.append(r)
        if frees_w: free.append(W0)
        if after_step: after_step(i, free)
        fill()
    a("s_nop 7"); a("s_nop 3")

def emit_retries(a, retries):
    for lr, lb, steps, s_act in retries:
        lp = a.uid("L_rp")
        r = steps[0][1]
        a.label(lr)
        a("s_mov_b32 s53, 0")
        a.label(lp)
        for k, rk in steps: act_load(a, s_act, k, rk)
        a("s_add_u32 s53, s53, 1")
        a("s_waitcnt vmcnt(0)")
        a("s_cmp_ge_u32 s53, 0x100000"); a(f"s_cbranch_scc1 {lb}")
        tag_check(a, [r, r + 4], lp)
        a(f"s_branch {lb}")

RING_BLOCKS = [8 + 8 * i for i in range(6)]
def reduce8(a, w2, tail_barrier):
    a(f"v_add_u32 v2, s{w2.SE}, v1"); a(f"v_add_u32 v3, s{w2.SM}, v1")
    a("s_waitcnt lgkmcnt(0)")
    for p in range(8):
        sub, half, dt = p & 1, (p >> 1) & 1, p >> 2
        for q in range(2):
            r = ACC + 16 * (2 * dt + sub) + 8 * half + 4 * q
            a(f"ds_write_b128 v{2 + (p >> 2)}, {vr(r,4)} offset:{(p & 3)*2048 + q*1024}")
    a("s_and_b32 s46, s3, 3"); a("s_lshl_b32 s46, s46, 11")
    a("s_mov_b32 s48, 65536"); a("s_cmp_lt_u32 s3, 4"); a("s_cselect_b32 s47, 98304, 0"); a("s_cselect_b32 s48, 32768, s48")
    a("s_add_u32 s46, s46, s47"); a("v_add_u32 v2, s46, v1"); a("v_add_u32 v3, s48, v2")
    a("s_waitcnt lgkmcnt(0)"); a("s_barrier")
    for src in range(8):
        for q in range(2):
            a(f"ds_read_b128 {vr(ACC + 8*src + 4*q, 4)}, v{2 + (src >> 2)} offset:{(src & 3)*8192 + q*1024}")
    for lvl, (wait, pairs) in enumerate(((12, [(0, 1)]), (8, [(2, 3)]), (4, [(4, 5)]), (0, [(6, 7)]))):
        a(f"s_waitcnt lgkmcnt({wait})")
        for x, y in pairs:
            for i in range(8): a(f"v_add_f32 v{ACC+8*x+i}, v{ACC+8*x+i}, v{ACC+8*y+i}")
        if lvl == 3 and tail_barrier: a("s_barrier")
    for x, y in ((0, 2), (4, 6), (0, 4)):
        for i in range(8): a(f"v_add_f32 v{ACC+8*x+i}, v{ACC+8*x+i}, v{ACC+8*y+i}")

def phase4v2(a, retries, w2):
    s_db = 26
    SB, SW2 = 32, 28
    a("s_and_b32 s46, s2, 7"); a("s_lshr_b32 s47, s2, 3")
    a("s_and_b32 s48, s46, 1"); a("s_lshl_b32 s48, s48, 2"); a("s_and_b32 s49, s47, 3"); a(f"s_add_u32 s{s_db}, s48, s49")
    srd(a, SB, P_B1, 1792 * 2)
    vq = VMQ(); w2.vq = vq
    if opt.exp != "earlybias":
        a("s_and_b32 s46, s3, 1"); a("s_lshl_b32 s46, s46, 6"); a("s_bfe_u32 s47, s3, 0x10001"); a("s_lshl_b32 s47, s47, 5")
        a("s_add_u32 s46, s46, s47"); a(f"s_add_u32 s46, s46, s{S_FB128}")
        a("v_lshrrev_b32 v2, 5, v0"); a("v_lshlrev_b32 v2, 3, v2")
        a(f"buffer_load_dwordx2 v[56:57], v2, s[{SB}:{SB+3}], s46 offen"); a(f"buffer_load_dwordx2 v[58:59], v2, s[{SB}:{SB+3}], s46 offen offset:16")
        vq.issue("bias", 2)
    a(f"s_lshl_b32 s46, s{s_db}, 18"); a("s_lshl_b32 s47, s3, 14"); a("s_add_u32 s46, s46, s47")
    a(f"s_add_u32 s54, s46, {LF}"); a(f"s_add_u32 s56, s46, {LF + 128*1024}")
    ldup, ljoin = a.uid("L_p4_idle"), a.uid("L_p4_join")
    if "skipdup" in opt.flags:
        a(f"s_cmp_eq_u32 s{S_STU}, 0"); a(f"s_cbranch_scc1 {ldup}")
    def after4(i, free):
        j = i if 5 <= i <= 8 and i != 7 else None
        if j is not None: free.remove(WREG + 8 * j); w2.read(a, j)
        if i == 7: free.remove(WREG + 8 * 7); w2.read(a, 7)
        if i in (7, 9, 11, 13, 15):
            j = (i - 7) // 2; free.remove(WREG + 8 * j); w2.read(a, j)
    phases.cfg.fake16 = 'fake45' in opt.flags
    gemm8(a, vq, 16, (54, 56), True, retries, (3, 7, 11, 15), RING_BLOCKS, lambda i: WREG + 8 * i, True, after4)
    stamp(a, 7)
    reduce8(a, w2, True)
    for j in range(4):
        a(f"v_lshlrev_b32 v{16+2*j}, 16, v{56+j}"); a(f"v_and_b32 v{17+2*j}, 0xffff0000, v{56+j}")
    for i in range(8): a(f"v_add_f32 v{ACC+i}, v{ACC+i}, v{16+i}")
    a("s_mov_b32 s46, 0xc0135761")
    a("s_mov_b32 s47, 0xbdd2d3e8")
    a("v_mov_b32 v24, s46")
    for i in range(8): a(f"v_mul_f32 v{16+i}, v{ACC+i}, v{ACC+i}")
    for i in range(8): a(f"v_fma_f32 v{16+i}, v{16+i}, s47, v24")
    for i in range(8): a(f"v_mul_f32 v{16+i}, v{16+i}, v{ACC+i}")
    for i in range(8): a(f"v_exp_f32 v{16+i}, v{16+i}")
    for i in range(8): a(f"v_add_f32 v{16+i}, 1.0, v{16+i}")
    for i in range(8): a(f"v_rcp_f32 v{16+i}, v{16+i}")
    for i in range(8): a(f"v_mul_f32 v{16+i}, v{16+i}, v{ACC+i}")
    for j in range(4): a(f"v_cvt_pk_bf16_f32 v{28+j}, v{16+2*j}, v{17+2*j}")
    a("v_min_u32 v28, 0xfffffffe, v28")
    l = a.uid("L_nostu")
    a(f"s_cmp_eq_u32 s{S_STU}, 0"); a(f"s_cbranch_scc1 {l}")
    a(f"buffer_store_dwordx4 v[28:31], v1, s[36:39], s{S_UFA} offen sc1")
    a.label(l)
    if "skipdup" in opt.flags:
        a(f"s_branch {ljoin}")
        a.label(ldup)
        a("s_waitcnt vmcnt(0)")
        for j in range(9):
            if j % 3 == 0 and j: a("s_waitcnt lgkmcnt(0)")
            w2.read(a, j)
        a("s_waitcnt lgkmcnt(0)")
        a.label(ljoin)
    if opt.exp != "w2late":
        w2.vq = None
        if "ubar" in opt.flags: a("s_barrier")
        for j in range(9, 14): w2.dma(a, j)

def phase5v2(a, retries, w2):
    s_db, s_sb = 26, 27
    SB, SO = 32, 40
    a("; ---- P5: out = h + (u w2 + b2)^T")
    a("s_and_b32 s46, s2, 7"); a("s_lshr_b32 s47, s2, 3")
    a("s_lshl_b32 s48, s46, 2"); a("s_lshr_b32 s49, s47, 3"); a(f"s_add_u32 s{s_sb}, s48, s49"); a(f"s_and_b32 s{s_db}, s47, 7")
    srd(a, SB, P_B2, 2048 * 2); srd(a, SO, P_OUT, 2048 * 512 * 2)
    vq = VMQ(); vq.issue("ustore")
    a(f"s_lshl_b32 s46, s{s_sb}, 6"); a("s_and_b32 s47, s3, 1"); a("s_lshl_b32 s47, s47, 5"); a("s_add_u32 s46, s46, s47")
    a("v_and_b32 v2, 31, v0"); a("v_add_u32 v57, s46, v2"); a("v_lshlrev_b32 v2, 1, v57")
    if opt.exp != "earlybias": a(f"buffer_load_ushort v63, v2, s[{SB}:{SB+3}], 0 offen"); vq.issue("b2")
    a(f"s_mul_i32 s46, s{s_db}, {2*112*1024}"); a(f"s_mul_i32 s47, s3, {14*1024}"); a("s_add_u32 s46, s46, s47")
    a(f"s_add_u32 s54, s46, {UF}"); a(f"s_add_u32 s56, s46, {UF + 112*1024}")
    wblk = {j: WREG + 8 * j for j in range(9)}
    spare = [WREG + 8 * j for j in range(9, 16)]
    def rest_of_w2():
        if opt.exp != "w2late": return
        w2.vq = vq
        for j in range(9, 14): w2.dma(a, j)
    def after5(i, free):
        if i <= 1: free += [spare.pop(0), spare.pop(0)]
        if i == 2: free.append(spare.pop(0))
        if i == 6:
            vq.wait(a, "w2_13")
            for j in (9, 10): wblk[j] = spare.pop(0); w2.read(a, j, wblk[j])
        if i == 7:
            for j in (11, 12): wblk[j] = free.pop(0); w2.read(a, j, wblk[j])
        if i == 8:
            wblk[13] = free.pop(0); a("s_waitcnt lgkmcnt(8)"); w2.read(a, 13, wblk[13]); a("s_waitcnt lgkmcnt(4)")
        if i == 11: a("s_waitcnt lgkmcnt(0)")
    gemm8(a, vq, 14, (54, 56), False, retries, (1, 5, 9, 13), RING_BLOCKS, lambda i: wblk[i], False, after5, rest_of_w2)
    phases.cfg.fake16 = False
    stamp(a, 9)
    reduce8(a, w2, False)
    a("v_lshlrev_b32 v56, 16, v63")
    for j in range(4):
        a(f"v_lshlrev_b32 v{20+2*j}, 16, v{HP+j}"); a(f"v_and_b32 v{21+2*j}, 0xffff0000, v{HP+j}")
    for i in range(8): a(f"v_add_f32 v{ACC+i}, v{ACC+i}, v56")
    for i in range(8): a(f"v_add_f32 v{ACC+i}, v{ACC+i}, v{20+i}")
    for j in range(4): a(f"v_cvt_pk_bf16_f32 v{28+j}, v{ACC+2*j}, v{ACC+2*j+1}")
    a("s_nop 1")
    a("v_permlane32_swap_b32 v28, v30"); a("v_permlane32_swap_b32 v29, v31")
    a("v_lshlrev_b32 v57, 10, v57"); a("v_lshrrev_b32 v2, 5, v0"); a("v_lshlrev_b32 v2, 4, v2"); a("v_add_u32 v57, v57, v2")
    a(f"s_lshl_b32 s46, s{s_db}, 7"); a("s_lshr_b32 s47, s3, 1"); a("s_lshl_b32 s47, s47, 5"); a("s_add_u32 s46, s46, s47")
    a(f"buffer_store_dwordx4 v[28:31], v57, s[{SO}:{SO+3}], s46 offen{opt.outflags}")

opt.outflags = ""
opt.p1stamps = False
opt.exp = None
opt.stamp_wave = 0
opt.flags = {'off', 'prio', 'dpoll', 'skipdup', 'ubar', 'middma_early', 'ackwait'}
def build():
    phases.cfg.persist = True; phases.cfg.tags = True
    a = Asm()
    a.label(KNAME)
    end = "L_end"
    if opt.stamps: a("s_memrealtime s[74:75]")
    prologue(a, 256, end)
    if opt.stamps:
        for i in range(1, 16): a(f"s_mov_b32 s{STAMP0+i}, 0")
        a(f"s_mov_b32 s{STAMP0}, s74")
    if opt.diag == "pad100":
        a("s_memrealtime s[90:91]"); a("s_waitcnt lgkmcnt(0)")
    srd(a, SB_WS, P_WS, WS_SIZE); srd(a, 76, P_DBG, 256)
    a("v_mov_b32 v248, 252"); a("v_mov_b32 v247, 0")
    if opt.codepf:
        a("s_getpc_b64 s[62:63]")
        a.label("L_pcbase")
        a("s_lshl_b32 s60, s3, 13"); a("v_lshlrev_b32 v2, 7, v0"); a("v_add_u32 v2, s60, v2")
        a("s_mov_b32 s61, L_codeend-L_pcbase"); a("v_min_u32 v2, s61, v2")
        a("global_load_dword v249, v2, s[62:63]")
    lz = a.uid("L_zero")
    a("s_cmp_lg_u32 s2, 0"); a(f"s_cbranch_scc1 {lz}")
    a("s_cmp_lg_u32 s3, 7"); a(f"s_cbranch_scc1 {lz}")
    a("v_lshlrev_b32 v2, 8, v0"); a("v_mov_b32 v3, 0")
    a("v_cmp_gt_u32 vcc, 16, v0"); a("s_and_saveexec_b64 s[62:63], vcc")
    a(f"s_mov_b32 s60, {CNT}")
    a(f"buffer_store_dword v3, v2, s[{SB_WS}:{SB_WS+3}], s60 offen sc1")
    a("s_mov_b64 exec, s[62:63]")
    a.label(lz)
    map_addresses(a)
    phases.cfg.fake16 = 'fake1' in opt.flags
    phase1(a, {**({"after_dma": markers_p1} if opt.exp == "mk_p1" else {}), "post_x": zero_flag_store, "pre_store": zero_flag_load, "no_clear": True, "xfirst": True, "wtouch": opt.touch, "late_issue": True, **({"cyc0": lambda a: (stamp(a, 10, force=True), stamp(a, 14, True, force=True)), "cyc1": lambda a: (stamp(a, 15, True, force=True), stamp(a, 11, force=True))} if "p1cyc" in opt.flags else {}), "pipe_ln": opt.exp == "pipeln", **({"st": (lambda a, i: stamp(a, i, force=True))} if opt.p1stamps else {})})
    phases.cfg.fake16 = False
    stamp(a, 1)
    l, lp = a.uid("L_zc"), a.uid("L_zp")
    a("s_cmp_lg_u32 s3, 0"); a(f"s_cbranch_scc1 {l}")
    a("s_mov_b32 s61, 0")
    a.label(lp)
    a("s_waitcnt vmcnt(0)")
    a("v_readfirstlane_b32 s64, v247"); a("s_add_u32 s61, s61, 1")
    a("s_cmp_lg_u32 s64, 0"); a(f"s_cbranch_scc1 {l}")
    a("buffer_load_dword v247, v248, s[76:79], 0 offen sc1")
    a("s_cmp_lt_u32 s61, 0x200000"); a(f"s_cbranch_scc1 {lp}")
    a.label(l)
    gp.arrive(a, 0, 27, 13)
    vq = VMQ(); pf = W1Pref()
    def dep2(a):
        pf.setup(a)
        a("s_and_b32 s65, s2, 7")
        gp.make_wait(0, 65, 32, 2)(a)
    phase2(a, {"dep": dep2, "vq": vq, "tile": pf.tile(vq),
               **({} if "p1cyc" in opt.flags else {"loop_start": lambda a: (stamp(a, 10), stamp(a, 14, True)), "loop_end": lambda a: (stamp(a, 15, True), stamp(a, 11))})})
    stamp(a, 3)
    late_check(a)
    retries = []
    w2 = W2Stage()
    phase3v2(a, w2)
    stamp(a, 6)
    phase4v2(a, retries, w2)
    stamp(a, 8)
    phase5v2(a, retries, w2)
    if opt.stamps:
        a("s_waitcnt vmcnt(0)")
        stamp(a, 12)
        ls = a.uid("L_st")
        a("s_lshl_b32 s61, s2, 3"); a("s_add_u32 s61, s61, s3"); a("s_lshl_b32 s61, s61, 6"); a("s_add_u32 s61, s61, 0xF00000"); a("v_mov_b32 v3, 0")
        for i in range(16):
            a(f"v_mov_b32 v2, s{STAMP0+i}")
            a(f"buffer_store_dword v2, v3, s[{SB_WS}:{SB_WS+3}], s61 offen offset:{4*i}")
        a(f"s_cmp_lg_u32 s2, {opt.stamp_wg}"); a(f"s_cbranch_scc1 {ls}"); a(f"s_cmp_lg_u32 s3, {opt.stamp_wave}"); a(f"s_cbranch_scc1 {ls}")
        for i in range(14):
            a(f"s_sub_u32 s60, s{STAMP0+i}, s74"); a(f"v_mov_b32 v2, s60"); a(f"v_mov_b32 v3, {4*i}")
            a("buffer_store_dword v2, v3, s[76:79], 0 offen")
        a.label(ls)
    if opt.diag == "pad100":
        a.label("L_dg"); a("s_memrealtime s[92:93]"); a("s_waitcnt lgkmcnt(0)"); a("s_sub_u32 s92, s92, s90"); a("s_cmp_lt_u32 s92, 10000"); a("s_cbranch_scc1 L_dg")
    a("s_endpgm")
    emit_retries(a, retries)
    a.label(end)
    a.label("L_codeend")
    a("s_endpgm")
    body = a.text()
    probs = check_hazards(body)
    for p in probs: print(p, file=sys.stderr)
    desc = f""".amdhsa_kernel {KNAME}
  .amdhsa_next_free_vgpr 256
  .amdhsa_next_free_sgpr 102
  .amdhsa_accum_offset 256
  .amdhsa_group_segment_fixed_size 0
  .amdhsa_kernarg_size 88
  .amdhsa_user_sgpr_count 2
  .amdhsa_user_sgpr_kernarg_segment_ptr 1
  .amdhsa_system_sgpr_workgroup_id_x 1
  .amdhsa_float_denorm_mode_32 3
.end_amdhsa_kernel
"""
    return (HEADER + "; @launch grid=(256,1,1) block=(512,1,1) lds=163840\n"
            + '.amdgcn_target "amdgcn-amd-amdhsa--gfx950"\n.text\n'
            + f".globl {KNAME}\n.p2align 8\n.type {KNAME},@function\n" + body
            + '.section .rodata,"a"\n.p2align 6\n' + desc)

if __name__ == "__main__":
    import argparse
    ap = argparse.ArgumentParser()
    ap.add_argument("-o", default=f"cdna_kernels/{NAME}.s")
    ap.add_argument("--stamps", action="store_true")
    ap.add_argument("--no-touch", action="store_true")
    ap.add_argument("--no-codepf", action="store_true")
    ap.add_argument("--diag", default=None)
    ap.add_argument("--outflags", default="")
    ap.add_argument("--p1stamps", action="store_true")
    ap.add_argument("--exp", default=None)
    ap.add_argument("--endonly", action="store_true")
    ap.add_argument("--flags", default="off,prio,dpoll,skipdup,ubar,middma_early,ackwait")
    ap.add_argument("--stamp-wg", type=int, default=0)
    ap.add_argument("--stamp-wave", type=int, default=0)
    args = ap.parse_args()
    opt.stamps = args.stamps; opt.touch = not args.no_touch; opt.codepf = not args.no_codepf; opt.diag = args.diag
    opt.endonly = args.endonly; opt.flags = set(args.flags.split(','))
    opt.stamp_wg = args.stamp_wg; opt.stamp_wave = args.stamp_wave
    opt.p1stamps = args.p1stamps; opt.exp = args.exp; phases.cfg.exp = args.exp; phases.cfg.prio = 'prio' in opt.flags; phases.cfg.kvstaged = 'kvstaged' in opt.flags
    opt.outflags = (" " + args.outflags) if args.outflags else ""
    open(args.o, "w").write(build())
    print("wrote", args.o)
```

```python
import sys
from asmlib import *
import phases
from phases import *
NAME = "sequential_preLN__mha_block__mixer_token_mlp__prompt"
HEADER = open("cdna_kernels/%s.s.ref" % NAME).read().split("; Override launch")[0]
KNAME = NAME + "_kernel"
SB_WS = 68
STAMP0 = 80

class Opt:
    stamps = False
    touch = True
    codepf = True
    stamp_wg = 0
    diag = None
opt = Opt()

def stamp(a, i, cyc=False, force=False):
    if getattr(opt, "endonly", False) and i not in (0, 12): return
    if getattr(opt, "p1stamps", False) and i in (4, 5, 6, 7) and not force: return
    if getattr(opt, "exp", None) == "p45" and i in (1, 4, 5, 13) and not force: return
    if getattr(opt, "exp", None) == "p4steps" and i in (1, 2, 3, 4, 5, 9, 10, 11, 12, 13) and not force: return
    if getattr(opt, "exp", None) == "p5steps" and i in (1, 2, 3, 4, 5, 6, 7, 10, 11, 13) and not force: return
    if getattr(opt, "exp", None) == "probes" and i in (1, 13) and not force: return
    if getattr(opt, "exp", None) == "p3steps" and i in (1, 2, 13) and not force: return
    if getattr(opt, "exp", None) == "chunks" and i in (8, 9, 10, 11, 12) and not force: return
    if opt.stamps:
        a(f"{'s_memtime' if cyc else 's_memrealtime'} s[72:73]"); a("s_waitcnt lgkmcnt(0)"); a(f"s_mov_b32 s{STAMP0+i}, s72")

def arrive(a, k, s_group, st=None):
    l = a.uid("L_arr")
    a("s_waitcnt vmcnt(0)")
    if st is not None: stamp(a, st)
    a("s_barrier")
    a("s_cmp_lg_u32 s3, 0"); a(f"s_cbranch_scc1 {l}")
    a(f"s_lshl_b32 s60, s{s_group}, 8"); a(f"s_add_u32 s60, s60, {CNT + k*2048}")
    a("v_mov_b32 v250, 1"); a("v_mov_b32 v251, 0")
    a("v_cmp_eq_u32 vcc, 0, v0"); a("s_and_saveexec_b64 s[62:63], vcc")
    a(f"buffer_atomic_add v250, v251, s[{SB_WS}:{SB_WS+3}], s60 offen")
    a("s_mov_b64 exec, s[62:63]")
    a.label(l)

def make_wait(k, s_group, target, st=None):
    def dep(a):
        l, lp = a.uid("L_wait"), a.uid("L_poll")
        a("s_cmp_lg_u32 s3, 0"); a(f"s_cbranch_scc1 {l}")
        a(f"s_lshl_b32 s60, s{s_group}, 8"); a(f"s_add_u32 s60, s60, {CNT + k*2048}")
        a("v_mov_b32 v251, 0"); a("s_mov_b32 s61, 0")
        if "b1ack" in getattr(opt, "flags", ()): a("s_waitcnt vmcnt(0)")
        a.label(lp)
        a(f"buffer_load_dword v250, v251, s[{SB_WS}:{SB_WS+3}], s60 offen sc1")
        a("s_waitcnt vmcnt(0)")
        a("v_readfirstlane_b32 s64, v250")
        a("s_add_u32 s61, s61, 1")
        a(f"s_cmp_ge_u32 s64, {target}"); a(f"s_cbranch_scc1 {l}")
        sl = [f for f in getattr(opt, "flags", ()) if f.startswith("b1sleep")]
        if sl: a(f"s_sleep {int(sl[0][7:])}")
        a("s_cmp_lt_u32 s61, 0x200000"); a(f"s_cbranch_scc1 {lp}")
        a.label(l)
        a("s_barrier")
        if st is not None: stamp(a, st)
    return dep

def build():
    phases.cfg.persist = True
    a = Asm()
    a.label(KNAME)
    end = "L_end"
    if opt.stamps: a("s_memrealtime s[74:75]")
    prologue(a, 256, end)
    if opt.stamps:
        for i in range(1, 16): a(f"s_mov_b32 s{STAMP0+i}, 0")
        a(f"s_mov_b32 s{STAMP0}, s74")
    if opt.diag == "pad100":
        a("s_memrealtime s[90:91]"); a("s_waitcnt lgkmcnt(0)")
    if opt.diag == "cyc_start":
        a("s_mov_b32 s90, 2000"); a.label("L_dg"); a("s_nop 7"); a("s_nop 7"); a("s_nop 7"); a("s_nop 7"); a("s_sub_u32 s90, s90, 1"); a("s_cmp_lg_u32 s90, 0"); a("s_cbranch_scc1 L_dg")
    srd(a, SB_WS, P_WS, WS_SIZE)
    srd(a, 76, P_DBG, 256)
    a("v_mov_b32 v248, 252"); a("v_mov_b32 v247, 0")
    if opt.codepf:
        lc = a.uid("L_cpf")
        a("s_getpc_b64 s[62:63]")
        a.label("L_pcbase")
        a("s_lshl_b32 s60, s3, 13"); a("v_lshlrev_b32 v2, 7, v0"); a("v_add_u32 v2, s60, v2")
        a("s_mov_b32 s61, L_codeend-L_pcbase"); a("v_min_u32 v2, s61, v2")
        a("global_load_dword v249, v2, s[62:63]")
        a.label(lc)
    lz = a.uid("L_zero")
    a("s_cmp_lg_u32 s2, 0"); a(f"s_cbranch_scc1 {lz}")
    a("s_cmp_lg_u32 s3, 7"); a(f"s_cbranch_scc1 {lz}")
    a("v_lshlrev_b32 v2, 8, v0"); a("v_mov_b32 v3, 0")
    a("v_cmp_gt_u32 vcc, 32, v0"); a("s_and_saveexec_b64 s[62:63], vcc")
    a(f"s_mov_b32 s60, {CNT}")
    a(f"buffer_store_dword v3, v2, s[{SB_WS}:{SB_WS+3}], s60 offen sc1")
    a("s_waitcnt vmcnt(0)")
    a("s_mov_b64 exec, s[62:63]")
    a("v_mov_b32 v3, 1"); a("v_mov_b32 v2, 252")
    a("v_cmp_eq_u32 vcc, 0, v0"); a("s_and_saveexec_b64 s[62:63], vcc")
    a("buffer_store_dword v3, v2, s[76:79], 0 offen sc1")
    a("s_mov_b64 exec, s[62:63]")
    a.label(lz)

    def pre_store(a):
        l = a.uid("L_zf")
        a("s_cmp_lg_u32 s3, 0"); a(f"s_cbranch_scc1 {l}")
        a("buffer_load_dword v247, v248, s[76:79], 0 offen sc1")
        a.label(l)
    phase1(a, {"pre_store": pre_store})
    stamp(a, 1)
    l, lp = a.uid("L_zc"), a.uid("L_zp")
    a("s_cmp_lg_u32 s3, 0"); a(f"s_cbranch_scc1 {l}")
    a("s_mov_b32 s61, 0")
    a.label(lp)
    a("s_waitcnt vmcnt(0)")
    a("v_readfirstlane_b32 s64, v247"); a("s_add_u32 s61, s61, 1")
    a("s_cmp_lg_u32 s64, 0"); a(f"s_cbranch_scc1 {l}")
    a("buffer_load_dword v247, v248, s[76:79], 0 offen sc1")
    a("s_cmp_lt_u32 s61, 0x200000"); a(f"s_cbranch_scc1 {lp}")
    a.label(l)
    arrive(a, 0, 27)
    def touch(a):
        if not opt.touch: return 0
        l = a.uid("L_notouch")
        a("s_cmp_ge_u32 s3, 4"); a(f"s_cbranch_scc1 {l}")
        a("s_and_b32 s60, s2, 7"); a("s_lshr_b32 s61, s2, 3")
        srd(a, 28, P_W1, 2048 * 1792 * 2); srd(a, 32, P_W2, 1792 * 2048 * 2); srd(a, 40, P_WO, 512 * 512 * 2)
        a("s_and_b32 s62, s61, 7"); a("s_lshl_b32 s62, s62, 7")
        a("s_lshl_b32 s63, s3, 7"); a("v_add_u32 v240, s63, v0"); a("v_lshlrev_b32 v241, 10, v240"); a("v_add_u32 v241, s62, v241")
        for i in range(2):
            a(f"s_mov_b32 s64, {i*64*1024}"); a("buffer_load_dword v249, v241, s[40:43], s64 offen")
        a("s_lshr_b32 s62, s60, 1"); a("s_mul_i32 s62, s62, 7"); a("s_lshr_b32 s63, s61, 2"); a("s_add_u32 s62, s62, s63"); a("s_lshl_b32 s62, s62, 7")
        a("s_lshl_b32 s63, s3, 9"); a("v_add_u32 v240, s63, v0")
        a("s_mov_b32 s64, 3584"); a("v_mul_lo_u32 v241, v240, s64"); a("v_add_u32 v241, s62, v241")
        for i in range(8):
            a(f"s_mov_b32 s64, {i*64*3584}"); a("buffer_load_dword v249, v241, s[28:31], s64 offen")
        a("s_lshl_b32 s62, s60, 2"); a("s_lshr_b32 s63, s61, 3"); a("s_add_u32 s62, s62, s63"); a("s_lshl_b32 s62, s62, 7")
        a("s_mul_i32 s63, s3, 448"); a("v_add_u32 v240, s63, v0"); a("v_lshlrev_b32 v241, 12, v240"); a("v_add_u32 v241, s62, v241")
        for i in range(7):
            a(f"s_mov_b32 s64, {i*64*4096}"); a("buffer_load_dword v249, v241, s[32:35], s64 offen")
        a.label(l)
        return 0
    def dep2(a):
        a("s_and_b32 s65, s2, 7")
        make_wait(0, 65, 32, 2)(a)
    phase2(a, {"dep": dep2, "after": (lambda a: touch(a)), "loop_start": lambda a: (stamp(a, 10), stamp(a, 14, True)), "loop_end": lambda a: (stamp(a, 15, True), stamp(a, 11))})
    stamp(a, 3)
    arrive(a, 1, 27)
    def dep3(a):
        a("s_and_b32 s65, s2, 7")
        make_wait(1, 65, 32, 4)(a)
    phase3(a, {"dep": dep3})
    stamp(a, 5)
    arrive(a, 2, 27)
    l5 = a.uid("L_skip4")
    a("s_cmp_ge_u32 s2, 224"); a(f"s_cbranch_scc1 {l5}")
    phase4(a, {"dep": make_wait(2, 26, 32, 6)})
    stamp(a, 7)
    arrive(a, 3, 26)
    a.label(l5)
    phase5(a, {"dep": make_wait(3, 26, 28, 8)})
    if opt.stamps:
        a("s_waitcnt vmcnt(0)")
        stamp(a, 9)
        ls = a.uid("L_st")
        a("s_lshl_b32 s61, s2, 3"); a("s_add_u32 s61, s61, s3"); a("s_lshl_b32 s61, s61, 6"); a("s_add_u32 s61, s61, 0xF00000"); a("v_mov_b32 v3, 0")
        for i in range(16):
            a(f"v_mov_b32 v2, s{STAMP0+i}")
            a(f"buffer_store_dword v2, v3, s[{SB_WS}:{SB_WS+3}], s61 offen offset:{4*i}")
        a(f"s_cmp_lg_u32 s2, {opt.stamp_wg}"); a(f"s_cbranch_scc1 {ls}"); a("s_cmp_lg_u32 s3, 0"); a(f"s_cbranch_scc1 {ls}")
        for i in range(14):
            a(f"s_sub_u32 s60, s{STAMP0+i}, s74"); a(f"v_mov_b32 v2, s60"); a(f"v_mov_b32 v3, {4*i}")
            a("buffer_store_dword v2, v3, s[76:79], 0 offen")
        a.label(ls)
    if opt.diag == "pad100":
        a.label("L_dg"); a("s_memrealtime s[92:93]"); a("s_waitcnt lgkmcnt(0)"); a("s_sub_u32 s92, s92, s90"); a("s_cmp_lt_u32 s92, 10000"); a("s_cbranch_scc1 L_dg")
    if opt.diag == "cyc_end":
        a("s_mov_b32 s90, 2000"); a.label("L_dg"); a("s_nop 7"); a("s_nop 7"); a("s_nop 7"); a("s_nop 7"); a("s_sub_u32 s90, s90, 1"); a("s_cmp_lg_u32 s90, 0"); a("s_cbranch_scc1 L_dg")
    a.label(end)
    a.label("L_codeend")
    a("s_endpgm")
    body = a.text()
    probs = check_hazards(body)
    for p in probs: print(p, file=sys.stderr)
    desc = f""".amdhsa_kernel {KNAME}
  .amdhsa_next_free_vgpr 256
  .amdhsa_next_free_sgpr 96
  .amdhsa_accum_offset 256
  .amdhsa_group_segment_fixed_size 0
  .amdhsa_kernarg_size 88
  .amdhsa_user_sgpr_count 2
  .amdhsa_user_sgpr_kernarg_segment_ptr 1
  .amdhsa_system_sgpr_workgroup_id_x 1
  .amdhsa_float_denorm_mode_32 3
.end_amdhsa_kernel
"""
    return (HEADER + "; @launch grid=(256,1,1) block=(512,1,1) lds=163840\n"
            + '.amdgcn_target "amdgcn-amd-amdhsa--gfx950"\n.text\n'
            + f".globl {KNAME}\n.p2align 8\n.type {KNAME},@function\n" + body
            + '.section .rodata,"a"\n.p2align 6\n' + desc)

if __name__ == "__main__":
    import argparse
    ap = argparse.ArgumentParser()
    ap.add_argument("-o", default=f"cdna_kernels/{NAME}.s")
    ap.add_argument("--stamps", action="store_true")
    ap.add_argument("--stamp-wg", type=int, default=0)
    ap.add_argument("--no-touch", action="store_true")
    ap.add_argument("--no-codepf", action="store_true")
    ap.add_argument("--diag", default=None)
    args = ap.parse_args()
    opt.diag = args.diag
    opt.stamps = args.stamps; opt.touch = not args.no_touch; opt.codepf = not args.no_codepf; opt.stamp_wg = args.stamp_wg
    open(args.o, "w").write(build())
    print("wrote", args.o)
```

```python
from asmlib import *

QF, KF, VF, OF, HF, LF, UF, XCH = 0x000000, 0x200000, 0x400000, 0x600000, 0x800000, 0xA00000, 0xC00000, 0xE00000
WS_SIZE = 0x1000000
P_X, P_WQKV, P_WO, P_W1, P_B1, P_W2, P_B2, P_OUT, P_DBG, P_WS = 4, 6, 8, 12, 14, 16, 18, 20, 22, 24
S_WG, S_WAVE = 2, 3
class Cfg:
    persist = False
    stamps = False
    tags = False
cfg = Cfg()
def SC(): return " sc1" if cfg.persist else ""
CNT = 0xE40000
V_HP = 200

def srd(a, dst, ptr, nbytes):
    a(f"s_mov_b32 s{dst}, s{ptr}")
    a(f"s_mov_b32 s{dst+1}, s{ptr+1}")
    a(f"s_mov_b32 s{dst+2}, {hex(nbytes)}")
    a(f"s_mov_b32 s{dst+3}, 0x20000")

def prologue(a, nwg, end_label):
    a(f"s_cmp_ge_u32 s2, {nwg}")
    a(f"s_cbranch_scc1 {end_label}")
    a("s_load_dwordx16 s[4:19], s[0:1], 0")
    a("s_load_dwordx4 s[20:23], s[0:1], 64")
    a("s_load_dwordx2 s[24:25], s[0:1], 80")
    a("v_lshrrev_b32 v1, 6, v0")
    a("v_and_b32 v0, 63, v0")
    a("v_readfirstlane_b32 s3, v1")
    a("s_waitcnt lgkmcnt(0)")

def dma(a, voff, srd_, soff, m0, offset=0, flags="", pre=None):
    if isinstance(m0, tuple):
        if m0[1] == 0: a(f"s_mov_b32 m0, s{m0[0]}")
        else: a(f"s_add_u32 m0, s{m0[0]}, {m0[1]}")
    elif m0 is not None:
        a(f"s_mov_b32 m0, {m0}")
    if pre: a(pre)
    elif m0 is not None: a("s_nop 0")
    o = f" offset:{offset}" if offset else ""
    so = f"s{soff}" if soff is not None else "0"
    a(f"buffer_load_dwordx4 v{voff}, s[{srd_}:{srd_+3}], {so} offen{o}{flags} lds")

def tr_lane_addr(a, dst, t0, t1, rowsel, colunit_sreg=None, colunit_imm=0):
    a(f"v_lshrrev_b32 v{t0}, 5, v0")
    a(f"v_lshlrev_b32 v{t0}, {3 if rowsel=='nat' else 2}, v{t0}")
    a(f"v_bfe_u32 v{t1}, v0, 2, 2")
    a(f"v_add_u32 v{t0}, v{t0}, v{t1}")
    a(f"v_lshlrev_b32 v{dst}, 7, v{t0}")
    a(f"v_bfe_u32 v{t0}, v0, 4, 1")
    a(f"v_lshlrev_b32 v{t0}, 1, v{t0}")
    a(f"v_bfe_u32 v{t1}, v0, 1, 1")
    a(f"v_add_u32 v{t0}, v{t0}, v{t1}")
    if colunit_sreg is not None: a(f"v_add_u32 v{t0}, s{colunit_sreg}, v{t0}")
    elif colunit_imm: a(f"v_add_u32 v{t0}, {colunit_imm}, v{t0}")
    a(f"v_bfe_u32 v{t1}, v0, 3, 1")
    a(f"v_lshlrev_b32 v{t1}, 2, v{t1}")
    a(f"v_xor_b32 v{t0}, v{t0}, v{t1}")
    a(f"v_lshlrev_b32 v{t0}, 4, v{t0}")
    a(f"v_add_u32 v{dst}, v{dst}, v{t0}")
    a(f"v_and_b32 v{t0}, 1, v0")
    a(f"v_lshlrev_b32 v{t0}, 3, v{t0}")
    a(f"v_add_u32 v{dst}, v{dst}, v{t0}")

def dma_row_voff(a, dst, t0, t1, row_stride):
    a(f"v_lshrrev_b32 v{t0}, 3, v0")
    a(f"s_mov_b32 s65, {row_stride}")
    a(f"v_mul_lo_u32 v{dst}, v{t0}, s65")
    a(f"v_bfe_u32 v{t0}, v0, 4, 1")
    a(f"v_lshlrev_b32 v{t0}, 2, v{t0}")
    a(f"v_and_b32 v{t1}, 7, v0")
    a(f"v_xor_b32 v{t0}, v{t0}, v{t1}")
    a(f"v_lshlrev_b32 v{t0}, 4, v{t0}")
    a(f"v_add_u32 v{dst}, v{dst}, v{t0}")

def mfma(a, d, A, B, c=None):
    if getattr(cfg, "fake16", False) and c is None:
        for q in range(2): a(f"v_mfma_f32_16x16x32_bf16 {vr(d+8*q,4)}, {vr(A,4)}, {vr(B,4)}, {vr(d+8*q,4)}")
        return
    cs = vr(d, 16) if c is None else c
    a(f"v_mfma_f32_32x32x16_bf16 {vr(d,16)}, {vr(A,4)}, {vr(B,4)}, {cs}")

def p1_xloads(a, hooks):
    s_tb, s_g, s_tt, s_p = 26, 27, 44, 45
    SX, XR = 28, 8
    a("s_and_b32 s46, s2, 7"); a("s_lshr_b32 s47, s2, 3")
    a("s_lshr_b32 s48, s46, 1"); a("s_lshl_b32 s48, s48, 3"); a("s_and_b32 s49, s47, 7"); a(f"s_add_u32 s{s_tb}, s48, s49")
    srd(a, SX, P_X, 2048 * 512 * 2)
    a("v_lshrrev_b32 v1, 3, v0"); a("s_lshl_b32 s50, s3, 3"); a("v_add_u32 v2, s50, v1")
    a(f"s_lshl_b32 s51, s{s_tb}, 6"); a("v_add_u32 v3, s51, v2"); a("v_lshlrev_b32 v3, 10, v3")
    a("v_and_b32 v4, 7, v0"); a("v_lshlrev_b32 v5, 4, v4"); a("v_add_u32 v3, v3, v5")
    if hooks.get("marks_first"): hooks["after_dma"](a)
    for c in range(8):
        a(f"buffer_load_dwordx4 {vr(XR+4*c,4)}, v3, s[{SX}:{SX+3}], 0 offen offset:{c*128}")
    a("s_and_b32 s48, s46, 1"); a("s_lshl_b32 s48, s48, 2"); a("s_lshr_b32 s49, s47, 3"); a(f"s_add_u32 s{s_g}, s48, s49")
    a(f"s_and_b32 s{s_tt}, s3, 1"); a(f"s_bfe_u32 s{s_p}, s3, 0x10001")

def phase1(a, hooks=None):
    hooks = hooks or {}
    s_tb, s_g, s_tt, s_p = 26, 27, 44, 45
    SX, SW, SWS = 28, 32, 36
    XR, VSUM, VSQ, VT, VXW, VWD, VXA, VWA, ACC, XFR, WQ, WK = 8, 40, 41, 44, 46, 47, 48, 56, 64, 96, 104, 112
    if not hooks.get("x_issued"): p1_xloads(a, hooks)
    srd(a, SW, P_WQKV, 512 * 1536 * 2); srd(a, SWS, P_WS, WS_SIZE)
    if hooks.get("xfirst"): a("s_barrier")
    dma_row_voff(a, VWD, 5, 6, 3072)
    a("s_mul_i32 s46, s3, 24576"); a(f"s_lshl_b32 s47, s{s_g}, 7"); a("s_add_u32 s46, s46, s47")
    a(f"v_add_u32 v{VWD}, s46, v{VWD}")
    a("s_lshl_b32 s50, s3, 10"); a("s_add_u32 s50, s50, 65536")
    vq0 = VMQ(); vq0.issue('x', 8)
    def issue_chunk(ch, vq):
        slot = ch & 3
        for seg in range(3):
            dma(a, VWD, SW, 51, (50, slot * 24576 + seg * 8192), pre=f"s_mov_b32 s51, {ch*64*3072 + seg*1024}")
        vq.issue(f"c{ch}", 3)
    late = hooks.get("late_issue")
    for ch in range(2 if late else 4): issue_chunk(ch, vq0)
    def wtouch():
        a("s_lshr_b32 s46, s2, 3"); a("s_and_b32 s46, s46, 7"); a("s_lshl_b32 s46, s46, 5"); a("s_and_b32 s47, s3, 1"); a("s_lshl_b32 s47, s47, 4")
        a("s_add_u32 s46, s46, s47"); a("s_add_u32 s46, s46, 256")
        a("v_and_b32 v6, 15, v0"); a("v_add_u32 v6, s46, v6"); a("s_movk_i32 s47, 3072"); a("v_mul_lo_u32 v6, v6, s47")
        a("s_lshr_b32 s46, s3, 1"); a("s_min_u32 s46, s46, 2"); a("s_lshl_b32 s46, s46, 10"); a(f"s_lshl_b32 s47, s{s_g}, 7"); a("s_add_u32 s46, s46, s47")
        a("v_cmp_gt_u32 vcc, 16, v0"); a("s_and_saveexec_b64 s[52:53], vcc")
        a(f"buffer_load_dword v125, v6, s[{SW}:{SW+3}], s46 offen")
        a("s_mov_b64 exec, s[52:53]")
        vq0.issue("touch", 1)
    if hooks.get("wtouch") and not late: wtouch()
    if "after_dma" in hooks and not late: vq0.issue("extra", hooks["after_dma"](a))
    if not hooks.get('no_clear'):
        a("v_mov_b32 v56, -1"); a("v_mov_b32 v57, -1"); a("v_mov_b32 v58, -1"); a("v_mov_b32 v59, -1")
        a("v_lshlrev_b32 v6, 4, v0"); a("s_lshl_b32 s46, s2, 9"); a(f"s_add_u32 s46, s46, {XCH}")
        lskip = a.uid("L_p1_noclr")
        a("s_cmp_lg_u32 s3, 0"); a(f"s_cbranch_scc1 {lskip}")
        a("v_cmp_gt_u32 vcc, 32, v0"); a("s_and_saveexec_b64 s[52:53], vcc")
        a(f"buffer_store_dwordx4 v[56:59], v6, s[{SWS}:{SWS+3}], s46 offen{SC()}")
        a("s_mov_b64 exec, s[52:53]")
        a.label(lskip)
    a("v_and_b32 v5, 15, v2"); a("v_xor_b32 v5, v5, v4"); a("v_lshlrev_b32 v5, 4, v5")
    a(f"v_lshlrev_b32 v{VXW}, 10, v2"); a(f"v_add_u32 v{VXW}, v{VXW}, v5"); a(f"v_xor_b32 v43, 128, v{VXW}")
    a("v_and_b32 v1, 31, v0"); a(f"s_lshl_b32 s46, s{s_tt}, 5"); a("v_add_u32 v1, s46, v1")
    a("v_and_b32 v2, 15, v1"); a("v_lshlrev_b32 v1, 10, v1"); a("v_lshrrev_b32 v3, 5, v0")
    for b in range(8):
        a(f"v_add_u32 v4, {2*b}, v3"); a("v_xor_b32 v4, v4, v2"); a("v_lshlrev_b32 v4, 4, v4"); a(f"v_add_u32 v{VXA+b}, v1, v4")
    a(f"s_lshl_b32 s46, s{s_p}, 2")
    tr_lane_addr(a, VWA, 1, 2, 'nat', colunit_sreg=46)
    a(f"v_add_u32 v{VWA}, 0x10000, v{VWA}"); a(f"v_add_u32 v{VWA+1}, 49152, v{VWA}")
    vq0.wait(a, "x")
    if "post_x" in hooks: hooks["post_x"](a)
    if "st" in hooks: hooks["st"](a, 4)
    a(f"v_mov_b32 v{VSUM}, 0"); a(f"v_mov_b32 v{VSQ}, 0"); a("v_mov_b32 v42, 0x3f803f80")
    if getattr(cfg, "ln4", False):
        a("v_mov_b32 v122, 0"); a("v_mov_b32 v123, 0")
        for i in range(0, 32, 2):
            a(f"v_dot2c_f32_bf16 v{VSUM}, v{XR+i}, v42"); a(f"v_dot2c_f32_bf16 v{VSQ}, v{XR+i}, v{XR+i}")
            a(f"v_dot2c_f32_bf16 v122, v{XR+i+1}, v42"); a(f"v_dot2c_f32_bf16 v123, v{XR+i+1}, v{XR+i+1}")
        a("s_nop 2")
        a(f"v_add_f32 v{VSUM}, v{VSUM}, v122"); a(f"v_add_f32 v{VSQ}, v{VSQ}, v123")
    else:
        for i in range(32):
            a(f"v_dot2c_f32_bf16 v{VSUM}, v{XR+i}, v42")
            a(f"v_dot2c_f32_bf16 v{VSQ}, v{XR+i}, v{XR+i}")
    a("s_nop 2")
    for mod in ("quad_perm:[1,0,3,2]", "quad_perm:[2,3,0,1]", "row_half_mirror"):
        a(f"v_add_f32_dpp v{VSUM}, v{VSUM}, v{VSUM} {mod} row_mask:0xf bank_mask:0xf")
        a(f"v_add_f32_dpp v{VSQ}, v{VSQ}, v{VSQ} {mod} row_mask:0xf bank_mask:0xf")
        a("s_nop 0")
    a(f"v_mul_f32 v{VSUM}, {1/512!r}, v{VSUM}".replace("0.001953125", "0x3b000000"))
    a(f"v_mul_f32 v{VSQ}, 0x3b000000, v{VSQ}")
    a(f"v_fma_f32 v{VSQ}, -v{VSUM}, v{VSUM}, v{VSQ}")
    a(f"v_max_f32 v{VSQ}, 0, v{VSQ}")
    a(f"v_add_f32 v{VSQ}, 0x3727c5ac, v{VSQ}")
    a(f"v_rsq_f32 v60, v{VSQ}")
    a("s_nop 0")
    a(f"v_mul_f32 v62, v{VSUM}, v60"); a("v_sub_f32 v62, 0, v62")
    def normalise(c):
        if getattr(cfg, "ln4", False):
            T4 = [104, 106, 108, 110]
            for n_, i in enumerate(range(4 * c, 4 * c + 4)): a(f"v_lshlrev_b32 v{T4[n_]}, 16, v{XR+i}")
            for n_, i in enumerate(range(4 * c, 4 * c + 4)): a(f"v_and_b32 v{T4[n_]+1}, 0xffff0000, v{XR+i}")
            for n_ in range(4): a(f"v_pk_fma_f32 {vr(T4[n_],2)}, {vr(T4[n_],2)}, v[60:61], v[62:63] op_sel_hi:[1,0,0]")
            for n_, i in enumerate(range(4 * c, 4 * c + 4)): a(f"v_cvt_pk_bf16_f32 v{XR+i}, v{T4[n_]}, v{T4[n_]+1}")
        else:
          for i in range(4 * c, 4 * c + 4):
            t = VT if i % 2 == 0 else 120
            a(f"v_lshlrev_b32 v{t}, 16, v{XR+i}")
            a(f"v_and_b32 v{t+1}, 0xffff0000, v{XR+i}")
            a(f"v_pk_fma_f32 {vr(t,2)}, {vr(t,2)}, v[60:61], v[62:63] op_sel_hi:[1,0,0]")
            a(f"v_cvt_pk_bf16_f32 v{XR+i}, v{t}, v{t+1}")
        a(f"ds_write_b128 v{VXW if c % 2 == 0 else 43}, {vr(XR+4*c,4)} offset:{(c>>1)*256}")
    pipe_ln = bool(hooks.get("pipe_ln"))
    if pipe_ln:
        issue_chunk(2, vq0)
        normalise(0)
        issue_chunk(3, vq0)
        if hooks.get("wtouch"): wtouch()
    else:
        for c in range(8):
            if late and c == 1: issue_chunk(2, vq0)
            if late and c == 3: issue_chunk(3, vq0)
            if late and c == 6 and hooks.get("wtouch"): wtouch()
            normalise(c)
    lv, lend = a.uid("L_p1_v"), a.uid("L_p1_end")
    a("s_cmp_ge_u32 s3, 4"); a(f"s_cbranch_scc1 {lv}")
    def gemm(isv):
        n = 16 if isv else 32
        for i in range(n): a(f"v_mov_b32 v{ACC+i}, 0")
        D = 2
        XF3, WQ3, WK3 = 128, 140, 152
        def reads(ksg):
            ch, k = ksg >> 2, ksg & 3
            slot = ch & 3; base = VWA + (slot >> 1); off = (slot & 1) * 24576 + k * 2048
            b = ksg % 3
            a(f"ds_read_b128 {vr(XF3+4*b,4)}, v{VXA + (ksg & 7)} offset:{(ksg >> 3) * 256}")
            segs = (2,) if isv else (0, 1)
            for n_, seg in enumerate(segs):
                r = (WQ3 if n_ == 0 else WK3) + 4 * b
                a(f"ds_read_b64_tr_b16 {vr(r,2)}, v{base} offset:{off + seg*8192}")
                a(f"ds_read_b64_tr_b16 {vr(r+2,2)}, v{base} offset:{off + seg*8192 + 512}")
        nrd = 3 if isv else 5
        vq = VMQ(); vq.q = list(vq0.q)
        vq.wait(a, "c0", " lgkmcnt(0)"); a("s_barrier")
        if "post_c0" in hooks: hooks["post_c0"](a)
        if "st" in hooks: hooks["st"](a, 5)
        if "cyc0" in hooks: hooks["cyc0"](a)
        lq = []
        def lwait(tag):
            if tag in lq:
                last = len(lq) - 1 - lq[::-1].index(tag)
                n_ = len(lq) - 1 - last
                assert n_ <= 15
                a(f"s_waitcnt lgkmcnt({n_})"); del lq[:last + 1]
        def rd(n_): reads(n_); lq.extend([f"r{n_}"] * nrd)
        rd(0); rd(1)
        for ksg in range(32):
            ch, k = ksg >> 2, ksg & 3
            if k == 2 and ch < 7:
                if pipe_ln: lwait(f"x{ch+1}")
                if getattr(cfg, "exp", None) == "p1nowait": vq.q = []
                vq.wait(a, f"c{ch+1}")
                if getattr(cfg, "exp", None) != "p1nobar": a("s_barrier")
                if "st" in hooks and getattr(cfg, "exp", None) == "chunks": hooks["st"](a, [6, 7, 8, 9, 10, 11, 12][ch])
                elif "st" in hooks and ch == 3: hooks["st"](a, 6)
                elif "st" in hooks and ch == 6: hooks["st"](a, 7)
                if 1 <= ch <= 4: issue_chunk(ch + 3, vq)
                if late and ch == 5 and "after_dma" in hooks and not hooks.get("marks_first"): vq.issue("extra", hooks["after_dma"](a))
            if ksg + D < 32: rd(ksg + D)
            lwait(f"r{ksg}")
            if pipe_ln and k == 0 and ch < 7:
                pend = ch + 1
            else: pend = None
            b = ksg % 3
            if isv:
                mfma(a, ACC, XF3 + 4 * b, WQ3 + 4 * b)
            else:
                mfma(a, ACC, WQ3 + 4 * b, XF3 + 4 * b)
                mfma(a, ACC + 16, WK3 + 4 * b, XF3 + 4 * b)
            if pend is not None:
                normalise(pend); lq.append(f"x{pend}")
        if "cyc1" in hooks: hooks["cyc1"](a)
    gemm(False)
    a(f"s_lshl_b32 s46, s{s_g}, 2"); a(f"s_lshl_b32 s47, s{s_p}, 1"); a("s_add_u32 s46, s46, s47")
    a(f"s_lshl_b32 s47, s{s_tb}, 1"); a(f"s_add_u32 s47, s47, s{s_tt}")
    a("s_lshl_b32 s48, s46, 16"); a("s_lshl_b32 s49, s47, 10"); a("s_add_u32 s48, s48, s49")
    a("v_lshlrev_b32 v1, 4, v0")
    a("s_add_u32 s51, s48, 0x10000")
    a(f"s_add_u32 s52, s48, {KF}"); a(f"s_add_u32 s53, s51, {KF}")
    a("s_mov_b32 s54, 0x3eb8aa3b")
    a("s_nop 7")
    for i in range(16): a(f"v_mul_f32 v{ACC+i}, s54, v{ACC+i}")
    for i in range(8): a(f"v_cvt_pk_bf16_f32 v{XR+i}, v{ACC+2*i}, v{ACC+2*i+1}")
    for i in range(8): a(f"v_cvt_pk_bf16_f32 v{XR+8+i}, v{ACC+16+2*i}, v{ACC+16+2*i+1}")
    if "pre_store" in hooks: hooks["pre_store"](a)
    for n_, so in enumerate((48, 51, 52, 53)):
        a(f"buffer_store_dwordx4 {vr(XR+4*n_,4)}, v1, s[{SWS}:{SWS+3}], s{so} offen{SC()}")
    a(f"s_branch {lend}")
    a.label(lv)
    gemm(True)
    a(f"s_lshl_b32 s46, s{s_g}, 2"); a(f"s_lshl_b32 s47, s{s_p}, 1"); a("s_add_u32 s46, s46, s47")
    a(f"s_lshl_b32 s47, s{s_tb}, 1"); a(f"s_add_u32 s47, s47, s{s_tt}")
    a("s_lshl_b32 s48, s46, 16"); a("s_lshl_b32 s49, s47, 10"); a("s_add_u32 s48, s48, s49"); a(f"s_add_u32 s48, s48, {VF}")
    a("v_bfe_u32 v1, v0, 4, 1"); a("v_lshlrev_b32 v1, 16, v1"); a("v_lshrrev_b32 v2, 5, v0"); a("v_lshlrev_b32 v2, 8, v2")
    a("v_add_u32 v1, v1, v2"); a("v_and_b32 v2, 15, v0"); a("v_lshlrev_b32 v2, 4, v2"); a("v_add_u32 v1, v1, v2")
    a("s_nop 7")
    for i in range(8): a(f"v_cvt_pk_bf16_f32 v{XR+i}, v{ACC+2*i}, v{ACC+2*i+1}")
    if "pre_store" in hooks: hooks["pre_store"](a)
    a(f"buffer_store_dwordx4 {vr(XR,4)}, v1, s[{SWS}:{SWS+3}], s48 offen{SC()}")
    a(f"buffer_store_dwordx4 {vr(XR+4,4)}, v1, s[{SWS}:{SWS+3}], s48 offen offset:512{SC()}")
    a.label(lend)
P1_LDS = 163840

P2_LDS = 131072
class Att:
    Q, KFR, VFR, SA, SB, P, O, VK, VV = 4, 8, 16, 32, 48, 64, 72, 88, 89
def phase2(a, hooks=None):
    hooks = hooks or {}
    s_head, s_qb = 26, 27
    SWS = 36
    Q, KFR, VFR, SA, SB, P, O, VK, VV = Att.Q, Att.KFR, Att.VFR, Att.SA, Att.SB, Att.P, Att.O, Att.VK, Att.VV
    MASK = "s[56:57]"
    a("; ---- P2: attention")
    a("s_and_b32 s46, s2, 7"); a("s_lshr_b32 s47, s2, 3")
    a("s_lshl_b32 s48, s46, 2"); a("s_lshr_b32 s49, s47, 3"); a(f"s_add_u32 s{s_head}, s48, s49"); a(f"s_and_b32 s{s_qb}, s47, 7")
    srd(a, SWS, P_WS, WS_SIZE)
    a("v_lshlrev_b32 v1, 4, v0")
    a(f"s_lshl_b32 s46, s{s_head}, 16")
    a(f"s_lshl_b32 s47, s{s_qb}, 3"); a("s_add_u32 s47, s47, s3"); a("s_lshl_b32 s47, s47, 10"); a("s_add_u32 s47, s47, s46")
    a("s_lshl_b32 s48, s3, 11")
    a("s_add_u32 s49, s46, s48")
    a("s_mov_b32 s56, 0x0000ffff"); a("s_mov_b32 s57, 0x0000ffff")
    a("v_and_b32 v2, 27, v0"); a("v_cmp_eq_u32 vcc, 16, v2"); a("v_mov_b32 v3, 0x3f803f80"); a("v_mov_b32 v2, 0")
    a("v_cndmask_b32 v2, v2, v3, vcc")
    for i in range(16): a(f"v_mov_b32 v{VFR+i}, v2")
    a("v_and_b32 v2, 15, v0"); a("v_lshlrev_b32 v2, 4, v2"); a("v_lshrrev_b32 v3, 5, v0"); a("v_lshlrev_b32 v3, 8, v3"); a("v_add_u32 v91, v2, v3")
    a("v_add_u32 v91, 0x10000, v91")
    if "dep" in hooks: hooks["dep"](a)
    vq = hooks.get("vq") or VMQ()
    a(f"buffer_load_dwordx4 {vr(Q,4)}, v1, s[{SWS}:{SWS+3}], s47 offen{SC()}"); vq.issue("q")
    def kv_stage(st):
        vq.issue(f"kv{st}", 4)
        dma(a, 1, SWS, 50, (48, st * 16384), flags=SC(), pre=f"s_add_u32 s50, s49, {KF + st*16384}"); dma(a, 1, SWS, 50, None, offset=1024, flags=SC())
        dma(a, 1, SWS, 50, (48, 65536 + st * 16384), flags=SC(), pre=f"s_add_u32 s50, s49, {VF + st*16384}"); dma(a, 1, SWS, 50, None, offset=1024, flags=SC())
    staged = bool(getattr(cfg, "kvstaged", False))
    for st in range(1 if staged else 4): kv_stage(st)
    vq.wait(a, "kv0"); a("s_barrier")
    if "loop_start" in hooks: hooks["loop_start"](a)
    def vread(dst, off):
        a(f"s_mov_b64 exec, {MASK}")
        a(f"ds_read_b128 {vr(dst,4)}, v{VV} offset:{off}"); a(f"ds_read_b128 {vr(dst+4,4)}, v{VV} offset:{off+512}")
        a("s_mov_b64 exec, -1")
    def tile(t, S, SN, par, koff, voff, C):
        e = lambda i: a(f"v_exp_f32 v{S+i}, v{S+i}")
        c = lambda i: a(f"v_cvt_pk_bf16_f32 v{P+i}, v{S+2*i}, v{S+2*i+1}")
        e(0); e(1)
        mfma(a, O, VFR + 8 * (par ^ 1) + 4, P + 4)
        vread(VFR + 8 * (par ^ 1), voff)
        a(f"ds_read_b128 {vr(KFR+4*par,4)}, v{VK} offset:{koff}")
        e(2); e(3); e(4); e(5)
        a("s_waitcnt lgkmcnt(3)")
        mfma(a, SN, KFR + 4 * (par ^ 1), Q, C)
        if getattr(cfg, "prio", False): a("s_setprio 1")
        e(6); e(7); c(0); c(1); c(2); c(3); e(8); e(9)
        mfma(a, O, VFR + 8 * par, P)
        if getattr(cfg, "prio", False): a("s_setprio 0")
        for i in range(10, 16): e(i)
        c(4); c(5); c(6); c(7)
    def start(C):
        a(f"v_mov_b32 v{VK}, v1"); a(f"v_mov_b32 v{VV}, v91")
        a(f"ds_read_b128 {vr(KFR,4)}, v{VK}")
        vread(VFR, 0)
        a(f"ds_read_b128 {vr(KFR+4,4)}, v{VK} offset:1024")
        for i in range(16): a(f"v_mov_b32 v{O+i}, 0")
        for i in range(4): a(f"v_mov_b32 v{P+4+i}, 0")
        a(f"s_mov_b64 exec, {MASK}")
        for i in range(4): a(f"v_mov_b32 v{VFR+12+i}, 0")
        a("s_mov_b64 exec, -1")
        a("s_waitcnt lgkmcnt(3)")
        mfma(a, SA, KFR, Q, C)
        a("s_nop 7"); a("s_nop 3")
    def finish():
        a("s_nop 1")
        mfma(a, O, VFR + 8 + 4, P + 4)
        a("s_waitcnt lgkmcnt(0)")
        a("s_nop 7"); a("s_nop 3")
    start("0")
    for t in range(64):
        if t in ((12, 44) if getattr(cfg, "m12", False) else (12, 28, 44)):
            if t == (12 if getattr(cfg, "m12", False) else 28): vq.wait(a, "markers")
            if t == 12 and getattr(cfg, "m12", False): vq.wait(a, "kv3")
            vq.wait(a, {12: "kv1", 28: "kv2", 44: "kv3"}[t]); a("s_barrier")
        if staged and t in (0, 1, 2): kv_stage(t + 1)
        if "tile" in hooks: hooks["tile"](a, t)
        if t == 48:
            pass
        S, SN = (SA, SB) if t % 2 == 0 else (SB, SA)
        tile(t, S, SN, t & 1, min((t + 2), 63) * 1024, min(t + 1, 63) * 1024, "0")
    finish()
    if "loop_end" in hooks: hooks["loop_end"](a)
    ldone, lmax, lloop = a.uid("L_p2_done"), a.uid("L_p2_maxl"), a.uid("L_p2_loop")
    a("v_mov_b32 v2, 0")
    for i in range(8): a(f"v_fmac_f32 v2, 0, v{O+i}")
    a(f"v_cmp_u_f32 s[58:59], v2, v2")
    a("s_mov_b32 s62, 0x5d800000")
    a(f"v_cmp_nge_f32 s[60:61], s62, v{O+8}")
    a("s_mov_b32 s62, 0x21800000")
    a(f"v_cmp_nle_f32 s[64:65], s62, v{O+8}")
    a("s_nop 3")
    a("s_or_b64 s[58:59], s[58:59], s[60:61]"); a("s_or_b64 s[58:59], s[58:59], s[64:65]")
    a("s_mov_b32 s55, 0")
    a("s_cmp_eq_u64 s[58:59], 0"); a(f"s_cbranch_scc1 {ldone}")
    a("s_mov_b32 s55, 1")
    CN = 96
    a(f"s_lshl_b32 s46, s{s_head}, 16"); a(f"s_add_u32 s47, s46, {KF}"); a(f"s_add_u32 s48, s46, {VF}")
    a("v_mov_b32 v2, 0xff800000"); a("s_mov_b32 s54, 0")
    a.label(lmax)
    a("s_add_u32 s49, s47, s54")
    a(f"buffer_load_dwordx4 {vr(KFR,4)}, v1, s[{SWS}:{SWS+3}], s49 offen{SC()}")
    a("s_waitcnt vmcnt(0)")
    mfma(a, SA, KFR, Q, "0")
    a("s_nop 7"); a("s_nop 3")
    for i in range(8): a(f"v_max3_f32 v2, v2, v{SA+2*i}, v{SA+2*i+1}")
    a("s_add_u32 s54, s54, 1024"); a("s_cmp_lt_u32 s54, 0x10000"); a(f"s_cbranch_scc1 {lmax}")
    a("v_mov_b32 v3, v2"); a("s_nop 1")
    a("v_permlane32_swap_b32 v2, v3"); a("s_nop 1")
    a("v_max_f32 v2, v2, v3"); a("v_sub_f32 v2, 0, v2")
    for i in range(16): a(f"v_mov_b32 v{CN+i}, v2")
    for i in range(16): a(f"v_mov_b32 v{O+i}, 0")
    a(f"v_subrev_u32 v{VV}, 0x10000, v91")
    a("s_mov_b32 s54, 0")
    a.label(lloop)
    a("s_add_u32 s49, s47, s54"); a("s_add_u32 s50, s48, s54")
    a(f"buffer_load_dwordx4 {vr(KFR,4)}, v1, s[{SWS}:{SWS+3}], s49 offen{SC()}")
    a(f"s_mov_b64 exec, {MASK}")
    a(f"buffer_load_dwordx4 {vr(VFR,4)}, v{VV}, s[{SWS}:{SWS+3}], s50 offen{SC()}")
    a(f"buffer_load_dwordx4 {vr(VFR+4,4)}, v{VV}, s[{SWS}:{SWS+3}], s50 offen offset:512{SC()}")
    a("s_mov_b64 exec, -1")
    a("s_waitcnt vmcnt(0)")
    mfma(a, SA, KFR, Q, vr(CN, 16))
    a("s_nop 7"); a("s_nop 3")
    for i in range(16): a(f"v_exp_f32 v{SA+i}, v{SA+i}")
    a("s_nop 0")
    for i in range(8): a(f"v_cvt_pk_bf16_f32 v{P+i}, v{SA+2*i}, v{SA+2*i+1}")
    a("s_nop 1")
    mfma(a, O, VFR, P); mfma(a, O, VFR + 4, P + 4)
    a("s_add_u32 s54, s54, 1024"); a("s_cmp_lt_u32 s54, 0x10000"); a(f"s_cbranch_scc1 {lloop}")
    a("s_nop 7"); a("s_nop 7")
    a.label(ldone)
    a(f"v_rcp_f32 v2, v{O+8}"); a("s_nop 0")
    for i in range(8): a(f"v_mul_f32 v{O+i}, v{O+i}, v2")
    for i in range(4): a(f"v_cvt_pk_bf16_f32 v{P+i}, v{O+2*i}, v{O+2*i+1}")
    if cfg.tags: a(f"v_min_u32 v{P}, 0xfffffffe, v{P}")
    a(f"s_lshl_b32 s47, s{s_qb}, 3"); a("s_add_u32 s47, s47, s3"); a("s_lshl_b32 s47, s47, 5"); a(f"s_add_u32 s47, s47, s{s_head}")
    a("s_lshl_b32 s47, s47, 10"); a(f"s_add_u32 s47, s47, {OF}")
    a(f"buffer_store_dwordx4 {vr(P,4)}, v1, s[{SWS}:{SWS+3}], s47 offen{SC()}")
    if "after" in hooks: hooks["after"](a)

def reduce_scatter(a, ACC, s_sub, s_kq, vtmp, T, base, sub_shift=15):
    a("s_barrier")
    a(f"s_lshl_b32 s46, s{s_sub}, {sub_shift}"); a(f"s_lshl_b32 s47, s{s_kq}, 11"); a("s_add_u32 s47, s47, s46"); a(f"s_add_u32 s47, s47, {base}")
    a(f"v_lshlrev_b32 v{vtmp}, 4, v0"); a(f"v_add_u32 v{vtmp+1}, s47, v{vtmp}")
    for pc in range(4):
        for half in range(2):
            r = ACC + 16 * (pc >> 1) + 8 * (pc & 1) + 4 * half
            a(f"ds_write_b128 v{vtmp+1}, {vr(r,4)} offset:{pc*8192 + half*1024}")
    a(f"s_lshl_b32 s47, s{s_kq}, 13"); a("s_add_u32 s47, s47, s46"); a(f"s_add_u32 s47, s47, {base}")
    a(f"v_add_u32 v{vtmp+1}, s47, v{vtmp}")
    a("s_waitcnt lgkmcnt(0)"); a("s_barrier")
    for src in range(4):
        for half in range(2):
            a(f"ds_read_b128 {vr(T + 8*src + 4*half, 4)}, v{vtmp+1} offset:{src*2048 + half*1024}")
    a("s_waitcnt lgkmcnt(4)")
    for i in range(8): a(f"v_add_f32 v{ACC+i}, v{T+i}, v{T+8+i}")
    a("s_waitcnt lgkmcnt(0)")
    for i in range(8): a(f"v_add_f32 v{T+16+i}, v{T+16+i}, v{T+24+i}")
    for i in range(8): a(f"v_add_f32 v{ACC+i}, v{ACC+i}, v{T+16+i}")

P3_LDS = 131072 + 4096
def phase3(a, hooks=None):
    hooks = hooks or {}
    s_tb, s_cb, s_tt, s_kq, s_ct, s_jp = 26, 27, 44, 45, 56, 57
    SWO, SWS, SX = 28, 36, 32
    OFR, XR, ACC, AF, T, VA = 8, 40, 64, 96, 104, 4
    a("s_and_b32 s46, s2, 7"); a("s_lshr_b32 s47, s2, 3")
    a("s_lshl_b32 s48, s46, 2"); a("s_lshr_b32 s49, s47, 3"); a(f"s_add_u32 s{s_tb}, s48, s49"); a(f"s_and_b32 s{s_cb}, s47, 7")
    a(f"s_and_b32 s{s_tt}, s3, 1"); a(f"s_lshr_b32 s{s_kq}, s3, 1")
    a(f"s_lshr_b32 s{s_ct}, s{s_kq}, 1"); a(f"s_and_b32 s{s_jp}, s{s_kq}, 1")
    srd(a, SWO, P_WO, 512 * 512 * 2); srd(a, SWS, P_WS, WS_SIZE); srd(a, SX, P_X, 2048 * 512 * 2)
    dma_row_voff(a, 2, 5, 6, 1024)
    a("s_lshl_b32 s46, s3, 16"); a(f"s_lshl_b32 s47, s{s_cb}, 7"); a("s_add_u32 s46, s46, s47"); a("v_add_u32 v2, s46, v2")
    a("s_lshl_b32 s50, s3, 13")
    for i in range(8):
        a(f"s_mov_b32 s51, {i*8192}")
        dma(a, 2, SWO, 51, (50, i * 1024))
    a("v_lshlrev_b32 v1, 4, v0")
    a(f"s_lshl_b32 s46, s{s_tb}, 1"); a(f"s_add_u32 s58, s46, s{s_tt}")
    a("v_and_b32 v3, 31, v0"); a("s_lshl_b32 s46, s58, 5"); a("v_add_u32 v3, s46, v3"); a("v_lshlrev_b32 v3, 10, v3")
    a("v_lshrrev_b32 v5, 5, v0"); a("v_lshlrev_b32 v5, 3, v5"); a("v_add_u32 v3, v3, v5")
    a(f"s_lshl_b32 s46, s{s_cb}, 7"); a(f"s_lshl_b32 s47, s{s_kq}, 5"); a("s_add_u32 s46, s46, s47")
    a(f"buffer_load_dwordx2 {vr(XR,2)}, v3, s[{SX}:{SX+3}], s46 offen")
    a(f"buffer_load_dwordx2 {vr(XR+2,2)}, v3, s[{SX}:{SX+3}], s46 offen offset:16")
    if "dep" in hooks: hooks["dep"](a)
    a(f"s_lshl_b32 s46, s58, 5"); a(f"s_lshl_b32 s47, s{s_kq}, 3"); a("s_add_u32 s46, s46, s47"); a("s_lshl_b32 s46, s46, 10"); a(f"s_add_u32 s46, s46, {OF}")
    for i in range(8):
        if i == 4: a("s_add_u32 s46, s46, 4096")
        a(f"buffer_load_dwordx4 {vr(OFR+4*i,4)}, v1, s[{SWS}:{SWS+3}], s46 offen offset:{(i&3)*1024}{SC()}")
    tr_lane_addr(a, VA, 5, 6, 'perm')
    a(f"s_lshl_b32 s46, s{s_kq}, 14"); a(f"v_add_u32 v{VA}, s46, v{VA}"); a(f"v_xor_b32 v{VA+1}, 64, v{VA}")
    for i in range(32): a(f"v_mov_b32 v{ACC+i}, 0")
    a("s_waitcnt vmcnt(0)"); a("s_barrier")
    def rd(i):
        for ct in range(2):
            r = AF + 8 * (i & 1) + 4 * ct
            a(f"ds_read_b64_tr_b16 {vr(r,2)}, v{VA+ct} offset:{i*2048}")
            a(f"ds_read_b64_tr_b16 {vr(r+2,2)}, v{VA+ct} offset:{i*2048+1024}")
    rd(0)
    for i in range(8):
        if i < 7: rd(i + 1); a("s_waitcnt lgkmcnt(4)")
        else: a("s_waitcnt lgkmcnt(0)")
        for ct in range(2): mfma(a, ACC + 16 * ct, AF + 8 * (i & 1) + 4 * ct, OFR + 4 * i)
    a("s_nop 7"); a("s_nop 3")
    reduce_scatter(a, ACC, s_tt, s_kq, 5, 112, 65536)
    H = 8
    for j in range(4):
        a(f"v_lshlrev_b32 v{H+2*j}, 16, v{XR+j}"); a(f"v_and_b32 v{H+2*j+1}, 0xffff0000, v{XR+j}")
    for i in range(8): a(f"v_add_f32 v{H+i}, v{H+i}, v{ACC+i}")
    HP = 16
    for j in range(4): a(f"v_cvt_pk_bf16_f32 v{HP+j}, v{H+2*j}, v{H+2*j+1}")
    a(f"s_lshl_b32 s46, s58, 5"); a(f"s_lshl_b32 s47, s{s_cb}, 2"); a("s_add_u32 s46, s46, s47"); a(f"s_add_u32 s46, s46, s{s_kq}")
    a("s_lshl_b32 s46, s46, 10"); a(f"s_add_u32 s46, s46, {HF}")
    if cfg.persist:
        for j in range(4): a(f"v_mov_b32 v{V_HP+j}, v{HP+j}")
    else:
        a(f"buffer_store_dwordx4 {vr(HP,4)}, v1, s[{SWS}:{SWS+3}], s46 offen")
    for j in range(4):
        a(f"v_lshlrev_b32 v{H+2*j}, 16, v{HP+j}"); a(f"v_and_b32 v{H+2*j+1}, 0xffff0000, v{HP+j}")
    a(f"v_add_f32 v20, v{H}, v{H+1}"); a(f"v_mul_f32 v21, v{H}, v{H}"); a(f"v_fmac_f32 v21, v{H+1}, v{H+1}")
    for i in range(2, 8):
        a(f"v_add_f32 v20, v20, v{H+i}"); a(f"v_fmac_f32 v21, v{H+i}, v{H+i}")
    a("v_mov_b32 v22, v20"); a("v_mov_b32 v23, v21"); a("s_nop 1")
    a("v_permlane32_swap_b32 v20, v22"); a("v_permlane32_swap_b32 v21, v23"); a("s_nop 1")
    a("v_add_f32 v20, v20, v22"); a("v_add_f32 v21, v21, v23")
    ST = 131072
    a("v_and_b32 v5, 31, v0"); a(f"s_lshl_b32 s46, s{s_tt}, 5"); a("v_add_u32 v5, s46, v5"); a("v_lshlrev_b32 v24, 3, v5")
    a(f"s_lshl_b32 s46, s{s_kq}, 9"); a(f"s_add_u32 s46, s46, {ST}"); a("v_add_u32 v6, s46, v24")
    a("v_cmp_gt_u32 vcc, 32, v0"); a("s_and_saveexec_b64 s[52:53], vcc")
    a("ds_write_b64 v6, v[20:21]")
    a("s_mov_b64 exec, s[52:53]")
    a("s_waitcnt lgkmcnt(0)"); a("s_barrier")
    lx = a.uid("L_p3_x")
    a("s_cmp_lg_u32 s3, 0"); a(f"s_cbranch_scc1 {lx}")
    a("v_lshlrev_b32 v5, 3, v0"); a(f"v_add_u32 v6, {ST}, v5")
    for q in range(4): a(f"ds_read_b64 {vr(26+2*q,2)}, v6 offset:{q*512}")
    a("s_waitcnt lgkmcnt(0)")
    a("v_add_f32 v26, v26, v28"); a("v_add_f32 v27, v27, v29"); a("v_add_f32 v30, v30, v32"); a("v_add_f32 v31, v31, v33")
    a("v_add_f32 v26, v26, v30"); a("v_add_f32 v27, v27, v31")
    a("v_cmp_eq_u32 vcc, -1, v26"); a("v_mov_b32 v28, 0x7fc00000"); a("s_nop 0"); a("v_cndmask_b32 v26, v26, v28, vcc")
    a("v_cmp_eq_u32 vcc, -1, v27"); a("s_nop 1"); a("v_cndmask_b32 v27, v27, v28, vcc")
    a(f"s_lshl_b32 s46, s{s_tb}, 12"); a(f"s_add_u32 s46, s46, {XCH}"); a(f"s_lshl_b32 s47, s{s_cb}, 9"); a("s_add_u32 s47, s47, s46")
    a(f"buffer_store_dwordx2 v[26:27], v5, s[{SWS}:{SWS+3}], s47 offen sc1")
    lp, lpd = a.uid("L_p3_poll"), a.uid("L_p3_pd")
    a("s_mov_b32 s48, 0")
    a.label(lp)
    for q in range(8): a(f"buffer_load_dwordx2 {vr(32+2*q,2)}, v5, s[{SWS}:{SWS+3}], s46 offen offset:{q*512} sc1")
    a("s_waitcnt vmcnt(0)")
    a("v_cmp_eq_u32 vcc, -1, v32")
    for q in range(1, 16):
        a(f"v_cmp_eq_u32 s[52:53], -1, v{32+q}"); a("s_or_b64 vcc, vcc, s[52:53]")
    a(f"s_cbranch_vccz {lpd}")
    a("s_add_u32 s48, s48, 1"); a("s_cmp_lt_u32 s48, 0x100000"); a(f"s_cbranch_scc1 {lp}")
    a.label(lpd)
    for q in range(1, 8):
        a(f"v_add_f32 v32, v32, v{32+2*q}"); a(f"v_add_f32 v33, v33, v{33+2*q}")
    a("v_mul_f32 v32, 0x3b000000, v32"); a("v_mul_f32 v33, 0x3b000000, v33")
    a("v_fma_f32 v33, -v32, v32, v33"); a("v_max_f32 v33, 0, v33")
    a("v_add_f32 v34, 0x3727c5ac, v33"); a("v_rsq_f32 v35, v34")
    a("s_nop 0")
    a("v_mul_f32 v36, v35, v35"); a("v_mul_f32 v36, v36, v33")
    a("v_add_f32 v36, 0x3727c5ac, v36"); a("v_rsq_f32 v36, v36")
    a("s_nop 0")
    a("v_mul_f32 v34, v35, v36"); a("v_mul_f32 v35, v32, v34"); a("v_sub_f32 v35, 0, v35")
    a(f"v_add_u32 v6, {ST + 2048}, v5")
    a("ds_write_b64 v6, v[34:35]")
    a("s_waitcnt lgkmcnt(0)")
    a.label(lx)
    a("s_barrier")
    a(f"v_add_u32 v6, {ST + 2048}, v24")
    a("ds_read_b64 v[20:21], v6")
    a("s_waitcnt lgkmcnt(0)")
    for i in range(8): a(f"v_fma_f32 v{H+i}, v{H+i}, v20, v21")
    for j in range(4): a(f"v_cvt_pk_bf16_f32 v{HP+j}, v{H+2*j}, v{H+2*j+1}")
    a("v_lshrrev_b32 v5, 3, v24")
    a("v_bfe_u32 v6, v5, 1, 1"); a("v_lshlrev_b32 v6, 2, v6")
    a(f"s_lshl_b32 s46, s{s_kq}, 1"); a("v_xor_b32 v6, s46, v6")
    a("v_lshlrev_b32 v6, 4, v6"); a("v_lshlrev_b32 v5, 7, v5"); a("v_add_u32 v5, v5, v6")
    a("v_lshrrev_b32 v6, 5, v0"); a("v_lshlrev_b32 v6, 3, v6"); a("v_add_u32 v5, v5, v6")
    a(f"ds_write_b64 v5, {vr(HP,2)}"); a(f"ds_write_b64 v5, {vr(HP+2,2)} offset:16")
    a(f"s_lshl_b32 s46, s{s_tt}, 2")
    tr_lane_addr(a, 7, 5, 6, 'perm', colunit_sreg=46)
    a(f"s_lshl_b32 s46, s{s_kq}, 11"); a("v_add_u32 v7, s46, v7")
    a("s_waitcnt lgkmcnt(0)"); a("s_barrier")
    a("ds_read_b64_tr_b16 v[24:25], v7"); a("ds_read_b64_tr_b16 v[26:27], v7 offset:1024")
    a(f"s_lshl_b32 s46, s{s_cb}, 1"); a(f"s_add_u32 s46, s46, s{s_tt}"); a("s_lshl_b32 s46, s46, 7")
    a(f"s_lshl_b32 s47, s{s_tb}, 2"); a("s_add_u32 s46, s46, s47"); a(f"s_add_u32 s46, s46, s{s_kq}")
    a("s_lshl_b32 s46, s46, 10"); a(f"s_add_u32 s46, s46, {LF}")
    a("s_waitcnt lgkmcnt(0)")
    a(f"buffer_store_dwordx4 v[24:27], v1, s[{SWS}:{SWS+3}], s46 offen{SC()}")

def big_gemm(a, nst, act_base_sregs, SWS, SW, VWD, w_stage_stride, s_sub, s_kq, act_is_B, ACC, dep=None):
    VL, VT, AF, WF = 4, 6, 96, 112
    a("v_lshlrev_b32 v1, 4, v0")
    a("s_lshl_b32 s50, s3, 11")
    a("s_lshl_b32 s51, s3, 11"); a("s_add_u32 s51, s51, 16384")
    def issue_act(s):
        slot = (s & 3) * 32768
        for dt in range(2):
            a(f"s_add_u32 s52, s{act_base_sregs[dt]}, {s*8192}")
            dma(a, 1, SWS, 52, (50, slot + dt * 1024), flags=SC())
    def issue_w(s):
        slot = (s & 3) * 32768
        for i in range(2):
            a(f"s_mov_b32 s52, {s*w_stage_stride + i*(w_stage_stride//16)}")
            dma(a, VWD, SW, 52, (51, slot + i * 1024))
    def issue(s): issue_act(s); issue_w(s)
    for s in range(4): issue_w(s)
    if dep: dep(a)
    for s in range(4): issue_act(s)
    a(f"s_lshl_b32 s46, s{s_kq}, 12"); a(f"v_add_u32 v{VL}, s46, v1"); a(f"v_add_u32 v{VL+1}, 0x10000, v{VL}")
    a(f"s_lshl_b32 s46, s{s_sub}, 2")
    tr_lane_addr(a, VT, 2, 3, 'perm', colunit_sreg=46)
    a(f"s_lshl_b32 s46, s{s_kq}, 12"); a("s_add_u32 s46, s46, 16384")
    a(f"v_add_u32 v{VT}, s46, v{VT}"); a(f"v_add_u32 v{VT+1}, 0x10000, v{VT}")
    for i in range(32): a(f"v_mov_b32 v{ACC+i}, 0")
    def reads(n):
        s, k = n >> 1, n & 1
        slot = s & 3; hi = slot >> 1; off = (slot & 1) * 32768
        par = n & 1
        for dt in range(2):
            a(f"ds_read_b128 {vr(AF + 8*par + 4*dt, 4)}, v{VL+hi} offset:{off + k*2048 + dt*1024}")
        a(f"ds_read_b64_tr_b16 {vr(WF + 4*par, 2)}, v{VT+hi} offset:{off + k*2048}")
        a(f"ds_read_b64_tr_b16 {vr(WF + 4*par + 2, 2)}, v{VT+hi} offset:{off + k*2048 + 1024}")
    a("s_waitcnt vmcnt(6)"); a("s_barrier")
    reads(0)
    N = 2 * nst
    for n in range(N):
        s, k = n >> 1, n & 1
        if k == 1 and s < nst - 1:
            if s <= 2: vm = {0: 4, 1: 2, 2: 4}[s]
            else: vm = 4 * (min(nst - 1, s + 2) - (s + 1))
            a(f"s_waitcnt vmcnt({vm})"); a("s_barrier")
            if s >= 1 and s + 3 < nst: issue(s + 3)
        if n < N - 1:
            reads(n + 1); a("s_waitcnt lgkmcnt(4)")
        else:
            a("s_waitcnt lgkmcnt(0)")
        par = n & 1
        for dt in range(2):
            if act_is_B: mfma(a, ACC + 16 * dt, WF + 4 * par, AF + 8 * par + 4 * dt)
            else: mfma(a, ACC + 16 * dt, AF + 8 * par + 4 * dt, WF + 4 * par)
    a("s_nop 7"); a("s_nop 3")

P45_LDS = 131072
def phase4(a, hooks=None):
    hooks = hooks or {}
    s_db, s_fb, s_ft, s_kq = 26, 27, 44, 45
    SW, SWS, SB = 28, 36, 32
    ACC = 64
    a("s_and_b32 s46, s2, 7"); a("s_lshr_b32 s47, s2, 3")
    a("s_and_b32 s48, s46, 1"); a("s_lshl_b32 s48, s48, 2"); a("s_and_b32 s49, s47, 3"); a(f"s_add_u32 s{s_db}, s48, s49")
    a("s_lshr_b32 s48, s46, 1"); a("s_mul_i32 s48, s48, 7"); a("s_lshr_b32 s49, s47, 2"); a(f"s_add_u32 s{s_fb}, s48, s49")
    a(f"s_and_b32 s{s_ft}, s3, 1"); a(f"s_lshr_b32 s{s_kq}, s3, 1")
    srd(a, SW, P_W1, 2048 * 1792 * 2); srd(a, SWS, P_WS, WS_SIZE); srd(a, SB, P_B1, 1792 * 2)
    dma_row_voff(a, 10, 2, 3, 3584)
    a("s_mul_i32 s46, s3, %d" % (16 * 3584)); a(f"s_lshl_b32 s47, s{s_fb}, 7"); a("s_add_u32 s46, s46, s47"); a("v_add_u32 v10, s46, v10")
    a(f"s_lshl_b32 s46, s{s_db}, 18"); a("s_lshl_b32 s47, s3, 10"); a("s_add_u32 s46, s46, s47")
    a(f"s_add_u32 s54, s46, {LF}"); a(f"s_add_u32 s55, s46, {LF + 128*1024}")
    a(f"s_lshl_b32 s46, s{s_fb}, 7"); a(f"s_lshl_b32 s47, s{s_ft}, 6"); a("s_add_u32 s46, s46, s47")
    a(f"s_and_b32 s47, s{s_kq}, 1"); a("s_lshl_b32 s47, s47, 5"); a("s_add_u32 s46, s46, s47")
    a("v_lshrrev_b32 v2, 5, v0"); a("v_lshlrev_b32 v2, 3, v2")
    a(f"buffer_load_dwordx2 v[12:13], v2, s[{SB}:{SB+3}], s46 offen"); a(f"buffer_load_dwordx2 v[14:15], v2, s[{SB}:{SB+3}], s46 offen offset:16")
    big_gemm(a, 16, (54, 55), SWS, SW, 10, 128 * 3584, s_ft, s_kq, True, ACC, hooks.get("dep"))
    reduce_scatter(a, ACC, s_ft, s_kq, 5, 112, 0)
    for j in range(4):
        a(f"v_lshlrev_b32 v{16+2*j}, 16, v{12+j}"); a(f"v_and_b32 v{17+2*j}, 0xffff0000, v{12+j}")
    for i in range(8): a(f"v_add_f32 v{ACC+i}, v{ACC+i}, v{16+i}")
    a("s_mov_b32 s46, 0xc0135761")
    a("s_mov_b32 s47, 0xbdd2d3e8")
    a("v_mov_b32 v24, s46")
    for i in range(8): a(f"v_mul_f32 v{16+i}, v{ACC+i}, v{ACC+i}")
    for i in range(8): a(f"v_fma_f32 v{16+i}, v{16+i}, s47, v24")
    for i in range(8): a(f"v_mul_f32 v{16+i}, v{16+i}, v{ACC+i}")
    for i in range(8): a(f"v_exp_f32 v{16+i}, v{16+i}")
    for i in range(8): a(f"v_add_f32 v{16+i}, 1.0, v{16+i}")
    for i in range(8): a(f"v_rcp_f32 v{16+i}, v{16+i}")
    for i in range(8): a(f"v_mul_f32 v{16+i}, v{16+i}, v{ACC+i}")
    for j in range(4): a(f"v_cvt_pk_bf16_f32 v{28+j}, v{16+2*j}, v{17+2*j}")
    a(f"s_lshl_b32 s46, s{s_db}, 1"); a(f"s_lshr_b32 s47, s{s_kq}, 1"); a("s_add_u32 s46, s46, s47"); a("s_mul_i32 s46, s46, 112")
    a(f"s_lshl_b32 s47, s{s_fb}, 2"); a("s_add_u32 s46, s46, s47"); a(f"s_lshl_b32 s47, s{s_ft}, 1"); a("s_add_u32 s46, s46, s47")
    a(f"s_and_b32 s47, s{s_kq}, 1"); a("s_add_u32 s46, s46, s47"); a("s_lshl_b32 s46, s46, 10"); a(f"s_add_u32 s46, s46, {UF}")
    a(f"buffer_store_dwordx4 v[28:31], v1, s[{SWS}:{SWS+3}], s46 offen{SC()}")

def phase5(a, hooks=None):
    hooks = hooks or {}
    s_db, s_sb, s_st, s_kq = 26, 27, 44, 45
    SW, SWS, SB, SO = 28, 36, 32, 40
    ACC = 64
    a("; ---- P5: out = h + (u w2 + b2)^T")
    a("s_and_b32 s46, s2, 7"); a("s_lshr_b32 s47, s2, 3")
    a("s_lshl_b32 s48, s46, 2"); a("s_lshr_b32 s49, s47, 3"); a(f"s_add_u32 s{s_sb}, s48, s49"); a(f"s_and_b32 s{s_db}, s47, 7")
    a(f"s_and_b32 s{s_st}, s3, 1"); a(f"s_lshr_b32 s{s_kq}, s3, 1")
    srd(a, SW, P_W2, 1792 * 2048 * 2); srd(a, SWS, P_WS, WS_SIZE); srd(a, SB, P_B2, 2048 * 2); srd(a, SO, P_OUT, 2048 * 512 * 2)
    dma_row_voff(a, 10, 2, 3, 4096)
    a("s_lshl_b32 s46, s3, 16"); a(f"s_lshl_b32 s47, s{s_sb}, 7"); a("s_add_u32 s46, s46, s47"); a("v_add_u32 v10, s46, v10")
    a(f"s_mul_i32 s46, s{s_db}, {2*112*1024}"); a("s_lshl_b32 s47, s3, 10"); a("s_add_u32 s46, s46, s47")
    a(f"s_add_u32 s54, s46, {UF}"); a(f"s_add_u32 s55, s46, {UF + 112*1024}")
    a(f"s_lshl_b32 s46, s{s_sb}, 1"); a(f"s_add_u32 s58, s46, s{s_st}")
    a("v_and_b32 v2, 31, v0"); a("s_lshl_b32 s46, s58, 5"); a("v_add_u32 v11, s46, v2")
    a("v_lshlrev_b32 v2, 1, v11")
    a(f"buffer_load_ushort v12, v2, s[{SB}:{SB+3}], 0 offen")
    a("s_lshl_b32 s46, s58, 5"); a(f"s_lshl_b32 s47, s{s_db}, 2"); a("s_add_u32 s46, s46, s47"); a(f"s_add_u32 s46, s46, s{s_kq}")
    a("s_lshl_b32 s46, s46, 10"); a(f"s_add_u32 s46, s46, {HF}")
    a("v_lshlrev_b32 v2, 4, v0")
    if cfg.persist:
        for j in range(4): a(f"v_mov_b32 v{16+j}, v{V_HP+j}")
    else:
        a(f"buffer_load_dwordx4 v[16:19], v2, s[{SWS}:{SWS+3}], s46 offen")
    big_gemm(a, 14, (54, 55), SWS, SW, 10, 128 * 4096, s_st, s_kq, False, ACC, hooks.get("dep"))
    reduce_scatter(a, ACC, s_st, s_kq, 5, 112, 0)
    a("v_lshlrev_b32 v12, 16, v12")
    for j in range(4):
        a(f"v_lshlrev_b32 v{20+2*j}, 16, v{16+j}"); a(f"v_and_b32 v{21+2*j}, 0xffff0000, v{16+j}")
    for i in range(8): a(f"v_add_f32 v{ACC+i}, v{ACC+i}, v12")
    for i in range(8): a(f"v_add_f32 v{ACC+i}, v{ACC+i}, v{20+i}")
    for j in range(4): a(f"v_cvt_pk_bf16_f32 v{28+j}, v{ACC+2*j}, v{ACC+2*j+1}")
    a("s_nop 1")
    a("v_permlane32_swap_b32 v28, v30"); a("v_permlane32_swap_b32 v29, v31")
    a("v_lshlrev_b32 v11, 10, v11"); a("v_lshrrev_b32 v2, 5, v0"); a("v_lshlrev_b32 v2, 4, v2"); a("v_add_u32 v11, v11, v2")
    a(f"s_lshl_b32 s46, s{s_db}, 7"); a(f"s_lshl_b32 s47, s{s_kq}, 5"); a("s_add_u32 s46, s46, s47")
    a(f"buffer_store_dwordx4 v[28:31], v11, s[{SO}:{SO+3}], s46 offen")
```

```python
import sys
from asmlib import *
import phases
from phases import *
import gen_persist as gp
from gen_persist import opt, stamp, SB_WS, STAMP0, HEADER, KNAME, NAME

S_OFA, S_LFA, S_UFA, S_FB128, S_STU = 96, 97, 98, 99, 100
WREG = 128
HP = 4
STG = 131072

def map_addresses(a):
    a("s_and_b32 s46, s2, 7"); a("s_lshr_b32 s47, s2, 3")
    a("s_lshl_b32 s48, s46, 2"); a("s_lshr_b32 s49, s47, 3"); a("s_add_u32 s48, s48, s49")
    a("s_and_b32 s49, s47, 7")
    a("s_lshl_b32 s50, s49, 3"); a("s_add_u32 s50, s50, s3"); a("s_lshl_b32 s50, s50, 5"); a("s_add_u32 s50, s50, s48")
    a("s_lshl_b32 s50, s50, 10"); a(f"s_add_u32 s{S_OFA}, s50, {OF}")
    a("s_lshl_b32 s50, s49, 1"); a("s_and_b32 s51, s3, 1"); a("s_add_u32 s50, s50, s51"); a("s_lshl_b32 s50, s50, 7")
    a("s_lshl_b32 s51, s48, 2"); a("s_add_u32 s50, s50, s51"); a("s_lshr_b32 s51, s3, 1"); a("s_add_u32 s50, s50, s51")
    a("s_lshl_b32 s50, s50, 10"); a(f"s_add_u32 s{S_LFA}, s50, {LF}")
    a("s_and_b32 s50, s46, 1"); a("s_lshl_b32 s50, s50, 2"); a("s_and_b32 s51, s47, 3"); a("s_add_u32 s50, s50, s51")
    a("s_lshr_b32 s51, s46, 1"); a("s_mul_i32 s51, s51, 7"); a("s_lshr_b32 s52, s47, 2"); a("s_min_u32 s52, s52, 6"); a("s_add_u32 s51, s51, s52")
    a(f"s_lshl_b32 s{S_FB128}, s51, 7")
    a("s_cmp_lt_u32 s47, 28"); a(f"s_cselect_b32 s{S_STU}, 1, 0")
    a("s_lshl_b32 s50, s50, 1"); a("s_lshr_b32 s52, s3, 2"); a("s_add_u32 s50, s50, s52"); a("s_mul_i32 s50, s50, 112")
    a("s_lshl_b32 s51, s51, 2"); a("s_add_u32 s50, s50, s51")
    a("s_and_b32 s51, s3, 1"); a("s_lshl_b32 s51, s51, 1"); a("s_add_u32 s50, s50, s51"); a("s_bfe_u32 s51, s3, 0x10001"); a("s_add_u32 s50, s50, s51")
    a("s_lshl_b32 s50, s50, 10"); a(f"s_add_u32 s{S_UFA}, s50, {UF}")

def markers(a):
    if opt.exp == "nomark": return 0
    for i in range(4): a(f"v_mov_b32 v{120+i}, -1")
    a("v_mov_b32 v124, v1")
    for s in (S_OFA, S_LFA):
        a(f"buffer_store_dwordx4 v[120:123], v124, s[{SB_WS}:{SB_WS+3}], s{s} offen sc1")
    a(f"s_cmp_eq_u32 s{S_STU}, 0"); a(f"s_cselect_b32 s60, s{S_LFA}, s{S_UFA}")
    a(f"buffer_store_dwordx4 v[120:123], v124, s[{SB_WS}:{SB_WS+3}], s60 offen sc1")
    a("s_lshl_b32 s60, s2, 9"); a("s_lshl_b32 s61, s3, 6"); a("s_add_u32 s60, s60, s61"); a(f"s_add_u32 s60, s60, {XCH}")
    a("v_cmp_gt_u32 vcc, 4, v0"); a("s_and_saveexec_b64 s[62:63], vcc")
    a(f"buffer_store_dwordx4 v[120:123], v124, s[{SB_WS}:{SB_WS+3}], s60 offen sc1")
    a("s_mov_b64 exec, s[62:63]")
    return 4

def markers_p1(a):
    a("v_lshlrev_b32 v1, 4, v0")
    return markers(a)

def zero_flag_load(a):
    l = a.uid("L_zf")
    a("s_cmp_lg_u32 s3, 0"); a(f"s_cbranch_scc1 {l}")
    a("buffer_load_dword v247, v248, s[76:79], 0 offen sc1")
    a.label(l)

def zero_flag_store(a):
    l = a.uid("L_zs")
    a("s_cmp_lg_u32 s2, 0"); a(f"s_cbranch_scc1 {l}"); a("s_cmp_lg_u32 s3, 7"); a(f"s_cbranch_scc1 {l}")
    a("v_mov_b32 v126, 1")
    a("v_cmp_eq_u32 vcc, 0, v0"); a("s_and_saveexec_b64 s[62:63], vcc")
    a("buffer_store_dword v126, v248, s[76:79], 0 offen sc1")
    a("s_mov_b64 exec, s[62:63]")
    a.label(l)

def wait_all_groups(k, target, st):
    def dep(a):
        l, lp = a.uid("L_wait"), a.uid("L_poll")
        a("s_cmp_lg_u32 s3, 0"); a(f"s_cbranch_scc1 {l}")
        a(f"s_mov_b32 s60, {CNT + k*2048}"); a("v_lshlrev_b32 v251, 8, v0"); a("s_mov_b32 s61, 0")
        a("v_cmp_gt_u32 vcc, 8, v0"); a("s_and_saveexec_b64 s[62:63], vcc")
        a.label(lp)
        a(f"buffer_load_dword v250, v251, s[{SB_WS}:{SB_WS+3}], s60 offen sc1")
        a("s_add_u32 s61, s61, 1")
        a("s_waitcnt vmcnt(0)")
        a(f"v_cmp_gt_u32 vcc, {target}, v250")
        lx = a.uid("L_wx")
        a(f"s_cbranch_vccz {lx}")
        a("s_cmp_lt_u32 s61, 0x200000"); a(f"s_cbranch_scc1 {lp}")
        a.label(lx)
        a("s_mov_b64 exec, s[62:63]")
        a.label(l)
        a("s_barrier")
        stamp(a, st)
    return dep

def late_check(a):
    l, lp = a.uid("L_lck"), a.uid("L_lcp")
    a("s_cmp_lg_u32 s3, 0"); a(f"s_cbranch_scc1 {l}")
    a("v_cmp_gt_u32 vcc, 32, v113")
    a(f"s_cbranch_vccz {l}")
    a("s_mov_b32 s61, 0"); a(f"s_mov_b32 s60, {CNT + (0 if opt.exp == 'mk_p1' else 2048)}")
    a.label(lp)
    a(f"buffer_load_dword v113, v112, s[{SB_WS}:{SB_WS+3}], s60 offen sc1")
    a("s_add_u32 s61, s61, 1")
    a("s_waitcnt vmcnt(0)")
    a("v_cmp_gt_u32 vcc, 32, v113")
    a(f"s_cbranch_vccz {l}")
    a("s_cmp_lt_u32 s61, 0x200000"); a(f"s_cbranch_scc1 {lp}")
    a.label(l)
    a("s_barrier")

def tag_check(a, regs_, lfail):
    a(f"v_cmp_eq_u32 vcc, -1, v{regs_[0]}")
    for r in regs_[1:]:
        a(f"v_cmp_eq_u32 s[62:63], -1, v{r}"); a("s_or_b64 vcc, vcc, s[62:63]")
    a(f"s_cbranch_vccnz {lfail}")

class W1Pref:
    VD, VT = 92, 93
    def setup(self, a):
        srd(a, 28, P_W1, 2048 * 1792 * 2); srd(a, 32, P_W2, 1792 * 2048 * 2); srd(a, 40, P_WO, 512 * 512 * 2)
        a("v_and_b32 v112, 7, v0"); a("v_lshlrev_b32 v112, 8, v112"); a("v_mov_b32 v113, 0")
        dma_row_voff(a, self.VD, 2, 3, 3584)
        a(f"s_mul_i32 s60, s3, {256*3584}"); a(f"s_add_u32 s60, s60, s{S_FB128}"); a(f"v_add_u32 v{self.VD}, s60, v{self.VD}")
        if "off" in opt.flags:
            for j in range(1, 4): a(f"v_add_u32 v{116 + j}, {j * (8 * 3584 - 1024)}, v{self.VD}")
        tr_lane_addr(a, self.VT, 2, 3, 'perm')
        a("s_lshl_b32 s59, s3, 12"); a(f"s_add_u32 s59, s59, {STG}")
        a(f"v_add_u32 v{self.VT}, s59, v{self.VT}"); a(f"v_xor_b32 v{self.VT+1}, 64, v{self.VT}")
        a("s_and_b32 s60, s2, 7"); a("s_lshr_b32 s61, s2, 3")
        dma_row_voff(a, 95, 2, 3, 1024)
        a("s_and_b32 s62, s61, 7"); a("s_lshl_b32 s62, s62, 7"); a("s_lshl_b32 s63, s3, 16"); a("s_add_u32 s62, s62, s63"); a("v_add_u32 v95, s62, v95")
        a("s_and_b32 s62, s3, 3"); a("s_lshl_b32 s62, s62, 13"); a("s_lshr_b32 s63, s3, 2"); a("s_lshl_b32 s63, s63, 16"); a("s_add_u32 s53, s62, s63")
        a("s_and_b32 s62, s61, 3"); a("s_lshl_b32 s62, s62, 6"); a("s_lshl_b32 s63, s3, 8"); a("s_add_u32 s62, s62, s63")
        a("v_add_u32 v116, s62, v0"); a("s_movk_i32 s63, 3584"); a("v_mul_lo_u32 v116, v116, s63"); a(f"v_add_u32 v116, s{S_FB128}, v116")
        a("s_lshl_b32 s62, s60, 2"); a("s_lshr_b32 s63, s61, 3"); a("s_add_u32 s62, s62, s63"); a("s_lshl_b32 s62, s62, 7")
        a("s_and_b32 s63, s61, 7"); a("s_mul_i32 s63, s63, 224"); a("s_mul_i32 s64, s3, 28"); a("s_add_u32 s63, s63, s64")
        a("v_min_u32 v96, 27, v0"); a("v_add_u32 v96, s63, v96"); a("v_lshlrev_b32 v96, 12, v96"); a("v_add_u32 v96, s62, v96")
    def tile(self, vq):
        def f(a, t):
            if t == (0 if "m12" in opt.flags else 1) and opt.exp != "mk_p1" and "preb1" not in opt.flags:
                vq.issue("markers", markers(a))
            if t % 8 == 0 and not (t == 0 and "preb1" in opt.flags):
                c = t // 8
                if "off" in opt.flags:
                    for j in range(4):
                        dma(a, self.VD if j == 0 else 116 + j, 28, 60, (59, 0) if j == 0 else None, offset=j * 1024,
                            pre=f"s_mov_b32 s60, {32*c*3584}" if j == 0 else None)
                else:
                    for j in range(4):
                        dma(a, self.VD, 28, 60, (59, j * 1024), pre=f"s_mov_b32 s60, {(32*c + 8*j)*3584}")
                vq.issue(f"w1_{c}", 4)
            if t % 8 == 7:
                c = t // 8
                vq.wait(a, f"w1_{c}")
                for kk in range(2):
                    for ft in range(2):
                        r = WREG + (2 * c + kk) * 8 + 4 * ft
                        a(f"ds_read_b64_tr_b16 {vr(r,2)}, v{self.VT+ft} offset:{kk*2048}")
                        a(f"ds_read_b64_tr_b16 {vr(r+2,2)}, v{self.VT+ft} offset:{kk*2048+1024}")
            if t in (45, 46):
                for i in range(4 * (t - 45), 4 * (t - 45) + 4):
                    dma(a, 95, 40, 60, (53, i * 1024), pre=f"s_mov_b32 s60, {i*8192}")
                vq.issue("wo", 4)
            MK = opt.exp == "mk_p1"
            if t == (0 if "preb1" in opt.flags else 12 if "m12" in opt.flags else 28) and not MK:
                l = a.uid("L_ma")
                a("s_cmp_lg_u32 s3, 0"); a(f"s_cbranch_scc1 {l}")
                a("s_and_b32 s60, s2, 7"); a("s_lshl_b32 s60, s60, 8"); a(f"s_add_u32 s60, s60, {CNT + 2048}")
                a("v_mov_b32 v114, 1"); a("v_mov_b32 v115, 0")
                a("v_cmp_eq_u32 vcc, 0, v0"); a("s_and_saveexec_b64 s[62:63], vcc")
                a(f"buffer_atomic_add v114, v115, s[{SB_WS}:{SB_WS+3}], s60 offen")
                a("s_mov_b64 exec, s[62:63]")
                a.label(l)
            if t == 52:
                l = a.uid("L_lc")
                a("s_cmp_lg_u32 s3, 0"); a(f"s_cbranch_scc1 {l}")
                a(f"s_mov_b32 s60, {CNT + (0 if MK else 2048)}")
                a(f"buffer_load_dword v113, v112, s[{SB_WS}:{SB_WS+3}], s60 offen sc1")
                a.label(l)
                vq.issue("maybe", 0)
            if "codepf2" in opt.flags and t == 50:
                a("s_lshl_b32 s60, s3, 13"); a("s_add_u32 s60, s60, L_p3_code-L_pcbase"); a("v_lshlrev_b32 v126, 7, v0"); a("v_add_u32 v126, s60, v126")
                a("s_mov_b32 s61, L_codeend-L_pcbase"); a("v_min_u32 v126, s61, v126")
                a("global_load_dword v125, v126, s[66:67]"); vq.issue("touch")
            if opt.touch and t == 3 and opt.exp == "btouch":
                srd(a, 44, P_B1, 1792 * 2); a("v_lshlrev_b32 v117, 7, v0")
                a("buffer_load_dword v97, v117, s[44:47], 0 offen"); vq.issue("touch")
                srd(a, 44, P_B2, 2048 * 2)
                a("buffer_load_dword v97, v117, s[44:47], 0 offen"); vq.issue("touch")
            if opt.touch and t == 2 and opt.exp == "w1touch":
                a("buffer_load_dword v97, v116, s[28:31], 0 offen"); vq.issue("touch")
            if opt.touch:
                if t == 27 and "preb1" not in opt.flags:
                    a("buffer_load_dword v97, v96, s[32:35], 0 offen"); vq.issue("touch")
        return f

class W2Stage:
    VD, VP, SRD, SE, SX_, SM = 60, 61, 28, 59, 55, 57
    def __init__(self): self.vq = None
    def setup(self, a):
        srd(a, self.SRD, P_W2, 1792 * 2048 * 2)
        dma_row_voff(a, self.VD, 2, 3, 4096)
        a("s_and_b32 s60, s2, 7"); a("s_lshr_b32 s61, s2, 3")
        a("s_lshl_b32 s60, s60, 2"); a("s_lshr_b32 s61, s61, 3"); a("s_add_u32 s60, s60, s61"); a("s_lshl_b32 s60, s60, 7")
        a(f"s_mul_i32 s61, s3, {224*4096}"); a("s_add_u32 s60, s60, s61"); a(f"v_add_u32 v{self.VD}, s60, v{self.VD}")
        a(f"s_lshl_b32 s{self.SE}, s3, 13"); a(f"s_add_u32 s{self.SE}, s{self.SE}, 98304")
        a(f"s_lshl_b32 s{self.SX_}, s3, 11"); a(f"s_add_u32 s{self.SX_}, s{self.SX_}, 49152")
        a("s_and_b32 s60, s3, 3"); a("s_lshl_b32 s60, s60, 13"); a("s_lshr_b32 s61, s3, 2"); a("s_lshl_b32 s61, s61, 16"); a(f"s_add_u32 s{self.SM}, s60, s61")
        tr_lane_addr(a, self.VP, 2, 3, 'perm')
        a(f"v_xor_b32 v{self.VP+1}, 64, v{self.VP}")
    def slot(self, j):
        k = j if j < 9 else j - 9
        if k < 4: return self.SE, k * 2048
        if k == 4: return self.SX_, 0
        return self.SM, (k - 5) * 2048
    def dma(self, a, j):
        sreg, off = self.slot(j)
        for i in range(2):
            dma(a, self.VD, self.SRD, 60, (sreg, off + i * 1024), pre=f"s_mov_b32 s60, {(16*j + 8*i)*4096}")
        if self.vq is not None: self.vq.issue(f"w2_{j}", 2)
    def read(self, a, j, dst=None):
        sreg, off = self.slot(j)
        dst = WREG + 8 * j if dst is None else dst
        for st in range(2):
            a(f"v_add_u32 v{2+st}, s{sreg}, v{self.VP+st}")
        for st in range(2):
            r = dst + 4 * st
            a(f"ds_read_b64_tr_b16 {vr(r,2)}, v{2+st} offset:{off}")
            a(f"ds_read_b64_tr_b16 {vr(r+2,2)}, v{2+st} offset:{off+1024}")

def phase3v2(a, w2):
    s_tb, s_cb, s_tt, s_kq = 26, 27, 44, 45
    SWO, SWS, SX = 28, 36, 32
    OFR, XR, ACC, AF, VA = 8, 40, 64, 96, 44
    a("s_and_b32 s46, s2, 7"); a("s_lshr_b32 s47, s2, 3")
    a("s_lshl_b32 s48, s46, 2"); a("s_lshr_b32 s49, s47, 3"); a(f"s_add_u32 s{s_tb}, s48, s49"); a(f"s_and_b32 s{s_cb}, s47, 7")
    a(f"s_and_b32 s{s_tt}, s3, 1"); a(f"s_lshr_b32 s{s_kq}, s3, 1")
    srd(a, SWO, P_WO, 512 * 512 * 2); srd(a, SWS, P_WS, WS_SIZE); srd(a, SX, P_X, 2048 * 512 * 2)
    a(f"s_lshl_b32 s46, s{s_tb}, 1"); a(f"s_add_u32 s58, s46, s{s_tt}")
    a(f"s_lshl_b32 s46, s58, 5"); a(f"s_lshl_b32 s47, s{s_kq}, 3"); a("s_add_u32 s46, s46, s47"); a("s_lshl_b32 s46, s46, 10"); a(f"s_add_u32 s50, s46, {OF}")
    a("s_add_u32 s51, s50, 4096")
    def oloads():
        for i in range(8):
            a(f"buffer_load_dwordx4 {vr(OFR+4*i,4)}, v1, s[{SWS}:{SWS+3}], s{50 + (i >> 2)} offen offset:{(i&3)*1024} sc1")
    if "oprobe" in opt.flags:
        a("v_lshlrev_b32 v46, 10, v0"); a("v_add_u32 v46, 1008, v46"); a("s_mov_b32 s48, 0")
        a("v_cmp_gt_u32 vcc, 8, v0"); a("s_and_saveexec_b64 s[52:53], vcc")
        lp, lx_ = a.uid("L_o_probe"), a.uid("L_o_px")
        a.label(lp)
        a(f"buffer_load_dword v47, v46, s[{SWS}:{SWS+3}], s50 offen sc1")
        a("s_add_u32 s48, s48, 1")
        a("s_waitcnt vmcnt(0)")
        a("v_cmp_eq_u32 vcc, -1, v47")
        a(f"s_cbranch_vccz {lx_}")
        a("s_cmp_lt_u32 s48, 0x100000"); a(f"s_cbranch_scc1 {lp}")
        a.label(lx_)
        a("s_mov_b64 exec, s[52:53]")
    if "ackwait_o" in opt.flags: a("s_waitcnt vmcnt(0)")
    oloads()
    a("v_and_b32 v3, 31, v0"); a("s_lshl_b32 s46, s58, 5"); a("v_add_u32 v3, s46, v3"); a("v_lshlrev_b32 v3, 10, v3")
    a("v_lshrrev_b32 v46, 5, v0"); a("v_lshlrev_b32 v46, 3, v46"); a("v_add_u32 v3, v3, v46")
    a(f"s_lshl_b32 s46, s{s_cb}, 7"); a(f"s_lshl_b32 s47, s{s_kq}, 5"); a("s_add_u32 s46, s46, s47")
    a(f"buffer_load_dwordx2 {vr(XR,2)}, v3, s[{SX}:{SX+3}], s46 offen")
    a(f"buffer_load_dwordx2 {vr(XR+2,2)}, v3, s[{SX}:{SX+3}], s46 offen offset:16")
    tr_lane_addr(a, VA, 46, 47, 'perm')
    a(f"s_and_b32 s46, s{s_kq}, 1"); a("s_lshl_b32 s46, s46, 14"); a(f"s_lshr_b32 s47, s{s_kq}, 1"); a("s_lshl_b32 s47, s47, 16"); a("s_add_u32 s46, s46, s47")
    a(f"v_add_u32 v{VA}, s46, v{VA}"); a(f"v_xor_b32 v{VA+1}, 64, v{VA}")
    for i in range(32): a(f"v_mov_b32 v{ACC+i}, 0")
    a("s_waitcnt lgkmcnt(0)"); a("s_barrier")
    w2.setup(a)
    def rd(i):
        for ct in range(2):
            r = AF + 8 * (i & 3) + 4 * ct
            a(f"ds_read_b64_tr_b16 {vr(r,2)}, v{VA+ct} offset:{i*2048}")
            a(f"ds_read_b64_tr_b16 {vr(r+2,2)}, v{VA+ct} offset:{i*2048+1024}")
    for i in range(3): rd(i)
    if "early_after_o" not in opt.flags:
        for j in range(5): w2.dma(a, j)
        a("s_waitcnt vmcnt(10)")
    else:
        a("s_waitcnt vmcnt(0)")
    def biases():
        srd(a, 40, P_B1, 1792 * 2)
        a("s_and_b32 s46, s3, 1"); a("s_lshl_b32 s46, s46, 6"); a("s_bfe_u32 s47, s3, 0x10001"); a("s_lshl_b32 s47, s47, 5")
        a("s_add_u32 s46, s46, s47"); a(f"s_add_u32 s46, s46, s{S_FB128}")
        a("v_lshrrev_b32 v2, 5, v0"); a("v_lshlrev_b32 v2, 3, v2")
        a("buffer_load_dwordx2 v[56:57], v2, s[40:43], s46 offen"); a("buffer_load_dwordx2 v[58:59], v2, s[40:43], s46 offen offset:16")
        srd(a, 40, P_B2, 2048 * 2)
        a("v_and_b32 v2, 31, v0"); a("s_lshl_b32 s46, s58, 5"); a("v_add_u32 v2, s46, v2"); a("v_lshlrev_b32 v2, 1, v2")
        a("buffer_load_ushort v63, v2, s[40:43], 0 offen")
    lp, lr, lok = a.uid("L_o_poll"), a.uid("L_o_retry"), a.uid("L_o_ok")
    if "oprobe" not in opt.flags:
        a("s_mov_b32 s48, 0")
        a.label(lp)
        a("s_mov_b32 s49, 0")
        for i in range(8):
            ls_ = a.uid("L_o_sk")
            a(f"v_cmp_eq_u32 vcc, -1, v{OFR+4*i}")
            a(f"s_cbranch_vccz {ls_}")
            a(f"buffer_load_dwordx4 {vr(OFR+4*i,4)}, v1, s[{SWS}:{SWS+3}], s{50 + (i >> 2)} offen offset:{(i&3)*1024} sc1")
            a("s_mov_b32 s49, 1")
            a.label(ls_)
        a("s_cmp_eq_u32 s49, 0"); a(f"s_cbranch_scc1 {lok}")
        a("s_add_u32 s48, s48, 1")
        a("s_waitcnt vmcnt(0)")
        a("s_cmp_lt_u32 s48, 0x100000"); a(f"s_cbranch_scc1 {lp}")
        a.label(lok)
    else:
        tag_check(a, [OFR + 4 * i for i in range(8)], lr)
        a(f"s_branch {lok}")
        a.label(lr)
        a("s_mov_b32 s48, 0")
        a.label(lp)
        oloads()
        a("s_add_u32 s48, s48, 1")
        a("s_waitcnt vmcnt(0)")
        a("s_cmp_ge_u32 s48, 0x100000"); a(f"s_cbranch_scc1 {lok}")
        tag_check(a, [OFR + 4 * i for i in range(8)], lp)
        a.label(lok)
    stamp(a, 4)
    if "early_after_o" in opt.flags:
        for j in range(5): w2.dma(a, j)
    if opt.exp == "earlybias": biases()
    for i in range(8):
        if i + 3 < 8: rd(i + 3); a("s_waitcnt lgkmcnt(12)")
        else: a(f"s_waitcnt lgkmcnt({(7 - i) * 4})")
        for ct in range(2): mfma(a, ACC + 16 * ct, AF + 8 * (i & 3) + 4 * ct, OFR + 4 * i)
    a("s_nop 7"); a("s_nop 3")
    if opt.exp == "p3steps": stamp(a, 1, force=True)
    reduce_scatter(a, ACC, s_tt, s_kq, 46, 8, 0, sub_shift=16)
    if opt.exp == "p3steps": stamp(a, 2, force=True)
    H = 8
    for j in range(4):
        a(f"v_lshlrev_b32 v{H+2*j}, 16, v{XR+j}"); a(f"v_and_b32 v{H+2*j+1}, 0xffff0000, v{XR+j}")
    for i in range(8): a(f"v_add_f32 v{H+i}, v{H+i}, v{ACC+i}")
    for j in range(4): a(f"v_cvt_pk_bf16_f32 v{HP+j}, v{H+2*j}, v{H+2*j+1}")
    for j in range(4):
        a(f"v_lshlrev_b32 v{H+2*j}, 16, v{HP+j}"); a(f"v_and_b32 v{H+2*j+1}, 0xffff0000, v{HP+j}")
    a(f"v_add_f32 v20, v{H}, v{H+1}"); a(f"v_mul_f32 v21, v{H}, v{H}"); a(f"v_fmac_f32 v21, v{H+1}, v{H+1}")
    for i in range(2, 8):
        a(f"v_add_f32 v20, v20, v{H+i}"); a(f"v_fmac_f32 v21, v{H+i}, v{H+i}")
    a("v_mov_b32 v22, v20"); a("v_mov_b32 v23, v21"); a("s_nop 1")
    a("v_permlane32_swap_b32 v20, v22"); a("v_permlane32_swap_b32 v21, v23"); a("s_nop 1")
    a("v_add_f32 v20, v20, v22"); a("v_add_f32 v21, v21, v23")
    ST = 32768
    a("v_and_b32 v46, 31, v0"); a(f"s_lshl_b32 s46, s{s_tt}, 5"); a("v_add_u32 v46, s46, v46"); a("v_lshlrev_b32 v24, 3, v46")
    a(f"s_lshl_b32 s46, s{s_kq}, 9"); a(f"s_add_u32 s46, s46, {ST}"); a("v_add_u32 v47, s46, v24")
    a("v_cmp_gt_u32 vcc, 32, v0"); a("s_and_saveexec_b64 s[52:53], vcc")
    a("ds_write_b64 v47, v[20:21]")
    a("s_mov_b64 exec, s[52:53]")
    a("s_waitcnt lgkmcnt(0)"); a("s_barrier")
    if opt.exp == "p3steps": stamp(a, 13, force=True)
    lx, lx0, lx1 = a.uid("L_p3_x"), a.uid("L_p3_x0"), a.uid("L_p3_x1")
    a(f"s_lshl_b32 s46, s{s_tb}, 12"); a(f"s_add_u32 s46, s46, {XCH}"); a(f"s_lshl_b32 s47, s{s_cb}, 9"); a("s_add_u32 s47, s47, s46")
    a("v_lshlrev_b32 v48, 3, v0")
    def publish():
        a(f"v_add_u32 v49, {ST}, v48")
        for q in range(4): a(f"ds_read_b64 {vr(26+2*q,2)}, v49 offset:{q*512}")
        a("s_waitcnt lgkmcnt(0)")
        a("v_add_f32 v26, v26, v28"); a("v_add_f32 v27, v27, v29"); a("v_add_f32 v30, v30, v32"); a("v_add_f32 v31, v31, v33")
        a("v_add_f32 v26, v26, v30"); a("v_add_f32 v27, v27, v31")
        a("v_min_u32 v26, 0xfffffffe, v26"); a("v_min_u32 v27, 0xfffffffe, v27")
        a(f"buffer_store_dwordx2 v[26:27], v48, s[{SWS}:{SWS+3}], s47 offen sc1")
    a("s_cmp_eq_u32 s3, 0"); a(f"s_cbranch_scc1 {lx0}")
    if "xack" not in opt.flags:
        a("s_cmp_lg_u32 s3, 1"); a(f"s_cbranch_scc1 {lx1}")
        publish()
    a.label(lx1)
    if "pubbar" in opt.flags: a("s_barrier")
    if "middma_early" in opt.flags:
        for j in range(5, 9): w2.dma(a, j)
    a(f"s_branch {lx}")
    a.label(lx0)
    if "pubbar" in opt.flags: a("s_barrier")
    if "xack" in opt.flags:
        publish()
        a("s_waitcnt vmcnt(0)")
    lp, lpd, lr = a.uid("L_p3_poll"), a.uid("L_p3_pd"), a.uid("L_p3_r")
    a("s_mov_b32 s48, 0")
    a.label(lp)
    for q in range(8): a(f"buffer_load_dwordx2 {vr(32+2*q,2)}, v48, s[{SWS}:{SWS+3}], s46 offen offset:{q*512} sc1")
    a("s_waitcnt vmcnt(0)")
    tag_check(a, list(range(32, 48)), lr)
    a(f"s_branch {lpd}")
    a.label(lr)
    if "xsleep" in opt.flags: a("s_sleep 3")
    a("s_add_u32 s48, s48, 1"); a("s_cmp_lt_u32 s48, 0x100000"); a(f"s_cbranch_scc1 {lp}")
    a.label(lpd)
    for q in range(1, 8):
        a(f"v_add_f32 v32, v32, v{32+2*q}"); a(f"v_add_f32 v33, v33, v{33+2*q}")
    a("v_mul_f32 v32, 0x3b000000, v32"); a("v_mul_f32 v33, 0x3b000000, v33")
    a("v_fma_f32 v33, -v32, v32, v33"); a("v_max_f32 v33, 0, v33")
    a("v_add_f32 v34, 0x3727c5ac, v33"); a("v_rsq_f32 v35, v34")
    a("s_nop 0")
    a("v_mul_f32 v36, v35, v35"); a("v_mul_f32 v36, v36, v33")
    a("v_add_f32 v36, 0x3727c5ac, v36"); a("v_rsq_f32 v36, v36")
    a("s_nop 0")
    a("v_mul_f32 v34, v35, v36"); a("v_mul_f32 v35, v32, v34"); a("v_sub_f32 v35, 0, v35")
    a(f"v_add_u32 v49, {ST + 2048}, v48")
    a("ds_write_b64 v49, v[34:35]")
    if "middma_early" in opt.flags:
        for j in range(5, 9): w2.dma(a, j)
    a("s_waitcnt lgkmcnt(0)")
    a.label(lx)
    a("s_barrier")
    stamp(a, 5)
    a(f"v_add_u32 v47, {ST + 2048}, v24")
    a("ds_read_b64 v[20:21], v47")
    a("s_waitcnt lgkmcnt(0)")
    for i in range(8): a(f"v_fma_f32 v{H+i}, v{H+i}, v20, v21")
    for j in range(4): a(f"v_cvt_pk_bf16_f32 v{16+j}, v{H+2*j}, v{H+2*j+1}")
    a("v_lshrrev_b32 v46, 3, v24")
    a("v_bfe_u32 v47, v46, 1, 1"); a("v_lshlrev_b32 v47, 2, v47")
    a(f"s_lshl_b32 s46, s{s_kq}, 1"); a("v_xor_b32 v47, s46, v47")
    a("v_lshlrev_b32 v47, 4, v47"); a("v_lshlrev_b32 v46, 7, v46"); a("v_add_u32 v46, v46, v47")
    a("v_lshrrev_b32 v47, 5, v0"); a("v_lshlrev_b32 v47, 3, v47"); a("v_add_u32 v46, v46, v47")
    a("ds_write_b64 v46, v[16:17] offset:36864"); a("ds_write_b64 v46, v[18:19] offset:36880")
    a(f"s_lshl_b32 s46, s{s_tt}, 2")
    tr_lane_addr(a, 48, 46, 47, 'perm', colunit_sreg=46)
    a(f"s_lshl_b32 s46, s{s_kq}, 11"); a("v_add_u32 v48, s46, v48")
    a("s_waitcnt lgkmcnt(0)"); a("s_barrier")
    a("ds_read_b64_tr_b16 v[24:25], v48 offset:36864"); a("ds_read_b64_tr_b16 v[26:27], v48 offset:37888")
    a("s_waitcnt lgkmcnt(0)")
    a("v_min_u32 v24, 0xfffffffe, v24")
    a(f"buffer_store_dwordx4 v[24:27], v1, s[{SWS}:{SWS+3}], s{S_LFA} offen sc1")
    if "middma_early" not in opt.flags:
        a("s_barrier")
        for j in range(5, 9): w2.dma(a, j)

RING = 8
NR = 6
ACC = 64
def act_load(a, s_act, i, r):
    for dt in range(2):
        a(f"s_add_u32 s52, s{s_act[dt]}, {i*1024}")
        a(f"buffer_load_dwordx4 {vr(r+4*dt,4)}, v1, s[36:39], s52 offen sc1")

def probe(a, s_act, probe_steps, sleep=0):
    a("v_lshrrev_b32 v2, 1, v0"); a(f"v_mov_b32 v3, {probe_steps[0]}")
    for n in range(1, 4):
        a(f"v_cmp_eq_u32 vcc, {n}, v2"); a(f"v_mov_b32 v8, {probe_steps[n]}"); a("s_nop 0"); a("v_cndmask_b32 v3, v3, v8, vcc")
    a("v_lshlrev_b32 v3, 10, v3"); a("v_add_u32 v3, 1008, v3")
    a("v_and_b32 v2, 1, v0"); a(f"s_sub_u32 s52, s{s_act[1]}, s{s_act[0]}"); a("v_mul_lo_u32 v2, v2, s52"); a("v_add_u32 v3, v3, v2")
    a("s_mov_b32 s53, 0")
    a("v_cmp_gt_u32 vcc, 8, v0"); a("s_and_saveexec_b64 s[62:63], vcc")
    lp, lx = a.uid("L_probe"), a.uid("L_px")
    a.label(lp)
    a(f"buffer_load_dword v8, v3, s[36:39], s{s_act[0]} offen sc1")
    a("s_add_u32 s53, s53, 1")
    a("s_waitcnt vmcnt(0)")
    a("v_cmp_eq_u32 vcc, -1, v8")
    a(f"s_cbranch_vccz {lx}")
    if sleep: a(f"s_sleep {sleep}")
    a("s_cmp_lt_u32 s53, 0x100000"); a(f"s_cbranch_scc1 {lp}")
    a.label(lx)
    a("s_mov_b64 exec, s[62:63]")

def gemm8(a, vq, nks, s_act, act_is_B, retries, probe_steps, free, wreg, frees_w, after_step=None, after_fill=None):
    dpoll = "dpoll" in opt.flags
    if dpoll and "ackwait" in opt.flags:
        a(f"s_waitcnt vmcnt({0 if (nks == 16 or opt.exp == 'w2late') else 10})")
    if not dpoll: probe(a, s_act, probe_steps)
    else: a("s_nop 0")
    if not dpoll: vq.q = []
    if (opt.exp == "p4steps" and nks == 16) or (opt.exp == "p5steps" and nks == 14): stamp(a, 1, force=True)
    if opt.exp == "probes": stamp(a, 1 if nks == 16 else 13, force=True)
    free = list(free); blk = {}; nxt = [0]
    def fill():
        while free and nxt[0] < nks:
            i = nxt[0]; blk[i] = free.pop(0); act_load(a, s_act, i, blk[i]); vq.issue(f"act{i}", 2); nxt[0] += 1
    fill()
    if after_fill: after_fill()
    for i in range(64): a(f"v_mov_b32 v{ACC+i}, 0")
    if dpoll:
        lp, lok = a.uid("L_dp"), a.uid("L_dpok")
        a("s_mov_b32 s53, 0")
        lfirst = a.uid("L_dp1")
        if opt.exp == "w2late" and nks == 14:
            a("s_waitcnt vmcnt(10)"); a(f"s_branch {lfirst}")
        a.label(lp)
        a("s_waitcnt vmcnt(0)")
        a.label(lfirst)
        a("s_mov_b32 s49, 0")
        for i in range(nxt[0]):
            for dt in range(2):
                ls_ = a.uid("L_dsk")
                a(f"v_cmp_eq_u32 vcc, -1, v{blk[i] + 4*dt}")
                a(f"s_cbranch_vccz {ls_}")
                a(f"s_add_u32 s52, s{s_act[dt]}, {i*1024}")
                a(f"buffer_load_dwordx4 {vr(blk[i]+4*dt,4)}, v1, s[36:39], s52 offen sc1")
                a("s_mov_b32 s49, 1")
                a.label(ls_)
        a("s_add_u32 s53, s53, 1")
        a("s_cmp_eq_u32 s49, 0"); a(f"s_cbranch_scc1 {lok}")
        a("s_cmp_lt_u32 s53, 0x100000"); a(f"s_cbranch_scc1 {lp}")
        a("s_waitcnt vmcnt(0)")
        a.label(lok)
        if opt.exp == "w2late" and nks == 14: vq.q = [t for t in vq.q if t.startswith("w2_")]
        else: vq.q = []
    for i in range(nks):
        r = blk[i]
        vq.wait(a, f"act{i}")
        lr, lb = a.uid("L_retry"), a.uid("L_back")
        if opt.exp != "notag": tag_check(a, [r, r + 4], lr)
        a.label(lb)
        retries.append((lr, lb, [(k, blk[k]) for k in range(i, min(i + 4, nxt[0]))], s_act))
        W0 = wreg(i)
        for sub in range(2):
            for dt in range(2):
                W, A_ = W0 + 4 * sub, r + 4 * dt
                if opt.exp == "nomfma": continue
                if act_is_B: mfma(a, ACC + 16 * (2 * dt + sub), W, A_)
                else: mfma(a, ACC + 16 * (2 * dt + sub), A_, W)
        if opt.exp == "p4steps" and nks == 16 and i in (0, 1, 3, 5, 7, 9, 11, 13): stamp(a, {0: 2, 1: 3, 3: 4, 5: 5, 7: 9, 9: 10, 11: 11, 13: 12}[i], force=True)
        if opt.exp == "p5steps" and nks == 14 and i in (0, 1, 3, 5, 7, 9, 11, 13): stamp(a, {0: 2, 1: 3, 3: 4, 5: 5, 7: 6, 9: 10, 11: 11, 13: 7}[i], force=True)
        free.append(r)
        if frees_w: free.append(W0)
        if after_step: after_step(i, free)
        fill()
    a("s_nop 7"); a("s_nop 3")

def emit_retries(a, retries):
    for lr, lb, steps, s_act in retries:
        lp = a.uid("L_rp")
        r = steps[0][1]
        a.label(lr)
        a("s_mov_b32 s53, 0")
        a.label(lp)
        for k, rk in steps: act_load(a, s_act, k, rk)
        a("s_add_u32 s53, s53, 1")
        a("s_waitcnt vmcnt(0)")
        a("s_cmp_ge_u32 s53, 0x100000"); a(f"s_cbranch_scc1 {lb}")
        tag_check(a, [r, r + 4], lp)
        a(f"s_branch {lb}")

RING_BLOCKS = [8 + 8 * i for i in range(6)]
def reduce8(a, w2, tail_barrier):
    a(f"v_add_u32 v2, s{w2.SE}, v1"); a(f"v_add_u32 v3, s{w2.SM}, v1")
    a("s_waitcnt lgkmcnt(0)")
    for p in range(8):
        sub, half, dt = p & 1, (p >> 1) & 1, p >> 2
        for q in range(2):
            r = ACC + 16 * (2 * dt + sub) + 8 * half + 4 * q
            a(f"ds_write_b128 v{2 + (p >> 2)}, {vr(r,4)} offset:{(p & 3)*2048 + q*1024}")
    a("s_and_b32 s46, s3, 3"); a("s_lshl_b32 s46, s46, 11")
    a("s_mov_b32 s48, 65536"); a("s_cmp_lt_u32 s3, 4"); a("s_cselect_b32 s47, 98304, 0"); a("s_cselect_b32 s48, 32768, s48")
    a("s_add_u32 s46, s46, s47"); a("v_add_u32 v2, s46, v1"); a("v_add_u32 v3, s48, v2")
    a("s_waitcnt lgkmcnt(0)"); a("s_barrier")
    for src in range(8):
        for q in range(2):
            a(f"ds_read_b128 {vr(ACC + 8*src + 4*q, 4)}, v{2 + (src >> 2)} offset:{(src & 3)*8192 + q*1024}")
    for lvl, (wait, pairs) in enumerate(((12, [(0, 1)]), (8, [(2, 3)]), (4, [(4, 5)]), (0, [(6, 7)]))):
        a(f"s_waitcnt lgkmcnt({wait})")
        for x, y in pairs:
            for i in range(8): a(f"v_add_f32 v{ACC+8*x+i}, v{ACC+8*x+i}, v{ACC+8*y+i}")
        if lvl == 3 and tail_barrier: a("s_barrier")
    for x, y in ((0, 2), (4, 6), (0, 4)):
        for i in range(8): a(f"v_add_f32 v{ACC+8*x+i}, v{ACC+8*x+i}, v{ACC+8*y+i}")

def phase4v2(a, retries, w2):
    s_db = 26
    SB, SW2 = 32, 28
    a("s_and_b32 s46, s2, 7"); a("s_lshr_b32 s47, s2, 3")
    a("s_and_b32 s48, s46, 1"); a("s_lshl_b32 s48, s48, 2"); a("s_and_b32 s49, s47, 3"); a(f"s_add_u32 s{s_db}, s48, s49")
    srd(a, SB, P_B1, 1792 * 2)
    vq = VMQ(); w2.vq = vq
    if opt.exp != "earlybias":
        a("s_and_b32 s46, s3, 1"); a("s_lshl_b32 s46, s46, 6"); a("s_bfe_u32 s47, s3, 0x10001"); a("s_lshl_b32 s47, s47, 5")
        a("s_add_u32 s46, s46, s47"); a(f"s_add_u32 s46, s46, s{S_FB128}")
        a("v_lshrrev_b32 v2, 5, v0"); a("v_lshlrev_b32 v2, 3, v2")
        a(f"buffer_load_dwordx2 v[56:57], v2, s[{SB}:{SB+3}], s46 offen"); a(f"buffer_load_dwordx2 v[58:59], v2, s[{SB}:{SB+3}], s46 offen offset:16")
        vq.issue("bias", 2)
    a(f"s_lshl_b32 s46, s{s_db}, 18"); a("s_lshl_b32 s47, s3, 14"); a("s_add_u32 s46, s46, s47")
    a(f"s_add_u32 s54, s46, {LF}"); a(f"s_add_u32 s56, s46, {LF + 128*1024}")
    ldup, ljoin = a.uid("L_p4_idle"), a.uid("L_p4_join")
    if "skipdup" in opt.flags:
        a(f"s_cmp_eq_u32 s{S_STU}, 0"); a(f"s_cbranch_scc1 {ldup}")
    def after4(i, free):
        j = i if 5 <= i <= 8 and i != 7 else None
        if j is not None: free.remove(WREG + 8 * j); w2.read(a, j)
        if i == 7: free.remove(WREG + 8 * 7); w2.read(a, 7)
        if i in (7, 9, 11, 13, 15):
            j = (i - 7) // 2; free.remove(WREG + 8 * j); w2.read(a, j)
    phases.cfg.fake16 = 'fake45' in opt.flags
    gemm8(a, vq, 16, (54, 56), True, retries, (3, 7, 11, 15), RING_BLOCKS, lambda i: WREG + 8 * i, True, after4)
    stamp(a, 7)
    reduce8(a, w2, True)
    for j in range(4):
        a(f"v_lshlrev_b32 v{16+2*j}, 16, v{56+j}"); a(f"v_and_b32 v{17+2*j}, 0xffff0000, v{56+j}")
    for i in range(8): a(f"v_add_f32 v{ACC+i}, v{ACC+i}, v{16+i}")
    a("s_mov_b32 s46, 0xc0135761")
    a("s_mov_b32 s47, 0xbdd2d3e8")
    a("v_mov_b32 v24, s46")
    for i in range(8): a(f"v_mul_f32 v{16+i}, v{ACC+i}, v{ACC+i}")
    for i in range(8): a(f"v_fma_f32 v{16+i}, v{16+i}, s47, v24")
    for i in range(8): a(f"v_mul_f32 v{16+i}, v{16+i}, v{ACC+i}")
    for i in range(8): a(f"v_exp_f32 v{16+i}, v{16+i}")
    for i in range(8): a(f"v_add_f32 v{16+i}, 1.0, v{16+i}")
    for i in range(8): a(f"v_rcp_f32 v{16+i}, v{16+i}")
    for i in range(8): a(f"v_mul_f32 v{16+i}, v{16+i}, v{ACC+i}")
    for j in range(4): a(f"v_cvt_pk_bf16_f32 v{28+j}, v{16+2*j}, v{17+2*j}")
    a("v_min_u32 v28, 0xfffffffe, v28")
    l = a.uid("L_nostu")
    a(f"s_cmp_eq_u32 s{S_STU}, 0"); a(f"s_cbranch_scc1 {l}")
    a(f"buffer_store_dwordx4 v[28:31], v1, s[36:39], s{S_UFA} offen sc1")
    a.label(l)
    if "skipdup" in opt.flags:
        a(f"s_branch {ljoin}")
        a.label(ldup)
        a("s_waitcnt vmcnt(0)")
        for j in range(9):
            if j % 3 == 0 and j: a("s_waitcnt lgkmcnt(0)")
            w2.read(a, j)
        a("s_waitcnt lgkmcnt(0)")
        a.label(ljoin)
    if opt.exp != "w2late":
        w2.vq = None
        if "ubar" in opt.flags: a("s_barrier")
        for j in range(9, 14): w2.dma(a, j)

def phase5v2(a, retries, w2):
    s_db, s_sb = 26, 27
    SB, SO = 32, 40
    a("; ---- P5: out = h + (u w2 + b2)^T")
    a("s_and_b32 s46, s2, 7"); a("s_lshr_b32 s47, s2, 3")
    a("s_lshl_b32 s48, s46, 2"); a("s_lshr_b32 s49, s47, 3"); a(f"s_add_u32 s{s_sb}, s48, s49"); a(f"s_and_b32 s{s_db}, s47, 7")
    srd(a, SB, P_B2, 2048 * 2); srd(a, SO, P_OUT, 2048 * 512 * 2)
    vq = VMQ(); vq.issue("ustore")
    a(f"s_lshl_b32 s46, s{s_sb}, 6"); a("s_and_b32 s47, s3, 1"); a("s_lshl_b32 s47, s47, 5"); a("s_add_u32 s46, s46, s47")
    a("v_and_b32 v2, 31, v0"); a("v_add_u32 v57, s46, v2"); a("v_lshlrev_b32 v2, 1, v57")
    if opt.exp != "earlybias": a(f"buffer_load_ushort v63, v2, s[{SB}:{SB+3}], 0 offen"); vq.issue("b2")
    a(f"s_mul_i32 s46, s{s_db}, {2*112*1024}"); a(f"s_mul_i32 s47, s3, {14*1024}"); a("s_add_u32 s46, s46, s47")
    a(f"s_add_u32 s54, s46, {UF}"); a(f"s_add_u32 s56, s46, {UF + 112*1024}")
    if "idleprobe" in opt.flags and "skipdup" in opt.flags:
        lq_ = a.uid("L_p5_busy")
        a(f"s_cmp_lg_u32 s{S_STU}, 0"); a(f"s_cbranch_scc1 {lq_}")
        if "idle1" in opt.flags:
            lw_ = a.uid("L_p5_w")
            a("s_cmp_lg_u32 s3, 7"); a(f"s_cbranch_scc1 {lw_}")
            probe(a, (54, 56), (1, 5, 9, 13), 8 if "idlesleep" in opt.flags else 0)
            a.label(lw_)
            a("s_barrier")
        else:
            probe(a, (54, 56), (1, 5, 9, 13))
        a.label(lq_)
    wblk = {j: WREG + 8 * j for j in range(9)}
    spare = [WREG + 8 * j for j in range(9, 16)]
    def rest_of_w2():
        if opt.exp != "w2late": return
        w2.vq = vq
        for j in range(9, 14): w2.dma(a, j)
    def after5(i, free):
        if i <= 1: free += [spare.pop(0), spare.pop(0)]
        if i == 2: free.append(spare.pop(0))
        if i == 6:
            vq.wait(a, "w2_13")
            for j in (9, 10): wblk[j] = spare.pop(0); w2.read(a, j, wblk[j])
        if i == 7:
            for j in (11, 12): wblk[j] = free.pop(0); w2.read(a, j, wblk[j])
        if i == 8:
            wblk[13] = free.pop(0); a("s_waitcnt lgkmcnt(8)"); w2.read(a, 13, wblk[13]); a("s_waitcnt lgkmcnt(4)")
        if i == 11: a("s_waitcnt lgkmcnt(0)")
    gemm8(a, vq, 14, (54, 56), False, retries, (1, 5, 9, 13), RING_BLOCKS, lambda i: wblk[i], False, after5, rest_of_w2)
    phases.cfg.fake16 = False
    stamp(a, 9)
    reduce8(a, w2, False)
    a("v_lshlrev_b32 v56, 16, v63")
    for j in range(4):
        a(f"v_lshlrev_b32 v{20+2*j}, 16, v{HP+j}"); a(f"v_and_b32 v{21+2*j}, 0xffff0000, v{HP+j}")
    for i in range(8): a(f"v_add_f32 v{ACC+i}, v{ACC+i}, v56")
    for i in range(8): a(f"v_add_f32 v{ACC+i}, v{ACC+i}, v{20+i}")
    for j in range(4): a(f"v_cvt_pk_bf16_f32 v{28+j}, v{ACC+2*j}, v{ACC+2*j+1}")
    a("s_nop 1")
    a("v_permlane32_swap_b32 v28, v30"); a("v_permlane32_swap_b32 v29, v31")
    a("v_lshlrev_b32 v57, 10, v57"); a("v_lshrrev_b32 v2, 5, v0"); a("v_lshlrev_b32 v2, 4, v2"); a("v_add_u32 v57, v57, v2")
    a(f"s_lshl_b32 s46, s{s_db}, 7"); a("s_lshr_b32 s47, s3, 1"); a("s_lshl_b32 s47, s47, 5"); a("s_add_u32 s46, s46, s47")
    a(f"buffer_store_dwordx4 v[28:31], v57, s[{SO}:{SO+3}], s46 offen{opt.outflags}")

DOC = """; ---------------------------------------------------------------------------------------------------------------
;      Hand-off: counters in d_ws (zeroed by workgroup 0, announced through d_debug word 63), one per head group.
;      Under the loop: w1 fragments move into registers, the Wo slice into dead K/V space, hand-off markers are reset.
;  Hand-offs after P2 carry their own validity: the producer first resets its fragments to an all-ones marker (counted on a
; ---------------------------------------------------------------------------------------------------------------
"""

opt.outflags = ""
opt.p1stamps = False
opt.exp = None
opt.stamp_wave = 0
opt.flags = {'off', 'prio', 'dpoll', 'skipdup', 'ubar', 'middma_early', 'ackwait', 'idleprobe', 'idle1', 'ackwait_o', 'b1sleep4'}
def build():
    phases.cfg.persist = True; phases.cfg.tags = True
    a = Asm()
    a.label(KNAME)
    end = "L_end"
    if opt.stamps: a("s_memrealtime s[74:75]")
    prologue(a, 256, end)
    if opt.stamps:
        for i in range(1, 16): a(f"s_mov_b32 s{STAMP0+i}, 0")
        a(f"s_mov_b32 s{STAMP0}, s74")
    if opt.diag == "pad100":
        a("s_memrealtime s[90:91]"); a("s_waitcnt lgkmcnt(0)")
    if "xearly" in opt.flags: p1_xloads(a, {})
    srd(a, SB_WS, P_WS, WS_SIZE); srd(a, 76, P_DBG, 256)
    a("v_mov_b32 v248, 252"); a("v_mov_b32 v247, 0")
    if opt.codepf:
        a("s_getpc_b64 s[62:63]")
        a.label("L_pcbase")
        if "codepf2" in opt.flags: a("s_mov_b64 s[66:67], s[62:63]")
        a("s_lshl_b32 s60, s3, 13"); a("v_lshlrev_b32 v6, 7, v0"); a("v_add_u32 v6, s60, v6")
        a("s_mov_b32 s61, L_codeend-L_pcbase"); a("v_min_u32 v6, s61, v6")
        a("global_load_dword v249, v6, s[62:63]")
    lz = a.uid("L_zero")
    a("s_cmp_lg_u32 s2, 0"); a(f"s_cbranch_scc1 {lz}")
    a("s_cmp_lg_u32 s3, 7"); a(f"s_cbranch_scc1 {lz}")
    a("v_lshlrev_b32 v6, 8, v0"); a("v_mov_b32 v7, 0")
    a("v_cmp_gt_u32 vcc, 16, v0"); a("s_and_saveexec_b64 s[62:63], vcc")
    a(f"s_mov_b32 s60, {CNT}")
    a(f"buffer_store_dword v7, v6, s[{SB_WS}:{SB_WS+3}], s60 offen sc1")
    a("s_mov_b64 exec, s[62:63]")
    a.label(lz)
    map_addresses(a)
    phases.cfg.fake16 = 'fake1' in opt.flags
    phase1(a, {**({"after_dma": markers_p1} if opt.exp == "mk_p1" else {}), ("post_c0" if "xearly" in opt.flags else "post_x"): zero_flag_store, "pre_store": zero_flag_load, "no_clear": True, "xfirst": True, "wtouch": opt.touch, "late_issue": True, "x_issued": "xearly" in opt.flags, **({"cyc0": lambda a: (stamp(a, 10, force=True), stamp(a, 14, True, force=True)), "cyc1": lambda a: (stamp(a, 15, True, force=True), stamp(a, 11, force=True))} if "p1cyc" in opt.flags else {}), "pipe_ln": opt.exp == "pipeln", **({"st": (lambda a, i: stamp(a, i, force=True))} if opt.p1stamps else {})})
    phases.cfg.fake16 = False
    stamp(a, 1)
    l, lp = a.uid("L_zc"), a.uid("L_zp")
    a("s_cmp_lg_u32 s3, 0"); a(f"s_cbranch_scc1 {l}")
    a("s_mov_b32 s61, 0")
    a.label(lp)
    a("s_waitcnt vmcnt(0)")
    a("v_readfirstlane_b32 s64, v247"); a("s_add_u32 s61, s61, 1")
    a("s_cmp_lg_u32 s64, 0"); a(f"s_cbranch_scc1 {l}")
    a("buffer_load_dword v247, v248, s[76:79], 0 offen sc1")
    a("s_cmp_lt_u32 s61, 0x200000"); a(f"s_cbranch_scc1 {lp}")
    a.label(l)
    gp.arrive(a, 0, 27, 13)
    vq = VMQ(); pf = W1Pref()
    def dep2(a):
        pf.setup(a)
        if "codepf2" in opt.flags:
            a("s_lshl_b32 s60, s3, 13"); a("s_add_u32 s60, s60, L_att_code-L_pcbase"); a("v_lshlrev_b32 v6, 7, v0"); a("v_add_u32 v6, s60, v6")
            a("s_mov_b32 s61, L_p3_code-L_pcbase"); a("v_min_u32 v6, s61, v6")
            a("global_load_dword v125, v6, s[66:67]")
        if "preb1" in opt.flags:
            vq.issue("markers", markers(a))
            if opt.touch: a("buffer_load_dword v97, v96, s[32:35], 0 offen"); vq.issue("touch")
            for j in range(4):
                dma(a, pf.VD if j == 0 else 116 + j, 28, 60, (59, 0) if j == 0 else None, offset=j * 1024, pre="s_mov_b32 s60, 0" if j == 0 else None)
            vq.issue("w1_0", 4)
        a("s_and_b32 s65, s2, 7")
        gp.make_wait(0, 65, 32, 2)(a)
    phase2(a, {"dep": dep2, "vq": vq, "tile": pf.tile(vq),
               **({} if "p1cyc" in opt.flags else {"loop_start": lambda a: (a.label("L_att_code"), stamp(a, 10), stamp(a, 14, True)), "loop_end": lambda a: (stamp(a, 15, True), stamp(a, 11))})})
    stamp(a, 3)
    a.label("L_p3_code")
    late_check(a)
    retries = []
    w2 = W2Stage()
    phase3v2(a, w2)
    stamp(a, 6)
    phase4v2(a, retries, w2)
    stamp(a, 8)
    phase5v2(a, retries, w2)
    if opt.stamps:
        a("s_waitcnt vmcnt(0)")
        stamp(a, 12)
        ls = a.uid("L_st")
        a("s_lshl_b32 s61, s2, 3"); a("s_add_u32 s61, s61, s3"); a("s_lshl_b32 s61, s61, 6"); a("s_add_u32 s61, s61, 0xF00000"); a("v_mov_b32 v3, 0")
        for i in range(16):
            a(f"v_mov_b32 v2, s{STAMP0+i}")
            a(f"buffer_store_dword v2, v3, s[{SB_WS}:{SB_WS+3}], s61 offen offset:{4*i}")
        a(f"s_cmp_lg_u32 s2, {opt.stamp_wg}"); a(f"s_cbranch_scc1 {ls}"); a(f"s_cmp_lg_u32 s3, {opt.stamp_wave}"); a(f"s_cbranch_scc1 {ls}")
        for i in range(14):
            a(f"s_sub_u32 s60, s{STAMP0+i}, s74"); a(f"v_mov_b32 v2, s60"); a(f"v_mov_b32 v3, {4*i}")
            a("buffer_store_dword v2, v3, s[76:79], 0 offen")
        a.label(ls)
    if opt.diag == "pad100":
        a.label("L_dg"); a("s_memrealtime s[92:93]"); a("s_waitcnt lgkmcnt(0)"); a("s_sub_u32 s92, s92, s90"); a("s_cmp_lt_u32 s92, 10000"); a("s_cbranch_scc1 L_dg")
    a("s_endpgm")
    emit_retries(a, retries)
    a.label(end)
    a.label("L_codeend")
    a("s_endpgm")
    body = a.text()
    probs = check_hazards(body)
    for p in probs: print(p, file=sys.stderr)
    desc = f""".amdhsa_kernel {KNAME}
  .amdhsa_next_free_vgpr 256
  .amdhsa_next_free_sgpr 102
  .amdhsa_accum_offset 256
  .amdhsa_group_segment_fixed_size 0
  .amdhsa_kernarg_size 88
  .amdhsa_user_sgpr_count 2
  .amdhsa_user_sgpr_kernarg_segment_ptr 1
  .amdhsa_system_sgpr_workgroup_id_x 1
  .amdhsa_float_denorm_mode_32 3
.end_amdhsa_kernel
"""
    return (HEADER + "; @launch grid=(256,1,1) block=(512,1,1) lds=163840\n" + DOC
            + '.amdgcn_target "amdgcn-amd-amdhsa--gfx950"\n.text\n'
            + f".globl {KNAME}\n.p2align 8\n.type {KNAME},@function\n" + body
            + '.section .rodata,"a"\n.p2align 6\n' + desc)

if __name__ == "__main__":
    import argparse
    ap = argparse.ArgumentParser()
    ap.add_argument("-o", default=f"cdna_kernels/{NAME}.s")
    ap.add_argument("--stamps", action="store_true")
    ap.add_argument("--no-touch", action="store_true")
    ap.add_argument("--no-codepf", action="store_true")
    ap.add_argument("--diag", default=None)
    ap.add_argument("--outflags", default="")
    ap.add_argument("--p1stamps", action="store_true")
    ap.add_argument("--exp", default=None)
    ap.add_argument("--endonly", action="store_true")
    ap.add_argument("--flags", default="off,prio,dpoll,skipdup,ubar,middma_early,ackwait,idleprobe,idle1,ackwait_o,b1sleep4")
    ap.add_argument("--stamp-wg", type=int, default=0)
    ap.add_argument("--stamp-wave", type=int, default=0)
    args = ap.parse_args()
    opt.stamps = args.stamps; opt.touch = not args.no_touch; opt.codepf = not args.no_codepf; opt.diag = args.diag
    opt.endonly = args.endonly; opt.flags = set(args.flags.split(','))
    opt.stamp_wg = args.stamp_wg; opt.stamp_wave = args.stamp_wave
    opt.p1stamps = args.p1stamps; opt.exp = args.exp; phases.cfg.exp = args.exp; phases.cfg.prio = 'prio' in opt.flags; phases.cfg.kvstaged = 'kvstaged' in opt.flags; phases.cfg.ln4 = 'ln4' in opt.flags; phases.cfg.m12 = 'm12' in opt.flags or 'preb1' in opt.flags
    opt.outflags = (" " + args.outflags) if args.outflags else ""
    open(args.o, "w").write(build())
    print("wrote", args.o)
```

```python
import sys
from asmlib import *
import phases
from phases import *
import gen_persist as gp
from gen_persist import opt, stamp, SB_WS, STAMP0, HEADER, KNAME, NAME

S_OFA, S_LFA, S_UFA, S_FB128, S_STU = 96, 97, 98, 99, 100
WREG = 128
HP = 4
STG = 131072

def map_addresses(a):
    a("s_and_b32 s46, s2, 7"); a("s_lshr_b32 s47, s2, 3")
    a("s_lshl_b32 s48, s46, 2"); a("s_lshr_b32 s49, s47, 3"); a("s_add_u32 s48, s48, s49")
    a("s_and_b32 s49, s47, 7")
    a("s_lshl_b32 s50, s49, 3"); a("s_add_u32 s50, s50, s3"); a("s_lshl_b32 s50, s50, 5"); a("s_add_u32 s50, s50, s48")
    a("s_lshl_b32 s50, s50, 10"); a(f"s_add_u32 s{S_OFA}, s50, {OF}")
    a("s_lshl_b32 s50, s49, 1"); a("s_and_b32 s51, s3, 1"); a("s_add_u32 s50, s50, s51"); a("s_lshl_b32 s50, s50, 7")
    a("s_lshl_b32 s51, s48, 2"); a("s_add_u32 s50, s50, s51"); a("s_lshr_b32 s51, s3, 1"); a("s_add_u32 s50, s50, s51")
    a("s_lshl_b32 s50, s50, 10"); a(f"s_add_u32 s{S_LFA}, s50, {LF}")
    a("s_and_b32 s50, s46, 1"); a("s_lshl_b32 s50, s50, 2"); a("s_and_b32 s51, s47, 3"); a("s_add_u32 s50, s50, s51")
    a("s_lshr_b32 s51, s46, 1"); a("s_mul_i32 s51, s51, 7"); a("s_lshr_b32 s52, s47, 2"); a("s_min_u32 s52, s52, 6"); a("s_add_u32 s51, s51, s52")
    a(f"s_lshl_b32 s{S_FB128}, s51, 7")
    a("s_cmp_lt_u32 s47, 28"); a(f"s_cselect_b32 s{S_STU}, 1, 0")
    a("s_lshl_b32 s50, s50, 1"); a("s_lshr_b32 s52, s3, 2"); a("s_add_u32 s50, s50, s52"); a("s_mul_i32 s50, s50, 112")
    a("s_lshl_b32 s51, s51, 2"); a("s_add_u32 s50, s50, s51")
    a("s_and_b32 s51, s3, 1"); a("s_lshl_b32 s51, s51, 1"); a("s_add_u32 s50, s50, s51"); a("s_bfe_u32 s51, s3, 0x10001"); a("s_add_u32 s50, s50, s51")
    a("s_lshl_b32 s50, s50, 10"); a(f"s_add_u32 s{S_UFA}, s50, {UF}")

def markers(a):
    if opt.exp == "nomark": return 0
    for i in range(4): a(f"v_mov_b32 v{120+i}, -1")
    a("v_mov_b32 v124, v1")
    for s in (S_OFA, S_LFA):
        a(f"buffer_store_dwordx4 v[120:123], v124, s[{SB_WS}:{SB_WS+3}], s{s} offen sc1")
    a(f"s_cmp_eq_u32 s{S_STU}, 0"); a(f"s_cselect_b32 s60, s{S_LFA}, s{S_UFA}")
    a(f"buffer_store_dwordx4 v[120:123], v124, s[{SB_WS}:{SB_WS+3}], s60 offen sc1")
    a("s_lshl_b32 s60, s2, 9"); a("s_lshl_b32 s61, s3, 6"); a("s_add_u32 s60, s60, s61"); a(f"s_add_u32 s60, s60, {XCH}")
    a("v_cmp_gt_u32 vcc, 4, v0"); a("s_and_saveexec_b64 s[62:63], vcc")
    a(f"buffer_store_dwordx4 v[120:123], v124, s[{SB_WS}:{SB_WS+3}], s60 offen sc1")
    a("s_mov_b64 exec, s[62:63]")
    return 4

def markers_p1(a):
    a("v_lshlrev_b32 v1, 4, v0")
    return markers(a)

def zero_flag_load(a):
    l = a.uid("L_zf")
    a("s_cmp_lg_u32 s3, 0"); a(f"s_cbranch_scc1 {l}")
    a("buffer_load_dword v247, v248, s[76:79], 0 offen sc1")
    a.label(l)

def zero_flag_store(a):
    l = a.uid("L_zs")
    a("s_cmp_lg_u32 s2, 0"); a(f"s_cbranch_scc1 {l}"); a("s_cmp_lg_u32 s3, 7"); a(f"s_cbranch_scc1 {l}")
    a("v_mov_b32 v126, 1")
    a("v_cmp_eq_u32 vcc, 0, v0"); a("s_and_saveexec_b64 s[62:63], vcc")
    a("buffer_store_dword v126, v248, s[76:79], 0 offen sc1")
    a("s_mov_b64 exec, s[62:63]")
    a.label(l)

def wait_all_groups(k, target, st):
    def dep(a):
        l, lp = a.uid("L_wait"), a.uid("L_poll")
        a("s_cmp_lg_u32 s3, 0"); a(f"s_cbranch_scc1 {l}")
        a(f"s_mov_b32 s60, {CNT + k*2048}"); a("v_lshlrev_b32 v251, 8, v0"); a("s_mov_b32 s61, 0")
        a("v_cmp_gt_u32 vcc, 8, v0"); a("s_and_saveexec_b64 s[62:63], vcc")
        a.label(lp)
        a(f"buffer_load_dword v250, v251, s[{SB_WS}:{SB_WS+3}], s60 offen sc1")
        a("s_add_u32 s61, s61, 1")
        a("s_waitcnt vmcnt(0)")
        a(f"v_cmp_gt_u32 vcc, {target}, v250")
        lx = a.uid("L_wx")
        a(f"s_cbranch_vccz {lx}")
        a("s_cmp_lt_u32 s61, 0x200000"); a(f"s_cbranch_scc1 {lp}")
        a.label(lx)
        a("s_mov_b64 exec, s[62:63]")
        a.label(l)
        a("s_barrier")
        stamp(a, st)
    return dep

def late_check(a):
    l, lp = a.uid("L_lck"), a.uid("L_lcp")
    a("s_cmp_lg_u32 s3, 0"); a(f"s_cbranch_scc1 {l}")
    a("v_cmp_gt_u32 vcc, 32, v113")
    a(f"s_cbranch_vccz {l}")
    a("s_mov_b32 s61, 0"); a(f"s_mov_b32 s60, {CNT + (0 if opt.exp == 'mk_p1' else 2048)}")
    a.label(lp)
    a(f"buffer_load_dword v113, v112, s[{SB_WS}:{SB_WS+3}], s60 offen sc1")
    a("s_add_u32 s61, s61, 1")
    a("s_waitcnt vmcnt(0)")
    a("v_cmp_gt_u32 vcc, 32, v113")
    a(f"s_cbranch_vccz {l}")
    a("s_cmp_lt_u32 s61, 0x200000"); a(f"s_cbranch_scc1 {lp}")
    a.label(l)
    a("s_barrier")

def tag_check(a, regs_, lfail):
    a(f"v_cmp_eq_u32 vcc, -1, v{regs_[0]}")
    for r in regs_[1:]:
        a(f"v_cmp_eq_u32 s[62:63], -1, v{r}"); a("s_or_b64 vcc, vcc, s[62:63]")
    a(f"s_cbranch_vccnz {lfail}")

class W1Pref:
    VD, VT = 92, 93
    def setup(self, a):
        srd(a, 28, P_W1, 2048 * 1792 * 2); srd(a, 32, P_W2, 1792 * 2048 * 2); srd(a, 40, P_WO, 512 * 512 * 2)
        a("v_and_b32 v112, 7, v0"); a("v_lshlrev_b32 v112, 8, v112"); a("v_mov_b32 v113, 0")
        dma_row_voff(a, self.VD, 2, 3, 3584)
        a(f"s_mul_i32 s60, s3, {256*3584}"); a(f"s_add_u32 s60, s60, s{S_FB128}"); a(f"v_add_u32 v{self.VD}, s60, v{self.VD}")
        if "off" in opt.flags:
            for j in range(1, 4): a(f"v_add_u32 v{116 + j}, {j * (8 * 3584 - 1024)}, v{self.VD}")
        tr_lane_addr(a, self.VT, 2, 3, 'perm')
        a("s_lshl_b32 s59, s3, 12"); a(f"s_add_u32 s59, s59, {STG}")
        a(f"v_add_u32 v{self.VT}, s59, v{self.VT}"); a(f"v_xor_b32 v{self.VT+1}, 64, v{self.VT}")
        a("s_and_b32 s60, s2, 7"); a("s_lshr_b32 s61, s2, 3")
        dma_row_voff(a, 95, 2, 3, 1024)
        a("s_and_b32 s62, s61, 7"); a("s_lshl_b32 s62, s62, 7"); a("s_lshl_b32 s63, s3, 16"); a("s_add_u32 s62, s62, s63"); a("v_add_u32 v95, s62, v95")
        a("s_and_b32 s62, s3, 3"); a("s_lshl_b32 s62, s62, 13"); a("s_lshr_b32 s63, s3, 2"); a("s_lshl_b32 s63, s63, 16"); a("s_add_u32 s53, s62, s63")
        a("s_and_b32 s62, s61, 3"); a("s_lshl_b32 s62, s62, 6"); a("s_lshl_b32 s63, s3, 8"); a("s_add_u32 s62, s62, s63")
        a("v_add_u32 v116, s62, v0"); a("s_movk_i32 s63, 3584"); a("v_mul_lo_u32 v116, v116, s63"); a(f"v_add_u32 v116, s{S_FB128}, v116")
        a("s_lshl_b32 s62, s60, 2"); a("s_lshr_b32 s63, s61, 3"); a("s_add_u32 s62, s62, s63"); a("s_lshl_b32 s62, s62, 7")
        a("s_and_b32 s63, s61, 7"); a("s_mul_i32 s63, s63, 224"); a("s_mul_i32 s64, s3, 28"); a("s_add_u32 s63, s63, s64")
        a("v_min_u32 v96, 27, v0"); a("v_add_u32 v96, s63, v96"); a("v_lshlrev_b32 v96, 12, v96"); a("v_add_u32 v96, s62, v96")
    def tile(self, vq):
        def f(a, t):
            if t == (0 if "m12" in opt.flags else 1) and opt.exp != "mk_p1" and "preb1" not in opt.flags:
                vq.issue("markers", markers(a))
            if t % 8 == 0 and not (t == 0 and "preb1" in opt.flags):
                c = t // 8
                if "off" in opt.flags:
                    for j in range(4):
                        dma(a, self.VD if j == 0 else 116 + j, 28, 60, (59, 0) if j == 0 else None, offset=j * 1024,
                            pre=f"s_mov_b32 s60, {32*c*3584}" if j == 0 else None)
                else:
                    for j in range(4):
                        dma(a, self.VD, 28, 60, (59, j * 1024), pre=f"s_mov_b32 s60, {(32*c + 8*j)*3584}")
                vq.issue(f"w1_{c}", 4)
            if t % 8 == 7:
                c = t // 8
                vq.wait(a, f"w1_{c}")
                for kk in range(2):
                    for ft in range(2):
                        r = WREG + (2 * c + kk) * 8 + 4 * ft
                        a(f"ds_read_b64_tr_b16 {vr(r,2)}, v{self.VT+ft} offset:{kk*2048}")
                        a(f"ds_read_b64_tr_b16 {vr(r+2,2)}, v{self.VT+ft} offset:{kk*2048+1024}")
            if t in (45, 46):
                for i in range(4 * (t - 45), 4 * (t - 45) + 4):
                    dma(a, 95, 40, 60, (53, i * 1024), pre=f"s_mov_b32 s60, {i*8192}")
                vq.issue("wo", 4)
            MK = opt.exp == "mk_p1"
            if t == (0 if "preb1" in opt.flags else 12 if "m12" in opt.flags else 28) and not MK:
                l = a.uid("L_ma")
                a("s_cmp_lg_u32 s3, 0"); a(f"s_cbranch_scc1 {l}")
                a("s_and_b32 s60, s2, 7"); a("s_lshl_b32 s60, s60, 8"); a(f"s_add_u32 s60, s60, {CNT + 2048}")
                a("v_mov_b32 v114, 1"); a("v_mov_b32 v115, 0")
                a("v_cmp_eq_u32 vcc, 0, v0"); a("s_and_saveexec_b64 s[62:63], vcc")
                a(f"buffer_atomic_add v114, v115, s[{SB_WS}:{SB_WS+3}], s60 offen")
                a("s_mov_b64 exec, s[62:63]")
                a.label(l)
            if t == 52:
                l = a.uid("L_lc")
                a("s_cmp_lg_u32 s3, 0"); a(f"s_cbranch_scc1 {l}")
                a(f"s_mov_b32 s60, {CNT + (0 if MK else 2048)}")
                a(f"buffer_load_dword v113, v112, s[{SB_WS}:{SB_WS+3}], s60 offen sc1")
                a.label(l)
                vq.issue("maybe", 0)
            if "codepf2" in opt.flags and t == 50:
                a("s_lshl_b32 s60, s3, 13"); a("s_add_u32 s60, s60, L_p3_code-L_pcbase"); a("v_lshlrev_b32 v126, 7, v0"); a("v_add_u32 v126, s60, v126")
                a("s_mov_b32 s61, L_codeend-L_pcbase"); a("v_min_u32 v126, s61, v126")
                a("global_load_dword v125, v126, s[66:67]"); vq.issue("touch")
            if opt.touch and t == 3 and opt.exp == "btouch":
                srd(a, 44, P_B1, 1792 * 2); a("v_lshlrev_b32 v117, 7, v0")
                a("buffer_load_dword v97, v117, s[44:47], 0 offen"); vq.issue("touch")
                srd(a, 44, P_B2, 2048 * 2)
                a("buffer_load_dword v97, v117, s[44:47], 0 offen"); vq.issue("touch")
            if opt.touch and t == 2 and opt.exp == "w1touch":
                a("buffer_load_dword v97, v116, s[28:31], 0 offen"); vq.issue("touch")
            if opt.touch:
                if t == 27 and "preb1" not in opt.flags:
                    a("buffer_load_dword v97, v96, s[32:35], 0 offen"); vq.issue("touch")
        return f

class W2Stage:
    VD, VP, SRD, SE, SX_, SM = 60, 61, 28, 59, 55, 57
    def __init__(self): self.vq = None
    def setup(self, a):
        srd(a, self.SRD, P_W2, 1792 * 2048 * 2)
        dma_row_voff(a, self.VD, 2, 3, 4096)
        a("s_and_b32 s60, s2, 7"); a("s_lshr_b32 s61, s2, 3")
        a("s_lshl_b32 s60, s60, 2"); a("s_lshr_b32 s61, s61, 3"); a("s_add_u32 s60, s60, s61"); a("s_lshl_b32 s60, s60, 7")
        a(f"s_mul_i32 s61, s3, {224*4096}"); a("s_add_u32 s60, s60, s61"); a(f"v_add_u32 v{self.VD}, s60, v{self.VD}")
        a(f"s_lshl_b32 s{self.SE}, s3, 13"); a(f"s_add_u32 s{self.SE}, s{self.SE}, 98304")
        a(f"s_lshl_b32 s{self.SX_}, s3, 11"); a(f"s_add_u32 s{self.SX_}, s{self.SX_}, 49152")
        a("s_and_b32 s60, s3, 3"); a("s_lshl_b32 s60, s60, 13"); a("s_lshr_b32 s61, s3, 2"); a("s_lshl_b32 s61, s61, 16"); a(f"s_add_u32 s{self.SM}, s60, s61")
        tr_lane_addr(a, self.VP, 2, 3, 'perm')
        a(f"v_xor_b32 v{self.VP+1}, 64, v{self.VP}")
    def slot(self, j):
        k = j if j < 9 else j - 9
        if k < 4: return self.SE, k * 2048
        if k == 4: return self.SX_, 0
        return self.SM, (k - 5) * 2048
    def dma(self, a, j):
        sreg, off = self.slot(j)
        for i in range(2):
            dma(a, self.VD, self.SRD, 60, (sreg, off + i * 1024), pre=f"s_mov_b32 s60, {(16*j + 8*i)*4096}")
        if self.vq is not None: self.vq.issue(f"w2_{j}", 2)
    def read(self, a, j, dst=None):
        sreg, off = self.slot(j)
        dst = WREG + 8 * j if dst is None else dst
        for st in range(2):
            a(f"v_add_u32 v{2+st}, s{sreg}, v{self.VP+st}")
        for st in range(2):
            r = dst + 4 * st
            a(f"ds_read_b64_tr_b16 {vr(r,2)}, v{2+st} offset:{off}")
            a(f"ds_read_b64_tr_b16 {vr(r+2,2)}, v{2+st} offset:{off+1024}")

def phase3v2(a, w2):
    s_tb, s_cb, s_tt, s_kq = 26, 27, 44, 45
    SWO, SWS, SX = 28, 36, 32
    OFR, XR, ACC, AF, VA = 8, 40, 64, 96, 44
    a("s_and_b32 s46, s2, 7"); a("s_lshr_b32 s47, s2, 3")
    a("s_lshl_b32 s48, s46, 2"); a("s_lshr_b32 s49, s47, 3"); a(f"s_add_u32 s{s_tb}, s48, s49"); a(f"s_and_b32 s{s_cb}, s47, 7")
    a(f"s_and_b32 s{s_tt}, s3, 1"); a(f"s_lshr_b32 s{s_kq}, s3, 1")
    srd(a, SWO, P_WO, 512 * 512 * 2); srd(a, SWS, P_WS, WS_SIZE); srd(a, SX, P_X, 2048 * 512 * 2)
    a(f"s_lshl_b32 s46, s{s_tb}, 1"); a(f"s_add_u32 s58, s46, s{s_tt}")
    a(f"s_lshl_b32 s46, s58, 5"); a(f"s_lshl_b32 s47, s{s_kq}, 3"); a("s_add_u32 s46, s46, s47"); a("s_lshl_b32 s46, s46, 10"); a(f"s_add_u32 s50, s46, {OF}")
    a("s_add_u32 s51, s50, 4096")
    def oloads():
        for i in range(8):
            a(f"buffer_load_dwordx4 {vr(OFR+4*i,4)}, v1, s[{SWS}:{SWS+3}], s{50 + (i >> 2)} offen offset:{(i&3)*1024} sc1")
    if "oprobe" in opt.flags:
        a("v_lshlrev_b32 v46, 10, v0"); a("v_add_u32 v46, 1008, v46"); a("s_mov_b32 s48, 0")
        a("v_cmp_gt_u32 vcc, 8, v0"); a("s_and_saveexec_b64 s[52:53], vcc")
        lp, lx_ = a.uid("L_o_probe"), a.uid("L_o_px")
        a.label(lp)
        a(f"buffer_load_dword v47, v46, s[{SWS}:{SWS+3}], s50 offen sc1")
        a("s_add_u32 s48, s48, 1")
        a("s_waitcnt vmcnt(0)")
        a("v_cmp_eq_u32 vcc, -1, v47")
        a(f"s_cbranch_vccz {lx_}")
        a("s_cmp_lt_u32 s48, 0x100000"); a(f"s_cbranch_scc1 {lp}")
        a.label(lx_)
        a("s_mov_b64 exec, s[52:53]")
    if "ackwait_o" in opt.flags: a("s_waitcnt vmcnt(0)")
    oloads()
    a("v_and_b32 v3, 31, v0"); a("s_lshl_b32 s46, s58, 5"); a("v_add_u32 v3, s46, v3"); a("v_lshlrev_b32 v3, 10, v3")
    a("v_lshrrev_b32 v46, 5, v0"); a("v_lshlrev_b32 v46, 3, v46"); a("v_add_u32 v3, v3, v46")
    a(f"s_lshl_b32 s46, s{s_cb}, 7"); a(f"s_lshl_b32 s47, s{s_kq}, 5"); a("s_add_u32 s46, s46, s47")
    a(f"buffer_load_dwordx2 {vr(XR,2)}, v3, s[{SX}:{SX+3}], s46 offen")
    a(f"buffer_load_dwordx2 {vr(XR+2,2)}, v3, s[{SX}:{SX+3}], s46 offen offset:16")
    tr_lane_addr(a, VA, 46, 47, 'perm')
    a(f"s_and_b32 s46, s{s_kq}, 1"); a("s_lshl_b32 s46, s46, 14"); a(f"s_lshr_b32 s47, s{s_kq}, 1"); a("s_lshl_b32 s47, s47, 16"); a("s_add_u32 s46, s46, s47")
    a(f"v_add_u32 v{VA}, s46, v{VA}"); a(f"v_xor_b32 v{VA+1}, 64, v{VA}")
    for i in range(32): a(f"v_mov_b32 v{ACC+i}, 0")
    a("s_waitcnt lgkmcnt(0)"); a("s_barrier")
    w2.setup(a)
    def rd(i):
        for ct in range(2):
            r = AF + 8 * (i & 3) + 4 * ct
            a(f"ds_read_b64_tr_b16 {vr(r,2)}, v{VA+ct} offset:{i*2048}")
            a(f"ds_read_b64_tr_b16 {vr(r+2,2)}, v{VA+ct} offset:{i*2048+1024}")
    for i in range(3): rd(i)
    if "early_after_o" not in opt.flags:
        for j in range(5): w2.dma(a, j)
        a("s_waitcnt vmcnt(10)")
    else:
        a("s_waitcnt vmcnt(0)")
    def biases():
        srd(a, 40, P_B1, 1792 * 2)
        a("s_and_b32 s46, s3, 1"); a("s_lshl_b32 s46, s46, 6"); a("s_bfe_u32 s47, s3, 0x10001"); a("s_lshl_b32 s47, s47, 5")
        a("s_add_u32 s46, s46, s47"); a(f"s_add_u32 s46, s46, s{S_FB128}")
        a("v_lshrrev_b32 v2, 5, v0"); a("v_lshlrev_b32 v2, 3, v2")
        a("buffer_load_dwordx2 v[56:57], v2, s[40:43], s46 offen"); a("buffer_load_dwordx2 v[58:59], v2, s[40:43], s46 offen offset:16")
        srd(a, 40, P_B2, 2048 * 2)
        a("v_and_b32 v2, 31, v0"); a("s_lshl_b32 s46, s58, 5"); a("v_add_u32 v2, s46, v2"); a("v_lshlrev_b32 v2, 1, v2")
        a("buffer_load_ushort v63, v2, s[40:43], 0 offen")
    lp, lr, lok = a.uid("L_o_poll"), a.uid("L_o_retry"), a.uid("L_o_ok")
    if "oprobe" not in opt.flags:
        a("s_mov_b32 s48, 0")
        a.label(lp)
        a("s_mov_b32 s49, 0")
        for i in range(8):
            ls_ = a.uid("L_o_sk")
            a(f"v_cmp_eq_u32 vcc, -1, v{OFR+4*i}")
            a(f"s_cbranch_vccz {ls_}")
            a(f"buffer_load_dwordx4 {vr(OFR+4*i,4)}, v1, s[{SWS}:{SWS+3}], s{50 + (i >> 2)} offen offset:{(i&3)*1024} sc1")
            a("s_mov_b32 s49, 1")
            a.label(ls_)
        a("s_cmp_eq_u32 s49, 0"); a(f"s_cbranch_scc1 {lok}")
        a("s_add_u32 s48, s48, 1")
        a("s_waitcnt vmcnt(0)")
        a("s_cmp_lt_u32 s48, 0x100000"); a(f"s_cbranch_scc1 {lp}")
        a.label(lok)
    else:
        tag_check(a, [OFR + 4 * i for i in range(8)], lr)
        a(f"s_branch {lok}")
        a.label(lr)
        a("s_mov_b32 s48, 0")
        a.label(lp)
        oloads()
        a("s_add_u32 s48, s48, 1")
        a("s_waitcnt vmcnt(0)")
        a("s_cmp_ge_u32 s48, 0x100000"); a(f"s_cbranch_scc1 {lok}")
        tag_check(a, [OFR + 4 * i for i in range(8)], lp)
        a.label(lok)
    stamp(a, 4)
    if "early_after_o" in opt.flags:
        for j in range(5): w2.dma(a, j)
    if opt.exp == "earlybias": biases()
    for i in range(8):
        if i + 3 < 8: rd(i + 3); a("s_waitcnt lgkmcnt(12)")
        else: a(f"s_waitcnt lgkmcnt({(7 - i) * 4})")
        for ct in range(2): mfma(a, ACC + 16 * ct, AF + 8 * (i & 3) + 4 * ct, OFR + 4 * i)
    a("s_nop 7"); a("s_nop 3")
    if opt.exp == "p3steps": stamp(a, 1, force=True)
    reduce_scatter(a, ACC, s_tt, s_kq, 46, 8, 0, sub_shift=16)
    if opt.exp == "p3steps": stamp(a, 2, force=True)
    H = 8
    for j in range(4):
        a(f"v_lshlrev_b32 v{H+2*j}, 16, v{XR+j}"); a(f"v_and_b32 v{H+2*j+1}, 0xffff0000, v{XR+j}")
    for i in range(8): a(f"v_add_f32 v{H+i}, v{H+i}, v{ACC+i}")
    for j in range(4): a(f"v_cvt_pk_bf16_f32 v{HP+j}, v{H+2*j}, v{H+2*j+1}")
    for j in range(4):
        a(f"v_lshlrev_b32 v{H+2*j}, 16, v{HP+j}"); a(f"v_and_b32 v{H+2*j+1}, 0xffff0000, v{HP+j}")
    a(f"v_add_f32 v20, v{H}, v{H+1}"); a(f"v_mul_f32 v21, v{H}, v{H}"); a(f"v_fmac_f32 v21, v{H+1}, v{H+1}")
    for i in range(2, 8):
        a(f"v_add_f32 v20, v20, v{H+i}"); a(f"v_fmac_f32 v21, v{H+i}, v{H+i}")
    a("v_mov_b32 v22, v20"); a("v_mov_b32 v23, v21"); a("s_nop 1")
    a("v_permlane32_swap_b32 v20, v22"); a("v_permlane32_swap_b32 v21, v23"); a("s_nop 1")
    a("v_add_f32 v20, v20, v22"); a("v_add_f32 v21, v21, v23")
    ST = 32768
    a("v_and_b32 v46, 31, v0"); a(f"s_lshl_b32 s46, s{s_tt}, 5"); a("v_add_u32 v46, s46, v46"); a("v_lshlrev_b32 v24, 3, v46")
    a(f"s_lshl_b32 s46, s{s_kq}, 9"); a(f"s_add_u32 s46, s46, {ST}"); a("v_add_u32 v47, s46, v24")
    a("v_cmp_gt_u32 vcc, 32, v0"); a("s_and_saveexec_b64 s[52:53], vcc")
    a("ds_write_b64 v47, v[20:21]")
    a("s_mov_b64 exec, s[52:53]")
    a("s_waitcnt lgkmcnt(0)"); a("s_barrier")
    if opt.exp == "p3steps": stamp(a, 13, force=True)
    lx, lx0, lx1 = a.uid("L_p3_x"), a.uid("L_p3_x0"), a.uid("L_p3_x1")
    a(f"s_lshl_b32 s46, s{s_tb}, 12"); a(f"s_add_u32 s46, s46, {XCH}"); a(f"s_lshl_b32 s47, s{s_cb}, 9"); a("s_add_u32 s47, s47, s46")
    a("v_lshlrev_b32 v48, 3, v0")
    def publish():
        a(f"v_add_u32 v49, {ST}, v48")
        for q in range(4): a(f"ds_read_b64 {vr(26+2*q,2)}, v49 offset:{q*512}")
        a("s_waitcnt lgkmcnt(0)")
        a("v_add_f32 v26, v26, v28"); a("v_add_f32 v27, v27, v29"); a("v_add_f32 v30, v30, v32"); a("v_add_f32 v31, v31, v33")
        a("v_add_f32 v26, v26, v30"); a("v_add_f32 v27, v27, v31")
        a("v_min_u32 v26, 0xfffffffe, v26"); a("v_min_u32 v27, 0xfffffffe, v27")
        a(f"buffer_store_dwordx2 v[26:27], v48, s[{SWS}:{SWS+3}], s47 offen sc1")
    a("s_cmp_eq_u32 s3, 0"); a(f"s_cbranch_scc1 {lx0}")
    if "xack" not in opt.flags:
        a("s_cmp_lg_u32 s3, 1"); a(f"s_cbranch_scc1 {lx1}")
        publish()
    a.label(lx1)
    if "pubbar" in opt.flags: a("s_barrier")
    if "middma_early" in opt.flags:
        for j in range(5, 9): w2.dma(a, j)
    a(f"s_branch {lx}")
    a.label(lx0)
    if "pubbar" in opt.flags: a("s_barrier")
    if "xack" in opt.flags:
        publish()
        a("s_waitcnt vmcnt(0)")
    lp, lpd, lr = a.uid("L_p3_poll"), a.uid("L_p3_pd"), a.uid("L_p3_r")
    a("s_mov_b32 s48, 0")
    a.label(lp)
    for q in range(8): a(f"buffer_load_dwordx2 {vr(32+2*q,2)}, v48, s[{SWS}:{SWS+3}], s46 offen offset:{q*512} sc1")
    a("s_waitcnt vmcnt(0)")
    tag_check(a, list(range(32, 48)), lr)
    a(f"s_branch {lpd}")
    a.label(lr)
    if "xsleep" in opt.flags: a("s_sleep 3")
    a("s_add_u32 s48, s48, 1"); a("s_cmp_lt_u32 s48, 0x100000"); a(f"s_cbranch_scc1 {lp}")
    a.label(lpd)
    for q in range(1, 8):
        a(f"v_add_f32 v32, v32, v{32+2*q}"); a(f"v_add_f32 v33, v33, v{33+2*q}")
    a("v_mul_f32 v32, 0x3b000000, v32"); a("v_mul_f32 v33, 0x3b000000, v33")
    a("v_fma_f32 v33, -v32, v32, v33"); a("v_max_f32 v33, 0, v33")
    a("v_add_f32 v34, 0x3727c5ac, v33"); a("v_rsq_f32 v35, v34")
    a("s_nop 0")
    a("v_mul_f32 v36, v35, v35"); a("v_mul_f32 v36, v36, v33")
    a("v_add_f32 v36, 0x3727c5ac, v36"); a("v_rsq_f32 v36, v36")
    a("s_nop 0")
    a("v_mul_f32 v34, v35, v36"); a("v_mul_f32 v35, v32, v34"); a("v_sub_f32 v35, 0, v35")
    a(f"v_add_u32 v49, {ST + 2048}, v48")
    a("ds_write_b64 v49, v[34:35]")
    if "middma_early" in opt.flags:
        for j in range(5, 9): w2.dma(a, j)
    a("s_waitcnt lgkmcnt(0)")
    a.label(lx)
    a("s_barrier")
    stamp(a, 5)
    a(f"v_add_u32 v47, {ST + 2048}, v24")
    a("ds_read_b64 v[20:21], v47")
    a("s_waitcnt lgkmcnt(0)")
    for i in range(8): a(f"v_fma_f32 v{H+i}, v{H+i}, v20, v21")
    for j in range(4): a(f"v_cvt_pk_bf16_f32 v{16+j}, v{H+2*j}, v{H+2*j+1}")
    a("v_lshrrev_b32 v46, 3, v24")
    a("v_bfe_u32 v47, v46, 1, 1"); a("v_lshlrev_b32 v47, 2, v47")
    a(f"s_lshl_b32 s46, s{s_kq}, 1"); a("v_xor_b32 v47, s46, v47")
    a("v_lshlrev_b32 v47, 4, v47"); a("v_lshlrev_b32 v46, 7, v46"); a("v_add_u32 v46, v46, v47")
    a("v_lshrrev_b32 v47, 5, v0"); a("v_lshlrev_b32 v47, 3, v47"); a("v_add_u32 v46, v46, v47")
    a("ds_write_b64 v46, v[16:17] offset:36864"); a("ds_write_b64 v46, v[18:19] offset:36880")
    a(f"s_lshl_b32 s46, s{s_tt}, 2")
    tr_lane_addr(a, 48, 46, 47, 'perm', colunit_sreg=46)
    a(f"s_lshl_b32 s46, s{s_kq}, 11"); a("v_add_u32 v48, s46, v48")
    a("s_waitcnt lgkmcnt(0)"); a("s_barrier")
    a("ds_read_b64_tr_b16 v[24:25], v48 offset:36864"); a("ds_read_b64_tr_b16 v[26:27], v48 offset:37888")
    a("s_waitcnt lgkmcnt(0)")
    a("v_min_u32 v24, 0xfffffffe, v24")
    a(f"buffer_store_dwordx4 v[24:27], v1, s[{SWS}:{SWS+3}], s{S_LFA} offen sc1")
    if "middma_early" not in opt.flags:
        a("s_barrier")
        for j in range(5, 9): w2.dma(a, j)

RING = 8
NR = 6
ACC = 64
def act_load(a, s_act, i, r):
    for dt in range(2):
        a(f"s_add_u32 s52, s{s_act[dt]}, {i*1024}")
        a(f"buffer_load_dwordx4 {vr(r+4*dt,4)}, v1, s[36:39], s52 offen sc1")

def probe(a, s_act, probe_steps, sleep=0):
    a("v_lshrrev_b32 v2, 1, v0"); a(f"v_mov_b32 v3, {probe_steps[0]}")
    for n in range(1, 4):
        a(f"v_cmp_eq_u32 vcc, {n}, v2"); a(f"v_mov_b32 v8, {probe_steps[n]}"); a("s_nop 0"); a("v_cndmask_b32 v3, v3, v8, vcc")
    a("v_lshlrev_b32 v3, 10, v3"); a("v_add_u32 v3, 1008, v3")
    a("v_and_b32 v2, 1, v0"); a(f"s_sub_u32 s52, s{s_act[1]}, s{s_act[0]}"); a("v_mul_lo_u32 v2, v2, s52"); a("v_add_u32 v3, v3, v2")
    a("s_mov_b32 s53, 0")
    a("v_cmp_gt_u32 vcc, 8, v0"); a("s_and_saveexec_b64 s[62:63], vcc")
    lp, lx = a.uid("L_probe"), a.uid("L_px")
    a.label(lp)
    a(f"buffer_load_dword v8, v3, s[36:39], s{s_act[0]} offen sc1")
    a("s_add_u32 s53, s53, 1")
    a("s_waitcnt vmcnt(0)")
    a("v_cmp_eq_u32 vcc, -1, v8")
    a(f"s_cbranch_vccz {lx}")
    if sleep: a(f"s_sleep {sleep}")
    a("s_cmp_lt_u32 s53, 0x100000"); a(f"s_cbranch_scc1 {lp}")
    a.label(lx)
    a("s_mov_b64 exec, s[62:63]")

def gemm8(a, vq, nks, s_act, act_is_B, retries, probe_steps, free, wreg, frees_w, after_step=None, after_fill=None):
    dpoll = "dpoll" in opt.flags
    if dpoll and "ackwait" in opt.flags:
        a(f"s_waitcnt vmcnt({0 if (nks == 16 or opt.exp == 'w2late') else 10})")
    if not dpoll: probe(a, s_act, probe_steps)
    else: a("s_nop 0")
    if not dpoll: vq.q = []
    if (opt.exp == "p4steps" and nks == 16) or (opt.exp == "p5steps" and nks == 14): stamp(a, 1, force=True)
    if opt.exp == "probes": stamp(a, 1 if nks == 16 else 13, force=True)
    free = list(free); blk = {}; nxt = [0]
    def fill():
        while free and nxt[0] < nks:
            i = nxt[0]; blk[i] = free.pop(0); act_load(a, s_act, i, blk[i]); vq.issue(f"act{i}", 2); nxt[0] += 1
    fill()
    if after_fill: after_fill()
    for i in range(64): a(f"v_mov_b32 v{ACC+i}, 0")
    if dpoll:
        lp, lok = a.uid("L_dp"), a.uid("L_dpok")
        a("s_mov_b32 s53, 0")
        lfirst = a.uid("L_dp1")
        if opt.exp == "w2late" and nks == 14:
            a("s_waitcnt vmcnt(10)"); a(f"s_branch {lfirst}")
        a.label(lp)
        a("s_waitcnt vmcnt(0)")
        a.label(lfirst)
        a("s_mov_b32 s49, 0")
        for i in range(nxt[0]):
            for dt in range(2):
                ls_ = a.uid("L_dsk")
                a(f"v_cmp_eq_u32 vcc, -1, v{blk[i] + 4*dt}")
                a(f"s_cbranch_vccz {ls_}")
                a(f"s_add_u32 s52, s{s_act[dt]}, {i*1024}")
                a(f"buffer_load_dwordx4 {vr(blk[i]+4*dt,4)}, v1, s[36:39], s52 offen sc1")
                a("s_mov_b32 s49, 1")
                a.label(ls_)
        a("s_add_u32 s53, s53, 1")
        a("s_cmp_eq_u32 s49, 0"); a(f"s_cbranch_scc1 {lok}")
        a("s_cmp_lt_u32 s53, 0x100000"); a(f"s_cbranch_scc1 {lp}")
        a("s_waitcnt vmcnt(0)")
        a.label(lok)
        if opt.exp == "w2late" and nks == 14: vq.q = [t for t in vq.q if t.startswith("w2_")]
        else: vq.q = []
    for i in range(nks):
        r = blk[i]
        vq.wait(a, f"act{i}")
        lr, lb = a.uid("L_retry"), a.uid("L_back")
        if opt.exp != "notag": tag_check(a, [r, r + 4], lr)
        a.label(lb)
        retries.append((lr, lb, [(k, blk[k]) for k in range(i, min(i + 4, nxt[0]))], s_act))
        W0 = wreg(i)
        for sub in range(2):
            for dt in range(2):
                W, A_ = W0 + 4 * sub, r + 4 * dt
                if opt.exp == "nomfma": continue
                if act_is_B: mfma(a, ACC + 16 * (2 * dt + sub), W, A_)
                else: mfma(a, ACC + 16 * (2 * dt + sub), A_, W)
        if opt.exp == "p4steps" and nks == 16 and i in (0, 1, 3, 5, 7, 9, 11, 13): stamp(a, {0: 2, 1: 3, 3: 4, 5: 5, 7: 9, 9: 10, 11: 11, 13: 12}[i], force=True)
        if opt.exp == "p5steps" and nks == 14 and i in (0, 1, 3, 5, 7, 9, 11, 13): stamp(a, {0: 2, 1: 3, 3: 4, 5: 5, 7: 6, 9: 10, 11: 11, 13: 7}[i], force=True)
        free.append(r)
        if frees_w: free.append(W0)
        if after_step: after_step(i, free)
        fill()
    a("s_nop 7"); a("s_nop 3")

def emit_retries(a, retries):
    for lr, lb, steps, s_act in retries:
        lp = a.uid("L_rp")
        r = steps[0][1]
        a.label(lr)
        a("s_mov_b32 s53, 0")
        a.label(lp)
        for k, rk in steps: act_load(a, s_act, k, rk)
        a("s_add_u32 s53, s53, 1")
        a("s_waitcnt vmcnt(0)")
        a("s_cmp_ge_u32 s53, 0x100000"); a(f"s_cbranch_scc1 {lb}")
        tag_check(a, [r, r + 4], lp)
        a(f"s_branch {lb}")

RING_BLOCKS = [8 + 8 * i for i in range(6)]
def reduce8(a, w2, tail_barrier):
    a(f"v_add_u32 v2, s{w2.SE}, v1"); a(f"v_add_u32 v3, s{w2.SM}, v1")
    a("s_waitcnt lgkmcnt(0)")
    for p in range(8):
        sub, half, dt = p & 1, (p >> 1) & 1, p >> 2
        for q in range(2):
            r = ACC + 16 * (2 * dt + sub) + 8 * half + 4 * q
            a(f"ds_write_b128 v{2 + (p >> 2)}, {vr(r,4)} offset:{(p & 3)*2048 + q*1024}")
    a("s_and_b32 s46, s3, 3"); a("s_lshl_b32 s46, s46, 11")
    a("s_mov_b32 s48, 65536"); a("s_cmp_lt_u32 s3, 4"); a("s_cselect_b32 s47, 98304, 0"); a("s_cselect_b32 s48, 32768, s48")
    a("s_add_u32 s46, s46, s47"); a("v_add_u32 v2, s46, v1"); a("v_add_u32 v3, s48, v2")
    a("s_waitcnt lgkmcnt(0)"); a("s_barrier")
    for src in range(8):
        for q in range(2):
            a(f"ds_read_b128 {vr(ACC + 8*src + 4*q, 4)}, v{2 + (src >> 2)} offset:{(src & 3)*8192 + q*1024}")
    for lvl, (wait, pairs) in enumerate(((12, [(0, 1)]), (8, [(2, 3)]), (4, [(4, 5)]), (0, [(6, 7)]))):
        a(f"s_waitcnt lgkmcnt({wait})")
        for x, y in pairs:
            for i in range(8): a(f"v_add_f32 v{ACC+8*x+i}, v{ACC+8*x+i}, v{ACC+8*y+i}")
        if lvl == 3 and tail_barrier: a("s_barrier")
    for x, y in ((0, 2), (4, 6), (0, 4)):
        for i in range(8): a(f"v_add_f32 v{ACC+8*x+i}, v{ACC+8*x+i}, v{ACC+8*y+i}")

def phase4v2(a, retries, w2):
    s_db = 26
    SB, SW2 = 32, 28
    a("s_and_b32 s46, s2, 7"); a("s_lshr_b32 s47, s2, 3")
    a("s_and_b32 s48, s46, 1"); a("s_lshl_b32 s48, s48, 2"); a("s_and_b32 s49, s47, 3"); a(f"s_add_u32 s{s_db}, s48, s49")
    srd(a, SB, P_B1, 1792 * 2)
    vq = VMQ(); w2.vq = vq
    def load_b1():
        a("s_and_b32 s46, s3, 1"); a("s_lshl_b32 s46, s46, 6"); a("s_bfe_u32 s47, s3, 0x10001"); a("s_lshl_b32 s47, s47, 5")
        a("s_add_u32 s46, s46, s47"); a(f"s_add_u32 s46, s46, s{S_FB128}")
        a("v_lshrrev_b32 v2, 5, v0"); a("v_lshlrev_b32 v2, 3, v2")
        a(f"buffer_load_dwordx2 v[56:57], v2, s[{SB}:{SB+3}], s46 offen"); a(f"buffer_load_dwordx2 v[58:59], v2, s[{SB}:{SB+3}], s46 offen offset:16")
        vq.issue("bias", 2)
    if opt.exp != "earlybias" and "biasloop" not in opt.flags: load_b1()
    a(f"s_lshl_b32 s46, s{s_db}, 18"); a("s_lshl_b32 s47, s3, 14"); a("s_add_u32 s46, s46, s47")
    a(f"s_add_u32 s54, s46, {LF}"); a(f"s_add_u32 s56, s46, {LF + 128*1024}")
    ldup, ljoin = a.uid("L_p4_idle"), a.uid("L_p4_join")
    if "skipdup" in opt.flags:
        a(f"s_cmp_eq_u32 s{S_STU}, 0"); a(f"s_cbranch_scc1 {ldup}")
    def after4(i, free):
        if i == 5 and "biasloop" in opt.flags: load_b1()
        j = i if 5 <= i <= 8 and i != 7 else None
        if j is not None: free.remove(WREG + 8 * j); w2.read(a, j)
        if i == 7: free.remove(WREG + 8 * 7); w2.read(a, 7)
        if i in (7, 9, 11, 13, 15):
            j = (i - 7) // 2; free.remove(WREG + 8 * j); w2.read(a, j)
    phases.cfg.fake16 = 'fake45' in opt.flags
    gemm8(a, vq, 16, (54, 56), True, retries, (3, 7, 11, 15), RING_BLOCKS, lambda i: WREG + 8 * i, True, after4)
    stamp(a, 7)
    reduce8(a, w2, True)
    vq.wait(a, "bias")
    for j in range(4):
        a(f"v_lshlrev_b32 v{16+2*j}, 16, v{56+j}"); a(f"v_and_b32 v{17+2*j}, 0xffff0000, v{56+j}")
    for i in range(8): a(f"v_add_f32 v{ACC+i}, v{ACC+i}, v{16+i}")
    a("s_mov_b32 s46, 0xc0135761")
    a("s_mov_b32 s47, 0xbdd2d3e8")
    a("v_mov_b32 v24, s46")
    for i in range(8): a(f"v_mul_f32 v{16+i}, v{ACC+i}, v{ACC+i}")
    for i in range(8): a(f"v_fma_f32 v{16+i}, v{16+i}, s47, v24")
    for i in range(8): a(f"v_mul_f32 v{16+i}, v{16+i}, v{ACC+i}")
    for i in range(8): a(f"v_exp_f32 v{16+i}, v{16+i}")
    for i in range(8): a(f"v_add_f32 v{16+i}, 1.0, v{16+i}")
    for i in range(8): a(f"v_rcp_f32 v{16+i}, v{16+i}")
    for i in range(8): a(f"v_mul_f32 v{16+i}, v{16+i}, v{ACC+i}")
    for j in range(4): a(f"v_cvt_pk_bf16_f32 v{28+j}, v{16+2*j}, v{17+2*j}")
    a("v_min_u32 v28, 0xfffffffe, v28")
    l = a.uid("L_nostu")
    a(f"s_cmp_eq_u32 s{S_STU}, 0"); a(f"s_cbranch_scc1 {l}")
    a(f"buffer_store_dwordx4 v[28:31], v1, s[36:39], s{S_UFA} offen sc1")
    a.label(l)
    if "skipdup" in opt.flags:
        a(f"s_branch {ljoin}")
        a.label(ldup)
        a("s_waitcnt vmcnt(0)")
        for j in range(9):
            if j % 3 == 0 and j: a("s_waitcnt lgkmcnt(0)")
            w2.read(a, j)
        a("s_waitcnt lgkmcnt(0)")
        a.label(ljoin)
    if opt.exp != "w2late":
        w2.vq = None
        if "ubar" in opt.flags: a("s_barrier")
        for j in range(9, 14): w2.dma(a, j)

def phase5v2(a, retries, w2):
    s_db, s_sb = 26, 27
    SB, SO = 32, 40
    a("; ---- P5: out = h + (u w2 + b2)^T")
    a("s_and_b32 s46, s2, 7"); a("s_lshr_b32 s47, s2, 3")
    a("s_lshl_b32 s48, s46, 2"); a("s_lshr_b32 s49, s47, 3"); a(f"s_add_u32 s{s_sb}, s48, s49"); a(f"s_and_b32 s{s_db}, s47, 7")
    srd(a, SB, P_B2, 2048 * 2); srd(a, SO, P_OUT, 2048 * 512 * 2)
    vq = VMQ(); vq.issue("ustore")
    a(f"s_lshl_b32 s46, s{s_sb}, 6"); a("s_and_b32 s47, s3, 1"); a("s_lshl_b32 s47, s47, 5"); a("s_add_u32 s46, s46, s47")
    a("v_and_b32 v2, 31, v0"); a("v_add_u32 v57, s46, v2")
    def load_b2():
        a("v_lshlrev_b32 v2, 1, v57")
        a(f"buffer_load_ushort v63, v2, s[{SB}:{SB+3}], 0 offen"); vq.issue("b2")
    if opt.exp != "earlybias" and "biasloop" not in opt.flags: load_b2()
    a(f"s_mul_i32 s46, s{s_db}, {2*112*1024}"); a(f"s_mul_i32 s47, s3, {14*1024}"); a("s_add_u32 s46, s46, s47")
    a(f"s_add_u32 s54, s46, {UF}"); a(f"s_add_u32 s56, s46, {UF + 112*1024}")
    if "idleprobe" in opt.flags and "skipdup" in opt.flags:
        lq_ = a.uid("L_p5_busy")
        a(f"s_cmp_lg_u32 s{S_STU}, 0"); a(f"s_cbranch_scc1 {lq_}")
        if "idle1" in opt.flags:
            lw_ = a.uid("L_p5_w")
            a("s_cmp_lg_u32 s3, 7"); a(f"s_cbranch_scc1 {lw_}")
            probe(a, (54, 56), (1, 5, 9, 13), 8 if "idlesleep" in opt.flags else 0)
            a.label(lw_)
            a("s_barrier")
        else:
            probe(a, (54, 56), (1, 5, 9, 13))
        a.label(lq_)
    wblk = {j: WREG + 8 * j for j in range(9)}
    spare = [WREG + 8 * j for j in range(9, 16)]
    def rest_of_w2():
        if opt.exp != "w2late": return
        w2.vq = vq
        for j in range(9, 14): w2.dma(a, j)
    def after5(i, free):
        if i == 3 and "biasloop" in opt.flags: load_b2()
        if i <= 1: free += [spare.pop(0), spare.pop(0)]
        if i == 2: free.append(spare.pop(0))
        if i == 6:
            vq.wait(a, "w2_13")
            for j in (9, 10): wblk[j] = spare.pop(0); w2.read(a, j, wblk[j])
        if i == 7:
            for j in (11, 12): wblk[j] = free.pop(0); w2.read(a, j, wblk[j])
        if i == 8:
            wblk[13] = free.pop(0); a("s_waitcnt lgkmcnt(8)"); w2.read(a, 13, wblk[13]); a("s_waitcnt lgkmcnt(4)")
        if i == 11: a("s_waitcnt lgkmcnt(0)")
    gemm8(a, vq, 14, (54, 56), False, retries, (1, 5, 9, 13), RING_BLOCKS, lambda i: wblk[i], False, after5, rest_of_w2)
    phases.cfg.fake16 = False
    stamp(a, 9)
    reduce8(a, w2, False)
    vq.wait(a, "b2")
    a("v_lshlrev_b32 v56, 16, v63")
    for j in range(4):
        a(f"v_lshlrev_b32 v{20+2*j}, 16, v{HP+j}"); a(f"v_and_b32 v{21+2*j}, 0xffff0000, v{HP+j}")
    for i in range(8): a(f"v_add_f32 v{ACC+i}, v{ACC+i}, v56")
    for i in range(8): a(f"v_add_f32 v{ACC+i}, v{ACC+i}, v{20+i}")
    for j in range(4): a(f"v_cvt_pk_bf16_f32 v{28+j}, v{ACC+2*j}, v{ACC+2*j+1}")
    a("s_nop 1")
    a("v_permlane32_swap_b32 v28, v30"); a("v_permlane32_swap_b32 v29, v31")
    a("v_lshlrev_b32 v57, 10, v57"); a("v_lshrrev_b32 v2, 5, v0"); a("v_lshlrev_b32 v2, 4, v2"); a("v_add_u32 v57, v57, v2")
    a(f"s_lshl_b32 s46, s{s_db}, 7"); a("s_lshr_b32 s47, s3, 1"); a("s_lshl_b32 s47, s47, 5"); a("s_add_u32 s46, s46, s47")
    a(f"buffer_store_dwordx4 v[28:31], v57, s[{SO}:{SO+3}], s46 offen{opt.outflags}")

DOC = """; ---------------------------------------------------------------------------------------------------------------
;      Hand-off: counters in d_ws (zeroed by workgroup 0, announced through d_debug word 63), one per head group.
;      Under the loop: w1 fragments move into registers, the Wo slice into dead K/V space, hand-off markers are reset.
;  Hand-offs after P2 carry their own validity: the producer first resets its fragments to an all-ones marker (counted on a
; ---------------------------------------------------------------------------------------------------------------
"""

opt.outflags = ""
opt.p1stamps = False
opt.exp = None
opt.stamp_wave = 0
opt.flags = {'off', 'prio', 'dpoll', 'skipdup', 'ubar', 'middma_early', 'ackwait', 'idleprobe', 'idle1', 'ackwait_o', 'b1sleep4'}
def build():
    phases.cfg.persist = True; phases.cfg.tags = True
    a = Asm()
    a.label(KNAME)
    end = "L_end"
    if opt.stamps: a("s_memrealtime s[74:75]")
    prologue(a, 256, end)
    if opt.stamps:
        for i in range(1, 16): a(f"s_mov_b32 s{STAMP0+i}, 0")
        a(f"s_mov_b32 s{STAMP0}, s74")
    if opt.diag == "pad100":
        a("s_memrealtime s[90:91]"); a("s_waitcnt lgkmcnt(0)")
    if "xearly" in opt.flags: p1_xloads(a, {})
    srd(a, SB_WS, P_WS, WS_SIZE); srd(a, 76, P_DBG, 256)
    a("v_mov_b32 v248, 252"); a("v_mov_b32 v247, 0")
    if opt.codepf:
        a("s_getpc_b64 s[62:63]")
        a.label("L_pcbase")
        if "codepf2" in opt.flags: a("s_mov_b64 s[66:67], s[62:63]")
        a("s_lshl_b32 s60, s3, 13"); a("v_lshlrev_b32 v6, 7, v0"); a("v_add_u32 v6, s60, v6")
        a("s_mov_b32 s61, L_codeend-L_pcbase"); a("v_min_u32 v6, s61, v6")
        a("global_load_dword v249, v6, s[62:63]")
    lz = a.uid("L_zero")
    a("s_cmp_lg_u32 s2, 0"); a(f"s_cbranch_scc1 {lz}")
    a("s_cmp_lg_u32 s3, 7"); a(f"s_cbranch_scc1 {lz}")
    a("v_lshlrev_b32 v6, 8, v0"); a("v_mov_b32 v7, 0")
    a("v_cmp_gt_u32 vcc, 16, v0"); a("s_and_saveexec_b64 s[62:63], vcc")
    a(f"s_mov_b32 s60, {CNT}")
    a(f"buffer_store_dword v7, v6, s[{SB_WS}:{SB_WS+3}], s60 offen sc1")
    a("s_mov_b64 exec, s[62:63]")
    a.label(lz)
    map_addresses(a)
    phases.cfg.fake16 = 'fake1' in opt.flags
    phase1(a, {**({"after_dma": markers_p1} if opt.exp == "mk_p1" else {}), ("post_c0" if "xearly" in opt.flags else "post_x"): zero_flag_store, "pre_store": zero_flag_load, "no_clear": True, "xfirst": True, "wtouch": opt.touch, "late_issue": True, "x_issued": "xearly" in opt.flags, **({"cyc0": lambda a: (stamp(a, 10, force=True), stamp(a, 14, True, force=True)), "cyc1": lambda a: (stamp(a, 15, True, force=True), stamp(a, 11, force=True))} if "p1cyc" in opt.flags else {}), "pipe_ln": opt.exp == "pipeln", **({"st": (lambda a, i: stamp(a, i, force=True))} if opt.p1stamps else {})})
    phases.cfg.fake16 = False
    stamp(a, 1)
    l, lp = a.uid("L_zc"), a.uid("L_zp")
    a("s_cmp_lg_u32 s3, 0"); a(f"s_cbranch_scc1 {l}")
    a("s_mov_b32 s61, 0")
    a.label(lp)
    a("s_waitcnt vmcnt(0)")
    a("v_readfirstlane_b32 s64, v247"); a("s_add_u32 s61, s61, 1")
    a("s_cmp_lg_u32 s64, 0"); a(f"s_cbranch_scc1 {l}")
    a("buffer_load_dword v247, v248, s[76:79], 0 offen sc1")
    a("s_cmp_lt_u32 s61, 0x200000"); a(f"s_cbranch_scc1 {lp}")
    a.label(l)
    gp.arrive(a, 0, 27, 13)
    vq = VMQ(); pf = W1Pref()
    def dep2(a):
        pf.setup(a)
        if "codepf2" in opt.flags:
            a("s_lshl_b32 s60, s3, 13"); a("s_add_u32 s60, s60, L_att_code-L_pcbase"); a("v_lshlrev_b32 v6, 7, v0"); a("v_add_u32 v6, s60, v6")
            a("s_mov_b32 s61, L_p3_code-L_pcbase"); a("v_min_u32 v6, s61, v6")
            a("global_load_dword v125, v6, s[66:67]")
        if "preb1" in opt.flags:
            vq.issue("markers", markers(a))
            if opt.touch: a("buffer_load_dword v97, v96, s[32:35], 0 offen"); vq.issue("touch")
            for j in range(4):
                dma(a, pf.VD if j == 0 else 116 + j, 28, 60, (59, 0) if j == 0 else None, offset=j * 1024, pre="s_mov_b32 s60, 0" if j == 0 else None)
            vq.issue("w1_0", 4)
        a("s_and_b32 s65, s2, 7")
        gp.make_wait(0, 65, 32, 2)(a)
    phase2(a, {"dep": dep2, "vq": vq, "tile": pf.tile(vq),
               **({} if "p1cyc" in opt.flags else {"loop_start": lambda a: (a.label("L_att_code"), stamp(a, 10), stamp(a, 14, True)), "loop_end": lambda a: (stamp(a, 15, True), stamp(a, 11))})})
    stamp(a, 3)
    a.label("L_p3_code")
    late_check(a)
    retries = []
    w2 = W2Stage()
    phase3v2(a, w2)
    stamp(a, 6)
    phase4v2(a, retries, w2)
    stamp(a, 8)
    phase5v2(a, retries, w2)
    if opt.stamps:
        a("s_waitcnt vmcnt(0)")
        stamp(a, 12)
        ls = a.uid("L_st")
        a("s_lshl_b32 s61, s2, 3"); a("s_add_u32 s61, s61, s3"); a("s_lshl_b32 s61, s61, 6"); a("s_add_u32 s61, s61, 0xF00000"); a("v_mov_b32 v3, 0")
        for i in range(16):
            a(f"v_mov_b32 v2, s{STAMP0+i}")
            a(f"buffer_store_dword v2, v3, s[{SB_WS}:{SB_WS+3}], s61 offen offset:{4*i}")
        a(f"s_cmp_lg_u32 s2, {opt.stamp_wg}"); a(f"s_cbranch_scc1 {ls}"); a(f"s_cmp_lg_u32 s3, {opt.stamp_wave}"); a(f"s_cbranch_scc1 {ls}")
        for i in range(14):
            a(f"s_sub_u32 s60, s{STAMP0+i}, s74"); a(f"v_mov_b32 v2, s60"); a(f"v_mov_b32 v3, {4*i}")
            a("buffer_store_dword v2, v3, s[76:79], 0 offen")
        a.label(ls)
    if opt.diag == "pad100":
        a.label("L_dg"); a("s_memrealtime s[92:93]"); a("s_waitcnt lgkmcnt(0)"); a("s_sub_u32 s92, s92, s90"); a("s_cmp_lt_u32 s92, 10000"); a("s_cbranch_scc1 L_dg")
    a("s_endpgm")
    emit_retries(a, retries)
    a.label(end)
    a.label("L_codeend")
    a("s_endpgm")
    body = a.text()
    probs = check_hazards(body)
    for p in probs: print(p, file=sys.stderr)
    desc = f""".amdhsa_kernel {KNAME}
  .amdhsa_next_free_vgpr 256
  .amdhsa_next_free_sgpr 102
  .amdhsa_accum_offset 256
  .amdhsa_group_segment_fixed_size 0
  .amdhsa_kernarg_size 88
  .amdhsa_user_sgpr_count 2
  .amdhsa_user_sgpr_kernarg_segment_ptr 1
  .amdhsa_system_sgpr_workgroup_id_x 1
  .amdhsa_float_denorm_mode_32 3
.end_amdhsa_kernel
"""
    return (HEADER + "; @launch grid=(256,1,1) block=(512,1,1) lds=163840\n" + DOC
            + '.amdgcn_target "amdgcn-amd-amdhsa--gfx950"\n.text\n'
            + f".globl {KNAME}\n.p2align 8\n.type {KNAME},@function\n" + body
            + '.section .rodata,"a"\n.p2align 6\n' + desc)

if __name__ == "__main__":
    import argparse
    ap = argparse.ArgumentParser()
    ap.add_argument("-o", default=f"cdna_kernels/{NAME}.s")
    ap.add_argument("--stamps", action="store_true")
    ap.add_argument("--no-touch", action="store_true")
    ap.add_argument("--no-codepf", action="store_true")
    ap.add_argument("--diag", default=None)
    ap.add_argument("--outflags", default="")
    ap.add_argument("--p1stamps", action="store_true")
    ap.add_argument("--exp", default=None)
    ap.add_argument("--endonly", action="store_true")
    ap.add_argument("--flags", default="off,prio,dpoll,skipdup,ubar,middma_early,ackwait,idleprobe,idle1,ackwait_o,b1sleep4")
    ap.add_argument("--stamp-wg", type=int, default=0)
    ap.add_argument("--stamp-wave", type=int, default=0)
    args = ap.parse_args()
    opt.stamps = args.stamps; opt.touch = not args.no_touch; opt.codepf = not args.no_codepf; opt.diag = args.diag
    opt.endonly = args.endonly; opt.flags = set(args.flags.split(','))
    opt.stamp_wg = args.stamp_wg; opt.stamp_wave = args.stamp_wave
    opt.p1stamps = args.p1stamps; opt.exp = args.exp; phases.cfg.exp = args.exp; phases.cfg.prio = 'prio' in opt.flags; phases.cfg.kvstaged = 'kvstaged' in opt.flags; phases.cfg.ln4 = 'ln4' in opt.flags; phases.cfg.m12 = 'm12' in opt.flags or 'preb1' in opt.flags
    opt.outflags = (" " + args.outflags) if args.outflags else ""
    open(args.o, "w").write(build())
    print("wrote", args.o)
```

```python
import sys
from asmlib import *
import phases
from phases import *
import gen_persist as gp
from gen_persist import opt, stamp, SB_WS, STAMP0, HEADER, KNAME, NAME

S_OFA, S_LFA, S_UFA, S_FB128, S_STU = 96, 97, 98, 99, 100
WREG = 128
HP = 4
STG = 131072

def map_addresses(a):
    a("s_and_b32 s46, s2, 7"); a("s_lshr_b32 s47, s2, 3")
    a("s_lshl_b32 s48, s46, 2"); a("s_lshr_b32 s49, s47, 3"); a("s_add_u32 s48, s48, s49")
    a("s_and_b32 s49, s47, 7")
    a("s_lshl_b32 s50, s49, 3"); a("s_add_u32 s50, s50, s3"); a("s_lshl_b32 s50, s50, 5"); a("s_add_u32 s50, s50, s48")
    a("s_lshl_b32 s50, s50, 10"); a(f"s_add_u32 s{S_OFA}, s50, {OF}")
    a("s_lshl_b32 s50, s49, 1"); a("s_and_b32 s51, s3, 1"); a("s_add_u32 s50, s50, s51"); a("s_lshl_b32 s50, s50, 7")
    a("s_lshl_b32 s51, s48, 2"); a("s_add_u32 s50, s50, s51"); a("s_lshr_b32 s51, s3, 1"); a("s_add_u32 s50, s50, s51")
    a("s_lshl_b32 s50, s50, 10"); a(f"s_add_u32 s{S_LFA}, s50, {LF}")
    a("s_and_b32 s50, s46, 1"); a("s_lshl_b32 s50, s50, 2"); a("s_and_b32 s51, s47, 3"); a("s_add_u32 s50, s50, s51")
    a("s_lshr_b32 s51, s46, 1"); a("s_mul_i32 s51, s51, 7"); a("s_lshr_b32 s52, s47, 2"); a("s_min_u32 s52, s52, 6"); a("s_add_u32 s51, s51, s52")
    a(f"s_lshl_b32 s{S_FB128}, s51, 7")
    a("s_cmp_lt_u32 s47, 28"); a(f"s_cselect_b32 s{S_STU}, 1, 0")
    a("s_lshl_b32 s50, s50, 1"); a("s_lshr_b32 s52, s3, 2"); a("s_add_u32 s50, s50, s52"); a("s_mul_i32 s50, s50, 112")
    a("s_lshl_b32 s51, s51, 2"); a("s_add_u32 s50, s50, s51")
    a("s_and_b32 s51, s3, 1"); a("s_lshl_b32 s51, s51, 1"); a("s_add_u32 s50, s50, s51"); a("s_bfe_u32 s51, s3, 0x10001"); a("s_add_u32 s50, s50, s51")
    a("s_lshl_b32 s50, s50, 10"); a(f"s_add_u32 s{S_UFA}, s50, {UF}")

def markers(a):
    if opt.exp == "nomark": return 0
    for i in range(4): a(f"v_mov_b32 v{120+i}, -1")
    a("v_mov_b32 v124, v1")
    for s in (S_OFA, S_LFA):
        a(f"buffer_store_dwordx4 v[120:123], v124, s[{SB_WS}:{SB_WS+3}], s{s} offen sc1")
    a(f"s_cmp_eq_u32 s{S_STU}, 0"); a(f"s_cselect_b32 s60, s{S_LFA}, s{S_UFA}")
    a(f"buffer_store_dwordx4 v[120:123], v124, s[{SB_WS}:{SB_WS+3}], s60 offen sc1")
    a("s_lshl_b32 s60, s2, 9"); a("s_lshl_b32 s61, s3, 6"); a("s_add_u32 s60, s60, s61"); a(f"s_add_u32 s60, s60, {XCH}")
    a("v_cmp_gt_u32 vcc, 4, v0"); a("s_and_saveexec_b64 s[62:63], vcc")
    a(f"buffer_store_dwordx4 v[120:123], v124, s[{SB_WS}:{SB_WS+3}], s60 offen sc1")
    a("s_mov_b64 exec, s[62:63]")
    return 4

def markers_p1(a):
    a("v_lshlrev_b32 v1, 4, v0")
    return markers(a)

def zero_flag_load(a):
    l = a.uid("L_zf")
    a("s_cmp_lg_u32 s3, 0"); a(f"s_cbranch_scc1 {l}")
    a("buffer_load_dword v247, v248, s[76:79], 0 offen sc1")
    a.label(l)

def zero_flag_store(a):
    l = a.uid("L_zs")
    a("s_cmp_lg_u32 s2, 0"); a(f"s_cbranch_scc1 {l}"); a("s_cmp_lg_u32 s3, 7"); a(f"s_cbranch_scc1 {l}")
    a("v_mov_b32 v126, 1")
    a("v_cmp_eq_u32 vcc, 0, v0"); a("s_and_saveexec_b64 s[62:63], vcc")
    a("buffer_store_dword v126, v248, s[76:79], 0 offen sc1")
    a("s_mov_b64 exec, s[62:63]")
    a.label(l)

def wait_all_groups(k, target, st):
    def dep(a):
        l, lp = a.uid("L_wait"), a.uid("L_poll")
        a("s_cmp_lg_u32 s3, 0"); a(f"s_cbranch_scc1 {l}")
        a(f"s_mov_b32 s60, {CNT + k*2048}"); a("v_lshlrev_b32 v251, 8, v0"); a("s_mov_b32 s61, 0")
        a("v_cmp_gt_u32 vcc, 8, v0"); a("s_and_saveexec_b64 s[62:63], vcc")
        a.label(lp)
        a(f"buffer_load_dword v250, v251, s[{SB_WS}:{SB_WS+3}], s60 offen sc1")
        a("s_add_u32 s61, s61, 1")
        a("s_waitcnt vmcnt(0)")
        a(f"v_cmp_gt_u32 vcc, {target}, v250")
        lx = a.uid("L_wx")
        a(f"s_cbranch_vccz {lx}")
        a("s_cmp_lt_u32 s61, 0x200000"); a(f"s_cbranch_scc1 {lp}")
        a.label(lx)
        a("s_mov_b64 exec, s[62:63]")
        a.label(l)
        a("s_barrier")
        stamp(a, st)
    return dep

def late_check(a):
    l, lp = a.uid("L_lck"), a.uid("L_lcp")
    a("s_cmp_lg_u32 s3, 0"); a(f"s_cbranch_scc1 {l}")
    a("v_cmp_gt_u32 vcc, 32, v113")
    a(f"s_cbranch_vccz {l}")
    a("s_mov_b32 s61, 0"); a(f"s_mov_b32 s60, {CNT + (0 if opt.exp == 'mk_p1' else 2048)}")
    a.label(lp)
    a(f"buffer_load_dword v113, v112, s[{SB_WS}:{SB_WS+3}], s60 offen sc1")
    a("s_add_u32 s61, s61, 1")
    a("s_waitcnt vmcnt(0)")
    a("v_cmp_gt_u32 vcc, 32, v113")
    a(f"s_cbranch_vccz {l}")
    a("s_cmp_lt_u32 s61, 0x200000"); a(f"s_cbranch_scc1 {lp}")
    a.label(l)
    a("s_barrier")

def tag_check(a, regs_, lfail):
    a(f"v_cmp_eq_u32 vcc, -1, v{regs_[0]}")
    for r in regs_[1:]:
        a(f"v_cmp_eq_u32 s[62:63], -1, v{r}"); a("s_or_b64 vcc, vcc, s[62:63]")
    a(f"s_cbranch_vccnz {lfail}")

class W1Pref:
    VD, VT = 92, 93
    def setup(self, a):
        srd(a, 28, P_W1, 2048 * 1792 * 2); srd(a, 32, P_W2, 1792 * 2048 * 2); srd(a, 40, P_WO, 512 * 512 * 2)
        a("v_and_b32 v112, 7, v0"); a("v_lshlrev_b32 v112, 8, v112"); a("v_mov_b32 v113, 0")
        dma_row_voff(a, self.VD, 2, 3, 3584)
        a(f"s_mul_i32 s60, s3, {256*3584}"); a(f"s_add_u32 s60, s60, s{S_FB128}"); a(f"v_add_u32 v{self.VD}, s60, v{self.VD}")
        if "off" in opt.flags:
            for j in range(1, 4): a(f"v_add_u32 v{116 + j}, {j * (8 * 3584 - 1024)}, v{self.VD}")
        tr_lane_addr(a, self.VT, 2, 3, 'perm')
        a("s_lshl_b32 s59, s3, 12"); a(f"s_add_u32 s59, s59, {STG}")
        a(f"v_add_u32 v{self.VT}, s59, v{self.VT}"); a(f"v_xor_b32 v{self.VT+1}, 64, v{self.VT}")
        a("s_and_b32 s60, s2, 7"); a("s_lshr_b32 s61, s2, 3")
        dma_row_voff(a, 95, 2, 3, 1024)
        a("s_and_b32 s62, s61, 7"); a("s_lshl_b32 s62, s62, 7"); a("s_lshl_b32 s63, s3, 16"); a("s_add_u32 s62, s62, s63"); a("v_add_u32 v95, s62, v95")
        a("s_and_b32 s62, s3, 3"); a("s_lshl_b32 s62, s62, 13"); a("s_lshr_b32 s63, s3, 2"); a("s_lshl_b32 s63, s63, 16"); a("s_add_u32 s53, s62, s63")
        a("s_and_b32 s62, s61, 3"); a("s_lshl_b32 s62, s62, 6"); a("s_lshl_b32 s63, s3, 8"); a("s_add_u32 s62, s62, s63")
        a("v_add_u32 v116, s62, v0"); a("s_movk_i32 s63, 3584"); a("v_mul_lo_u32 v116, v116, s63"); a(f"v_add_u32 v116, s{S_FB128}, v116")
        if "w1lead" in opt.flags:
            a("s_and_b32 s62, s61, 3"); a("s_lshl_b32 s62, s62, 3"); a("s_lshl_b32 s63, s3, 8"); a("s_add_u32 s62, s62, s63")
            a("v_and_b32 v116, 7, v0"); a("v_add_u32 v116, s62, v116"); a("s_movk_i32 s63, 3584"); a("v_mul_lo_u32 v116, v116, s63"); a(f"v_add_u32 v116, s{S_FB128}, v116")
        a("s_lshl_b32 s62, s60, 2"); a("s_lshr_b32 s63, s61, 3"); a("s_add_u32 s62, s62, s63"); a("s_lshl_b32 s62, s62, 7")
        a("s_and_b32 s63, s61, 7"); a("s_mul_i32 s63, s63, 224"); a("s_mul_i32 s64, s3, 28"); a("s_add_u32 s63, s63, s64")
        if "w2t_pre" in opt.flags:
            a("s_and_b32 s63, s61, 7"); a("s_mul_i32 s63, s63, 224"); a("s_lshl_b32 s64, s3, 5"); a("s_add_u32 s63, s63, s64"); a("s_sub_u32 s63, s63, 32")
            a("v_min_u32 v96, 31, v0")
        else:
            a("v_min_u32 v96, 27, v0")
        a("v_add_u32 v96, s63, v96"); a("v_lshlrev_b32 v96, 12, v96"); a("v_add_u32 v96, s62, v96")
    def tile(self, vq):
        def f(a, t):
            if t == (0 if "m12" in opt.flags else 1) and opt.exp != "mk_p1" and "preb1" not in opt.flags:
                vq.issue("markers", markers(a))
            if t % 8 == 0 and not (t == 0 and "preb1" in opt.flags):
                c = t // 8
                if "off" in opt.flags:
                    for j in range(4):
                        dma(a, self.VD if j == 0 else 116 + j, 28, 60, (59, 0) if j == 0 else None, offset=j * 1024,
                            pre=f"s_mov_b32 s60, {32*c*3584}" if j == 0 else None)
                else:
                    for j in range(4):
                        dma(a, self.VD, 28, 60, (59, j * 1024), pre=f"s_mov_b32 s60, {(32*c + 8*j)*3584}")
                vq.issue(f"w1_{c}", 4)
            if t % 8 == 7:
                c = t // 8
                vq.wait(a, f"w1_{c}")
                for kk in range(2):
                    for ft in range(2):
                        r = WREG + (2 * c + kk) * 8 + 4 * ft
                        a(f"ds_read_b64_tr_b16 {vr(r,2)}, v{self.VT+ft} offset:{kk*2048}")
                        a(f"ds_read_b64_tr_b16 {vr(r+2,2)}, v{self.VT+ft} offset:{kk*2048+1024}")
            if t in (45, 46):
                for i in range(4 * (t - 45), 4 * (t - 45) + 4):
                    dma(a, 95, 40, 60, (53, i * 1024), pre=f"s_mov_b32 s60, {i*8192}")
                vq.issue("wo", 4)
            MK = opt.exp == "mk_p1"
            if t == (0 if "preb1" in opt.flags else 12 if "m12" in opt.flags else 28) and not MK:
                l = a.uid("L_ma")
                a("s_cmp_lg_u32 s3, 0"); a(f"s_cbranch_scc1 {l}")
                a("s_and_b32 s60, s2, 7"); a("s_lshl_b32 s60, s60, 8"); a(f"s_add_u32 s60, s60, {CNT + 2048}")
                a("v_mov_b32 v114, 1"); a("v_mov_b32 v115, 0")
                a("v_cmp_eq_u32 vcc, 0, v0"); a("s_and_saveexec_b64 s[62:63], vcc")
                a(f"buffer_atomic_add v114, v115, s[{SB_WS}:{SB_WS+3}], s60 offen")
                a("s_mov_b64 exec, s[62:63]")
                a.label(l)
            if t == 52:
                l = a.uid("L_lc")
                a("s_cmp_lg_u32 s3, 0"); a(f"s_cbranch_scc1 {l}")
                a(f"s_mov_b32 s60, {CNT + (0 if MK else 2048)}")
                a(f"buffer_load_dword v113, v112, s[{SB_WS}:{SB_WS+3}], s60 offen sc1")
                a.label(l)
                vq.issue("maybe", 0)
            if "codepf2" in opt.flags and t == 50:
                a("s_lshl_b32 s60, s3, 13"); a("s_add_u32 s60, s60, L_p3_code-L_pcbase"); a("v_lshlrev_b32 v126, 7, v0"); a("v_add_u32 v126, s60, v126")
                a("s_mov_b32 s61, L_codeend-L_pcbase"); a("v_min_u32 v126, s61, v126")
                a("global_load_dword v125, v126, s[66:67]"); vq.issue("touch")
            if opt.touch and t == 3 and opt.exp == "btouch":
                srd(a, 44, P_B1, 1792 * 2); a("v_lshlrev_b32 v117, 7, v0")
                a("buffer_load_dword v97, v117, s[44:47], 0 offen"); vq.issue("touch")
                srd(a, 44, P_B2, 2048 * 2)
                a("buffer_load_dword v97, v117, s[44:47], 0 offen"); vq.issue("touch")
            if "w1lead" in opt.flags and t % 8 == 2 and t < 56:
                a(f"s_mov_b32 s60, {32 * (t // 8 + 1) * 3584}"); a("buffer_load_dword v97, v116, s[28:31], s60 offen"); vq.issue("touch")
            if opt.touch and t == 2 and opt.exp == "w1touch":
                a("buffer_load_dword v97, v116, s[28:31], 0 offen"); vq.issue("touch")
            if opt.touch:
                if t == 27 and "preb1" not in opt.flags and "w2t_pre" not in opt.flags:
                    a("buffer_load_dword v97, v96, s[32:35], 0 offen"); vq.issue("touch")
        return f

class W2Stage:
    VD, VP, SRD, SE, SX_, SM = 60, 61, 28, 59, 55, 57
    def __init__(self): self.vq = None
    def setup(self, a):
        srd(a, self.SRD, P_W2, 1792 * 2048 * 2)
        dma_row_voff(a, self.VD, 2, 3, 4096)
        a("s_and_b32 s60, s2, 7"); a("s_lshr_b32 s61, s2, 3")
        a("s_lshl_b32 s60, s60, 2"); a("s_lshr_b32 s61, s61, 3"); a("s_add_u32 s60, s60, s61"); a("s_lshl_b32 s60, s60, 7")
        a(f"s_mul_i32 s61, s3, {224*4096}"); a("s_add_u32 s60, s60, s61"); a(f"v_add_u32 v{self.VD}, s60, v{self.VD}")
        a(f"s_lshl_b32 s{self.SE}, s3, 13"); a(f"s_add_u32 s{self.SE}, s{self.SE}, 98304")
        a(f"s_lshl_b32 s{self.SX_}, s3, 11"); a(f"s_add_u32 s{self.SX_}, s{self.SX_}, 49152")
        a("s_and_b32 s60, s3, 3"); a("s_lshl_b32 s60, s60, 13"); a("s_lshr_b32 s61, s3, 2"); a("s_lshl_b32 s61, s61, 16"); a(f"s_add_u32 s{self.SM}, s60, s61")
        tr_lane_addr(a, self.VP, 2, 3, 'perm')
        a(f"v_xor_b32 v{self.VP+1}, 64, v{self.VP}")
    def slot(self, j):
        k = j if j < 9 else j - 9
        if k < 4: return self.SE, k * 2048
        if k == 4: return self.SX_, 0
        return self.SM, (k - 5) * 2048
    def dma(self, a, j):
        sreg, off = self.slot(j)
        for i in range(2):
            dma(a, self.VD, self.SRD, 60, (sreg, off + i * 1024), pre=f"s_mov_b32 s60, {(16*j + 8*i)*4096}")
        if self.vq is not None: self.vq.issue(f"w2_{j}", 2)
    def read(self, a, j, dst=None):
        sreg, off = self.slot(j)
        dst = WREG + 8 * j if dst is None else dst
        for st in range(2):
            a(f"v_add_u32 v{2+st}, s{sreg}, v{self.VP+st}")
        for st in range(2):
            r = dst + 4 * st
            a(f"ds_read_b64_tr_b16 {vr(r,2)}, v{2+st} offset:{off}")
            a(f"ds_read_b64_tr_b16 {vr(r+2,2)}, v{2+st} offset:{off+1024}")

o_retries = []
def phase3v2(a, w2):
    s_tb, s_cb, s_tt, s_kq = 26, 27, 44, 45
    SWO, SWS, SX = 28, 36, 32
    OFR, XR, ACC, AF, VA = 8, 40, 64, 96, 44
    a("s_and_b32 s46, s2, 7"); a("s_lshr_b32 s47, s2, 3")
    a("s_lshl_b32 s48, s46, 2"); a("s_lshr_b32 s49, s47, 3"); a(f"s_add_u32 s{s_tb}, s48, s49"); a(f"s_and_b32 s{s_cb}, s47, 7")
    a(f"s_and_b32 s{s_tt}, s3, 1"); a(f"s_lshr_b32 s{s_kq}, s3, 1")
    srd(a, SWO, P_WO, 512 * 512 * 2); srd(a, SWS, P_WS, WS_SIZE); srd(a, SX, P_X, 2048 * 512 * 2)
    a(f"s_lshl_b32 s46, s{s_tb}, 1"); a(f"s_add_u32 s58, s46, s{s_tt}")
    a(f"s_lshl_b32 s46, s58, 5"); a(f"s_lshl_b32 s47, s{s_kq}, 3"); a("s_add_u32 s46, s46, s47"); a("s_lshl_b32 s46, s46, 10"); a(f"s_add_u32 s50, s46, {OF}")
    a("s_add_u32 s51, s50, 4096")
    def oloads():
        for i in range(8):
            a(f"buffer_load_dwordx4 {vr(OFR+4*i,4)}, v1, s[{SWS}:{SWS+3}], s{50 + (i >> 2)} offen offset:{(i&3)*1024} sc1")
    if "oprobe" in opt.flags:
        a("v_lshlrev_b32 v46, 10, v0"); a("v_add_u32 v46, 1008, v46"); a("s_mov_b32 s48, 0")
        a("v_cmp_gt_u32 vcc, 8, v0"); a("s_and_saveexec_b64 s[52:53], vcc")
        lp, lx_ = a.uid("L_o_probe"), a.uid("L_o_px")
        a.label(lp)
        a(f"buffer_load_dword v47, v46, s[{SWS}:{SWS+3}], s50 offen sc1")
        a("s_add_u32 s48, s48, 1")
        a("s_waitcnt vmcnt(0)")
        a("v_cmp_eq_u32 vcc, -1, v47")
        a(f"s_cbranch_vccz {lx_}")
        a("s_cmp_lt_u32 s48, 0x100000"); a(f"s_cbranch_scc1 {lp}")
        a.label(lx_)
        a("s_mov_b64 exec, s[52:53]")
    if "ackwait_o" in opt.flags: a("s_waitcnt vmcnt(0)")
    oloads()
    a("v_and_b32 v3, 31, v0"); a("s_lshl_b32 s46, s58, 5"); a("v_add_u32 v3, s46, v3"); a("v_lshlrev_b32 v3, 10, v3")
    a("v_lshrrev_b32 v46, 5, v0"); a("v_lshlrev_b32 v46, 3, v46"); a("v_add_u32 v3, v3, v46")
    a(f"s_lshl_b32 s46, s{s_cb}, 7"); a(f"s_lshl_b32 s47, s{s_kq}, 5"); a("s_add_u32 s46, s46, s47")
    a(f"buffer_load_dwordx2 {vr(XR,2)}, v3, s[{SX}:{SX+3}], s46 offen")
    a(f"buffer_load_dwordx2 {vr(XR+2,2)}, v3, s[{SX}:{SX+3}], s46 offen offset:16")
    tr_lane_addr(a, VA, 46, 47, 'perm')
    a(f"s_and_b32 s46, s{s_kq}, 1"); a("s_lshl_b32 s46, s46, 14"); a(f"s_lshr_b32 s47, s{s_kq}, 1"); a("s_lshl_b32 s47, s47, 16"); a("s_add_u32 s46, s46, s47")
    a(f"v_add_u32 v{VA}, s46, v{VA}"); a(f"v_xor_b32 v{VA+1}, 64, v{VA}")
    for i in range(32): a(f"v_mov_b32 v{ACC+i}, 0")
    a("s_waitcnt lgkmcnt(0)"); a("s_barrier")
    w2.setup(a)
    def rd(i):
        for ct in range(2):
            r = AF + 8 * (i & 3) + 4 * ct
            a(f"ds_read_b64_tr_b16 {vr(r,2)}, v{VA+ct} offset:{i*2048}")
            a(f"ds_read_b64_tr_b16 {vr(r+2,2)}, v{VA+ct} offset:{i*2048+1024}")
    for i in range(3): rd(i)
    ostep = "ostep" in opt.flags
    if "early_after_o" not in opt.flags:
        for j in range(5): w2.dma(a, j)
        if not ostep: a("s_waitcnt vmcnt(10)")
    else:
        a("s_waitcnt vmcnt(0)")
    def biases():
        srd(a, 40, P_B1, 1792 * 2)
        a("s_and_b32 s46, s3, 1"); a("s_lshl_b32 s46, s46, 6"); a("s_bfe_u32 s47, s3, 0x10001"); a("s_lshl_b32 s47, s47, 5")
        a("s_add_u32 s46, s46, s47"); a(f"s_add_u32 s46, s46, s{S_FB128}")
        a("v_lshrrev_b32 v2, 5, v0"); a("v_lshlrev_b32 v2, 3, v2")
        a("buffer_load_dwordx2 v[56:57], v2, s[40:43], s46 offen"); a("buffer_load_dwordx2 v[58:59], v2, s[40:43], s46 offen offset:16")
        srd(a, 40, P_B2, 2048 * 2)
        a("v_and_b32 v2, 31, v0"); a("s_lshl_b32 s46, s58, 5"); a("v_add_u32 v2, s46, v2"); a("v_lshlrev_b32 v2, 1, v2")
        a("buffer_load_ushort v63, v2, s[40:43], 0 offen")
    lp, lr, lok = a.uid("L_o_poll"), a.uid("L_o_retry"), a.uid("L_o_ok")
    if ostep:
        pass
    elif "oprobe" not in opt.flags:
        a("s_mov_b32 s48, 0")
        a.label(lp)
        a("s_mov_b32 s49, 0")
        for i in range(8):
            ls_ = a.uid("L_o_sk")
            a(f"v_cmp_eq_u32 vcc, -1, v{OFR+4*i}")
            a(f"s_cbranch_vccz {ls_}")
            a(f"buffer_load_dwordx4 {vr(OFR+4*i,4)}, v1, s[{SWS}:{SWS+3}], s{50 + (i >> 2)} offen offset:{(i&3)*1024} sc1")
            a("s_mov_b32 s49, 1")
            a.label(ls_)
        a("s_cmp_eq_u32 s49, 0"); a(f"s_cbranch_scc1 {lok}")
        a("s_add_u32 s48, s48, 1")
        a("s_waitcnt vmcnt(0)")
        a("s_cmp_lt_u32 s48, 0x100000"); a(f"s_cbranch_scc1 {lp}")
        a.label(lok)
    else:
        tag_check(a, [OFR + 4 * i for i in range(8)], lr)
        a(f"s_branch {lok}")
        a.label(lr)
        a("s_mov_b32 s48, 0")
        a.label(lp)
        oloads()
        a("s_add_u32 s48, s48, 1")
        a("s_waitcnt vmcnt(0)")
        a("s_cmp_ge_u32 s48, 0x100000"); a(f"s_cbranch_scc1 {lok}")
        tag_check(a, [OFR + 4 * i for i in range(8)], lp)
        a.label(lok)
    stamp(a, 4)
    if "early_after_o" in opt.flags:
        for j in range(5): w2.dma(a, j)
    if opt.exp == "earlybias": biases()
    for i in range(8):
        if ostep:
            a(f"s_waitcnt vmcnt({7 - i + 12})")
            lr_, lb_ = a.uid("L_os_r"), a.uid("L_os_b")
            a(f"v_cmp_eq_u32 vcc, -1, v{OFR+4*i}"); a(f"s_cbranch_vccnz {lr_}")
            a.label(lb_)
            o_retries.append((lr_, lb_, i))
        if i + 3 < 8: rd(i + 3); a("s_waitcnt lgkmcnt(12)")
        else: a(f"s_waitcnt lgkmcnt({(7 - i) * 4})")
        for ct in range(2): mfma(a, ACC + 16 * ct, AF + 8 * (i & 3) + 4 * ct, OFR + 4 * i)
    if ostep: a("s_waitcnt vmcnt(10)")
    a("s_nop 7"); a("s_nop 3")
    if opt.exp == "p3steps": stamp(a, 1, force=True)
    reduce_scatter(a, ACC, s_tt, s_kq, 46, 8, 0, sub_shift=16)
    if opt.exp == "p3steps": stamp(a, 2, force=True)
    H = 8
    for j in range(4):
        a(f"v_lshlrev_b32 v{H+2*j}, 16, v{XR+j}"); a(f"v_and_b32 v{H+2*j+1}, 0xffff0000, v{XR+j}")
    for i in range(8): a(f"v_add_f32 v{H+i}, v{H+i}, v{ACC+i}")
    for j in range(4): a(f"v_cvt_pk_bf16_f32 v{HP+j}, v{H+2*j}, v{H+2*j+1}")
    for j in range(4):
        a(f"v_lshlrev_b32 v{H+2*j}, 16, v{HP+j}"); a(f"v_and_b32 v{H+2*j+1}, 0xffff0000, v{HP+j}")
    a(f"v_add_f32 v20, v{H}, v{H+1}"); a(f"v_mul_f32 v21, v{H}, v{H}"); a(f"v_fmac_f32 v21, v{H+1}, v{H+1}")
    for i in range(2, 8):
        a(f"v_add_f32 v20, v20, v{H+i}"); a(f"v_fmac_f32 v21, v{H+i}, v{H+i}")
    a("v_mov_b32 v22, v20"); a("v_mov_b32 v23, v21"); a("s_nop 1")
    a("v_permlane32_swap_b32 v20, v22"); a("v_permlane32_swap_b32 v21, v23"); a("s_nop 1")
    a("v_add_f32 v20, v20, v22"); a("v_add_f32 v21, v21, v23")
    ST = 32768
    a("v_and_b32 v46, 31, v0"); a(f"s_lshl_b32 s46, s{s_tt}, 5"); a("v_add_u32 v46, s46, v46"); a("v_lshlrev_b32 v24, 3, v46")
    a(f"s_lshl_b32 s46, s{s_kq}, 9"); a(f"s_add_u32 s46, s46, {ST}"); a("v_add_u32 v47, s46, v24")
    a("v_cmp_gt_u32 vcc, 32, v0"); a("s_and_saveexec_b64 s[52:53], vcc")
    a("ds_write_b64 v47, v[20:21]")
    a("s_mov_b64 exec, s[52:53]")
    a("s_waitcnt lgkmcnt(0)"); a("s_barrier")
    if opt.exp == "p3steps": stamp(a, 13, force=True)
    lx, lx0, lx1 = a.uid("L_p3_x"), a.uid("L_p3_x0"), a.uid("L_p3_x1")
    a(f"s_lshl_b32 s46, s{s_tb}, 12"); a(f"s_add_u32 s46, s46, {XCH}"); a(f"s_lshl_b32 s47, s{s_cb}, 9"); a("s_add_u32 s47, s47, s46")
    a("v_lshlrev_b32 v48, 3, v0")
    def publish():
        a(f"v_add_u32 v49, {ST}, v48")
        for q in range(4): a(f"ds_read_b64 {vr(26+2*q,2)}, v49 offset:{q*512}")
        a("s_waitcnt lgkmcnt(0)")
        a("v_add_f32 v26, v26, v28"); a("v_add_f32 v27, v27, v29"); a("v_add_f32 v30, v30, v32"); a("v_add_f32 v31, v31, v33")
        a("v_add_f32 v26, v26, v30"); a("v_add_f32 v27, v27, v31")
        a("v_min_u32 v26, 0xfffffffe, v26"); a("v_min_u32 v27, 0xfffffffe, v27")
        a(f"buffer_store_dwordx2 v[26:27], v48, s[{SWS}:{SWS+3}], s47 offen sc1")
    a("s_cmp_eq_u32 s3, 0"); a(f"s_cbranch_scc1 {lx0}")
    if "xack" not in opt.flags:
        a("s_cmp_lg_u32 s3, 1"); a(f"s_cbranch_scc1 {lx1}")
        publish()
    a.label(lx1)
    if "pubbar" in opt.flags: a("s_barrier")
    if "middma_early" in opt.flags:
        for j in range(5, 9): w2.dma(a, j)
    a(f"s_branch {lx}")
    a.label(lx0)
    if "pubbar" in opt.flags: a("s_barrier")
    if "xack" in opt.flags:
        publish()
        a("s_waitcnt vmcnt(0)")
    lp, lpd, lr = a.uid("L_p3_poll"), a.uid("L_p3_pd"), a.uid("L_p3_r")
    a("s_mov_b32 s48, 0")
    a.label(lp)
    for q in range(8): a(f"buffer_load_dwordx2 {vr(32+2*q,2)}, v48, s[{SWS}:{SWS+3}], s46 offen offset:{q*512} sc1")
    a("s_waitcnt vmcnt(0)")
    tag_check(a, list(range(32, 48)), lr)
    a(f"s_branch {lpd}")
    a.label(lr)
    if "xsleep" in opt.flags: a("s_sleep 3")
    a("s_add_u32 s48, s48, 1"); a("s_cmp_lt_u32 s48, 0x100000"); a(f"s_cbranch_scc1 {lp}")
    a.label(lpd)
    for q in range(1, 8):
        a(f"v_add_f32 v32, v32, v{32+2*q}"); a(f"v_add_f32 v33, v33, v{33+2*q}")
    a("v_mul_f32 v32, 0x3b000000, v32"); a("v_mul_f32 v33, 0x3b000000, v33")
    a("v_fma_f32 v33, -v32, v32, v33"); a("v_max_f32 v33, 0, v33")
    a("v_add_f32 v34, 0x3727c5ac, v33"); a("v_rsq_f32 v35, v34")
    a("s_nop 0")
    a("v_mul_f32 v36, v35, v35"); a("v_mul_f32 v36, v36, v33")
    a("v_add_f32 v36, 0x3727c5ac, v36"); a("v_rsq_f32 v36, v36")
    a("s_nop 0")
    a("v_mul_f32 v34, v35, v36"); a("v_mul_f32 v35, v32, v34"); a("v_sub_f32 v35, 0, v35")
    a(f"v_add_u32 v49, {ST + 2048}, v48")
    a("ds_write_b64 v49, v[34:35]")
    if "middma_early" in opt.flags:
        for j in range(5, 9): w2.dma(a, j)
    a("s_waitcnt lgkmcnt(0)")
    a.label(lx)
    a("s_barrier")
    stamp(a, 5)
    a(f"v_add_u32 v47, {ST + 2048}, v24")
    a("ds_read_b64 v[20:21], v47")
    a("s_waitcnt lgkmcnt(0)")
    for i in range(8): a(f"v_fma_f32 v{H+i}, v{H+i}, v20, v21")
    for j in range(4): a(f"v_cvt_pk_bf16_f32 v{16+j}, v{H+2*j}, v{H+2*j+1}")
    a("v_lshrrev_b32 v46, 3, v24")
    a("v_bfe_u32 v47, v46, 1, 1"); a("v_lshlrev_b32 v47, 2, v47")
    a(f"s_lshl_b32 s46, s{s_kq}, 1"); a("v_xor_b32 v47, s46, v47")
    a("v_lshlrev_b32 v47, 4, v47"); a("v_lshlrev_b32 v46, 7, v46"); a("v_add_u32 v46, v46, v47")
    a("v_lshrrev_b32 v47, 5, v0"); a("v_lshlrev_b32 v47, 3, v47"); a("v_add_u32 v46, v46, v47")
    a("ds_write_b64 v46, v[16:17] offset:36864"); a("ds_write_b64 v46, v[18:19] offset:36880")
    a(f"s_lshl_b32 s46, s{s_tt}, 2")
    tr_lane_addr(a, 48, 46, 47, 'perm', colunit_sreg=46)
    a(f"s_lshl_b32 s46, s{s_kq}, 11"); a("v_add_u32 v48, s46, v48")
    a("s_waitcnt lgkmcnt(0)"); a("s_barrier")
    a("ds_read_b64_tr_b16 v[24:25], v48 offset:36864"); a("ds_read_b64_tr_b16 v[26:27], v48 offset:37888")
    a("s_waitcnt lgkmcnt(0)")
    a("v_min_u32 v24, 0xfffffffe, v24")
    a(f"buffer_store_dwordx4 v[24:27], v1, s[{SWS}:{SWS+3}], s{S_LFA} offen sc1")
    if "middma_early" not in opt.flags:
        a("s_barrier")
        for j in range(5, 9): w2.dma(a, j)

RING = 8
NR = 6
ACC = 64
def act_load(a, s_act, i, r):
    for dt in range(2):
        a(f"s_add_u32 s52, s{s_act[dt]}, {i*1024}")
        a(f"buffer_load_dwordx4 {vr(r+4*dt,4)}, v1, s[36:39], s52 offen sc1")

def probe(a, s_act, probe_steps, sleep=0):
    a("v_lshrrev_b32 v2, 1, v0"); a(f"v_mov_b32 v3, {probe_steps[0]}")
    for n in range(1, 4):
        a(f"v_cmp_eq_u32 vcc, {n}, v2"); a(f"v_mov_b32 v8, {probe_steps[n]}"); a("s_nop 0"); a("v_cndmask_b32 v3, v3, v8, vcc")
    a("v_lshlrev_b32 v3, 10, v3"); a("v_add_u32 v3, 1008, v3")
    a("v_and_b32 v2, 1, v0"); a(f"s_sub_u32 s52, s{s_act[1]}, s{s_act[0]}"); a("v_mul_lo_u32 v2, v2, s52"); a("v_add_u32 v3, v3, v2")
    a("s_mov_b32 s53, 0")
    a("v_cmp_gt_u32 vcc, 8, v0"); a("s_and_saveexec_b64 s[62:63], vcc")
    lp, lx = a.uid("L_probe"), a.uid("L_px")
    a.label(lp)
    a(f"buffer_load_dword v8, v3, s[36:39], s{s_act[0]} offen sc1")
    a("s_add_u32 s53, s53, 1")
    a("s_waitcnt vmcnt(0)")
    a("v_cmp_eq_u32 vcc, -1, v8")
    a(f"s_cbranch_vccz {lx}")
    if sleep: a(f"s_sleep {sleep}")
    a("s_cmp_lt_u32 s53, 0x100000"); a(f"s_cbranch_scc1 {lp}")
    a.label(lx)
    a("s_mov_b64 exec, s[62:63]")

def gemm8(a, vq, nks, s_act, act_is_B, retries, probe_steps, free, wreg, frees_w, after_step=None, after_fill=None):
    dpoll = "dpoll" in opt.flags
    if dpoll and "ackwait" in opt.flags:
        a(f"s_waitcnt vmcnt({0 if (nks == 16 or opt.exp == 'w2late') else 10})")
    ackonly = "ackonly" in opt.flags or (f"ackonly{nks}" in opt.flags)
    if not dpoll: probe(a, s_act, probe_steps)
    else: a("s_nop 0")
    if not dpoll or ackonly: vq.q = []
    if (opt.exp == "p4steps" and nks == 16) or (opt.exp == "p5steps" and nks == 14): stamp(a, 1, force=True)
    if opt.exp == "probes": stamp(a, 1 if nks == 16 else 13, force=True)
    free = list(free); blk = {}; nxt = [0]
    def fill():
        while free and nxt[0] < nks:
            i = nxt[0]; blk[i] = free.pop(0); act_load(a, s_act, i, blk[i]); vq.issue(f"act{i}", 2); nxt[0] += 1
    fill()
    if after_fill: after_fill()
    for i in range(64): a(f"v_mov_b32 v{ACC+i}, 0")
    if dpoll and not ackonly:
        lp, lok = a.uid("L_dp"), a.uid("L_dpok")
        a("s_mov_b32 s53, 0")
        lfirst = a.uid("L_dp1")
        if opt.exp == "w2late" and nks == 14:
            a("s_waitcnt vmcnt(10)"); a(f"s_branch {lfirst}")
        a.label(lp)
        a("s_waitcnt vmcnt(0)")
        a.label(lfirst)
        a("s_mov_b32 s49, 0")
        for i in range(nxt[0]):
            for dt in range(2):
                ls_ = a.uid("L_dsk")
                a(f"v_cmp_eq_u32 vcc, -1, v{blk[i] + 4*dt}")
                a(f"s_cbranch_vccz {ls_}")
                a(f"s_add_u32 s52, s{s_act[dt]}, {i*1024}")
                a(f"buffer_load_dwordx4 {vr(blk[i]+4*dt,4)}, v1, s[36:39], s52 offen sc1")
                a("s_mov_b32 s49, 1")
                a.label(ls_)
        a("s_add_u32 s53, s53, 1")
        a("s_cmp_eq_u32 s49, 0"); a(f"s_cbranch_scc1 {lok}")
        a("s_cmp_lt_u32 s53, 0x100000"); a(f"s_cbranch_scc1 {lp}")
        a("s_waitcnt vmcnt(0)")
        a.label(lok)
        if opt.exp == "w2late" and nks == 14: vq.q = [t for t in vq.q if t.startswith("w2_")]
        else: vq.q = []
    for i in range(nks):
        r = blk[i]
        vq.wait(a, f"act{i}")
        lr, lb = a.uid("L_retry"), a.uid("L_back")
        if opt.exp != "notag": tag_check(a, [r, r + 4], lr)
        a.label(lb)
        depth = 6 if "retry_sel" in opt.flags else 4
        retries.append((lr, lb, [(k, blk[k]) for k in range(i, min(i + depth, nxt[0]))], s_act))
        W0 = wreg(i)
        for sub in range(2):
            for dt in range(2):
                W, A_ = W0 + 4 * sub, r + 4 * dt
                if opt.exp == "nomfma": continue
                if act_is_B: mfma(a, ACC + 16 * (2 * dt + sub), W, A_)
                else: mfma(a, ACC + 16 * (2 * dt + sub), A_, W)
        if opt.exp == "p4steps" and nks == 16 and i in (0, 1, 3, 5, 7, 9, 11, 13): stamp(a, {0: 2, 1: 3, 3: 4, 5: 5, 7: 9, 9: 10, 11: 11, 13: 12}[i], force=True)
        if opt.exp == "p5steps" and nks == 14 and i in (0, 1, 3, 5, 7, 9, 11, 13): stamp(a, {0: 2, 1: 3, 3: 4, 5: 5, 7: 6, 9: 10, 11: 11, 13: 7}[i], force=True)
        free.append(r)
        if frees_w: free.append(W0)
        if after_step: after_step(i, free)
        fill()
    a("s_nop 7"); a("s_nop 3")

def emit_o_retries(a):
    for lr, lb, i in o_retries:
        lp = a.uid("L_os_p")
        a.label(lr)
        a("s_mov_b32 s48, 0")
        a.label(lp)
        for k in range(i, 8):
            ls_ = a.uid("L_os_k")
            if k > i:
                a(f"v_cmp_eq_u32 vcc, -1, v{8+4*k}"); a(f"s_cbranch_vccz {ls_}")
            a(f"buffer_load_dwordx4 {vr(8+4*k,4)}, v1, s[36:39], s{50 + (k >> 2)} offen offset:{(k&3)*1024} sc1")
            a.label(ls_)
        a("s_add_u32 s48, s48, 1")
        a("s_waitcnt vmcnt(0)")
        a("s_cmp_ge_u32 s48, 0x100000"); a(f"s_cbranch_scc1 {lb}")
        a(f"v_cmp_eq_u32 vcc, -1, v{8+4*i}"); a(f"s_cbranch_vccnz {lp}")
        a(f"s_branch {lb}")

def emit_retries(a, retries):
    for lr, lb, steps, s_act in retries:
        lp = a.uid("L_rp")
        r = steps[0][1]
        a.label(lr)
        a("s_mov_b32 s53, 0")
        a.label(lp)
        if "retry_sel" in opt.flags:
            for n_, (k, rk) in enumerate(steps):
                for dt in range(2):
                    ls_ = a.uid("L_rs")
                    if n_ > 0:
                        a(f"v_cmp_eq_u32 vcc, -1, v{rk + 4*dt}"); a(f"s_cbranch_vccz {ls_}")
                    a(f"s_add_u32 s52, s{s_act[dt]}, {k*1024}")
                    a(f"buffer_load_dwordx4 {vr(rk+4*dt,4)}, v1, s[36:39], s52 offen sc1")
                    a.label(ls_)
        else:
            for k, rk in steps: act_load(a, s_act, k, rk)
        a("s_add_u32 s53, s53, 1")
        a("s_waitcnt vmcnt(0)")
        a("s_cmp_ge_u32 s53, 0x100000"); a(f"s_cbranch_scc1 {lb}")
        tag_check(a, [r, r + 4], lp)
        a(f"s_branch {lb}")

RING_BLOCKS = [8 + 8 * i for i in range(6)]
def reduce8(a, w2, tail_barrier):
    a(f"v_add_u32 v2, s{w2.SE}, v1"); a(f"v_add_u32 v3, s{w2.SM}, v1")
    a("s_waitcnt lgkmcnt(0)")
    for p in range(8):
        sub, half, dt = p & 1, (p >> 1) & 1, p >> 2
        for q in range(2):
            r = ACC + 16 * (2 * dt + sub) + 8 * half + 4 * q
            a(f"ds_write_b128 v{2 + (p >> 2)}, {vr(r,4)} offset:{(p & 3)*2048 + q*1024}")
    a("s_and_b32 s46, s3, 3"); a("s_lshl_b32 s46, s46, 11")
    a("s_mov_b32 s48, 65536"); a("s_cmp_lt_u32 s3, 4"); a("s_cselect_b32 s47, 98304, 0"); a("s_cselect_b32 s48, 32768, s48")
    a("s_add_u32 s46, s46, s47"); a("v_add_u32 v2, s46, v1"); a("v_add_u32 v3, s48, v2")
    a("s_waitcnt lgkmcnt(0)"); a("s_barrier")
    for src in range(8):
        for q in range(2):
            a(f"ds_read_b128 {vr(ACC + 8*src + 4*q, 4)}, v{2 + (src >> 2)} offset:{(src & 3)*8192 + q*1024}")
    for lvl, (wait, pairs) in enumerate(((12, [(0, 1)]), (8, [(2, 3)]), (4, [(4, 5)]), (0, [(6, 7)]))):
        a(f"s_waitcnt lgkmcnt({wait})")
        for x, y in pairs:
            for i in range(8): a(f"v_add_f32 v{ACC+8*x+i}, v{ACC+8*x+i}, v{ACC+8*y+i}")
        if lvl == 3 and tail_barrier: a("s_barrier")
    for x, y in ((0, 2), (4, 6), (0, 4)):
        for i in range(8): a(f"v_add_f32 v{ACC+8*x+i}, v{ACC+8*x+i}, v{ACC+8*y+i}")

def phase4v2(a, retries, w2):
    s_db = 26
    SB, SW2 = 32, 28
    a("s_and_b32 s46, s2, 7"); a("s_lshr_b32 s47, s2, 3")
    a("s_and_b32 s48, s46, 1"); a("s_lshl_b32 s48, s48, 2"); a("s_and_b32 s49, s47, 3"); a(f"s_add_u32 s{s_db}, s48, s49")
    srd(a, SB, P_B1, 1792 * 2)
    vq = VMQ(); w2.vq = vq
    def load_b1():
        a("s_and_b32 s46, s3, 1"); a("s_lshl_b32 s46, s46, 6"); a("s_bfe_u32 s47, s3, 0x10001"); a("s_lshl_b32 s47, s47, 5")
        a("s_add_u32 s46, s46, s47"); a(f"s_add_u32 s46, s46, s{S_FB128}")
        a("v_lshrrev_b32 v2, 5, v0"); a("v_lshlrev_b32 v2, 3, v2")
        a(f"buffer_load_dwordx2 v[56:57], v2, s[{SB}:{SB+3}], s46 offen"); a(f"buffer_load_dwordx2 v[58:59], v2, s[{SB}:{SB+3}], s46 offen offset:16")
        vq.issue("bias", 2)
    if opt.exp != "earlybias" and "biasloop" not in opt.flags: load_b1()
    a(f"s_lshl_b32 s46, s{s_db}, 18"); a("s_lshl_b32 s47, s3, 14"); a("s_add_u32 s46, s46, s47")
    a(f"s_add_u32 s54, s46, {LF}"); a(f"s_add_u32 s56, s46, {LF + 128*1024}")
    ldup, ljoin = a.uid("L_p4_idle"), a.uid("L_p4_join")
    if "skipdup" in opt.flags:
        a(f"s_cmp_eq_u32 s{S_STU}, 0"); a(f"s_cbranch_scc1 {ldup}")
    def after4(i, free):
        if i == 5 and "biasloop" in opt.flags: load_b1()
        j = i if 5 <= i <= 8 and i != 7 else None
        if j is not None: free.remove(WREG + 8 * j); w2.read(a, j)
        if i == 7: free.remove(WREG + 8 * 7); w2.read(a, 7)
        if i in (7, 9, 11, 13, 15):
            j = (i - 7) // 2; free.remove(WREG + 8 * j); w2.read(a, j)
    phases.cfg.fake16 = 'fake45' in opt.flags
    gemm8(a, vq, 16, (54, 56), True, retries, (3, 7, 11, 15), RING_BLOCKS, lambda i: WREG + 8 * i, True, after4)
    stamp(a, 7)
    reduce8(a, w2, True)
    vq.wait(a, "bias")
    for j in range(4):
        a(f"v_lshlrev_b32 v{16+2*j}, 16, v{56+j}"); a(f"v_and_b32 v{17+2*j}, 0xffff0000, v{56+j}")
    for i in range(8): a(f"v_add_f32 v{ACC+i}, v{ACC+i}, v{16+i}")
    a("s_mov_b32 s46, 0xc0135761")
    a("s_mov_b32 s47, 0xbdd2d3e8")
    a("v_mov_b32 v24, s46")
    for i in range(8): a(f"v_mul_f32 v{16+i}, v{ACC+i}, v{ACC+i}")
    for i in range(8): a(f"v_fma_f32 v{16+i}, v{16+i}, s47, v24")
    for i in range(8): a(f"v_mul_f32 v{16+i}, v{16+i}, v{ACC+i}")
    for i in range(8): a(f"v_exp_f32 v{16+i}, v{16+i}")
    for i in range(8): a(f"v_add_f32 v{16+i}, 1.0, v{16+i}")
    for i in range(8): a(f"v_rcp_f32 v{16+i}, v{16+i}")
    for i in range(8): a(f"v_mul_f32 v{16+i}, v{16+i}, v{ACC+i}")
    for j in range(4): a(f"v_cvt_pk_bf16_f32 v{28+j}, v{16+2*j}, v{17+2*j}")
    a("v_min_u32 v28, 0xfffffffe, v28")
    l = a.uid("L_nostu")
    a(f"s_cmp_eq_u32 s{S_STU}, 0"); a(f"s_cbranch_scc1 {l}")
    a(f"buffer_store_dwordx4 v[28:31], v1, s[36:39], s{S_UFA} offen sc1")
    a.label(l)
    if "skipdup" in opt.flags:
        a(f"s_branch {ljoin}")
        a.label(ldup)
        a("s_waitcnt vmcnt(0)")
        for j in range(9):
            if j % 3 == 0 and j: a("s_waitcnt lgkmcnt(0)")
            w2.read(a, j)
        a("s_waitcnt lgkmcnt(0)")
        a.label(ljoin)
    if opt.exp != "w2late":
        w2.vq = None
        if "ubar" in opt.flags: a("s_barrier")
        for j in range(9, 14): w2.dma(a, j)

def phase5v2(a, retries, w2):
    s_db, s_sb = 26, 27
    SB, SO = 32, 40
    a("; ---- P5: out = h + (u w2 + b2)^T")
    a("s_and_b32 s46, s2, 7"); a("s_lshr_b32 s47, s2, 3")
    a("s_lshl_b32 s48, s46, 2"); a("s_lshr_b32 s49, s47, 3"); a(f"s_add_u32 s{s_sb}, s48, s49"); a(f"s_and_b32 s{s_db}, s47, 7")
    srd(a, SB, P_B2, 2048 * 2); srd(a, SO, P_OUT, 2048 * 512 * 2)
    vq = VMQ(); vq.issue("ustore")
    a(f"s_lshl_b32 s46, s{s_sb}, 6"); a("s_and_b32 s47, s3, 1"); a("s_lshl_b32 s47, s47, 5"); a("s_add_u32 s46, s46, s47")
    a("v_and_b32 v2, 31, v0"); a("v_add_u32 v57, s46, v2")
    def load_b2():
        a("v_lshlrev_b32 v2, 1, v57")
        a(f"buffer_load_ushort v63, v2, s[{SB}:{SB+3}], 0 offen"); vq.issue("b2")
    if opt.exp != "earlybias" and "biasloop" not in opt.flags: load_b2()
    a(f"s_mul_i32 s46, s{s_db}, {2*112*1024}"); a(f"s_mul_i32 s47, s3, {14*1024}"); a("s_add_u32 s46, s46, s47")
    a(f"s_add_u32 s54, s46, {UF}"); a(f"s_add_u32 s56, s46, {UF + 112*1024}")
    if "idleprobe" in opt.flags and "skipdup" in opt.flags:
        lq_ = a.uid("L_p5_busy")
        a(f"s_cmp_lg_u32 s{S_STU}, 0"); a(f"s_cbranch_scc1 {lq_}")
        if "idle1" in opt.flags:
            lw_ = a.uid("L_p5_w")
            a("s_cmp_lg_u32 s3, 7"); a(f"s_cbranch_scc1 {lw_}")
            probe(a, (54, 56), (1, 5, 9, 13), 8 if "idlesleep" in opt.flags else 0)
            a.label(lw_)
            a("s_barrier")
        else:
            probe(a, (54, 56), (1, 5, 9, 13))
        a.label(lq_)
    wblk = {j: WREG + 8 * j for j in range(9)}
    spare = [WREG + 8 * j for j in range(9, 16)]
    def rest_of_w2():
        if opt.exp != "w2late": return
        w2.vq = vq
        for j in range(9, 14): w2.dma(a, j)
    def after5(i, free):
        if i == 3 and "biasloop" in opt.flags: load_b2()
        if i <= 1: free += [spare.pop(0), spare.pop(0)]
        if i == 2: free.append(spare.pop(0))
        if i == 6:
            vq.wait(a, "w2_13")
            for j in (9, 10): wblk[j] = spare.pop(0); w2.read(a, j, wblk[j])
        if i == 7:
            for j in (11, 12): wblk[j] = free.pop(0); w2.read(a, j, wblk[j])
        if i == 8:
            wblk[13] = free.pop(0); a("s_waitcnt lgkmcnt(8)"); w2.read(a, 13, wblk[13]); a("s_waitcnt lgkmcnt(4)")
        if i == 11: a("s_waitcnt lgkmcnt(0)")
    gemm8(a, vq, 14, (54, 56), False, retries, (1, 5, 9, 13), RING_BLOCKS, lambda i: wblk[i], False, after5, rest_of_w2)
    phases.cfg.fake16 = False
    stamp(a, 9)
    reduce8(a, w2, False)
    vq.wait(a, "b2")
    a("v_lshlrev_b32 v56, 16, v63")
    for j in range(4):
        a(f"v_lshlrev_b32 v{20+2*j}, 16, v{HP+j}"); a(f"v_and_b32 v{21+2*j}, 0xffff0000, v{HP+j}")
    for i in range(8): a(f"v_add_f32 v{ACC+i}, v{ACC+i}, v56")
    for i in range(8): a(f"v_add_f32 v{ACC+i}, v{ACC+i}, v{20+i}")
    for j in range(4): a(f"v_cvt_pk_bf16_f32 v{28+j}, v{ACC+2*j}, v{ACC+2*j+1}")
    a("s_nop 1")
    a("v_permlane32_swap_b32 v28, v30"); a("v_permlane32_swap_b32 v29, v31")
    a("v_lshlrev_b32 v57, 10, v57"); a("v_lshrrev_b32 v2, 5, v0"); a("v_lshlrev_b32 v2, 4, v2"); a("v_add_u32 v57, v57, v2")
    a(f"s_lshl_b32 s46, s{s_db}, 7"); a("s_lshr_b32 s47, s3, 1"); a("s_lshl_b32 s47, s47, 5"); a("s_add_u32 s46, s46, s47")
    a(f"buffer_store_dwordx4 v[28:31], v57, s[{SO}:{SO+3}], s46 offen{opt.outflags}")

DOC = """; ---------------------------------------------------------------------------------------------------------------
;      Hand-off: counters in d_ws (zeroed by workgroup 0, announced through d_debug word 63), one per head group.
;      Under the loop: w1 fragments move into registers, the Wo slice into dead K/V space, hand-off markers are reset.
;  Hand-offs after P2 carry their own validity: the producer first resets its fragments to an all-ones marker (counted on a
; ---------------------------------------------------------------------------------------------------------------
"""

opt.outflags = ""
opt.p1stamps = False
opt.exp = None
opt.stamp_wave = 0
opt.flags = {'off', 'prio', 'dpoll', 'skipdup', 'ubar', 'middma_early', 'ackwait', 'idleprobe', 'idle1', 'b1sleep4', 'ackonly16', 'ackonly14', 'ostep'}
def build():
    del o_retries[:]
    phases.cfg.persist = True; phases.cfg.tags = True
    a = Asm()
    a.label(KNAME)
    end = "L_end"
    if opt.stamps: a("s_memrealtime s[74:75]")
    prologue(a, 256, end)
    if opt.stamps:
        for i in range(1, 16): a(f"s_mov_b32 s{STAMP0+i}, 0")
        a(f"s_mov_b32 s{STAMP0}, s74")
    if opt.diag == "pad100":
        a("s_memrealtime s[90:91]"); a("s_waitcnt lgkmcnt(0)")
    if "xearly" in opt.flags: p1_xloads(a, {})
    srd(a, SB_WS, P_WS, WS_SIZE); srd(a, 76, P_DBG, 256)
    a("v_mov_b32 v248, 252"); a("v_mov_b32 v247, 0")
    if opt.codepf:
        a("s_getpc_b64 s[62:63]")
        a.label("L_pcbase")
        if "codepf2" in opt.flags: a("s_mov_b64 s[66:67], s[62:63]")
        if "cpf_dedup" in opt.flags:
            lc = a.uid("L_cpf")
            a("s_cmp_lg_u32 s3, 6"); a(f"s_cbranch_scc1 {lc}")
            a("s_lshr_b32 s60, s2, 3"); a("s_lshl_b32 s60, s60, 11"); a("v_and_b32 v6, 15, v0"); a("v_lshlrev_b32 v6, 7, v6"); a("v_add_u32 v6, s60, v6")
            a("s_mov_b32 s61, L_codeend-L_pcbase"); a("v_min_u32 v6, s61, v6")
            a("global_load_dword v249, v6, s[62:63]")
            a.label(lc)
        else:
            a("s_lshl_b32 s60, s3, 13"); a("v_lshlrev_b32 v6, 7, v0"); a("v_add_u32 v6, s60, v6")
            a("s_mov_b32 s61, L_codeend-L_pcbase"); a("v_min_u32 v6, s61, v6")
            a("global_load_dword v249, v6, s[62:63]")
    lz = a.uid("L_zero")
    a("s_cmp_lg_u32 s2, 0"); a(f"s_cbranch_scc1 {lz}")
    a("s_cmp_lg_u32 s3, 7"); a(f"s_cbranch_scc1 {lz}")
    a("v_lshlrev_b32 v6, 8, v0"); a("v_mov_b32 v7, 0")
    a("v_cmp_gt_u32 vcc, 16, v0"); a("s_and_saveexec_b64 s[62:63], vcc")
    a(f"s_mov_b32 s60, {CNT}")
    a(f"buffer_store_dword v7, v6, s[{SB_WS}:{SB_WS+3}], s60 offen sc1")
    a("s_mov_b64 exec, s[62:63]")
    a.label(lz)
    map_addresses(a)
    phases.cfg.fake16 = 'fake1' in opt.flags
    phase1(a, {**({"after_dma": markers_p1} if opt.exp == "mk_p1" else {}), ("post_c0" if "xearly" in opt.flags else "post_x"): zero_flag_store, "pre_store": zero_flag_load, "no_clear": True, "xfirst": True, "wtouch": opt.touch, "late_issue": True, "x_issued": "xearly" in opt.flags, **({"cyc0": lambda a: (stamp(a, 10, force=True), stamp(a, 14, True, force=True)), "cyc1": lambda a: (stamp(a, 15, True, force=True), stamp(a, 11, force=True))} if "p1cyc" in opt.flags else {}), "pipe_ln": opt.exp == "pipeln", **({"st": (lambda a, i: stamp(a, i, force=True))} if opt.p1stamps else {})})
    phases.cfg.fake16 = False
    stamp(a, 1)
    l, lp = a.uid("L_zc"), a.uid("L_zp")
    a("s_cmp_lg_u32 s3, 0"); a(f"s_cbranch_scc1 {l}")
    a("s_mov_b32 s61, 0")
    a.label(lp)
    a("s_waitcnt vmcnt(0)")
    a("v_readfirstlane_b32 s64, v247"); a("s_add_u32 s61, s61, 1")
    a("s_cmp_lg_u32 s64, 0"); a(f"s_cbranch_scc1 {l}")
    a("buffer_load_dword v247, v248, s[76:79], 0 offen sc1")
    a("s_cmp_lt_u32 s61, 0x200000"); a(f"s_cbranch_scc1 {lp}")
    a.label(l)
    gp.arrive(a, 0, 27, 13)
    vq = VMQ(); pf = W1Pref()
    def dep2(a):
        pf.setup(a)
        if "w2t_pre" in opt.flags and opt.touch:
            lt_ = a.uid("L_w2t")
            a("s_cmp_eq_u32 s3, 0"); a(f"s_cbranch_scc1 {lt_}")
            a("buffer_load_dword v97, v96, s[32:35], 0 offen")
            a.label(lt_)
        if "codepf2" in opt.flags:
            a("s_lshl_b32 s60, s3, 13"); a("s_add_u32 s60, s60, L_att_code-L_pcbase"); a("v_lshlrev_b32 v6, 7, v0"); a("v_add_u32 v6, s60, v6")
            a("s_mov_b32 s61, L_p3_code-L_pcbase"); a("v_min_u32 v6, s61, v6")
            a("global_load_dword v125, v6, s[66:67]")
        if "preb1" in opt.flags:
            vq.issue("markers", markers(a))
            if opt.touch: a("buffer_load_dword v97, v96, s[32:35], 0 offen"); vq.issue("touch")
            for j in range(4):
                dma(a, pf.VD if j == 0 else 116 + j, 28, 60, (59, 0) if j == 0 else None, offset=j * 1024, pre="s_mov_b32 s60, 0" if j == 0 else None)
            vq.issue("w1_0", 4)
        a("s_and_b32 s65, s2, 7")
        gp.make_wait(0, 65, 32, 2)(a)
    phase2(a, {"dep": dep2, "vq": vq, "tile": pf.tile(vq),
               **({} if "p1cyc" in opt.flags else {"loop_start": lambda a: (a.label("L_att_code"), stamp(a, 10), stamp(a, 14, True)), "loop_end": lambda a: (stamp(a, 15, True), stamp(a, 11))})})
    stamp(a, 3)
    a.label("L_p3_code")
    late_check(a)
    retries = []
    w2 = W2Stage()
    phase3v2(a, w2)
    stamp(a, 6)
    phase4v2(a, retries, w2)
    stamp(a, 8)
    phase5v2(a, retries, w2)
    if opt.stamps:
        a("s_waitcnt vmcnt(0)")
        stamp(a, 12)
        ls = a.uid("L_st")
        a("s_lshl_b32 s61, s2, 3"); a("s_add_u32 s61, s61, s3"); a("s_lshl_b32 s61, s61, 6"); a("s_add_u32 s61, s61, 0xF00000"); a("v_mov_b32 v3, 0")
        for i in range(16):
            a(f"v_mov_b32 v2, s{STAMP0+i}")
            a(f"buffer_store_dword v2, v3, s[{SB_WS}:{SB_WS+3}], s61 offen offset:{4*i}")
        a(f"s_cmp_lg_u32 s2, {opt.stamp_wg}"); a(f"s_cbranch_scc1 {ls}"); a(f"s_cmp_lg_u32 s3, {opt.stamp_wave}"); a(f"s_cbranch_scc1 {ls}")
        for i in range(14):
            a(f"s_sub_u32 s60, s{STAMP0+i}, s74"); a(f"v_mov_b32 v2, s60"); a(f"v_mov_b32 v3, {4*i}")
            a("buffer_store_dword v2, v3, s[76:79], 0 offen")
        a.label(ls)
    if opt.diag == "pad100":
        a.label("L_dg"); a("s_memrealtime s[92:93]"); a("s_waitcnt lgkmcnt(0)"); a("s_sub_u32 s92, s92, s90"); a("s_cmp_lt_u32 s92, 10000"); a("s_cbranch_scc1 L_dg")
    a("s_endpgm")
    emit_retries(a, retries)
    emit_o_retries(a)
    a.label(end)
    a.label("L_codeend")
    a("s_endpgm")
    body = a.text()
    probs = check_hazards(body)
    for p in probs: print(p, file=sys.stderr)
    desc = f""".amdhsa_kernel {KNAME}
  .amdhsa_next_free_vgpr 256
  .amdhsa_next_free_sgpr 102
  .amdhsa_accum_offset 256
  .amdhsa_group_segment_fixed_size 0
  .amdhsa_kernarg_size 88
  .amdhsa_user_sgpr_count 2
  .amdhsa_user_sgpr_kernarg_segment_ptr 1
  .amdhsa_system_sgpr_workgroup_id_x 1
  .amdhsa_float_denorm_mode_32 3
.end_amdhsa_kernel
"""
    return (HEADER + "; @launch grid=(256,1,1) block=(512,1,1) lds=163840\n" + DOC
            + '.amdgcn_target "amdgcn-amd-amdhsa--gfx950"\n.text\n'
            + f".globl {KNAME}\n.p2align 8\n.type {KNAME},@function\n" + body
            + '.section .rodata,"a"\n.p2align 6\n' + desc)

if __name__ == "__main__":
    import argparse
    ap = argparse.ArgumentParser()
    ap.add_argument("-o", default=f"cdna_kernels/{NAME}.s")
    ap.add_argument("--stamps", action="store_true")
    ap.add_argument("--no-touch", action="store_true")
    ap.add_argument("--no-codepf", action="store_true")
    ap.add_argument("--diag", default=None)
    ap.add_argument("--outflags", default="")
    ap.add_argument("--p1stamps", action="store_true")
    ap.add_argument("--exp", default=None)
    ap.add_argument("--endonly", action="store_true")
    ap.add_argument("--flags", default="off,prio,dpoll,skipdup,ubar,middma_early,ackwait,idleprobe,idle1,b1sleep4,ackonly16,ackonly14,ostep")
    ap.add_argument("--stamp-wg", type=int, default=0)
    ap.add_argument("--stamp-wave", type=int, default=0)
    args = ap.parse_args()
    opt.stamps = args.stamps; opt.touch = not args.no_touch; opt.codepf = not args.no_codepf; opt.diag = args.diag
    opt.endonly = args.endonly; opt.flags = set(args.flags.split(','))
    opt.stamp_wg = args.stamp_wg; opt.stamp_wave = args.stamp_wave
    opt.p1stamps = args.p1stamps; opt.exp = args.exp; phases.cfg.exp = args.exp; phases.cfg.prio = 'prio' in opt.flags; phases.cfg.kvstaged = 'kvstaged' in opt.flags; phases.cfg.ln4 = 'ln4' in opt.flags; phases.cfg.m12 = 'm12' in opt.flags or 'preb1' in opt.flags
    opt.outflags = (" " + args.outflags) if args.outflags else ""
    open(args.o, "w").write(build())
    print("wrote", args.o)
```

```python
from asmlib import *

QF, KF, VF, OF, HF, LF, UF, XCH = 0x000000, 0x200000, 0x400000, 0x600000, 0x800000, 0xA00000, 0xC00000, 0xE00000
WS_SIZE = 0x1000000
P_X, P_WQKV, P_WO, P_W1, P_B1, P_W2, P_B2, P_OUT, P_DBG, P_WS = 4, 6, 8, 12, 14, 16, 18, 20, 22, 24
S_WG, S_WAVE = 2, 3
class Cfg:
    persist = False
    stamps = False
    tags = False
cfg = Cfg()
def SC(): return " sc1" if cfg.persist else ""
CNT = 0xE40000
V_HP = 200

def srd(a, dst, ptr, nbytes):
    a(f"s_mov_b32 s{dst}, s{ptr}")
    a(f"s_mov_b32 s{dst+1}, s{ptr+1}")
    a(f"s_mov_b32 s{dst+2}, {hex(nbytes)}")
    a(f"s_mov_b32 s{dst+3}, 0x20000")

def prologue(a, nwg, end_label):
    a(f"s_cmp_ge_u32 s2, {nwg}")
    a(f"s_cbranch_scc1 {end_label}")
    a("s_load_dwordx16 s[4:19], s[0:1], 0")
    a("s_load_dwordx4 s[20:23], s[0:1], 64")
    a("s_load_dwordx2 s[24:25], s[0:1], 80")
    a("v_lshrrev_b32 v1, 6, v0")
    a("v_and_b32 v0, 63, v0")
    a("v_readfirstlane_b32 s3, v1")
    a("s_waitcnt lgkmcnt(0)")

def dma(a, voff, srd_, soff, m0, offset=0, flags="", pre=None):
    if isinstance(m0, tuple):
        if m0[1] == 0: a(f"s_mov_b32 m0, s{m0[0]}")
        else: a(f"s_add_u32 m0, s{m0[0]}, {m0[1]}")
    elif m0 is not None:
        a(f"s_mov_b32 m0, {m0}")
    if pre: a(pre)
    elif m0 is not None: a("s_nop 0")
    o = f" offset:{offset}" if offset else ""
    so = f"s{soff}" if soff is not None else "0"
    a(f"buffer_load_dwordx4 v{voff}, s[{srd_}:{srd_+3}], {so} offen{o}{flags} lds")

def tr_lane_addr(a, dst, t0, t1, rowsel, colunit_sreg=None, colunit_imm=0):
    a(f"v_lshrrev_b32 v{t0}, 5, v0")
    a(f"v_lshlrev_b32 v{t0}, {3 if rowsel=='nat' else 2}, v{t0}")
    a(f"v_bfe_u32 v{t1}, v0, 2, 2")
    a(f"v_add_u32 v{t0}, v{t0}, v{t1}")
    a(f"v_lshlrev_b32 v{dst}, 7, v{t0}")
    a(f"v_bfe_u32 v{t0}, v0, 4, 1")
    a(f"v_lshlrev_b32 v{t0}, 1, v{t0}")
    a(f"v_bfe_u32 v{t1}, v0, 1, 1")
    a(f"v_add_u32 v{t0}, v{t0}, v{t1}")
    if colunit_sreg is not None: a(f"v_add_u32 v{t0}, s{colunit_sreg}, v{t0}")
    elif colunit_imm: a(f"v_add_u32 v{t0}, {colunit_imm}, v{t0}")
    a(f"v_bfe_u32 v{t1}, v0, 3, 1")
    a(f"v_lshlrev_b32 v{t1}, 2, v{t1}")
    a(f"v_xor_b32 v{t0}, v{t0}, v{t1}")
    a(f"v_lshlrev_b32 v{t0}, 4, v{t0}")
    a(f"v_add_u32 v{dst}, v{dst}, v{t0}")
    a(f"v_and_b32 v{t0}, 1, v0")
    a(f"v_lshlrev_b32 v{t0}, 3, v{t0}")
    a(f"v_add_u32 v{dst}, v{dst}, v{t0}")

def dma_row_voff(a, dst, t0, t1, row_stride):
    a(f"v_lshrrev_b32 v{t0}, 3, v0")
    a(f"s_mov_b32 s65, {row_stride}")
    a(f"v_mul_lo_u32 v{dst}, v{t0}, s65")
    a(f"v_bfe_u32 v{t0}, v0, 4, 1")
    a(f"v_lshlrev_b32 v{t0}, 2, v{t0}")
    a(f"v_and_b32 v{t1}, 7, v0")
    a(f"v_xor_b32 v{t0}, v{t0}, v{t1}")
    a(f"v_lshlrev_b32 v{t0}, 4, v{t0}")
    a(f"v_add_u32 v{dst}, v{dst}, v{t0}")

def mfma(a, d, A, B, c=None):
    if getattr(cfg, "fake16", False) and c is None:
        for q in range(2): a(f"v_mfma_f32_16x16x32_bf16 {vr(d+8*q,4)}, {vr(A,4)}, {vr(B,4)}, {vr(d+8*q,4)}")
        return
    cs = vr(d, 16) if c is None else c
    a(f"v_mfma_f32_32x32x16_bf16 {vr(d,16)}, {vr(A,4)}, {vr(B,4)}, {cs}")

def p1_xloads(a, hooks):
    s_tb, s_g, s_tt, s_p = 26, 27, 44, 45
    SX, XR = 28, 8
    a("s_and_b32 s46, s2, 7"); a("s_lshr_b32 s47, s2, 3")
    a("s_lshr_b32 s48, s46, 1"); a("s_lshl_b32 s48, s48, 3"); a("s_and_b32 s49, s47, 7"); a(f"s_add_u32 s{s_tb}, s48, s49")
    srd(a, SX, P_X, 2048 * 512 * 2)
    a("v_lshrrev_b32 v1, 3, v0"); a("s_lshl_b32 s50, s3, 3"); a("v_add_u32 v2, s50, v1")
    a(f"s_lshl_b32 s51, s{s_tb}, 6"); a("v_add_u32 v3, s51, v2"); a("v_lshlrev_b32 v3, 10, v3")
    a("v_and_b32 v4, 7, v0"); a("v_lshlrev_b32 v5, 4, v4"); a("v_add_u32 v3, v3, v5")
    if hooks.get("marks_first"): hooks["after_dma"](a)
    for c in range(8):
        a(f"buffer_load_dwordx4 {vr(XR+4*c,4)}, v3, s[{SX}:{SX+3}], 0 offen offset:{c*128}")
    a("s_and_b32 s48, s46, 1"); a("s_lshl_b32 s48, s48, 2"); a("s_lshr_b32 s49, s47, 3"); a(f"s_add_u32 s{s_g}, s48, s49")
    a(f"s_and_b32 s{s_tt}, s3, 1"); a(f"s_bfe_u32 s{s_p}, s3, 0x10001")

def phase1(a, hooks=None):
    hooks = hooks or {}
    s_tb, s_g, s_tt, s_p = 26, 27, 44, 45
    SX, SW, SWS = 28, 32, 36
    XR, VSUM, VSQ, VT, VXW, VWD, VXA, VWA, ACC, XFR, WQ, WK = 8, 40, 41, 44, 46, 47, 48, 56, 64, 96, 104, 112
    if not hooks.get("x_issued"): p1_xloads(a, hooks)
    srd(a, SW, P_WQKV, 512 * 1536 * 2); srd(a, SWS, P_WS, WS_SIZE)
    if hooks.get("xfirst"): a("s_barrier")
    dma_row_voff(a, VWD, 5, 6, 3072)
    a("s_mul_i32 s46, s3, 24576"); a(f"s_lshl_b32 s47, s{s_g}, 7"); a("s_add_u32 s46, s46, s47")
    a(f"v_add_u32 v{VWD}, s46, v{VWD}")
    a("s_lshl_b32 s50, s3, 10"); a("s_add_u32 s50, s50, 65536")
    vq0 = VMQ(); vq0.issue('x', 8)
    def issue_chunk(ch, vq):
        slot = ch & 3
        for seg in range(3):
            dma(a, VWD, SW, 51, (50, slot * 24576 + seg * 8192), pre=f"s_mov_b32 s51, {ch*64*3072 + seg*1024}")
        vq.issue(f"c{ch}", 3)
    late = hooks.get("late_issue")
    for ch in range(2 if late else 4): issue_chunk(ch, vq0)
    def wtouch():
        a("s_lshr_b32 s46, s2, 3"); a("s_and_b32 s46, s46, 7"); a("s_lshl_b32 s46, s46, 5"); a("s_and_b32 s47, s3, 1"); a("s_lshl_b32 s47, s47, 4")
        a("s_add_u32 s46, s46, s47"); a("s_add_u32 s46, s46, 256")
        a("v_and_b32 v6, 15, v0"); a("v_add_u32 v6, s46, v6"); a("s_movk_i32 s47, 3072"); a("v_mul_lo_u32 v6, v6, s47")
        a("s_lshr_b32 s46, s3, 1"); a("s_min_u32 s46, s46, 2"); a("s_lshl_b32 s46, s46, 10"); a(f"s_lshl_b32 s47, s{s_g}, 7"); a("s_add_u32 s46, s46, s47")
        a("v_cmp_gt_u32 vcc, 16, v0"); a("s_and_saveexec_b64 s[52:53], vcc")
        a(f"buffer_load_dword v125, v6, s[{SW}:{SW+3}], s46 offen")
        a("s_mov_b64 exec, s[52:53]")
        vq0.issue("touch", 1)
    if hooks.get("wtouch") and not late: wtouch()
    if "after_dma" in hooks and not late: vq0.issue("extra", hooks["after_dma"](a))
    if not hooks.get('no_clear'):
        a("v_mov_b32 v56, -1"); a("v_mov_b32 v57, -1"); a("v_mov_b32 v58, -1"); a("v_mov_b32 v59, -1")
        a("v_lshlrev_b32 v6, 4, v0"); a("s_lshl_b32 s46, s2, 9"); a(f"s_add_u32 s46, s46, {XCH}")
        lskip = a.uid("L_p1_noclr")
        a("s_cmp_lg_u32 s3, 0"); a(f"s_cbranch_scc1 {lskip}")
        a("v_cmp_gt_u32 vcc, 32, v0"); a("s_and_saveexec_b64 s[52:53], vcc")
        a(f"buffer_store_dwordx4 v[56:59], v6, s[{SWS}:{SWS+3}], s46 offen{SC()}")
        a("s_mov_b64 exec, s[52:53]")
        a.label(lskip)
    a("v_and_b32 v5, 15, v2"); a("v_xor_b32 v5, v5, v4"); a("v_lshlrev_b32 v5, 4, v5")
    a(f"v_lshlrev_b32 v{VXW}, 10, v2"); a(f"v_add_u32 v{VXW}, v{VXW}, v5"); a(f"v_xor_b32 v43, 128, v{VXW}")
    a("v_and_b32 v1, 31, v0"); a(f"s_lshl_b32 s46, s{s_tt}, 5"); a("v_add_u32 v1, s46, v1")
    a("v_and_b32 v2, 15, v1"); a("v_lshlrev_b32 v1, 10, v1"); a("v_lshrrev_b32 v3, 5, v0")
    for b in range(8):
        a(f"v_add_u32 v4, {2*b}, v3"); a("v_xor_b32 v4, v4, v2"); a("v_lshlrev_b32 v4, 4, v4"); a(f"v_add_u32 v{VXA+b}, v1, v4")
    a(f"s_lshl_b32 s46, s{s_p}, 2")
    tr_lane_addr(a, VWA, 1, 2, 'nat', colunit_sreg=46)
    a(f"v_add_u32 v{VWA}, 0x10000, v{VWA}"); a(f"v_add_u32 v{VWA+1}, 49152, v{VWA}")
    vq0.wait(a, "x")
    if "post_x" in hooks: hooks["post_x"](a)
    if "st" in hooks: hooks["st"](a, 4)
    a(f"v_mov_b32 v{VSUM}, 0"); a(f"v_mov_b32 v{VSQ}, 0"); a("v_mov_b32 v42, 0x3f803f80")
    if getattr(cfg, "ln4", False):
        a("v_mov_b32 v122, 0"); a("v_mov_b32 v123, 0")
        for i in range(0, 32, 2):
            a(f"v_dot2c_f32_bf16 v{VSUM}, v{XR+i}, v42"); a(f"v_dot2c_f32_bf16 v{VSQ}, v{XR+i}, v{XR+i}")
            a(f"v_dot2c_f32_bf16 v122, v{XR+i+1}, v42"); a(f"v_dot2c_f32_bf16 v123, v{XR+i+1}, v{XR+i+1}")
        a("s_nop 2")
        a(f"v_add_f32 v{VSUM}, v{VSUM}, v122"); a(f"v_add_f32 v{VSQ}, v{VSQ}, v123")
    else:
        for i in range(32):
            a(f"v_dot2c_f32_bf16 v{VSUM}, v{XR+i}, v42")
            a(f"v_dot2c_f32_bf16 v{VSQ}, v{XR+i}, v{XR+i}")
    a("s_nop 2")
    for mod in ("quad_perm:[1,0,3,2]", "quad_perm:[2,3,0,1]", "row_half_mirror"):
        a(f"v_add_f32_dpp v{VSUM}, v{VSUM}, v{VSUM} {mod} row_mask:0xf bank_mask:0xf")
        a(f"v_add_f32_dpp v{VSQ}, v{VSQ}, v{VSQ} {mod} row_mask:0xf bank_mask:0xf")
        a("s_nop 0")
    a(f"v_mul_f32 v{VSUM}, {1/512!r}, v{VSUM}".replace("0.001953125", "0x3b000000"))
    a(f"v_mul_f32 v{VSQ}, 0x3b000000, v{VSQ}")
    a(f"v_fma_f32 v{VSQ}, -v{VSUM}, v{VSUM}, v{VSQ}")
    a(f"v_max_f32 v{VSQ}, 0, v{VSQ}")
    a(f"v_add_f32 v{VSQ}, 0x3727c5ac, v{VSQ}")
    a(f"v_rsq_f32 v60, v{VSQ}")
    a("s_nop 0")
    a(f"v_mul_f32 v62, v{VSUM}, v60"); a("v_sub_f32 v62, 0, v62")
    def normalise(c):
        if getattr(cfg, "ln4", False):
            T4 = [104, 106, 108, 110]
            for n_, i in enumerate(range(4 * c, 4 * c + 4)): a(f"v_lshlrev_b32 v{T4[n_]}, 16, v{XR+i}")
            for n_, i in enumerate(range(4 * c, 4 * c + 4)): a(f"v_and_b32 v{T4[n_]+1}, 0xffff0000, v{XR+i}")
            for n_ in range(4): a(f"v_pk_fma_f32 {vr(T4[n_],2)}, {vr(T4[n_],2)}, v[60:61], v[62:63] op_sel_hi:[1,0,0]")
            for n_, i in enumerate(range(4 * c, 4 * c + 4)): a(f"v_cvt_pk_bf16_f32 v{XR+i}, v{T4[n_]}, v{T4[n_]+1}")
        else:
          for i in range(4 * c, 4 * c + 4):
            t = VT if i % 2 == 0 else 120
            a(f"v_lshlrev_b32 v{t}, 16, v{XR+i}")
            a(f"v_and_b32 v{t+1}, 0xffff0000, v{XR+i}")
            a(f"v_pk_fma_f32 {vr(t,2)}, {vr(t,2)}, v[60:61], v[62:63] op_sel_hi:[1,0,0]")
            a(f"v_cvt_pk_bf16_f32 v{XR+i}, v{t}, v{t+1}")
        a(f"ds_write_b128 v{VXW if c % 2 == 0 else 43}, {vr(XR+4*c,4)} offset:{(c>>1)*256}")
    pipe_ln = bool(hooks.get("pipe_ln"))
    if pipe_ln:
        issue_chunk(2, vq0)
        normalise(0)
        issue_chunk(3, vq0)
        if hooks.get("wtouch"): wtouch()
    else:
        for c in range(8):
            if late and c == 1: issue_chunk(2, vq0)
            if late and c == 3: issue_chunk(3, vq0)
            if late and c == 6 and hooks.get("wtouch"): wtouch()
            normalise(c)
    lv, lend = a.uid("L_p1_v"), a.uid("L_p1_end")
    a("s_cmp_ge_u32 s3, 4"); a(f"s_cbranch_scc1 {lv}")
    def gemm(isv):
        n = 16 if isv else 32
        for i in range(n): a(f"v_mov_b32 v{ACC+i}, 0")
        D = 2
        XF3, WQ3, WK3 = 128, 140, 152
        def reads(ksg):
            ch, k = ksg >> 2, ksg & 3
            slot = ch & 3; base = VWA + (slot >> 1); off = (slot & 1) * 24576 + k * 2048
            b = ksg % 3
            a(f"ds_read_b128 {vr(XF3+4*b,4)}, v{VXA + (ksg & 7)} offset:{(ksg >> 3) * 256}")
            segs = (2,) if isv else (0, 1)
            for n_, seg in enumerate(segs):
                r = (WQ3 if n_ == 0 else WK3) + 4 * b
                a(f"ds_read_b64_tr_b16 {vr(r,2)}, v{base} offset:{off + seg*8192}")
                a(f"ds_read_b64_tr_b16 {vr(r+2,2)}, v{base} offset:{off + seg*8192 + 512}")
        nrd = 3 if isv else 5
        vq = VMQ(); vq.q = list(vq0.q)
        vq.wait(a, "c0", " lgkmcnt(0)"); a("s_barrier")
        if "post_c0" in hooks: hooks["post_c0"](a)
        if "st" in hooks: hooks["st"](a, 5)
        if "cyc0" in hooks: hooks["cyc0"](a)
        lq = []
        def lwait(tag):
            if tag in lq:
                last = len(lq) - 1 - lq[::-1].index(tag)
                n_ = len(lq) - 1 - last
                assert n_ <= 15
                a(f"s_waitcnt lgkmcnt({n_})"); del lq[:last + 1]
        def rd(n_): reads(n_); lq.extend([f"r{n_}"] * nrd)
        rd(0); rd(1)
        for ksg in range(32):
            ch, k = ksg >> 2, ksg & 3
            if k == 2 and ch < 7:
                if pipe_ln: lwait(f"x{ch+1}")
                if getattr(cfg, "exp", None) == "p1nowait": vq.q = []
                vq.wait(a, f"c{ch+1}")
                if getattr(cfg, "exp", None) != "p1nobar": a("s_barrier")
                if "st" in hooks and getattr(cfg, "exp", None) == "chunks": hooks["st"](a, [6, 7, 8, 9, 10, 11, 12][ch])
                elif "st" in hooks and ch == 3: hooks["st"](a, 6)
                elif "st" in hooks and ch == 6: hooks["st"](a, 7)
                if 1 <= ch <= 4: issue_chunk(ch + 3, vq)
                if late and ch == 5 and "after_dma" in hooks and not hooks.get("marks_first"): vq.issue("extra", hooks["after_dma"](a))
            if ksg + D < 32: rd(ksg + D)
            lwait(f"r{ksg}")
            if pipe_ln and k == 0 and ch < 7:
                pend = ch + 1
            else: pend = None
            b = ksg % 3
            if isv:
                mfma(a, ACC, XF3 + 4 * b, WQ3 + 4 * b)
            else:
                mfma(a, ACC, WQ3 + 4 * b, XF3 + 4 * b)
                mfma(a, ACC + 16, WK3 + 4 * b, XF3 + 4 * b)
            if pend is not None:
                normalise(pend); lq.append(f"x{pend}")
        if "cyc1" in hooks: hooks["cyc1"](a)
    gemm(False)
    a(f"s_lshl_b32 s46, s{s_g}, 2"); a(f"s_lshl_b32 s47, s{s_p}, 1"); a("s_add_u32 s46, s46, s47")
    a(f"s_lshl_b32 s47, s{s_tb}, 1"); a(f"s_add_u32 s47, s47, s{s_tt}")
    a("s_lshl_b32 s48, s46, 16"); a("s_lshl_b32 s49, s47, 10"); a("s_add_u32 s48, s48, s49")
    a("v_lshlrev_b32 v1, 4, v0")
    a("s_add_u32 s51, s48, 0x10000")
    a(f"s_add_u32 s52, s48, {KF}"); a(f"s_add_u32 s53, s51, {KF}")
    a("s_mov_b32 s54, 0x3eb8aa3b")
    a("s_nop 7")
    for i in range(16): a(f"v_mul_f32 v{ACC+i}, s54, v{ACC+i}")
    for i in range(8): a(f"v_cvt_pk_bf16_f32 v{XR+i}, v{ACC+2*i}, v{ACC+2*i+1}")
    for i in range(8): a(f"v_cvt_pk_bf16_f32 v{XR+8+i}, v{ACC+16+2*i}, v{ACC+16+2*i+1}")
    if "pre_store" in hooks: hooks["pre_store"](a)
    for n_, so in enumerate((48, 51, 52, 53)):
        a(f"buffer_store_dwordx4 {vr(XR+4*n_,4)}, v1, s[{SWS}:{SWS+3}], s{so} offen{SC()}")
    a(f"s_branch {lend}")
    a.label(lv)
    gemm(True)
    a(f"s_lshl_b32 s46, s{s_g}, 2"); a(f"s_lshl_b32 s47, s{s_p}, 1"); a("s_add_u32 s46, s46, s47")
    a(f"s_lshl_b32 s47, s{s_tb}, 1"); a(f"s_add_u32 s47, s47, s{s_tt}")
    a("s_lshl_b32 s48, s46, 16"); a("s_lshl_b32 s49, s47, 10"); a("s_add_u32 s48, s48, s49"); a(f"s_add_u32 s48, s48, {VF}")
    a("v_bfe_u32 v1, v0, 4, 1"); a("v_lshlrev_b32 v1, 16, v1"); a("v_lshrrev_b32 v2, 5, v0"); a("v_lshlrev_b32 v2, 8, v2")
    a("v_add_u32 v1, v1, v2"); a("v_and_b32 v2, 15, v0"); a("v_lshlrev_b32 v2, 4, v2"); a("v_add_u32 v1, v1, v2")
    a("s_nop 7")
    for i in range(8): a(f"v_cvt_pk_bf16_f32 v{XR+i}, v{ACC+2*i}, v{ACC+2*i+1}")
    if "pre_store" in hooks: hooks["pre_store"](a)
    a(f"buffer_store_dwordx4 {vr(XR,4)}, v1, s[{SWS}:{SWS+3}], s48 offen{SC()}")
    a(f"buffer_store_dwordx4 {vr(XR+4,4)}, v1, s[{SWS}:{SWS+3}], s48 offen offset:512{SC()}")
    a.label(lend)
P1_LDS = 163840

P2_LDS = 131072
class Att:
    Q, KFR, VFR, SA, SB, P, O, VK, VV = 4, 8, 16, 32, 48, 64, 72, 88, 89
def phase2(a, hooks=None):
    hooks = hooks or {}
    s_head, s_qb = 26, 27
    SWS = 36
    Q, KFR, VFR, SA, SB, P, O, VK, VV = Att.Q, Att.KFR, Att.VFR, Att.SA, Att.SB, Att.P, Att.O, Att.VK, Att.VV
    MASK = "s[56:57]"
    a("; ---- P2: attention")
    a("s_and_b32 s46, s2, 7"); a("s_lshr_b32 s47, s2, 3")
    a("s_lshl_b32 s48, s46, 2"); a("s_lshr_b32 s49, s47, 3"); a(f"s_add_u32 s{s_head}, s48, s49"); a(f"s_and_b32 s{s_qb}, s47, 7")
    srd(a, SWS, P_WS, WS_SIZE)
    a("v_lshlrev_b32 v1, 4, v0")
    a(f"s_lshl_b32 s46, s{s_head}, 16")
    a(f"s_lshl_b32 s47, s{s_qb}, 3"); a("s_add_u32 s47, s47, s3"); a("s_lshl_b32 s47, s47, 10"); a("s_add_u32 s47, s47, s46")
    a("s_lshl_b32 s48, s3, 11")
    a("s_add_u32 s49, s46, s48")
    a("s_mov_b32 s56, 0x0000ffff"); a("s_mov_b32 s57, 0x0000ffff")
    a("v_and_b32 v2, 27, v0"); a("v_cmp_eq_u32 vcc, 16, v2"); a("v_mov_b32 v3, 0x3f803f80"); a("v_mov_b32 v2, 0")
    a("v_cndmask_b32 v2, v2, v3, vcc")
    for i in range(16): a(f"v_mov_b32 v{VFR+i}, v2")
    a("v_and_b32 v2, 15, v0"); a("v_lshlrev_b32 v2, 4, v2"); a("v_lshrrev_b32 v3, 5, v0"); a("v_lshlrev_b32 v3, 8, v3"); a("v_add_u32 v91, v2, v3")
    a("v_add_u32 v91, 0x10000, v91")
    if "dep" in hooks: hooks["dep"](a)
    vq = hooks.get("vq") or VMQ()
    a(f"buffer_load_dwordx4 {vr(Q,4)}, v1, s[{SWS}:{SWS+3}], s47 offen{SC()}"); vq.issue("q")
    def kv_stage(st):
        vq.issue(f"kv{st}", 4)
        dma(a, 1, SWS, 50, (48, st * 16384), flags=SC(), pre=f"s_add_u32 s50, s49, {KF + st*16384}"); dma(a, 1, SWS, 50, None, offset=1024, flags=SC())
        dma(a, 1, SWS, 50, (48, 65536 + st * 16384), flags=SC(), pre=f"s_add_u32 s50, s49, {VF + st*16384}"); dma(a, 1, SWS, 50, None, offset=1024, flags=SC())
    staged = bool(getattr(cfg, "kvstaged", False))
    for st in range(1 if staged else 4): kv_stage(st)
    vq.wait(a, "kv0"); a("s_barrier")
    if "loop_start" in hooks: hooks["loop_start"](a)
    def vread(dst, off):
        a(f"s_mov_b64 exec, {MASK}")
        a(f"ds_read_b128 {vr(dst,4)}, v{VV} offset:{off}"); a(f"ds_read_b128 {vr(dst+4,4)}, v{VV} offset:{off+512}")
        a("s_mov_b64 exec, -1")
    def tile(t, S, SN, par, koff, voff, C):
        e = lambda i: a(f"v_exp_f32 v{S+i}, v{S+i}")
        c = lambda i: a(f"v_cvt_pk_bf16_f32 v{P+i}, v{S+2*i}, v{S+2*i+1}")
        e(0); e(1)
        mfma(a, O, VFR + 8 * (par ^ 1) + 4, P + 4)
        vread(VFR + 8 * (par ^ 1), voff)
        a(f"ds_read_b128 {vr(KFR+4*par,4)}, v{VK} offset:{koff}")
        e(2); e(3); e(4); e(5)
        a("s_waitcnt lgkmcnt(3)")
        mfma(a, SN, KFR + 4 * (par ^ 1), Q, C)
        if getattr(cfg, "prio", False): a("s_setprio 1")
        e(6); e(7); c(0); c(1); c(2); c(3); e(8); e(9)
        mfma(a, O, VFR + 8 * par, P)
        if getattr(cfg, "prio", False): a("s_setprio 0")
        for i in range(10, 16): e(i)
        c(4); c(5); c(6); c(7)
    def start(C):
        a(f"v_mov_b32 v{VK}, v1"); a(f"v_mov_b32 v{VV}, v91")
        a(f"ds_read_b128 {vr(KFR,4)}, v{VK}")
        vread(VFR, 0)
        a(f"ds_read_b128 {vr(KFR+4,4)}, v{VK} offset:1024")
        for i in range(16): a(f"v_mov_b32 v{O+i}, 0")
        for i in range(4): a(f"v_mov_b32 v{P+4+i}, 0")
        a(f"s_mov_b64 exec, {MASK}")
        for i in range(4): a(f"v_mov_b32 v{VFR+12+i}, 0")
        a("s_mov_b64 exec, -1")
        a("s_waitcnt lgkmcnt(3)")
        mfma(a, SA, KFR, Q, C)
        a("s_nop 7"); a("s_nop 3")
    def finish():
        a("s_nop 1")
        mfma(a, O, VFR + 8 + 4, P + 4)
        a("s_waitcnt lgkmcnt(0)")
        a("s_nop 7"); a("s_nop 3")
    start("0")
    if "looped" in hooks:
        hooks["looped"](a, tile, SA, SB, VK, VV)
    else:
        for t in range(64):
            if t in ((12, 44) if getattr(cfg, "m12", False) else (12, 28, 44)):
                if t == (12 if getattr(cfg, "m12", False) else 28): vq.wait(a, "markers")
                if t == 12 and getattr(cfg, "m12", False): vq.wait(a, "kv3")
                vq.wait(a, {12: "kv1", 28: "kv2", 44: "kv3"}[t]); a("s_barrier")
            if staged and t in (0, 1, 2): kv_stage(t + 1)
            if "tile" in hooks: hooks["tile"](a, t)
            if t == 48:
                pass
            S, SN = (SA, SB) if t % 2 == 0 else (SB, SA)
            tile(t, S, SN, t & 1, min((t + 2), 63) * 1024, min(t + 1, 63) * 1024, "0")
    finish()
    if "loop_end" in hooks: hooks["loop_end"](a)
    ldone, lmax, lloop = a.uid("L_p2_done"), a.uid("L_p2_maxl"), a.uid("L_p2_loop")
    a("v_mov_b32 v2, 0")
    for i in range(8): a(f"v_fmac_f32 v2, 0, v{O+i}")
    a(f"v_cmp_u_f32 s[58:59], v2, v2")
    a("s_mov_b32 s62, 0x5d800000")
    a(f"v_cmp_nge_f32 s[60:61], s62, v{O+8}")
    a("s_mov_b32 s62, 0x21800000")
    a(f"v_cmp_nle_f32 s[64:65], s62, v{O+8}")
    a("s_nop 3")
    a("s_or_b64 s[58:59], s[58:59], s[60:61]"); a("s_or_b64 s[58:59], s[58:59], s[64:65]")
    a("s_mov_b32 s55, 0")
    defer = hooks.get("defer")
    lrare = a.uid("L_p2_rare")
    if defer is None:
        a("s_cmp_eq_u64 s[58:59], 0"); a(f"s_cbranch_scc1 {ldone}")
    else:
        a("s_cmp_eq_u64 s[58:59], 0"); a(f"s_cbranch_scc0 {lrare}")
    def rare(a=a):
        a("s_mov_b32 s55, 1")
        CN = 96
        a(f"s_lshl_b32 s46, s{s_head}, 16"); a(f"s_add_u32 s47, s46, {KF}"); a(f"s_add_u32 s48, s46, {VF}")
        a("v_mov_b32 v2, 0xff800000"); a("s_mov_b32 s54, 0")
        a.label(lmax)
        a("s_add_u32 s49, s47, s54")
        a(f"buffer_load_dwordx4 {vr(KFR,4)}, v1, s[{SWS}:{SWS+3}], s49 offen{SC()}")
        a("s_waitcnt vmcnt(0)")
        mfma(a, SA, KFR, Q, "0")
        a("s_nop 7"); a("s_nop 3")
        for i in range(8): a(f"v_max3_f32 v2, v2, v{SA+2*i}, v{SA+2*i+1}")
        a("s_add_u32 s54, s54, 1024"); a("s_cmp_lt_u32 s54, 0x10000"); a(f"s_cbranch_scc1 {lmax}")
        a("v_mov_b32 v3, v2"); a("s_nop 1")
        a("v_permlane32_swap_b32 v2, v3"); a("s_nop 1")
        a("v_max_f32 v2, v2, v3"); a("v_sub_f32 v2, 0, v2")
        for i in range(16): a(f"v_mov_b32 v{CN+i}, v2")
        for i in range(16): a(f"v_mov_b32 v{O+i}, 0")
        a(f"v_subrev_u32 v{VV}, 0x10000, v91")
        a("s_mov_b32 s54, 0")
        a.label(lloop)
        a("s_add_u32 s49, s47, s54"); a("s_add_u32 s50, s48, s54")
        a(f"buffer_load_dwordx4 {vr(KFR,4)}, v1, s[{SWS}:{SWS+3}], s49 offen{SC()}")
        a(f"s_mov_b64 exec, {MASK}")
        a(f"buffer_load_dwordx4 {vr(VFR,4)}, v{VV}, s[{SWS}:{SWS+3}], s50 offen{SC()}")
        a(f"buffer_load_dwordx4 {vr(VFR+4,4)}, v{VV}, s[{SWS}:{SWS+3}], s50 offen offset:512{SC()}")
        a("s_mov_b64 exec, -1")
        a("s_waitcnt vmcnt(0)")
        mfma(a, SA, KFR, Q, vr(CN, 16))
        a("s_nop 7"); a("s_nop 3")
        for i in range(16): a(f"v_exp_f32 v{SA+i}, v{SA+i}")
        a("s_nop 0")
        for i in range(8): a(f"v_cvt_pk_bf16_f32 v{P+i}, v{SA+2*i}, v{SA+2*i+1}")
        a("s_nop 1")
        mfma(a, O, VFR, P); mfma(a, O, VFR + 4, P + 4)
        a("s_add_u32 s54, s54, 1024"); a("s_cmp_lt_u32 s54, 0x10000"); a(f"s_cbranch_scc1 {lloop}")
        a("s_nop 7"); a("s_nop 7")
    if defer is None: rare()
    else:
        def out_of_line():
            a.label(lrare); rare(); a(f"s_branch {ldone}")
        defer.append(out_of_line)
    a.label(ldone)
    a(f"v_rcp_f32 v2, v{O+8}"); a("s_nop 0")
    for i in range(8): a(f"v_mul_f32 v{O+i}, v{O+i}, v2")
    for i in range(4): a(f"v_cvt_pk_bf16_f32 v{P+i}, v{O+2*i}, v{O+2*i+1}")
    if cfg.tags: a(f"v_min_u32 v{P}, 0xfffffffe, v{P}")
    a(f"s_lshl_b32 s47, s{s_qb}, 3"); a("s_add_u32 s47, s47, s3"); a("s_lshl_b32 s47, s47, 5"); a(f"s_add_u32 s47, s47, s{s_head}")
    a("s_lshl_b32 s47, s47, 10"); a(f"s_add_u32 s47, s47, {OF}")
    if "pre_ostore" in hooks: hooks["pre_ostore"](a)
    a(f"buffer_store_dwordx4 {vr(P,4)}, v1, s[{SWS}:{SWS+3}], s47 offen{SC()}")
    if "after" in hooks: hooks["after"](a)

def reduce_scatter(a, ACC, s_sub, s_kq, vtmp, T, base, sub_shift=15):
    a("s_barrier")
    a(f"s_lshl_b32 s46, s{s_sub}, {sub_shift}"); a(f"s_lshl_b32 s47, s{s_kq}, 11"); a("s_add_u32 s47, s47, s46"); a(f"s_add_u32 s47, s47, {base}")
    a(f"v_lshlrev_b32 v{vtmp}, 4, v0"); a(f"v_add_u32 v{vtmp+1}, s47, v{vtmp}")
    for pc in range(4):
        for half in range(2):
            r = ACC + 16 * (pc >> 1) + 8 * (pc & 1) + 4 * half
            a(f"ds_write_b128 v{vtmp+1}, {vr(r,4)} offset:{pc*8192 + half*1024}")
    a(f"s_lshl_b32 s47, s{s_kq}, 13"); a("s_add_u32 s47, s47, s46"); a(f"s_add_u32 s47, s47, {base}")
    a(f"v_add_u32 v{vtmp+1}, s47, v{vtmp}")
    a("s_waitcnt lgkmcnt(0)"); a("s_barrier")
    for src in range(4):
        for half in range(2):
            a(f"ds_read_b128 {vr(T + 8*src + 4*half, 4)}, v{vtmp+1} offset:{src*2048 + half*1024}")
    a("s_waitcnt lgkmcnt(4)")
    for i in range(8): a(f"v_add_f32 v{ACC+i}, v{T+i}, v{T+8+i}")
    a("s_waitcnt lgkmcnt(0)")
    for i in range(8): a(f"v_add_f32 v{T+16+i}, v{T+16+i}, v{T+24+i}")
    for i in range(8): a(f"v_add_f32 v{ACC+i}, v{ACC+i}, v{T+16+i}")

P3_LDS = 131072 + 4096
def phase3(a, hooks=None):
    hooks = hooks or {}
    s_tb, s_cb, s_tt, s_kq, s_ct, s_jp = 26, 27, 44, 45, 56, 57
    SWO, SWS, SX = 28, 36, 32
    OFR, XR, ACC, AF, T, VA = 8, 40, 64, 96, 104, 4
    a("s_and_b32 s46, s2, 7"); a("s_lshr_b32 s47, s2, 3")
    a("s_lshl_b32 s48, s46, 2"); a("s_lshr_b32 s49, s47, 3"); a(f"s_add_u32 s{s_tb}, s48, s49"); a(f"s_and_b32 s{s_cb}, s47, 7")
    a(f"s_and_b32 s{s_tt}, s3, 1"); a(f"s_lshr_b32 s{s_kq}, s3, 1")
    a(f"s_lshr_b32 s{s_ct}, s{s_kq}, 1"); a(f"s_and_b32 s{s_jp}, s{s_kq}, 1")
    srd(a, SWO, P_WO, 512 * 512 * 2); srd(a, SWS, P_WS, WS_SIZE); srd(a, SX, P_X, 2048 * 512 * 2)
    dma_row_voff(a, 2, 5, 6, 1024)
    a("s_lshl_b32 s46, s3, 16"); a(f"s_lshl_b32 s47, s{s_cb}, 7"); a("s_add_u32 s46, s46, s47"); a("v_add_u32 v2, s46, v2")
    a("s_lshl_b32 s50, s3, 13")
    for i in range(8):
        a(f"s_mov_b32 s51, {i*8192}")
        dma(a, 2, SWO, 51, (50, i * 1024))
    a("v_lshlrev_b32 v1, 4, v0")
    a(f"s_lshl_b32 s46, s{s_tb}, 1"); a(f"s_add_u32 s58, s46, s{s_tt}")
    a("v_and_b32 v3, 31, v0"); a("s_lshl_b32 s46, s58, 5"); a("v_add_u32 v3, s46, v3"); a("v_lshlrev_b32 v3, 10, v3")
    a("v_lshrrev_b32 v5, 5, v0"); a("v_lshlrev_b32 v5, 3, v5"); a("v_add_u32 v3, v3, v5")
    a(f"s_lshl_b32 s46, s{s_cb}, 7"); a(f"s_lshl_b32 s47, s{s_kq}, 5"); a("s_add_u32 s46, s46, s47")
    a(f"buffer_load_dwordx2 {vr(XR,2)}, v3, s[{SX}:{SX+3}], s46 offen")
    a(f"buffer_load_dwordx2 {vr(XR+2,2)}, v3, s[{SX}:{SX+3}], s46 offen offset:16")
    if "dep" in hooks: hooks["dep"](a)
    a(f"s_lshl_b32 s46, s58, 5"); a(f"s_lshl_b32 s47, s{s_kq}, 3"); a("s_add_u32 s46, s46, s47"); a("s_lshl_b32 s46, s46, 10"); a(f"s_add_u32 s46, s46, {OF}")
    for i in range(8):
        if i == 4: a("s_add_u32 s46, s46, 4096")
        a(f"buffer_load_dwordx4 {vr(OFR+4*i,4)}, v1, s[{SWS}:{SWS+3}], s46 offen offset:{(i&3)*1024}{SC()}")
    tr_lane_addr(a, VA, 5, 6, 'perm')
    a(f"s_lshl_b32 s46, s{s_kq}, 14"); a(f"v_add_u32 v{VA}, s46, v{VA}"); a(f"v_xor_b32 v{VA+1}, 64, v{VA}")
    for i in range(32): a(f"v_mov_b32 v{ACC+i}, 0")
    a("s_waitcnt vmcnt(0)"); a("s_barrier")
    def rd(i):
        for ct in range(2):
            r = AF + 8 * (i & 1) + 4 * ct
            a(f"ds_read_b64_tr_b16 {vr(r,2)}, v{VA+ct} offset:{i*2048}")
            a(f"ds_read_b64_tr_b16 {vr(r+2,2)}, v{VA+ct} offset:{i*2048+1024}")
    rd(0)
    for i in range(8):
        if i < 7: rd(i + 1); a("s_waitcnt lgkmcnt(4)")
        else: a("s_waitcnt lgkmcnt(0)")
        for ct in range(2): mfma(a, ACC + 16 * ct, AF + 8 * (i & 1) + 4 * ct, OFR + 4 * i)
    a("s_nop 7"); a("s_nop 3")
    reduce_scatter(a, ACC, s_tt, s_kq, 5, 112, 65536)
    H = 8
    for j in range(4):
        a(f"v_lshlrev_b32 v{H+2*j}, 16, v{XR+j}"); a(f"v_and_b32 v{H+2*j+1}, 0xffff0000, v{XR+j}")
    for i in range(8): a(f"v_add_f32 v{H+i}, v{H+i}, v{ACC+i}")
    HP = 16
    for j in range(4): a(f"v_cvt_pk_bf16_f32 v{HP+j}, v{H+2*j}, v{H+2*j+1}")
    a(f"s_lshl_b32 s46, s58, 5"); a(f"s_lshl_b32 s47, s{s_cb}, 2"); a("s_add_u32 s46, s46, s47"); a(f"s_add_u32 s46, s46, s{s_kq}")
    a("s_lshl_b32 s46, s46, 10"); a(f"s_add_u32 s46, s46, {HF}")
    if cfg.persist:
        for j in range(4): a(f"v_mov_b32 v{V_HP+j}, v{HP+j}")
    else:
        a(f"buffer_store_dwordx4 {vr(HP,4)}, v1, s[{SWS}:{SWS+3}], s46 offen")
    for j in range(4):
        a(f"v_lshlrev_b32 v{H+2*j}, 16, v{HP+j}"); a(f"v_and_b32 v{H+2*j+1}, 0xffff0000, v{HP+j}")
    a(f"v_add_f32 v20, v{H}, v{H+1}"); a(f"v_mul_f32 v21, v{H}, v{H}"); a(f"v_fmac_f32 v21, v{H+1}, v{H+1}")
    for i in range(2, 8):
        a(f"v_add_f32 v20, v20, v{H+i}"); a(f"v_fmac_f32 v21, v{H+i}, v{H+i}")
    a("v_mov_b32 v22, v20"); a("v_mov_b32 v23, v21"); a("s_nop 1")
    a("v_permlane32_swap_b32 v20, v22"); a("v_permlane32_swap_b32 v21, v23"); a("s_nop 1")
    a("v_add_f32 v20, v20, v22"); a("v_add_f32 v21, v21, v23")
    ST = 131072
    a("v_and_b32 v5, 31, v0"); a(f"s_lshl_b32 s46, s{s_tt}, 5"); a("v_add_u32 v5, s46, v5"); a("v_lshlrev_b32 v24, 3, v5")
    a(f"s_lshl_b32 s46, s{s_kq}, 9"); a(f"s_add_u32 s46, s46, {ST}"); a("v_add_u32 v6, s46, v24")
    a("v_cmp_gt_u32 vcc, 32, v0"); a("s_and_saveexec_b64 s[52:53], vcc")
    a("ds_write_b64 v6, v[20:21]")
    a("s_mov_b64 exec, s[52:53]")
    a("s_waitcnt lgkmcnt(0)"); a("s_barrier")
    lx = a.uid("L_p3_x")
    a("s_cmp_lg_u32 s3, 0"); a(f"s_cbranch_scc1 {lx}")
    a("v_lshlrev_b32 v5, 3, v0"); a(f"v_add_u32 v6, {ST}, v5")
    for q in range(4): a(f"ds_read_b64 {vr(26+2*q,2)}, v6 offset:{q*512}")
    a("s_waitcnt lgkmcnt(0)")
    a("v_add_f32 v26, v26, v28"); a("v_add_f32 v27, v27, v29"); a("v_add_f32 v30, v30, v32"); a("v_add_f32 v31, v31, v33")
    a("v_add_f32 v26, v26, v30"); a("v_add_f32 v27, v27, v31")
    a("v_cmp_eq_u32 vcc, -1, v26"); a("v_mov_b32 v28, 0x7fc00000"); a("s_nop 0"); a("v_cndmask_b32 v26, v26, v28, vcc")
    a("v_cmp_eq_u32 vcc, -1, v27"); a("s_nop 1"); a("v_cndmask_b32 v27, v27, v28, vcc")
    a(f"s_lshl_b32 s46, s{s_tb}, 12"); a(f"s_add_u32 s46, s46, {XCH}"); a(f"s_lshl_b32 s47, s{s_cb}, 9"); a("s_add_u32 s47, s47, s46")
    a(f"buffer_store_dwordx2 v[26:27], v5, s[{SWS}:{SWS+3}], s47 offen sc1")
    lp, lpd = a.uid("L_p3_poll"), a.uid("L_p3_pd")
    a("s_mov_b32 s48, 0")
    a.label(lp)
    for q in range(8): a(f"buffer_load_dwordx2 {vr(32+2*q,2)}, v5, s[{SWS}:{SWS+3}], s46 offen offset:{q*512} sc1")
    a("s_waitcnt vmcnt(0)")
    a("v_cmp_eq_u32 vcc, -1, v32")
    for q in range(1, 16):
        a(f"v_cmp_eq_u32 s[52:53], -1, v{32+q}"); a("s_or_b64 vcc, vcc, s[52:53]")
    a(f"s_cbranch_vccz {lpd}")
    a("s_add_u32 s48, s48, 1"); a("s_cmp_lt_u32 s48, 0x100000"); a(f"s_cbranch_scc1 {lp}")
    a.label(lpd)
    for q in range(1, 8):
        a(f"v_add_f32 v32, v32, v{32+2*q}"); a(f"v_add_f32 v33, v33, v{33+2*q}")
    a("v_mul_f32 v32, 0x3b000000, v32"); a("v_mul_f32 v33, 0x3b000000, v33")
    a("v_fma_f32 v33, -v32, v32, v33"); a("v_max_f32 v33, 0, v33")
    a("v_add_f32 v34, 0x3727c5ac, v33"); a("v_rsq_f32 v35, v34")
    a("s_nop 0")
    a("v_mul_f32 v36, v35, v35"); a("v_mul_f32 v36, v36, v33")
    a("v_add_f32 v36, 0x3727c5ac, v36"); a("v_rsq_f32 v36, v36")
    a("s_nop 0")
    a("v_mul_f32 v34, v35, v36"); a("v_mul_f32 v35, v32, v34"); a("v_sub_f32 v35, 0, v35")
    a(f"v_add_u32 v6, {ST + 2048}, v5")
    a("ds_write_b64 v6, v[34:35]")
    a("s_waitcnt lgkmcnt(0)")
    a.label(lx)
    a("s_barrier")
    a(f"v_add_u32 v6, {ST + 2048}, v24")
    a("ds_read_b64 v[20:21], v6")
    a("s_waitcnt lgkmcnt(0)")
    for i in range(8): a(f"v_fma_f32 v{H+i}, v{H+i}, v20, v21")
    for j in range(4): a(f"v_cvt_pk_bf16_f32 v{HP+j}, v{H+2*j}, v{H+2*j+1}")
    a("v_lshrrev_b32 v5, 3, v24")
    a("v_bfe_u32 v6, v5, 1, 1"); a("v_lshlrev_b32 v6, 2, v6")
    a(f"s_lshl_b32 s46, s{s_kq}, 1"); a("v_xor_b32 v6, s46, v6")
    a("v_lshlrev_b32 v6, 4, v6"); a("v_lshlrev_b32 v5, 7, v5"); a("v_add_u32 v5, v5, v6")
    a("v_lshrrev_b32 v6, 5, v0"); a("v_lshlrev_b32 v6, 3, v6"); a("v_add_u32 v5, v5, v6")
    a(f"ds_write_b64 v5, {vr(HP,2)}"); a(f"ds_write_b64 v5, {vr(HP+2,2)} offset:16")
    a(f"s_lshl_b32 s46, s{s_tt}, 2")
    tr_lane_addr(a, 7, 5, 6, 'perm', colunit_sreg=46)
    a(f"s_lshl_b32 s46, s{s_kq}, 11"); a("v_add_u32 v7, s46, v7")
    a("s_waitcnt lgkmcnt(0)"); a("s_barrier")
    a("ds_read_b64_tr_b16 v[24:25], v7"); a("ds_read_b64_tr_b16 v[26:27], v7 offset:1024")
    a(f"s_lshl_b32 s46, s{s_cb}, 1"); a(f"s_add_u32 s46, s46, s{s_tt}"); a("s_lshl_b32 s46, s46, 7")
    a(f"s_lshl_b32 s47, s{s_tb}, 2"); a("s_add_u32 s46, s46, s47"); a(f"s_add_u32 s46, s46, s{s_kq}")
    a("s_lshl_b32 s46, s46, 10"); a(f"s_add_u32 s46, s46, {LF}")
    a("s_waitcnt lgkmcnt(0)")
    a(f"buffer_store_dwordx4 v[24:27], v1, s[{SWS}:{SWS+3}], s46 offen{SC()}")

def big_gemm(a, nst, act_base_sregs, SWS, SW, VWD, w_stage_stride, s_sub, s_kq, act_is_B, ACC, dep=None):
    VL, VT, AF, WF = 4, 6, 96, 112
    a("v_lshlrev_b32 v1, 4, v0")
    a("s_lshl_b32 s50, s3, 11")
    a("s_lshl_b32 s51, s3, 11"); a("s_add_u32 s51, s51, 16384")
    def issue_act(s):
        slot = (s & 3) * 32768
        for dt in range(2):
            a(f"s_add_u32 s52, s{act_base_sregs[dt]}, {s*8192}")
            dma(a, 1, SWS, 52, (50, slot + dt * 1024), flags=SC())
    def issue_w(s):
        slot = (s & 3) * 32768
        for i in range(2):
            a(f"s_mov_b32 s52, {s*w_stage_stride + i*(w_stage_stride//16)}")
            dma(a, VWD, SW, 52, (51, slot + i * 1024))
    def issue(s): issue_act(s); issue_w(s)
    for s in range(4): issue_w(s)
    if dep: dep(a)
    for s in range(4): issue_act(s)
    a(f"s_lshl_b32 s46, s{s_kq}, 12"); a(f"v_add_u32 v{VL}, s46, v1"); a(f"v_add_u32 v{VL+1}, 0x10000, v{VL}")
    a(f"s_lshl_b32 s46, s{s_sub}, 2")
    tr_lane_addr(a, VT, 2, 3, 'perm', colunit_sreg=46)
    a(f"s_lshl_b32 s46, s{s_kq}, 12"); a("s_add_u32 s46, s46, 16384")
    a(f"v_add_u32 v{VT}, s46, v{VT}"); a(f"v_add_u32 v{VT+1}, 0x10000, v{VT}")
    for i in range(32): a(f"v_mov_b32 v{ACC+i}, 0")
    def reads(n):
        s, k = n >> 1, n & 1
        slot = s & 3; hi = slot >> 1; off = (slot & 1) * 32768
        par = n & 1
        for dt in range(2):
            a(f"ds_read_b128 {vr(AF + 8*par + 4*dt, 4)}, v{VL+hi} offset:{off + k*2048 + dt*1024}")
        a(f"ds_read_b64_tr_b16 {vr(WF + 4*par, 2)}, v{VT+hi} offset:{off + k*2048}")
        a(f"ds_read_b64_tr_b16 {vr(WF + 4*par + 2, 2)}, v{VT+hi} offset:{off + k*2048 + 1024}")
    a("s_waitcnt vmcnt(6)"); a("s_barrier")
    reads(0)
    N = 2 * nst
    for n in range(N):
        s, k = n >> 1, n & 1
        if k == 1 and s < nst - 1:
            if s <= 2: vm = {0: 4, 1: 2, 2: 4}[s]
            else: vm = 4 * (min(nst - 1, s + 2) - (s + 1))
            a(f"s_waitcnt vmcnt({vm})"); a("s_barrier")
            if s >= 1 and s + 3 < nst: issue(s + 3)
        if n < N - 1:
            reads(n + 1); a("s_waitcnt lgkmcnt(4)")
        else:
            a("s_waitcnt lgkmcnt(0)")
        par = n & 1
        for dt in range(2):
            if act_is_B: mfma(a, ACC + 16 * dt, WF + 4 * par, AF + 8 * par + 4 * dt)
            else: mfma(a, ACC + 16 * dt, AF + 8 * par + 4 * dt, WF + 4 * par)
    a("s_nop 7"); a("s_nop 3")

P45_LDS = 131072
def phase4(a, hooks=None):
    hooks = hooks or {}
    s_db, s_fb, s_ft, s_kq = 26, 27, 44, 45
    SW, SWS, SB = 28, 36, 32
    ACC = 64
    a("s_and_b32 s46, s2, 7"); a("s_lshr_b32 s47, s2, 3")
    a("s_and_b32 s48, s46, 1"); a("s_lshl_b32 s48, s48, 2"); a("s_and_b32 s49, s47, 3"); a(f"s_add_u32 s{s_db}, s48, s49")
    a("s_lshr_b32 s48, s46, 1"); a("s_mul_i32 s48, s48, 7"); a("s_lshr_b32 s49, s47, 2"); a(f"s_add_u32 s{s_fb}, s48, s49")
    a(f"s_and_b32 s{s_ft}, s3, 1"); a(f"s_lshr_b32 s{s_kq}, s3, 1")
    srd(a, SW, P_W1, 2048 * 1792 * 2); srd(a, SWS, P_WS, WS_SIZE); srd(a, SB, P_B1, 1792 * 2)
    dma_row_voff(a, 10, 2, 3, 3584)
    a("s_mul_i32 s46, s3, %d" % (16 * 3584)); a(f"s_lshl_b32 s47, s{s_fb}, 7"); a("s_add_u32 s46, s46, s47"); a("v_add_u32 v10, s46, v10")
    a(f"s_lshl_b32 s46, s{s_db}, 18"); a("s_lshl_b32 s47, s3, 10"); a("s_add_u32 s46, s46, s47")
    a(f"s_add_u32 s54, s46, {LF}"); a(f"s_add_u32 s55, s46, {LF + 128*1024}")
    a(f"s_lshl_b32 s46, s{s_fb}, 7"); a(f"s_lshl_b32 s47, s{s_ft}, 6"); a("s_add_u32 s46, s46, s47")
    a(f"s_and_b32 s47, s{s_kq}, 1"); a("s_lshl_b32 s47, s47, 5"); a("s_add_u32 s46, s46, s47")
    a("v_lshrrev_b32 v2, 5, v0"); a("v_lshlrev_b32 v2, 3, v2")
    a(f"buffer_load_dwordx2 v[12:13], v2, s[{SB}:{SB+3}], s46 offen"); a(f"buffer_load_dwordx2 v[14:15], v2, s[{SB}:{SB+3}], s46 offen offset:16")
    big_gemm(a, 16, (54, 55), SWS, SW, 10, 128 * 3584, s_ft, s_kq, True, ACC, hooks.get("dep"))
    reduce_scatter(a, ACC, s_ft, s_kq, 5, 112, 0)
    for j in range(4):
        a(f"v_lshlrev_b32 v{16+2*j}, 16, v{12+j}"); a(f"v_and_b32 v{17+2*j}, 0xffff0000, v{12+j}")
    for i in range(8): a(f"v_add_f32 v{ACC+i}, v{ACC+i}, v{16+i}")
    a("s_mov_b32 s46, 0xc0135761")
    a("s_mov_b32 s47, 0xbdd2d3e8")
    a("v_mov_b32 v24, s46")
    for i in range(8): a(f"v_mul_f32 v{16+i}, v{ACC+i}, v{ACC+i}")
    for i in range(8): a(f"v_fma_f32 v{16+i}, v{16+i}, s47, v24")
    for i in range(8): a(f"v_mul_f32 v{16+i}, v{16+i}, v{ACC+i}")
    for i in range(8): a(f"v_exp_f32 v{16+i}, v{16+i}")
    for i in range(8): a(f"v_add_f32 v{16+i}, 1.0, v{16+i}")
    for i in range(8): a(f"v_rcp_f32 v{16+i}, v{16+i}")
    for i in range(8): a(f"v_mul_f32 v{16+i}, v{16+i}, v{ACC+i}")
    for j in range(4): a(f"v_cvt_pk_bf16_f32 v{28+j}, v{16+2*j}, v{17+2*j}")
    a(f"s_lshl_b32 s46, s{s_db}, 1"); a(f"s_lshr_b32 s47, s{s_kq}, 1"); a("s_add_u32 s46, s46, s47"); a("s_mul_i32 s46, s46, 112")
    a(f"s_lshl_b32 s47, s{s_fb}, 2"); a("s_add_u32 s46, s46, s47"); a(f"s_lshl_b32 s47, s{s_ft}, 1"); a("s_add_u32 s46, s46, s47")
    a(f"s_and_b32 s47, s{s_kq}, 1"); a("s_add_u32 s46, s46, s47"); a("s_lshl_b32 s46, s46, 10"); a(f"s_add_u32 s46, s46, {UF}")
    a(f"buffer_store_dwordx4 v[28:31], v1, s[{SWS}:{SWS+3}], s46 offen{SC()}")

def phase5(a, hooks=None):
    hooks = hooks or {}
    s_db, s_sb, s_st, s_kq = 26, 27, 44, 45
    SW, SWS, SB, SO = 28, 36, 32, 40
    ACC = 64
    a("; ---- P5: out = h + (u w2 + b2)^T")
    a("s_and_b32 s46, s2, 7"); a("s_lshr_b32 s47, s2, 3")
    a("s_lshl_b32 s48, s46, 2"); a("s_lshr_b32 s49, s47, 3"); a(f"s_add_u32 s{s_sb}, s48, s49"); a(f"s_and_b32 s{s_db}, s47, 7")
    a(f"s_and_b32 s{s_st}, s3, 1"); a(f"s_lshr_b32 s{s_kq}, s3, 1")
    srd(a, SW, P_W2, 1792 * 2048 * 2); srd(a, SWS, P_WS, WS_SIZE); srd(a, SB, P_B2, 2048 * 2); srd(a, SO, P_OUT, 2048 * 512 * 2)
    dma_row_voff(a, 10, 2, 3, 4096)
    a("s_lshl_b32 s46, s3, 16"); a(f"s_lshl_b32 s47, s{s_sb}, 7"); a("s_add_u32 s46, s46, s47"); a("v_add_u32 v10, s46, v10")
    a(f"s_mul_i32 s46, s{s_db}, {2*112*1024}"); a("s_lshl_b32 s47, s3, 10"); a("s_add_u32 s46, s46, s47")
    a(f"s_add_u32 s54, s46, {UF}"); a(f"s_add_u32 s55, s46, {UF + 112*1024}")
    a(f"s_lshl_b32 s46, s{s_sb}, 1"); a(f"s_add_u32 s58, s46, s{s_st}")
    a("v_and_b32 v2, 31, v0"); a("s_lshl_b32 s46, s58, 5"); a("v_add_u32 v11, s46, v2")
    a("v_lshlrev_b32 v2, 1, v11")
    a(f"buffer_load_ushort v12, v2, s[{SB}:{SB+3}], 0 offen")
    a("s_lshl_b32 s46, s58, 5"); a(f"s_lshl_b32 s47, s{s_db}, 2"); a("s_add_u32 s46, s46, s47"); a(f"s_add_u32 s46, s46, s{s_kq}")
    a("s_lshl_b32 s46, s46, 10"); a(f"s_add_u32 s46, s46, {HF}")
    a("v_lshlrev_b32 v2, 4, v0")
    if cfg.persist:
        for j in range(4): a(f"v_mov_b32 v{16+j}, v{V_HP+j}")
    else:
        a(f"buffer_load_dwordx4 v[16:19], v2, s[{SWS}:{SWS+3}], s46 offen")
    big_gemm(a, 14, (54, 55), SWS, SW, 10, 128 * 4096, s_st, s_kq, False, ACC, hooks.get("dep"))
    reduce_scatter(a, ACC, s_st, s_kq, 5, 112, 0)
    a("v_lshlrev_b32 v12, 16, v12")
    for j in range(4):
        a(f"v_lshlrev_b32 v{20+2*j}, 16, v{16+j}"); a(f"v_and_b32 v{21+2*j}, 0xffff0000, v{16+j}")
    for i in range(8): a(f"v_add_f32 v{ACC+i}, v{ACC+i}, v12")
    for i in range(8): a(f"v_add_f32 v{ACC+i}, v{ACC+i}, v{20+i}")
    for j in range(4): a(f"v_cvt_pk_bf16_f32 v{28+j}, v{ACC+2*j}, v{ACC+2*j+1}")
    a("s_nop 1")
    a("v_permlane32_swap_b32 v28, v30"); a("v_permlane32_swap_b32 v29, v31")
    a("v_lshlrev_b32 v11, 10, v11"); a("v_lshrrev_b32 v2, 5, v0"); a("v_lshlrev_b32 v2, 4, v2"); a("v_add_u32 v11, v11, v2")
    a(f"s_lshl_b32 s46, s{s_db}, 7"); a(f"s_lshl_b32 s47, s{s_kq}, 5"); a("s_add_u32 s46, s46, s47")
    a(f"buffer_store_dwordx4 v[28:31], v11, s[{SO}:{SO+3}], s46 offen")
```

```python
import sys
from asmlib import *
import phases
from phases import *
import gen_persist as gp
from gen_persist import opt, stamp, SB_WS, STAMP0, HEADER, KNAME, NAME

S_OFA, S_LFA, S_UFA, S_FB128, S_STU = 96, 97, 98, 99, 100
WREG = 128
HP = 4
STG = 131072

def map_addresses(a):
    a("s_and_b32 s46, s2, 7"); a("s_lshr_b32 s47, s2, 3")
    a("s_lshl_b32 s48, s46, 2"); a("s_lshr_b32 s49, s47, 3"); a("s_add_u32 s48, s48, s49")
    a("s_and_b32 s49, s47, 7")
    a("s_lshl_b32 s50, s49, 3"); a("s_add_u32 s50, s50, s3"); a("s_lshl_b32 s50, s50, 5"); a("s_add_u32 s50, s50, s48")
    a("s_lshl_b32 s50, s50, 10"); a(f"s_add_u32 s{S_OFA}, s50, {OF}")
    a("s_lshl_b32 s50, s49, 1"); a("s_and_b32 s51, s3, 1"); a("s_add_u32 s50, s50, s51"); a("s_lshl_b32 s50, s50, 7")
    a("s_lshl_b32 s51, s48, 2"); a("s_add_u32 s50, s50, s51"); a("s_lshr_b32 s51, s3, 1"); a("s_add_u32 s50, s50, s51")
    a("s_lshl_b32 s50, s50, 10"); a(f"s_add_u32 s{S_LFA}, s50, {LF}")
    a("s_and_b32 s50, s46, 1"); a("s_lshl_b32 s50, s50, 2"); a("s_and_b32 s51, s47, 3"); a("s_add_u32 s50, s50, s51")
    a("s_lshr_b32 s51, s46, 1"); a("s_mul_i32 s51, s51, 7"); a("s_lshr_b32 s52, s47, 2"); a("s_min_u32 s52, s52, 6"); a("s_add_u32 s51, s51, s52")
    a(f"s_lshl_b32 s{S_FB128}, s51, 7")
    a("s_cmp_lt_u32 s47, 28"); a(f"s_cselect_b32 s{S_STU}, 1, 0")
    a("s_lshl_b32 s50, s50, 1"); a("s_lshr_b32 s52, s3, 2"); a("s_add_u32 s50, s50, s52"); a("s_mul_i32 s50, s50, 112")
    a("s_lshl_b32 s51, s51, 2"); a("s_add_u32 s50, s50, s51")
    a("s_and_b32 s51, s3, 1"); a("s_lshl_b32 s51, s51, 1"); a("s_add_u32 s50, s50, s51"); a("s_bfe_u32 s51, s3, 0x10001"); a("s_add_u32 s50, s50, s51")
    a("s_lshl_b32 s50, s50, 10"); a(f"s_add_u32 s{S_UFA}, s50, {UF}")

def markers(a):
    if opt.exp == "nomark": return 0
    for i in range(4): a(f"v_mov_b32 v{120+i}, -1")
    a("v_mov_b32 v124, v1")
    for s in (S_OFA, S_LFA):
        a(f"buffer_store_dwordx4 v[120:123], v124, s[{SB_WS}:{SB_WS+3}], s{s} offen sc1")
    a(f"s_cmp_eq_u32 s{S_STU}, 0"); a(f"s_cselect_b32 s60, s{S_LFA}, s{S_UFA}")
    a(f"buffer_store_dwordx4 v[120:123], v124, s[{SB_WS}:{SB_WS+3}], s60 offen sc1")
    a("s_lshl_b32 s60, s2, 9"); a("s_lshl_b32 s61, s3, 6"); a("s_add_u32 s60, s60, s61"); a(f"s_add_u32 s60, s60, {XCH}")
    a("v_cmp_gt_u32 vcc, 4, v0"); a("s_and_saveexec_b64 s[62:63], vcc")
    a(f"buffer_store_dwordx4 v[120:123], v124, s[{SB_WS}:{SB_WS+3}], s60 offen sc1")
    a("s_mov_b64 exec, s[62:63]")
    return 4

def markers_p1(a):
    a("v_lshlrev_b32 v1, 4, v0")
    return markers(a)

def zero_flag_load(a):
    l = a.uid("L_zf")
    a("s_cmp_lg_u32 s3, 0"); a(f"s_cbranch_scc1 {l}")
    a("buffer_load_dword v247, v248, s[76:79], 0 offen sc1")
    a.label(l)

def zero_flag_store(a):
    l = a.uid("L_zs")
    a("s_cmp_lg_u32 s2, 0"); a(f"s_cbranch_scc1 {l}"); a("s_cmp_lg_u32 s3, 7"); a(f"s_cbranch_scc1 {l}")
    a("v_mov_b32 v126, 1")
    a("v_cmp_eq_u32 vcc, 0, v0"); a("s_and_saveexec_b64 s[62:63], vcc")
    a("buffer_store_dword v126, v248, s[76:79], 0 offen sc1")
    a("s_mov_b64 exec, s[62:63]")
    a.label(l)

def wait_all_groups(k, target, st):
    def dep(a):
        l, lp = a.uid("L_wait"), a.uid("L_poll")
        a("s_cmp_lg_u32 s3, 0"); a(f"s_cbranch_scc1 {l}")
        a(f"s_mov_b32 s60, {CNT + k*2048}"); a("v_lshlrev_b32 v251, 8, v0"); a("s_mov_b32 s61, 0")
        a("v_cmp_gt_u32 vcc, 8, v0"); a("s_and_saveexec_b64 s[62:63], vcc")
        a.label(lp)
        a(f"buffer_load_dword v250, v251, s[{SB_WS}:{SB_WS+3}], s60 offen sc1")
        a("s_add_u32 s61, s61, 1")
        a("s_waitcnt vmcnt(0)")
        a(f"v_cmp_gt_u32 vcc, {target}, v250")
        lx = a.uid("L_wx")
        a(f"s_cbranch_vccz {lx}")
        a("s_cmp_lt_u32 s61, 0x200000"); a(f"s_cbranch_scc1 {lp}")
        a.label(lx)
        a("s_mov_b64 exec, s[62:63]")
        a.label(l)
        a("s_barrier")
        stamp(a, st)
    return dep

def jitter(a, point):
    if "jitter" not in opt.flags: return
    l, lx = a.uid("L_jit"), a.uid("L_jitx")
    a(f"s_mul_i32 s60, s2, {0x9E5 + 2 * point * 131}"); a(f"s_lshl_b32 s61, s3, 3"); a("s_add_u32 s60, s60, s61"); a(f"s_add_u32 s60, s60, {point * 77}")
    a("s_lshr_b32 s61, s60, 3"); a("s_xor_b32 s60, s60, s61"); a("s_and_b32 s60, s60, 63")
    a("s_cmp_lt_u32 s60, 40"); a(f"s_cbranch_scc1 {lx}")
    a("s_sub_u32 s60, s60, 39")
    a.label(l)
    a("s_sleep 8"); a("s_sub_u32 s60, s60, 1"); a("s_cmp_lg_u32 s60, 0"); a(f"s_cbranch_scc1 {l}")
    a.label(lx)

def late_check(a):
    l, lp = a.uid("L_lck"), a.uid("L_lcp")
    a("s_cmp_lg_u32 s3, 0"); a(f"s_cbranch_scc1 {l}")
    a("v_cmp_gt_u32 vcc, 32, v113")
    a(f"s_cbranch_vccz {l}")
    a("s_mov_b32 s61, 0"); a(f"s_mov_b32 s60, {CNT + (0 if opt.exp == 'mk_p1' else 2048)}")
    a.label(lp)
    a(f"buffer_load_dword v113, v112, s[{SB_WS}:{SB_WS+3}], s60 offen sc1")
    a("s_add_u32 s61, s61, 1")
    a("s_waitcnt vmcnt(0)")
    a("v_cmp_gt_u32 vcc, 32, v113")
    a(f"s_cbranch_vccz {l}")
    a("s_cmp_lt_u32 s61, 0x200000"); a(f"s_cbranch_scc1 {lp}")
    a.label(l)
    a("s_barrier")

def tag_check(a, regs_, lfail):
    a(f"v_cmp_eq_u32 vcc, -1, v{regs_[0]}")
    for r in regs_[1:]:
        a(f"v_cmp_eq_u32 s[62:63], -1, v{r}"); a("s_or_b64 vcc, vcc, s[62:63]")
    a(f"s_cbranch_vccnz {lfail}")

class W1Pref:
    VD, VT = 92, 93
    def setup(self, a):
        srd(a, 28, P_W1, 2048 * 1792 * 2); srd(a, 32, P_W2, 1792 * 2048 * 2); srd(a, 40, P_WO, 512 * 512 * 2)
        a("v_and_b32 v112, 7, v0"); a("v_lshlrev_b32 v112, 8, v112"); a("v_mov_b32 v113, 0")
        dma_row_voff(a, self.VD, 2, 3, 3584)
        a(f"s_mul_i32 s60, s3, {256*3584}"); a(f"s_add_u32 s60, s60, s{S_FB128}"); a(f"v_add_u32 v{self.VD}, s60, v{self.VD}")
        if "off" in opt.flags:
            for j in range(1, 4): a(f"v_add_u32 v{116 + j}, {j * (8 * 3584 - 1024)}, v{self.VD}")
        tr_lane_addr(a, self.VT, 2, 3, 'perm')
        a("s_lshl_b32 s59, s3, 12"); a(f"s_add_u32 s59, s59, {STG}")
        a(f"v_add_u32 v{self.VT}, s59, v{self.VT}"); a(f"v_xor_b32 v{self.VT+1}, 64, v{self.VT}")
        a("s_and_b32 s60, s2, 7"); a("s_lshr_b32 s61, s2, 3")
        dma_row_voff(a, 95, 2, 3, 1024)
        a("s_and_b32 s62, s61, 7"); a("s_lshl_b32 s62, s62, 7"); a("s_lshl_b32 s63, s3, 16"); a("s_add_u32 s62, s62, s63"); a("v_add_u32 v95, s62, v95")
        a("s_and_b32 s62, s3, 3"); a("s_lshl_b32 s62, s62, 13"); a("s_lshr_b32 s63, s3, 2"); a("s_lshl_b32 s63, s63, 16"); a("s_add_u32 s53, s62, s63")
        a("s_and_b32 s62, s61, 3"); a("s_lshl_b32 s62, s62, 6"); a("s_lshl_b32 s63, s3, 8"); a("s_add_u32 s62, s62, s63")
        a("v_add_u32 v116, s62, v0"); a("s_movk_i32 s63, 3584"); a("v_mul_lo_u32 v116, v116, s63"); a(f"v_add_u32 v116, s{S_FB128}, v116")
        if "w1lead" in opt.flags:
            a("s_and_b32 s62, s61, 3"); a("s_lshl_b32 s62, s62, 3"); a("s_lshl_b32 s63, s3, 8"); a("s_add_u32 s62, s62, s63")
            a("v_and_b32 v116, 7, v0"); a("v_add_u32 v116, s62, v116"); a("s_movk_i32 s63, 3584"); a("v_mul_lo_u32 v116, v116, s63"); a(f"v_add_u32 v116, s{S_FB128}, v116")
        a("s_lshl_b32 s62, s60, 2"); a("s_lshr_b32 s63, s61, 3"); a("s_add_u32 s62, s62, s63"); a("s_lshl_b32 s62, s62, 7")
        a("s_and_b32 s63, s61, 7"); a("s_mul_i32 s63, s63, 224"); a("s_mul_i32 s64, s3, 28"); a("s_add_u32 s63, s63, s64")
        if "w2t_pre" in opt.flags:
            a("s_and_b32 s63, s61, 7"); a("s_mul_i32 s63, s63, 224"); a("s_lshl_b32 s64, s3, 5"); a("s_add_u32 s63, s63, s64"); a("s_sub_u32 s63, s63, 32")
            a("v_min_u32 v96, 31, v0")
        else:
            a("v_min_u32 v96, 27, v0")
        a("v_add_u32 v96, s63, v96"); a("v_lshlrev_b32 v96, 12, v96"); a("v_add_u32 v96, s62, v96")
    def looped(self, vq):
        def f(a, tile, SA, SB, VK, VV):
            top, lsp, lspb = a.uid("L_att_top"), a.uid("L_att_sp"), a.uid("L_att_spb")
            a("s_mov_b32 s54, 0"); a("s_mov_b32 s52, 0"); a(f"s_mov_b32 s51, {(1 << 0) | (1 << 3) | (1 << 5) | (1 << 6)}")
            a.label(top)
            for u in range(8):
                if u == 1:
                    for j in range(4):
                        dma(a, self.VD if j == 0 else 116 + j, 28, 52, (59, 0) if j == 0 else None, offset=j * 1024)
                    a(f"s_add_u32 s52, s52, {32 * 3584}")
                if u == 2:
                    a("s_bitcmp1_b32 s51, s54"); a(f"s_cbranch_scc1 {lsp}")
                    a.label(lspb)
                S, SN = (SA, SB) if u % 2 == 0 else (SB, SA)
                tile(u, S, SN, u & 1, (u + 2) * 1024, (u + 1) * 1024, "0")
            a(f"v_add_u32 v{VK}, 8192, v{VK}"); a(f"v_add_u32 v{VV}, 8192, v{VV}")
            L = [a.uid(f"L_att_b{c}") for c in range(8)]
            SP = {c: a.uid(f"L_att_s{c}") for c in (0, 3, 5, 6)}
            l03, l01, l45 = a.uid("L_att_03"), a.uid("L_att_01"), a.uid("L_att_45")
            def special(c):
                if c == 0: vq.issue("markers", markers(a))
                if c == 3 and opt.touch:
                    a("buffer_load_dword v97, v96, s[32:35], 0 offen"); vq.issue("touch")
                if c == 5:
                    for i in range(8):
                        dma(a, 95, 40, 60, (53, i * 1024), pre=f"s_mov_b32 s60, {i*8192}")
                    vq.issue("wo", 8)
                if c == 6:
                    l = a.uid("L_lc")
                    a("s_cmp_lg_u32 s3, 0"); a(f"s_cbranch_scc1 {l}")
                    a(f"s_mov_b32 s60, {CNT + 2048}")
                    a(f"buffer_load_dword v113, v112, s[{SB_WS}:{SB_WS+3}], s60 offen sc1")
                    a.label(l)
                a(f"s_branch {lspb}")
            def block(c):
                vq.wait(a, f"w1_{c}")
                for kk in range(2):
                    for ft in range(2):
                        r = WREG + (2 * c + kk) * 8 + 4 * ft
                        a(f"ds_read_b64_tr_b16 {vr(r,2)}, v{self.VT+ft} offset:{kk*2048}")
                        a(f"ds_read_b64_tr_b16 {vr(r+2,2)}, v{self.VT+ft} offset:{kk*2048+1024}")
                if c == 0:
                    a("s_barrier")
                if c == 4:
                    a("s_barrier")
                    l = a.uid("L_ma")
                    a("s_cmp_lg_u32 s3, 0"); a(f"s_cbranch_scc1 {l}")
                    a("s_and_b32 s60, s2, 7"); a("s_lshl_b32 s60, s60, 8"); a(f"s_add_u32 s60, s60, {CNT + 2048}")
                    a("v_mov_b32 v114, 1"); a("v_mov_b32 v115, 0")
                    a("v_cmp_eq_u32 vcc, 0, v0"); a("s_and_saveexec_b64 s[62:63], vcc")
                    a(f"buffer_atomic_add v114, v115, s[{SB_WS}:{SB_WS+3}], s60 offen")
                    a("s_mov_b64 exec, s[62:63]")
                    a.label(l)
                if c < 7:
                    a(f"s_mov_b32 s54, {c + 1}"); a(f"s_branch {top}")
            texts, sptexts = [], {}
            def capture(fn):
                real = a.lines; a.lines = []
                fn(); out = a.lines; a.lines = real
                return out
            for c in range(8):
                vq.issue(f"w1_{c}", 4)
                if c in SP: sptexts[c] = capture(lambda: (a.label(SP[c]), special(c)))
                texts.append(capture(lambda: (a.label(L[c]), block(c))))
            a("s_cmp_lt_u32 s54, 4"); a(f"s_cbranch_scc1 {l03}")
            a("s_cmp_lt_u32 s54, 6"); a(f"s_cbranch_scc1 {l45}")
            a("s_cmp_eq_u32 s54, 7"); a(f"s_cbranch_scc1 {L[7]}")
            a.lines += texts[6]
            a.label(l45); a("s_cmp_eq_u32 s54, 5"); a(f"s_cbranch_scc1 {L[5]}")
            a.lines += texts[4]; a.lines += texts[5]
            a.label(l03); a("s_cmp_lt_u32 s54, 2"); a(f"s_cbranch_scc1 {l01}")
            a("s_cmp_eq_u32 s54, 3"); a(f"s_cbranch_scc1 {L[3]}")
            a.lines += texts[2]; a.lines += texts[3]
            a.label(l01); a("s_cmp_eq_u32 s54, 1"); a(f"s_cbranch_scc1 {L[1]}")
            a.lines += texts[0]; a.lines += texts[1]
            a.label(lsp)
            a("s_cmp_eq_u32 s54, 3"); a(f"s_cbranch_scc1 {SP[3]}")
            a("s_cmp_eq_u32 s54, 5"); a(f"s_cbranch_scc1 {SP[5]}")
            a("s_cmp_eq_u32 s54, 6"); a(f"s_cbranch_scc1 {SP[6]}")
            for c in (0, 3, 5, 6): a.lines += sptexts[c]
            a.lines += texts[7]
        return f
    def tile(self, vq):
        def f(a, t):
            if t == (0 if "m12" in opt.flags else 1) and opt.exp != "mk_p1" and "preb1" not in opt.flags:
                jitter(a, 6)
                vq.issue("markers", markers(a))
            if t % 8 == 0 and not (t == 0 and "preb1" in opt.flags):
                c = t // 8
                if "off" in opt.flags:
                    for j in range(4):
                        dma(a, self.VD if j == 0 else 116 + j, 28, 60, (59, 0) if j == 0 else None, offset=j * 1024,
                            pre=f"s_mov_b32 s60, {32*c*3584}" if j == 0 else None)
                else:
                    for j in range(4):
                        dma(a, self.VD, 28, 60, (59, j * 1024), pre=f"s_mov_b32 s60, {(32*c + 8*j)*3584}")
                vq.issue(f"w1_{c}", 4)
            if t % 8 == 7:
                c = t // 8
                vq.wait(a, f"w1_{c}")
                for kk in range(2):
                    for ft in range(2):
                        r = WREG + (2 * c + kk) * 8 + 4 * ft
                        a(f"ds_read_b64_tr_b16 {vr(r,2)}, v{self.VT+ft} offset:{kk*2048}")
                        a(f"ds_read_b64_tr_b16 {vr(r+2,2)}, v{self.VT+ft} offset:{kk*2048+1024}")
            if t in (45, 46):
                for i in range(4 * (t - 45), 4 * (t - 45) + 4):
                    dma(a, 95, 40, 60, (53, i * 1024), pre=f"s_mov_b32 s60, {i*8192}")
                vq.issue("wo", 4)
            MK = opt.exp == "mk_p1"
            if t == (0 if "preb1" in opt.flags else 12 if "m12" in opt.flags else 28) and not MK:
                l = a.uid("L_ma")
                a("s_cmp_lg_u32 s3, 0"); a(f"s_cbranch_scc1 {l}")
                a("s_and_b32 s60, s2, 7"); a("s_lshl_b32 s60, s60, 8"); a(f"s_add_u32 s60, s60, {CNT + 2048}")
                a("v_mov_b32 v114, 1"); a("v_mov_b32 v115, 0")
                a("v_cmp_eq_u32 vcc, 0, v0"); a("s_and_saveexec_b64 s[62:63], vcc")
                a(f"buffer_atomic_add v114, v115, s[{SB_WS}:{SB_WS+3}], s60 offen")
                a("s_mov_b64 exec, s[62:63]")
                a.label(l)
            if t == 52:
                l = a.uid("L_lc")
                a("s_cmp_lg_u32 s3, 0"); a(f"s_cbranch_scc1 {l}")
                a(f"s_mov_b32 s60, {CNT + (0 if MK else 2048)}")
                a(f"buffer_load_dword v113, v112, s[{SB_WS}:{SB_WS+3}], s60 offen sc1")
                a.label(l)
                vq.issue("maybe", 0)
            if "codepf2" in opt.flags and t == 50:
                a("s_lshl_b32 s60, s3, 13"); a("s_add_u32 s60, s60, L_p3_code-L_pcbase"); a("v_lshlrev_b32 v126, 7, v0"); a("v_add_u32 v126, s60, v126")
                a("s_mov_b32 s61, L_codeend-L_pcbase"); a("v_min_u32 v126, s61, v126")
                a("global_load_dword v125, v126, s[66:67]"); vq.issue("touch")
            if opt.touch and t == 3 and opt.exp == "btouch":
                srd(a, 44, P_B1, 1792 * 2); a("v_lshlrev_b32 v117, 7, v0")
                a("buffer_load_dword v97, v117, s[44:47], 0 offen"); vq.issue("touch")
                srd(a, 44, P_B2, 2048 * 2)
                a("buffer_load_dword v97, v117, s[44:47], 0 offen"); vq.issue("touch")
            if "w1lead" in opt.flags and t % 8 == 2 and t < 56:
                a(f"s_mov_b32 s60, {32 * (t // 8 + 1) * 3584}"); a("buffer_load_dword v97, v116, s[28:31], s60 offen"); vq.issue("touch")
            if opt.touch and t == 2 and opt.exp == "w1touch":
                a("buffer_load_dword v97, v116, s[28:31], 0 offen"); vq.issue("touch")
            if opt.touch:
                if t == 27 and "preb1" not in opt.flags and "w2t_pre" not in opt.flags:
                    a("buffer_load_dword v97, v96, s[32:35], 0 offen"); vq.issue("touch")
        return f

class W2Stage:
    VD, VP, SRD, SE, SX_, SM = 60, 61, 28, 59, 55, 57
    def __init__(self): self.vq = None
    def setup(self, a):
        srd(a, self.SRD, P_W2, 1792 * 2048 * 2)
        dma_row_voff(a, self.VD, 2, 3, 4096)
        a("s_and_b32 s60, s2, 7"); a("s_lshr_b32 s61, s2, 3")
        a("s_lshl_b32 s60, s60, 2"); a("s_lshr_b32 s61, s61, 3"); a("s_add_u32 s60, s60, s61"); a("s_lshl_b32 s60, s60, 7")
        a(f"s_mul_i32 s61, s3, {224*4096}"); a("s_add_u32 s60, s60, s61"); a(f"v_add_u32 v{self.VD}, s60, v{self.VD}")
        a(f"s_lshl_b32 s{self.SE}, s3, 13"); a(f"s_add_u32 s{self.SE}, s{self.SE}, 98304")
        a(f"s_lshl_b32 s{self.SX_}, s3, 11"); a(f"s_add_u32 s{self.SX_}, s{self.SX_}, 49152")
        a("s_and_b32 s60, s3, 3"); a("s_lshl_b32 s60, s60, 13"); a("s_lshr_b32 s61, s3, 2"); a("s_lshl_b32 s61, s61, 16"); a(f"s_add_u32 s{self.SM}, s60, s61")
        tr_lane_addr(a, self.VP, 2, 3, 'perm')
        a(f"v_xor_b32 v{self.VP+1}, 64, v{self.VP}")
    def slot(self, j):
        k = j if j < 9 else j - 9
        if k < 4: return self.SE, k * 2048
        if k == 4: return self.SX_, 0
        return self.SM, (k - 5) * 2048
    def dma(self, a, j):
        sreg, off = self.slot(j)
        for i in range(2):
            dma(a, self.VD, self.SRD, 60, (sreg, off + i * 1024), pre=f"s_mov_b32 s60, {(16*j + 8*i)*4096}")
        if self.vq is not None: self.vq.issue(f"w2_{j}", 2)
    def read(self, a, j, dst=None):
        sreg, off = self.slot(j)
        dst = WREG + 8 * j if dst is None else dst
        for st in range(2):
            a(f"v_add_u32 v{2+st}, s{sreg}, v{self.VP+st}")
        for st in range(2):
            r = dst + 4 * st
            a(f"ds_read_b64_tr_b16 {vr(r,2)}, v{2+st} offset:{off}")
            a(f"ds_read_b64_tr_b16 {vr(r+2,2)}, v{2+st} offset:{off+1024}")

o_retries = []
DEFER = []
def phase3v2(a, w2):
    s_tb, s_cb, s_tt, s_kq = 26, 27, 44, 45
    SWO, SWS, SX = 28, 36, 32
    OFR, XR, ACC, AF, VA = 8, 40, 64, 96, 44
    a("s_and_b32 s46, s2, 7"); a("s_lshr_b32 s47, s2, 3")
    a("s_lshl_b32 s48, s46, 2"); a("s_lshr_b32 s49, s47, 3"); a(f"s_add_u32 s{s_tb}, s48, s49"); a(f"s_and_b32 s{s_cb}, s47, 7")
    a(f"s_and_b32 s{s_tt}, s3, 1"); a(f"s_lshr_b32 s{s_kq}, s3, 1")
    srd(a, SWO, P_WO, 512 * 512 * 2); srd(a, SWS, P_WS, WS_SIZE); srd(a, SX, P_X, 2048 * 512 * 2)
    a(f"s_lshl_b32 s46, s{s_tb}, 1"); a(f"s_add_u32 s58, s46, s{s_tt}")
    a(f"s_lshl_b32 s46, s58, 5"); a(f"s_lshl_b32 s47, s{s_kq}, 3"); a("s_add_u32 s46, s46, s47"); a("s_lshl_b32 s46, s46, 10"); a(f"s_add_u32 s50, s46, {OF}")
    a("s_add_u32 s51, s50, 4096")
    def oloads():
        for i in range(8):
            a(f"buffer_load_dwordx4 {vr(OFR+4*i,4)}, v1, s[{SWS}:{SWS+3}], s{50 + (i >> 2)} offen offset:{(i&3)*1024} sc1")
    if "oprobe" in opt.flags:
        a("v_lshlrev_b32 v46, 10, v0"); a("v_add_u32 v46, 1008, v46"); a("s_mov_b32 s48, 0")
        a("v_cmp_gt_u32 vcc, 8, v0"); a("s_and_saveexec_b64 s[52:53], vcc")
        lp, lx_ = a.uid("L_o_probe"), a.uid("L_o_px")
        a.label(lp)
        a(f"buffer_load_dword v47, v46, s[{SWS}:{SWS+3}], s50 offen sc1")
        a("s_add_u32 s48, s48, 1")
        a("s_waitcnt vmcnt(0)")
        a("v_cmp_eq_u32 vcc, -1, v47")
        a(f"s_cbranch_vccz {lx_}")
        a("s_cmp_lt_u32 s48, 0x100000"); a(f"s_cbranch_scc1 {lp}")
        a.label(lx_)
        a("s_mov_b64 exec, s[52:53]")
    if "ackwait_o" in opt.flags: a("s_waitcnt vmcnt(0)")
    oloads()
    a("v_and_b32 v3, 31, v0"); a("s_lshl_b32 s46, s58, 5"); a("v_add_u32 v3, s46, v3"); a("v_lshlrev_b32 v3, 10, v3")
    a("v_lshrrev_b32 v46, 5, v0"); a("v_lshlrev_b32 v46, 3, v46"); a("v_add_u32 v3, v3, v46")
    a(f"s_lshl_b32 s46, s{s_cb}, 7"); a(f"s_lshl_b32 s47, s{s_kq}, 5"); a("s_add_u32 s46, s46, s47")
    a(f"buffer_load_dwordx2 {vr(XR,2)}, v3, s[{SX}:{SX+3}], s46 offen")
    a(f"buffer_load_dwordx2 {vr(XR+2,2)}, v3, s[{SX}:{SX+3}], s46 offen offset:16")
    tr_lane_addr(a, VA, 46, 47, 'perm')
    a(f"s_and_b32 s46, s{s_kq}, 1"); a("s_lshl_b32 s46, s46, 14"); a(f"s_lshr_b32 s47, s{s_kq}, 1"); a("s_lshl_b32 s47, s47, 16"); a("s_add_u32 s46, s46, s47")
    a(f"v_add_u32 v{VA}, s46, v{VA}"); a(f"v_xor_b32 v{VA+1}, 64, v{VA}")
    for i in range(32): a(f"v_mov_b32 v{ACC+i}, 0")
    a("s_waitcnt lgkmcnt(0)"); a("s_barrier")
    w2.setup(a)
    def rd(i):
        for ct in range(2):
            r = AF + 8 * (i & 3) + 4 * ct
            a(f"ds_read_b64_tr_b16 {vr(r,2)}, v{VA+ct} offset:{i*2048}")
            a(f"ds_read_b64_tr_b16 {vr(r+2,2)}, v{VA+ct} offset:{i*2048+1024}")
    for i in range(3): rd(i)
    ostep = "ostep" in opt.flags
    if "early_after_o" not in opt.flags:
        for j in range(5): w2.dma(a, j)
        if not ostep: a("s_waitcnt vmcnt(10)")
    else:
        a("s_waitcnt vmcnt(0)")
    def biases():
        srd(a, 40, P_B1, 1792 * 2)
        a("s_and_b32 s46, s3, 1"); a("s_lshl_b32 s46, s46, 6"); a("s_bfe_u32 s47, s3, 0x10001"); a("s_lshl_b32 s47, s47, 5")
        a("s_add_u32 s46, s46, s47"); a(f"s_add_u32 s46, s46, s{S_FB128}")
        a("v_lshrrev_b32 v2, 5, v0"); a("v_lshlrev_b32 v2, 3, v2")
        a("buffer_load_dwordx2 v[56:57], v2, s[40:43], s46 offen"); a("buffer_load_dwordx2 v[58:59], v2, s[40:43], s46 offen offset:16")
        srd(a, 40, P_B2, 2048 * 2)
        a("v_and_b32 v2, 31, v0"); a("s_lshl_b32 s46, s58, 5"); a("v_add_u32 v2, s46, v2"); a("v_lshlrev_b32 v2, 1, v2")
        a("buffer_load_ushort v63, v2, s[40:43], 0 offen")
    lp, lr, lok = a.uid("L_o_poll"), a.uid("L_o_retry"), a.uid("L_o_ok")
    if ostep:
        pass
    elif "oprobe" not in opt.flags:
        a("s_mov_b32 s48, 0")
        a.label(lp)
        a("s_mov_b32 s49, 0")
        for i in range(8):
            ls_ = a.uid("L_o_sk")
            a(f"v_cmp_eq_u32 vcc, -1, v{OFR+4*i}")
            a(f"s_cbranch_vccz {ls_}")
            a(f"buffer_load_dwordx4 {vr(OFR+4*i,4)}, v1, s[{SWS}:{SWS+3}], s{50 + (i >> 2)} offen offset:{(i&3)*1024} sc1")
            a("s_mov_b32 s49, 1")
            a.label(ls_)
        a("s_cmp_eq_u32 s49, 0"); a(f"s_cbranch_scc1 {lok}")
        a("s_add_u32 s48, s48, 1")
        a("s_waitcnt vmcnt(0)")
        a("s_cmp_lt_u32 s48, 0x100000"); a(f"s_cbranch_scc1 {lp}")
        a.label(lok)
    else:
        tag_check(a, [OFR + 4 * i for i in range(8)], lr)
        a(f"s_branch {lok}")
        a.label(lr)
        a("s_mov_b32 s48, 0")
        a.label(lp)
        oloads()
        a("s_add_u32 s48, s48, 1")
        a("s_waitcnt vmcnt(0)")
        a("s_cmp_ge_u32 s48, 0x100000"); a(f"s_cbranch_scc1 {lok}")
        tag_check(a, [OFR + 4 * i for i in range(8)], lp)
        a.label(lok)
    stamp(a, 4)
    if "early_after_o" in opt.flags:
        for j in range(5): w2.dma(a, j)
    if opt.exp == "earlybias": biases()
    for i in range(8):
        if ostep:
            a(f"s_waitcnt vmcnt({7 - i + 12})")
            lr_, lb_ = a.uid("L_os_r"), a.uid("L_os_b")
            a(f"v_cmp_eq_u32 vcc, -1, v{OFR+4*i}"); a(f"s_cbranch_vccnz {lr_}")
            a.label(lb_)
            o_retries.append((lr_, lb_, i))
        if i + 3 < 8: rd(i + 3); a("s_waitcnt lgkmcnt(12)")
        else: a(f"s_waitcnt lgkmcnt({(7 - i) * 4})")
        for ct in range(2): mfma(a, ACC + 16 * ct, AF + 8 * (i & 3) + 4 * ct, OFR + 4 * i)
    if ostep: a("s_waitcnt vmcnt(10)")
    a("s_nop 7"); a("s_nop 3")
    if opt.exp == "p3steps": stamp(a, 1, force=True)
    reduce_scatter(a, ACC, s_tt, s_kq, 46, 8, 0, sub_shift=16)
    if opt.exp == "p3steps": stamp(a, 2, force=True)
    H = 8
    for j in range(4):
        a(f"v_lshlrev_b32 v{H+2*j}, 16, v{XR+j}"); a(f"v_and_b32 v{H+2*j+1}, 0xffff0000, v{XR+j}")
    for i in range(8): a(f"v_add_f32 v{H+i}, v{H+i}, v{ACC+i}")
    for j in range(4): a(f"v_cvt_pk_bf16_f32 v{HP+j}, v{H+2*j}, v{H+2*j+1}")
    for j in range(4):
        a(f"v_lshlrev_b32 v{H+2*j}, 16, v{HP+j}"); a(f"v_and_b32 v{H+2*j+1}, 0xffff0000, v{HP+j}")
    a(f"v_add_f32 v20, v{H}, v{H+1}"); a(f"v_mul_f32 v21, v{H}, v{H}"); a(f"v_fmac_f32 v21, v{H+1}, v{H+1}")
    for i in range(2, 8):
        a(f"v_add_f32 v20, v20, v{H+i}"); a(f"v_fmac_f32 v21, v{H+i}, v{H+i}")
    a("v_mov_b32 v22, v20"); a("v_mov_b32 v23, v21"); a("s_nop 1")
    a("v_permlane32_swap_b32 v20, v22"); a("v_permlane32_swap_b32 v21, v23"); a("s_nop 1")
    a("v_add_f32 v20, v20, v22"); a("v_add_f32 v21, v21, v23")
    ST = 32768
    a("v_and_b32 v46, 31, v0"); a(f"s_lshl_b32 s46, s{s_tt}, 5"); a("v_add_u32 v46, s46, v46"); a("v_lshlrev_b32 v24, 3, v46")
    a(f"s_lshl_b32 s46, s{s_kq}, 9"); a(f"s_add_u32 s46, s46, {ST}"); a("v_add_u32 v47, s46, v24")
    a("v_cmp_gt_u32 vcc, 32, v0"); a("s_and_saveexec_b64 s[52:53], vcc")
    a("ds_write_b64 v47, v[20:21]")
    a("s_mov_b64 exec, s[52:53]")
    a("s_waitcnt lgkmcnt(0)"); a("s_barrier")
    if opt.exp == "p3steps": stamp(a, 13, force=True)
    lx, lx0, lx1 = a.uid("L_p3_x"), a.uid("L_p3_x0"), a.uid("L_p3_x1")
    a(f"s_lshl_b32 s46, s{s_tb}, 12"); a(f"s_add_u32 s46, s46, {XCH}"); a(f"s_lshl_b32 s47, s{s_cb}, 9"); a("s_add_u32 s47, s47, s46")
    a("v_lshlrev_b32 v48, 3, v0")
    def publish():
        a(f"v_add_u32 v49, {ST}, v48")
        for q in range(4): a(f"ds_read_b64 {vr(26+2*q,2)}, v49 offset:{q*512}")
        a("s_waitcnt lgkmcnt(0)")
        a("v_add_f32 v26, v26, v28"); a("v_add_f32 v27, v27, v29"); a("v_add_f32 v30, v30, v32"); a("v_add_f32 v31, v31, v33")
        a("v_add_f32 v26, v26, v30"); a("v_add_f32 v27, v27, v31")
        a("v_min_u32 v26, 0xfffffffe, v26"); a("v_min_u32 v27, 0xfffffffe, v27")
        jitter(a, 3)
        a(f"buffer_store_dwordx2 v[26:27], v48, s[{SWS}:{SWS+3}], s47 offen sc1")
    a("s_cmp_eq_u32 s3, 0"); a(f"s_cbranch_scc1 {lx0}")
    if "xack" not in opt.flags:
        a("s_cmp_lg_u32 s3, 1"); a(f"s_cbranch_scc1 {lx1}")
        publish()
    a.label(lx1)
    if "pubbar" in opt.flags: a("s_barrier")
    if "middma_early" in opt.flags:
        for j in range(5, 9): w2.dma(a, j)
    a(f"s_branch {lx}")
    a.label(lx0)
    if "pubbar" in opt.flags: a("s_barrier")
    if "xack" in opt.flags:
        publish()
        a("s_waitcnt vmcnt(0)")
    lp, lpd, lr = a.uid("L_p3_poll"), a.uid("L_p3_pd"), a.uid("L_p3_r")
    a("s_mov_b32 s48, 0")
    a.label(lp)
    for q in range(8): a(f"buffer_load_dwordx2 {vr(32+2*q,2)}, v48, s[{SWS}:{SWS+3}], s46 offen offset:{q*512} sc1")
    a("s_waitcnt vmcnt(0)")
    tag_check(a, list(range(32, 48)), lr)
    a(f"s_branch {lpd}")
    a.label(lr)
    if "xsleep" in opt.flags: a("s_sleep 3")
    a("s_add_u32 s48, s48, 1"); a("s_cmp_lt_u32 s48, 0x100000"); a(f"s_cbranch_scc1 {lp}")
    a.label(lpd)
    for q in range(1, 8):
        a(f"v_add_f32 v32, v32, v{32+2*q}"); a(f"v_add_f32 v33, v33, v{33+2*q}")
    a("v_mul_f32 v32, 0x3b000000, v32"); a("v_mul_f32 v33, 0x3b000000, v33")
    a("v_fma_f32 v33, -v32, v32, v33"); a("v_max_f32 v33, 0, v33")
    a("v_add_f32 v34, 0x3727c5ac, v33"); a("v_rsq_f32 v35, v34")
    a("s_nop 0")
    a("v_mul_f32 v36, v35, v35"); a("v_mul_f32 v36, v36, v33")
    a("v_add_f32 v36, 0x3727c5ac, v36"); a("v_rsq_f32 v36, v36")
    a("s_nop 0")
    a("v_mul_f32 v34, v35, v36"); a("v_mul_f32 v35, v32, v34"); a("v_sub_f32 v35, 0, v35")
    a(f"v_add_u32 v49, {ST + 2048}, v48")
    a("ds_write_b64 v49, v[34:35]")
    if "middma_early" in opt.flags:
        for j in range(5, 9): w2.dma(a, j)
    a("s_waitcnt lgkmcnt(0)")
    a.label(lx)
    a("s_barrier")
    stamp(a, 5)
    a(f"v_add_u32 v47, {ST + 2048}, v24")
    a("ds_read_b64 v[20:21], v47")
    a("s_waitcnt lgkmcnt(0)")
    for i in range(8): a(f"v_fma_f32 v{H+i}, v{H+i}, v20, v21")
    for j in range(4): a(f"v_cvt_pk_bf16_f32 v{16+j}, v{H+2*j}, v{H+2*j+1}")
    a("v_lshrrev_b32 v46, 3, v24")
    a("v_bfe_u32 v47, v46, 1, 1"); a("v_lshlrev_b32 v47, 2, v47")
    a(f"s_lshl_b32 s46, s{s_kq}, 1"); a("v_xor_b32 v47, s46, v47")
    a("v_lshlrev_b32 v47, 4, v47"); a("v_lshlrev_b32 v46, 7, v46"); a("v_add_u32 v46, v46, v47")
    a("v_lshrrev_b32 v47, 5, v0"); a("v_lshlrev_b32 v47, 3, v47"); a("v_add_u32 v46, v46, v47")
    a("ds_write_b64 v46, v[16:17] offset:36864"); a("ds_write_b64 v46, v[18:19] offset:36880")
    a(f"s_lshl_b32 s46, s{s_tt}, 2")
    tr_lane_addr(a, 48, 46, 47, 'perm', colunit_sreg=46)
    a(f"s_lshl_b32 s46, s{s_kq}, 11"); a("v_add_u32 v48, s46, v48")
    a("s_waitcnt lgkmcnt(0)"); a("s_barrier")
    a("ds_read_b64_tr_b16 v[24:25], v48 offset:36864"); a("ds_read_b64_tr_b16 v[26:27], v48 offset:37888")
    a("s_waitcnt lgkmcnt(0)")
    a("v_min_u32 v24, 0xfffffffe, v24")
    jitter(a, 4)
    a(f"buffer_store_dwordx4 v[24:27], v1, s[{SWS}:{SWS+3}], s{S_LFA} offen sc1")
    if "middma_early" not in opt.flags:
        a("s_barrier")
        for j in range(5, 9): w2.dma(a, j)

RING = 8
NR = 6
ACC = 64
def act_load(a, s_act, i, r):
    for dt in range(2):
        a(f"s_add_u32 s52, s{s_act[dt]}, {i*1024}")
        a(f"buffer_load_dwordx4 {vr(r+4*dt,4)}, v1, s[36:39], s52 offen sc1")

def probe(a, s_act, probe_steps, sleep=0):
    a("v_lshrrev_b32 v2, 1, v0"); a(f"v_mov_b32 v3, {probe_steps[0]}")
    for n in range(1, 4):
        a(f"v_cmp_eq_u32 vcc, {n}, v2"); a(f"v_mov_b32 v8, {probe_steps[n]}"); a("s_nop 0"); a("v_cndmask_b32 v3, v3, v8, vcc")
    a("v_lshlrev_b32 v3, 10, v3"); a("v_add_u32 v3, 1008, v3")
    a("v_and_b32 v2, 1, v0"); a(f"s_sub_u32 s52, s{s_act[1]}, s{s_act[0]}"); a("v_mul_lo_u32 v2, v2, s52"); a("v_add_u32 v3, v3, v2")
    a("s_mov_b32 s53, 0")
    a("v_cmp_gt_u32 vcc, 8, v0"); a("s_and_saveexec_b64 s[62:63], vcc")
    lp, lx = a.uid("L_probe"), a.uid("L_px")
    a.label(lp)
    a(f"buffer_load_dword v8, v3, s[36:39], s{s_act[0]} offen sc1")
    a("s_add_u32 s53, s53, 1")
    a("s_waitcnt vmcnt(0)")
    a("v_cmp_eq_u32 vcc, -1, v8")
    a(f"s_cbranch_vccz {lx}")
    if sleep: a(f"s_sleep {sleep}")
    a("s_cmp_lt_u32 s53, 0x100000"); a(f"s_cbranch_scc1 {lp}")
    a.label(lx)
    a("s_mov_b64 exec, s[62:63]")

def gemm8(a, vq, nks, s_act, act_is_B, retries, probe_steps, free, wreg, frees_w, after_step=None, after_fill=None):
    dpoll = "dpoll" in opt.flags
    if dpoll and "ackwait" in opt.flags:
        a(f"s_waitcnt vmcnt({0 if (nks == 16 or opt.exp == 'w2late') else 10})")
    ackonly = "ackonly" in opt.flags or (f"ackonly{nks}" in opt.flags)
    if not dpoll: probe(a, s_act, probe_steps)
    else: a("s_nop 0")
    if not dpoll or ackonly: vq.q = []
    if (opt.exp == "p4steps" and nks == 16) or (opt.exp == "p5steps" and nks == 14): stamp(a, 1, force=True)
    if opt.exp == "probes": stamp(a, 1 if nks == 16 else 13, force=True)
    free = list(free); blk = {}; nxt = [0]
    def fill():
        while free and nxt[0] < nks:
            i = nxt[0]; blk[i] = free.pop(0); act_load(a, s_act, i, blk[i]); vq.issue(f"act{i}", 2); nxt[0] += 1
    fill()
    if after_fill: after_fill()
    for i in range(64): a(f"v_mov_b32 v{ACC+i}, 0")
    if dpoll and not ackonly:
        lp, lok = a.uid("L_dp"), a.uid("L_dpok")
        a("s_mov_b32 s53, 0")
        lfirst = a.uid("L_dp1")
        if opt.exp == "w2late" and nks == 14:
            a("s_waitcnt vmcnt(10)"); a(f"s_branch {lfirst}")
        a.label(lp)
        a("s_waitcnt vmcnt(0)")
        a.label(lfirst)
        a("s_mov_b32 s49, 0")
        for i in range(nxt[0]):
            for dt in range(2):
                ls_ = a.uid("L_dsk")
                a(f"v_cmp_eq_u32 vcc, -1, v{blk[i] + 4*dt}")
                a(f"s_cbranch_vccz {ls_}")
                a(f"s_add_u32 s52, s{s_act[dt]}, {i*1024}")
                a(f"buffer_load_dwordx4 {vr(blk[i]+4*dt,4)}, v1, s[36:39], s52 offen sc1")
                a("s_mov_b32 s49, 1")
                a.label(ls_)
        a("s_add_u32 s53, s53, 1")
        a("s_cmp_eq_u32 s49, 0"); a(f"s_cbranch_scc1 {lok}")
        a("s_cmp_lt_u32 s53, 0x100000"); a(f"s_cbranch_scc1 {lp}")
        a("s_waitcnt vmcnt(0)")
        a.label(lok)
        if opt.exp == "w2late" and nks == 14: vq.q = [t for t in vq.q if t.startswith("w2_")]
        else: vq.q = []
    for i in range(nks):
        r = blk[i]
        vq.wait(a, f"act{i}")
        lr, lb = a.uid("L_retry"), a.uid("L_back")
        if i == 0 and "inline0" in opt.flags:
            lp0, lok0 = a.uid("L_i0"), a.uid("L_i0ok")
            a("s_mov_b32 s53, 0")
            a.label(lp0)
            a(f"v_cmp_eq_u32 vcc, -1, v{r}"); a(f"v_cmp_eq_u32 s[62:63], -1, v{r+4}"); a("s_or_b64 vcc, vcc, s[62:63]")
            a(f"s_cbranch_vccz {lok0}")
            for k in range(nxt[0]): act_load(a, s_act, k, blk[k])
            a("s_add_u32 s53, s53, 1")
            a("s_waitcnt vmcnt(0)")
            a("s_cmp_lt_u32 s53, 0x100000"); a(f"s_cbranch_scc1 {lp0}")
            a.label(lok0)
        elif opt.exp != "notag": tag_check(a, [r, r + 4], lr)
        a.label(lb)
        depth = 6 if "retry_sel" in opt.flags else 4
        retries.append((lr, lb, [(k, blk[k]) for k in range(i, min(i + depth, nxt[0]))], s_act))
        W0 = wreg(i)
        for sub in range(2):
            for dt in range(2):
                W, A_ = W0 + 4 * sub, r + 4 * dt
                if opt.exp == "nomfma": continue
                if act_is_B: mfma(a, ACC + 16 * (2 * dt + sub), W, A_)
                else: mfma(a, ACC + 16 * (2 * dt + sub), A_, W)
        if opt.exp == "p4steps" and nks == 16 and i in (0, 1, 3, 5, 7, 9, 11, 13): stamp(a, {0: 2, 1: 3, 3: 4, 5: 5, 7: 9, 9: 10, 11: 11, 13: 12}[i], force=True)
        if opt.exp == "p5steps" and nks == 14 and i in (0, 1, 3, 5, 7, 9, 11, 13): stamp(a, {0: 2, 1: 3, 3: 4, 5: 5, 7: 6, 9: 10, 11: 11, 13: 7}[i], force=True)
        free.append(r)
        if frees_w: free.append(W0)
        if after_step: after_step(i, free)
        fill()
    a("s_nop 7"); a("s_nop 3")

def emit_o_retries(a):
    for lr, lb, i in o_retries:
        lp = a.uid("L_os_p")
        a.label(lr)
        a("s_mov_b32 s48, 0")
        a.label(lp)
        for k in range(i, 8):
            ls_ = a.uid("L_os_k")
            if k > i:
                a(f"v_cmp_eq_u32 vcc, -1, v{8+4*k}"); a(f"s_cbranch_vccz {ls_}")
            a(f"buffer_load_dwordx4 {vr(8+4*k,4)}, v1, s[36:39], s{50 + (k >> 2)} offen offset:{(k&3)*1024} sc1")
            a.label(ls_)
        a("s_add_u32 s48, s48, 1")
        a("s_waitcnt vmcnt(0)")
        a("s_cmp_ge_u32 s48, 0x100000"); a(f"s_cbranch_scc1 {lb}")
        a(f"v_cmp_eq_u32 vcc, -1, v{8+4*i}"); a(f"s_cbranch_vccnz {lp}")
        a(f"s_branch {lb}")

def emit_retries(a, retries):
    for lr, lb, steps, s_act in retries:
        lp = a.uid("L_rp")
        r = steps[0][1]
        a.label(lr)
        a("s_mov_b32 s53, 0")
        a.label(lp)
        if "retry_sel" in opt.flags:
            for n_, (k, rk) in enumerate(steps):
                for dt in range(2):
                    ls_ = a.uid("L_rs")
                    if n_ > 0:
                        a(f"v_cmp_eq_u32 vcc, -1, v{rk + 4*dt}"); a(f"s_cbranch_vccz {ls_}")
                    a(f"s_add_u32 s52, s{s_act[dt]}, {k*1024}")
                    a(f"buffer_load_dwordx4 {vr(rk+4*dt,4)}, v1, s[36:39], s52 offen sc1")
                    a.label(ls_)
        else:
            for k, rk in steps: act_load(a, s_act, k, rk)
        a("s_add_u32 s53, s53, 1")
        a("s_waitcnt vmcnt(0)")
        a("s_cmp_ge_u32 s53, 0x100000"); a(f"s_cbranch_scc1 {lb}")
        tag_check(a, [r, r + 4], lp)
        a(f"s_branch {lb}")

RING_BLOCKS = [8 + 8 * i for i in range(6)]
def reduce8(a, w2, tail_barrier):
    a(f"v_add_u32 v2, s{w2.SE}, v1"); a(f"v_add_u32 v3, s{w2.SM}, v1")
    a("s_waitcnt lgkmcnt(0)")
    for p in range(8):
        sub, half, dt = p & 1, (p >> 1) & 1, p >> 2
        for q in range(2):
            r = ACC + 16 * (2 * dt + sub) + 8 * half + 4 * q
            a(f"ds_write_b128 v{2 + (p >> 2)}, {vr(r,4)} offset:{(p & 3)*2048 + q*1024}")
    a("s_and_b32 s46, s3, 3"); a("s_lshl_b32 s46, s46, 11")
    a("s_mov_b32 s48, 65536"); a("s_cmp_lt_u32 s3, 4"); a("s_cselect_b32 s47, 98304, 0"); a("s_cselect_b32 s48, 32768, s48")
    a("s_add_u32 s46, s46, s47"); a("v_add_u32 v2, s46, v1"); a("v_add_u32 v3, s48, v2")
    a("s_waitcnt lgkmcnt(0)"); a("s_barrier")
    for src in range(8):
        for q in range(2):
            a(f"ds_read_b128 {vr(ACC + 8*src + 4*q, 4)}, v{2 + (src >> 2)} offset:{(src & 3)*8192 + q*1024}")
    for lvl, (wait, pairs) in enumerate(((12, [(0, 1)]), (8, [(2, 3)]), (4, [(4, 5)]), (0, [(6, 7)]))):
        a(f"s_waitcnt lgkmcnt({wait})")
        for x, y in pairs:
            for i in range(8): a(f"v_add_f32 v{ACC+8*x+i}, v{ACC+8*x+i}, v{ACC+8*y+i}")
        if lvl == 3 and tail_barrier: a("s_barrier")
    for x, y in ((0, 2), (4, 6), (0, 4)):
        for i in range(8): a(f"v_add_f32 v{ACC+8*x+i}, v{ACC+8*x+i}, v{ACC+8*y+i}")

def phase4v2(a, retries, w2):
    s_db = 26
    SB, SW2 = 32, 28
    a("s_and_b32 s46, s2, 7"); a("s_lshr_b32 s47, s2, 3")
    a("s_and_b32 s48, s46, 1"); a("s_lshl_b32 s48, s48, 2"); a("s_and_b32 s49, s47, 3"); a(f"s_add_u32 s{s_db}, s48, s49")
    srd(a, SB, P_B1, 1792 * 2)
    vq = VMQ(); w2.vq = vq
    def load_b1():
        a("s_and_b32 s46, s3, 1"); a("s_lshl_b32 s46, s46, 6"); a("s_bfe_u32 s47, s3, 0x10001"); a("s_lshl_b32 s47, s47, 5")
        a("s_add_u32 s46, s46, s47"); a(f"s_add_u32 s46, s46, s{S_FB128}")
        a("v_lshrrev_b32 v2, 5, v0"); a("v_lshlrev_b32 v2, 3, v2")
        a(f"buffer_load_dwordx2 v[56:57], v2, s[{SB}:{SB+3}], s46 offen"); a(f"buffer_load_dwordx2 v[58:59], v2, s[{SB}:{SB+3}], s46 offen offset:16")
        vq.issue("bias", 2)
    if opt.exp != "earlybias" and "biasloop" not in opt.flags: load_b1()
    a(f"s_lshl_b32 s46, s{s_db}, 18"); a("s_lshl_b32 s47, s3, 14"); a("s_add_u32 s46, s46, s47")
    a(f"s_add_u32 s54, s46, {LF}"); a(f"s_add_u32 s56, s46, {LF + 128*1024}")
    ldup, ljoin = a.uid("L_p4_idle"), a.uid("L_p4_join")
    if "skipdup" in opt.flags:
        a(f"s_cmp_eq_u32 s{S_STU}, 0"); a(f"s_cbranch_scc1 {ldup}")
    def after4(i, free):
        if i == 5 and "biasloop" in opt.flags: load_b1()
        j = i if 5 <= i <= 8 and i != 7 else None
        if j is not None: free.remove(WREG + 8 * j); w2.read(a, j)
        if i == 7: free.remove(WREG + 8 * 7); w2.read(a, 7)
        if i in (7, 9, 11, 13, 15):
            j = (i - 7) // 2; free.remove(WREG + 8 * j); w2.read(a, j)
    phases.cfg.fake16 = 'fake45' in opt.flags
    gemm8(a, vq, 16, (54, 56), True, retries, (3, 7, 11, 15), RING_BLOCKS, lambda i: WREG + 8 * i, True, after4)
    stamp(a, 7)
    reduce8(a, w2, True)
    vq.wait(a, "bias")
    for j in range(4):
        a(f"v_lshlrev_b32 v{16+2*j}, 16, v{56+j}"); a(f"v_and_b32 v{17+2*j}, 0xffff0000, v{56+j}")
    for i in range(8): a(f"v_add_f32 v{ACC+i}, v{ACC+i}, v{16+i}")
    a("s_mov_b32 s46, 0xc0135761")
    a("s_mov_b32 s47, 0xbdd2d3e8")
    a("v_mov_b32 v24, s46")
    for i in range(8): a(f"v_mul_f32 v{16+i}, v{ACC+i}, v{ACC+i}")
    for i in range(8): a(f"v_fma_f32 v{16+i}, v{16+i}, s47, v24")
    for i in range(8): a(f"v_mul_f32 v{16+i}, v{16+i}, v{ACC+i}")
    for i in range(8): a(f"v_exp_f32 v{16+i}, v{16+i}")
    for i in range(8): a(f"v_add_f32 v{16+i}, 1.0, v{16+i}")
    for i in range(8): a(f"v_rcp_f32 v{16+i}, v{16+i}")
    for i in range(8): a(f"v_mul_f32 v{16+i}, v{16+i}, v{ACC+i}")
    for j in range(4): a(f"v_cvt_pk_bf16_f32 v{28+j}, v{16+2*j}, v{17+2*j}")
    a("v_min_u32 v28, 0xfffffffe, v28")
    jitter(a, 5)
    l = a.uid("L_nostu")
    a(f"s_cmp_eq_u32 s{S_STU}, 0"); a(f"s_cbranch_scc1 {l}")
    a(f"buffer_store_dwordx4 v[28:31], v1, s[36:39], s{S_UFA} offen sc1")
    a.label(l)
    if "skipdup" in opt.flags:
        def idle_path():
            a.label(ldup)
            a("s_waitcnt vmcnt(0)")
            for j in range(9):
                if j % 3 == 0 and j: a("s_waitcnt lgkmcnt(0)")
                w2.read(a, j)
            a("s_waitcnt lgkmcnt(0)")
        if "ool" in opt.flags:
            def ool(): idle_path(); a(f"s_branch {ljoin}")
            DEFER.append(ool)
        else:
            a(f"s_branch {ljoin}")
            idle_path()
        a.label(ljoin)
    if opt.exp != "w2late":
        w2.vq = None
        if "ubar" in opt.flags: a("s_barrier")
        for j in range(9, 14): w2.dma(a, j)

def phase5v2(a, retries, w2):
    s_db, s_sb = 26, 27
    SB, SO = 32, 40
    a("; ---- P5: out = h + (u w2 + b2)^T")
    a("s_and_b32 s46, s2, 7"); a("s_lshr_b32 s47, s2, 3")
    a("s_lshl_b32 s48, s46, 2"); a("s_lshr_b32 s49, s47, 3"); a(f"s_add_u32 s{s_sb}, s48, s49"); a(f"s_and_b32 s{s_db}, s47, 7")
    srd(a, SB, P_B2, 2048 * 2); srd(a, SO, P_OUT, 2048 * 512 * 2)
    vq = VMQ(); vq.issue("ustore")
    a(f"s_lshl_b32 s46, s{s_sb}, 6"); a("s_and_b32 s47, s3, 1"); a("s_lshl_b32 s47, s47, 5"); a("s_add_u32 s46, s46, s47")
    a("v_and_b32 v2, 31, v0"); a("v_add_u32 v57, s46, v2")
    def load_b2():
        a("v_lshlrev_b32 v2, 1, v57")
        a(f"buffer_load_ushort v63, v2, s[{SB}:{SB+3}], 0 offen"); vq.issue("b2")
    if opt.exp != "earlybias" and "biasloop" not in opt.flags: load_b2()
    a(f"s_mul_i32 s46, s{s_db}, {2*112*1024}"); a(f"s_mul_i32 s47, s3, {14*1024}"); a("s_add_u32 s46, s46, s47")
    a(f"s_add_u32 s54, s46, {UF}"); a(f"s_add_u32 s56, s46, {UF + 112*1024}")
    if "idleprobe" in opt.flags and "skipdup" in opt.flags:
        lq_ = a.uid("L_p5_busy")
        a(f"s_cmp_lg_u32 s{S_STU}, 0"); a(f"s_cbranch_scc1 {lq_}")
        if "idle1" in opt.flags:
            lw_ = a.uid("L_p5_w")
            a("s_cmp_lg_u32 s3, 7"); a(f"s_cbranch_scc1 {lw_}")
            probe(a, (54, 56), (1, 5, 9, 13), 8 if "idlesleep" in opt.flags else 0)
            a.label(lw_)
            a("s_barrier")
        else:
            probe(a, (54, 56), (1, 5, 9, 13))
        a.label(lq_)
    wblk = {j: WREG + 8 * j for j in range(9)}
    spare = [WREG + 8 * j for j in range(9, 16)]
    def rest_of_w2():
        if opt.exp != "w2late": return
        w2.vq = vq
        for j in range(9, 14): w2.dma(a, j)
    def after5(i, free):
        if i == 3 and "biasloop" in opt.flags: load_b2()
        if i <= 1: free += [spare.pop(0), spare.pop(0)]
        if i == 2: free.append(spare.pop(0))
        if i == 6:
            vq.wait(a, "w2_13")
            for j in (9, 10): wblk[j] = spare.pop(0); w2.read(a, j, wblk[j])
        if i == 7:
            for j in (11, 12): wblk[j] = free.pop(0); w2.read(a, j, wblk[j])
        if i == 8:
            wblk[13] = free.pop(0); a("s_waitcnt lgkmcnt(8)"); w2.read(a, 13, wblk[13]); a("s_waitcnt lgkmcnt(4)")
        if i == 11: a("s_waitcnt lgkmcnt(0)")
    gemm8(a, vq, 14, (54, 56), False, retries, (1, 5, 9, 13), RING_BLOCKS, lambda i: wblk[i], False, after5, rest_of_w2)
    phases.cfg.fake16 = False
    stamp(a, 9)
    reduce8(a, w2, False)
    vq.wait(a, "b2")
    a("v_lshlrev_b32 v56, 16, v63")
    for j in range(4):
        a(f"v_lshlrev_b32 v{20+2*j}, 16, v{HP+j}"); a(f"v_and_b32 v{21+2*j}, 0xffff0000, v{HP+j}")
    for i in range(8): a(f"v_add_f32 v{ACC+i}, v{ACC+i}, v56")
    for i in range(8): a(f"v_add_f32 v{ACC+i}, v{ACC+i}, v{20+i}")
    for j in range(4): a(f"v_cvt_pk_bf16_f32 v{28+j}, v{ACC+2*j}, v{ACC+2*j+1}")
    a("s_nop 1")
    a("v_permlane32_swap_b32 v28, v30"); a("v_permlane32_swap_b32 v29, v31")
    a("v_lshlrev_b32 v57, 10, v57"); a("v_lshrrev_b32 v2, 5, v0"); a("v_lshlrev_b32 v2, 4, v2"); a("v_add_u32 v57, v57, v2")
    a(f"s_lshl_b32 s46, s{s_db}, 7"); a("s_lshr_b32 s47, s3, 1"); a("s_lshl_b32 s47, s47, 5"); a("s_add_u32 s46, s46, s47")
    a(f"buffer_store_dwordx4 v[28:31], v57, s[{SO}:{SO+3}], s46 offen{opt.outflags}")

DOC = """; ---------------------------------------------------------------------------------------------------------------
;      Hand-off: counters in d_ws (zeroed by workgroup 0, announced through d_debug word 63), one per head group.
;      Under the loop: w1 fragments move into registers, the Wo slice into dead K/V space, hand-off markers are reset.
;  Hand-offs after P2 carry their own validity: the producer first resets its fragments to an all-ones marker (counted on a
; ---------------------------------------------------------------------------------------------------------------
"""

opt.outflags = ""
opt.p1stamps = False
opt.exp = None
opt.stamp_wave = 0
opt.flags = {'off', 'prio', 'dpoll', 'skipdup', 'ubar', 'middma_early', 'ackwait', 'idleprobe', 'idle1', 'ackonly16', 'ackonly14', 'ostep', 'inline0', 'ool'}
def build():
    del o_retries[:]; del DEFER[:]
    phases.cfg.persist = True; phases.cfg.tags = True
    a = Asm()
    a.label(KNAME)
    end = "L_end"
    if opt.stamps: a("s_memrealtime s[74:75]")
    prologue(a, 256, end)
    if opt.stamps:
        for i in range(1, 16): a(f"s_mov_b32 s{STAMP0+i}, 0")
        a(f"s_mov_b32 s{STAMP0}, s74")
    if opt.diag == "pad100":
        a("s_memrealtime s[90:91]"); a("s_waitcnt lgkmcnt(0)")
    if "xearly" in opt.flags: p1_xloads(a, {})
    srd(a, SB_WS, P_WS, WS_SIZE); srd(a, 76, P_DBG, 256)
    a("v_mov_b32 v248, 252"); a("v_mov_b32 v247, 0")
    if opt.codepf:
        a("s_getpc_b64 s[62:63]")
        a.label("L_pcbase")
        if "codepf2" in opt.flags: a("s_mov_b64 s[66:67], s[62:63]")
        if "cpf_dedup" in opt.flags:
            lc = a.uid("L_cpf")
            a("s_cmp_lg_u32 s3, 6"); a(f"s_cbranch_scc1 {lc}")
            a("s_lshr_b32 s60, s2, 3"); a("s_lshl_b32 s60, s60, 11"); a("v_and_b32 v6, 15, v0"); a("v_lshlrev_b32 v6, 7, v6"); a("v_add_u32 v6, s60, v6")
            a("s_mov_b32 s61, L_codeend-L_pcbase"); a("v_min_u32 v6, s61, v6")
            a("global_load_dword v249, v6, s[62:63]")
            a.label(lc)
        else:
            a("s_lshl_b32 s60, s3, 13"); a("v_lshlrev_b32 v6, 7, v0"); a("v_add_u32 v6, s60, v6")
            a("s_mov_b32 s61, L_codeend-L_pcbase"); a("v_min_u32 v6, s61, v6")
            a("global_load_dword v249, v6, s[62:63]")
    lz = a.uid("L_zero")
    a("s_cmp_lg_u32 s2, 0"); a(f"s_cbranch_scc1 {lz}")
    a("s_cmp_lg_u32 s3, 7"); a(f"s_cbranch_scc1 {lz}")
    a("v_lshlrev_b32 v6, 8, v0"); a("v_mov_b32 v7, 0")
    a("v_cmp_gt_u32 vcc, 16, v0"); a("s_and_saveexec_b64 s[62:63], vcc")
    a(f"s_mov_b32 s60, {CNT}")
    a(f"buffer_store_dword v7, v6, s[{SB_WS}:{SB_WS+3}], s60 offen sc1")
    a("s_mov_b64 exec, s[62:63]")
    a.label(lz)
    map_addresses(a)
    phases.cfg.fake16 = 'fake1' in opt.flags
    phase1(a, {**({"after_dma": markers_p1} if opt.exp == "mk_p1" else {}), ("post_c0" if "xearly" in opt.flags else "post_x"): zero_flag_store, "pre_store": zero_flag_load, "no_clear": True, "xfirst": True, "wtouch": opt.touch, "late_issue": True, "x_issued": "xearly" in opt.flags, **({"cyc0": lambda a: (stamp(a, 10, force=True), stamp(a, 14, True, force=True)), "cyc1": lambda a: (stamp(a, 15, True, force=True), stamp(a, 11, force=True))} if "p1cyc" in opt.flags else {}), "pipe_ln": opt.exp == "pipeln", **({"st": (lambda a, i: stamp(a, i, force=True))} if opt.p1stamps else {})})
    phases.cfg.fake16 = False
    stamp(a, 1)
    l, lp = a.uid("L_zc"), a.uid("L_zp")
    a("s_cmp_lg_u32 s3, 0"); a(f"s_cbranch_scc1 {l}")
    a("s_mov_b32 s61, 0")
    a.label(lp)
    a("s_waitcnt vmcnt(0)")
    a("v_readfirstlane_b32 s64, v247"); a("s_add_u32 s61, s61, 1")
    a("s_cmp_lg_u32 s64, 0"); a(f"s_cbranch_scc1 {l}")
    a("buffer_load_dword v247, v248, s[76:79], 0 offen sc1")
    a("s_cmp_lt_u32 s61, 0x200000"); a(f"s_cbranch_scc1 {lp}")
    a.label(l)
    jitter(a, 1)
    gp.arrive(a, 0, 27, 13)
    vq = VMQ(); pf = W1Pref()
    def dep2(a):
        pf.setup(a)
        if "w2t_pre" in opt.flags and opt.touch:
            lt_ = a.uid("L_w2t")
            a("s_cmp_eq_u32 s3, 0"); a(f"s_cbranch_scc1 {lt_}")
            a("buffer_load_dword v97, v96, s[32:35], 0 offen")
            a.label(lt_)
        if "codepf2" in opt.flags:
            a("s_lshl_b32 s60, s3, 13"); a("s_add_u32 s60, s60, L_att_code-L_pcbase"); a("v_lshlrev_b32 v6, 7, v0"); a("v_add_u32 v6, s60, v6")
            a("s_mov_b32 s61, L_p3_code-L_pcbase"); a("v_min_u32 v6, s61, v6")
            a("global_load_dword v125, v6, s[66:67]")
        if "preb1" in opt.flags:
            vq.issue("markers", markers(a))
            if opt.touch: a("buffer_load_dword v97, v96, s[32:35], 0 offen"); vq.issue("touch")
            for j in range(4):
                dma(a, pf.VD if j == 0 else 116 + j, 28, 60, (59, 0) if j == 0 else None, offset=j * 1024, pre="s_mov_b32 s60, 0" if j == 0 else None)
            vq.issue("w1_0", 4)
        a("s_and_b32 s65, s2, 7")
        gp.make_wait(0, 65, 32, 2)(a)
    deferred = []
    phase2(a, {"dep": dep2, "vq": vq, "tile": pf.tile(vq), **({"defer": deferred} if "ool" in opt.flags else {}), **({"looped": pf.looped(vq)} if "loop" in opt.flags else {}), "pre_ostore": lambda a: jitter(a, 2),
               **({} if "p1cyc" in opt.flags else {"loop_start": lambda a: (a.label("L_att_code"), stamp(a, 10), stamp(a, 14, True)), "loop_end": lambda a: (stamp(a, 15, True), stamp(a, 11))})})
    stamp(a, 3)
    a.label("L_p3_code")
    late_check(a)
    retries = []
    w2 = W2Stage()
    phase3v2(a, w2)
    stamp(a, 6)
    phase4v2(a, retries, w2)
    stamp(a, 8)
    phase5v2(a, retries, w2)
    if opt.stamps:
        a("s_waitcnt vmcnt(0)")
        stamp(a, 12)
        ls = a.uid("L_st")
        a("s_lshl_b32 s61, s2, 3"); a("s_add_u32 s61, s61, s3"); a("s_lshl_b32 s61, s61, 6"); a("s_add_u32 s61, s61, 0xF00000"); a("v_mov_b32 v3, 0")
        for i in range(16):
            a(f"v_mov_b32 v2, s{STAMP0+i}")
            a(f"buffer_store_dword v2, v3, s[{SB_WS}:{SB_WS+3}], s61 offen offset:{4*i}")
        a(f"s_cmp_lg_u32 s2, {opt.stamp_wg}"); a(f"s_cbranch_scc1 {ls}"); a(f"s_cmp_lg_u32 s3, {opt.stamp_wave}"); a(f"s_cbranch_scc1 {ls}")
        for i in range(14):
            a(f"s_sub_u32 s60, s{STAMP0+i}, s74"); a(f"v_mov_b32 v2, s60"); a(f"v_mov_b32 v3, {4*i}")
            a("buffer_store_dword v2, v3, s[76:79], 0 offen")
        a.label(ls)
    if opt.diag == "pad100":
        a.label("L_dg"); a("s_memrealtime s[92:93]"); a("s_waitcnt lgkmcnt(0)"); a("s_sub_u32 s92, s92, s90"); a("s_cmp_lt_u32 s92, 10000"); a("s_cbranch_scc1 L_dg")
    a("s_endpgm")
    for f in deferred + DEFER: f()
    emit_retries(a, retries)
    emit_o_retries(a)
    a.label(end)
    a.label("L_codeend")
    a("s_endpgm")
    body = a.text()
    probs = check_hazards(body)
    for p in probs: print(p, file=sys.stderr)
    desc = f""".amdhsa_kernel {KNAME}
  .amdhsa_next_free_vgpr 256
  .amdhsa_next_free_sgpr 102
  .amdhsa_accum_offset 256
  .amdhsa_group_segment_fixed_size 0
  .amdhsa_kernarg_size 88
  .amdhsa_user_sgpr_count 2
  .amdhsa_user_sgpr_kernarg_segment_ptr 1
  .amdhsa_system_sgpr_workgroup_id_x 1
  .amdhsa_float_denorm_mode_32 3
.end_amdhsa_kernel
"""
    return (HEADER + "; @launch grid=(256,1,1) block=(512,1,1) lds=163840\n" + DOC
            + '.amdgcn_target "amdgcn-amd-amdhsa--gfx950"\n.text\n'
            + f".globl {KNAME}\n.p2align 8\n.type {KNAME},@function\n" + body
            + '.section .rodata,"a"\n.p2align 6\n' + desc)

if __name__ == "__main__":
    import argparse
    ap = argparse.ArgumentParser()
    ap.add_argument("-o", default=f"cdna_kernels/{NAME}.s")
    ap.add_argument("--stamps", action="store_true")
    ap.add_argument("--no-touch", action="store_true")
    ap.add_argument("--no-codepf", action="store_true")
    ap.add_argument("--diag", default=None)
    ap.add_argument("--outflags", default="")
    ap.add_argument("--p1stamps", action="store_true")
    ap.add_argument("--exp", default=None)
    ap.add_argument("--endonly", action="store_true")
    ap.add_argument("--flags", default="off,prio,dpoll,skipdup,ubar,middma_early,ackwait,idleprobe,idle1,ackonly16,ackonly14,ostep,inline0,ool")
    ap.add_argument("--stamp-wg", type=int, default=0)
    ap.add_argument("--stamp-wave", type=int, default=0)
    args = ap.parse_args()
    opt.stamps = args.stamps; opt.touch = not args.no_touch; opt.codepf = not args.no_codepf; opt.diag = args.diag
    opt.endonly = args.endonly; opt.flags = set(args.flags.split(','))
    opt.stamp_wg = args.stamp_wg; opt.stamp_wave = args.stamp_wave
    opt.p1stamps = args.p1stamps; opt.exp = args.exp; phases.cfg.exp = args.exp; phases.cfg.prio = 'prio' in opt.flags; phases.cfg.kvstaged = 'kvstaged' in opt.flags; phases.cfg.ln4 = 'ln4' in opt.flags; phases.cfg.m12 = 'm12' in opt.flags or 'preb1' in opt.flags
    opt.outflags = (" " + args.outflags) if args.outflags else ""
    open(args.o, "w").write(build())
    print("wrote", args.o)
```
